```python
import torch

def _softmax(x, axis=-1):
    return torch.softmax(x, dim=axis)
def _gelu(x):
    return torch.nn.functional.gelu(x, approximate="tanh")
def _silu(x):
    return torch.nn.functional.silu(x)
def _sigmoid(x):
    return torch.sigmoid(x)
def _layernorm(x, axis=-1, eps=1e-5):
    m = x.mean(dim=axis, keepdim=True)
    v = x.var(dim=axis, keepdim=True, unbiased=False)
    return (x - m) / torch.sqrt(v + eps)
def _scatter_add(tgt, idx, src, axis=0):
    return tgt.clone().index_add_(axis, idx, src)
def _segment_sum(src, seg, n):
    out = torch.zeros((n,) + src.shape[1:], dtype=src.dtype)
    return out.index_add_(0, seg, src)
def _pad(x, pw):
    flat = tuple(v for pair in reversed(pw) for v in pair)
    return torch.nn.functional.pad(x, flat)

kernel_name = 'concat_heads__gqa_block_cached__mha_block_cached__near_ridge'

def setup_inputs():

    _w = (lambda a: (lambda t: t.to(torch.bfloat16) if t.is_floating_point() else t)(torch.as_tensor(a)))
    def _A_setup():
        B, Sq, D = 8, 32, 1024
        Hq, Hkv, Sk, Dh = 32, 4, 1024, 128
        assert Hq % Hkv == 0, (Hq, Hkv)
        return {
            "x": _w((lambda *s: torch.randn(*s, dtype=torch.bfloat16) * 0.8)(B, Sq, D)),
            "k_cache": _w((lambda *s: torch.randn(*s, dtype=torch.bfloat16) * 0.8)(B, Hkv, Sk, Dh)),
            "v_cache": _w((lambda *s: torch.randn(*s, dtype=torch.bfloat16) * 0.05)(B, Hkv, Sk, Dh)),
            "wq": _w((lambda *s: torch.randn(*s, dtype=torch.bfloat16) * 0.8)(D, Hq * Dh) * (D ** -0.5)),
            "wo": _w((lambda *s: torch.randn(*s, dtype=torch.bfloat16) * 0.05)(Hq * Dh, D) * ((Hq * Dh) ** -0.5)),
        }
    _A_in = _A_setup()

    def _B_setup():
        B, Sq, D = 8, 32, 1024
        H, Sk, Dh = 32, 1024, 128
        return {
            "x": _w((lambda *s: torch.randn(*s, dtype=torch.bfloat16) * 0.8)(B, Sq, D)),
            "k_cache": _w((lambda *s: torch.randn(*s, dtype=torch.bfloat16) * 0.8)(B, H, Sk, Dh)),
            "v_cache": _w((lambda *s: torch.randn(*s, dtype=torch.bfloat16) * 0.05)(B, H, Sk, Dh)),
            "wq": _w((lambda *s: torch.randn(*s, dtype=torch.bfloat16) * 0.8)(D, H * Dh) * (D ** -0.5)),
            "wo": _w((lambda *s: torch.randn(*s, dtype=torch.bfloat16) * 0.05)(H * Dh, D) * ((H * Dh) ** -0.5)),
        }
    _B_in = _B_setup()

    return {
        "A_x": _A_in["x"],
        "A_k_cache": _A_in["k_cache"],
        "A_v_cache": _A_in["v_cache"],
        "A_wq": _A_in["wq"],
        "A_wo": _A_in["wo"],
        "B_x": _B_in["x"],
        "B_k_cache": _B_in["k_cache"],
        "B_v_cache": _B_in["v_cache"],
        "B_wq": _B_in["wq"],
        "B_wo": _B_in["wo"],
    }

def reference(A_x, A_k_cache, A_v_cache, A_wq, A_wo, B_x, B_k_cache, B_v_cache, B_wq, B_wo):
    def _A_ref(x, k_cache, v_cache, wq, wo):
        B, Sq, D = x.shape
        Hq, Dh = 32, 128
        Hkv = k_cache.shape[1]
        rep = Hq // Hkv
        q = (lambda x, *d: x.permute(*d))((x @ wq).reshape(B, Sq, Hq, Dh), 0, 2, 1, 3)
        k = (lambda x, n, axis: torch.repeat_interleave(x, n, dim=axis))(k_cache, rep, axis=1)
        v = (lambda x, n, axis: torch.repeat_interleave(x, n, dim=axis))(v_cache, rep, axis=1)
        scores = torch.einsum("bhqd,bhkd->bhqk", q, k) * (Dh ** -0.5)
        p = _softmax(scores, axis=-1)
        o = torch.einsum("bhqk,bhkd->bhqd", p, v)
        return (lambda x, *d: x.permute(*d))(o, 0, 2, 1, 3).reshape(B, Sq, Hq * Dh) @ wo

    def _B_ref(x, k_cache, v_cache, wq, wo):
        B, Sq, D = x.shape
        H, Dh = 32, 128
        q = (lambda x, *d: x.permute(*d))((x @ wq).reshape(B, Sq, H, Dh), 0, 2, 1, 3)
        scores = torch.einsum("bhqd,bhkd->bhqk", q, k_cache) * (Dh ** -0.5)
        p = _softmax(scores, axis=-1)
        o = torch.einsum("bhqk,bhkd->bhqd", p, v_cache)
        return (lambda x, *d: x.permute(*d))(o, 0, 2, 1, 3).reshape(B, Sq, H * Dh) @ wo

    a = _A_ref(A_x, A_k_cache, A_v_cache, A_wq, A_wo)
    b = _B_ref(B_x, B_k_cache, B_v_cache, B_wq, B_wo)
    return torch.concatenate([a, b], axis=-1)
```

```python
import re

TRANS = ("v_exp_f32", "v_log_f32", "v_rcp_f32", "v_rsq_f32", "v_sqrt_f32", "v_sin_f32", "v_cos_f32")

def _regs(tok):
    tok = tok.strip()
    tok = tok.lstrip("-")
    if tok.startswith("abs(") or tok.startswith("|"):
        tok = tok.strip("|").replace("abs(", "").rstrip(")")
    m = re.fullmatch(r"([vas])\[(\d+):(\d+)\]", tok)
    if m:
        return [(m.group(1), i) for i in range(int(m.group(2)), int(m.group(3)) + 1)]
    m = re.fullmatch(r"([vas])(\d+)", tok)
    if m:
        return [(m.group(1), int(m.group(2)))]
    if tok in ("vcc", "vcc_lo", "vcc_hi"):
        return [("s", "vcc")]
    if tok == "m0":
        return [("s", "m0")]
    if tok == "exec":
        return [("s", "exec")]
    return []

class Ins:
    __slots__ = ("text", "op", "ops", "w", "r", "kind", "states")
    def __init__(self, text):
        self.text = text
        t = text.split(";")[0].strip()
        self.op = t.split()[0] if t else ""
        rest = t[len(self.op):].strip()
        ops = [x.strip() for x in re.split(r",(?![^\[]*\])", rest)] if rest else []
        if ops:
            last = ops[-1].split()
            ops[-1] = last[0] if last else ""
            mods = last[1:]
        else:
            mods = []
        self.ops = ops
        op = self.op
        self.states = 1
        w, r = [], []
        if op.endswith(":") or op.startswith(".") or not op:
            self.kind = "meta"; self.states = 0
        elif op == "s_nop":
            self.kind = "nop"; self.states = int(ops[0], 0) + 1
        elif op.startswith("v_mfma"):
            self.kind = "mfma"
            w = _regs(ops[0]); r = _regs(ops[1]) + _regs(ops[2]) + _regs(ops[3])
        elif op.startswith("v_"):
            self.kind = "valu"
            if op.startswith("v_permlane") and "swap" in op:
                w = _regs(ops[0]) + _regs(ops[1]); r = list(w)
            elif op.startswith("v_cmp"):
                w = _regs(ops[0]); r = sum((_regs(o) for o in ops[1:]), [])
            elif "_co_" in op:
                w = _regs(ops[0]) + _regs(ops[1]); r = sum((_regs(o) for o in ops[2:]), [])
            else:
                w = _regs(ops[0]); r = sum((_regs(o) for o in ops[1:]), [])
                if op.startswith("v_fmac") or op.startswith("v_pk_fmac") or op.startswith("v_writelane"):
                    r += w
                if op.startswith("v_cndmask") and len(ops) == 3:
                    r += [("s", "vcc")]
        elif op.startswith("ds_"):
            self.kind = "ds"
            if op.startswith("ds_read") or op.startswith("ds_bpermute") or op.startswith("ds_swizzle"):
                w = _regs(ops[0]); r = sum((_regs(o) for o in ops[1:]), [])
            else:
                r = sum((_regs(o) for o in ops), [])
        elif op.startswith("buffer_") or op.startswith("global_"):
            self.kind = "vmem"
            lds = "lds" in mods or "_lds_" in op
            if op in ("buffer_wbl2", "buffer_inv"):
                pass
            elif lds:
                r = sum((_regs(o) for o in ops), []) + [("s", "m0")]
            elif "_load" in op:
                w = _regs(ops[0]); r = sum((_regs(o) for o in ops[1:]), [])
            elif "atomic" in op and "sc0" in mods and op.startswith("buffer_"):
                w = _regs(ops[0]); r = sum((_regs(o) for o in ops), [])
            elif "atomic" in op and "sc0" in mods:
                w = _regs(ops[0]); r = sum((_regs(o) for o in ops[1:]), [])
            else:
                r = sum((_regs(o) for o in ops), [])
        elif op.startswith("s_"):
            self.kind = "salu"
            if op.startswith("s_cmp") or op.startswith("s_cbranch") or op in ("s_branch", "s_barrier", "s_waitcnt", "s_endpgm", "s_sleep", "s_setprio"):
                r = sum((_regs(o) for o in ops), [])
            else:
                w = _regs(ops[0]) if ops else []
                r = sum((_regs(o) for o in ops[1:]), [])
                if "saveexec" in op:
                    w += [("s", "exec")]
        else:
            raise ValueError("unknown instruction: " + text)
        self.w, self.r = set(w), set(r)

def mfma_passes(op):
    if "32x32x16" in op or "32x32x8" in op: return 8
    if "16x16x32" in op or "16x16x16" in op: return 4
    raise ValueError(op)

def need_states(p, c):
    n = 0
    vw = {x for x in p.w if x[0] in "va"}
    sw = {x for x in p.w if x[0] == "s"}
    if p.kind == "valu":
        if c.kind == "mfma" and vw & c.r: n = max(n, 2)
        if c.kind == "valu":
            if c.op.startswith("v_permlane") and vw & c.r: n = max(n, 2)
            if ("_dpp" in c.op or "row_" in c.text or "quad_perm" in c.text) and vw & c.r: n = max(n, 2)
            if c.op.startswith(("v_readlane", "v_readfirstlane")) and vw & c.r: n = max(n, 1)
            if any(p.op.startswith(t) for t in TRANS) and vw & c.r and not any(c.op.startswith(t) for t in TRANS): n = max(n, 1)
            if sw & c.r: n = max(n, 2)
            if c.op.startswith(("v_readlane", "v_writelane")) and sw & c.r: n = max(n, 4)
        if c.kind == "vmem" and sw & c.r: n = max(n, 5)
        if c.kind == "salu" and sw & c.r: n = max(n, 1)
        if ("s", "exec") in p.w and c.kind in ("mfma",): n = max(n, 4)
    if p.kind == "salu":
        if ("s", "m0") in p.w and c.kind == "vmem" and ("s", "m0") in c.r: n = max(n, 1)
    if p.kind == "mfma":
        ps = mfma_passes(p.op)
        full = {4: 8, 8: 12}[ps]; part = {4: 6, 8: 10}[ps]; war = {4: 3, 8: 7}[ps]
        if c.kind == "mfma":
            cC = set(_regs(c.ops[3])); cAB = set(_regs(c.ops[1]) + _regs(c.ops[2]))
            if p.w & cAB: n = max(n, full)
            if p.w & cC and not (cC == p.w and mfma_passes(c.op) == ps): n = max(n, part)
            if p.w & c.w and not (cC == p.w): n = max(n, part)
        else:
            if p.w & (c.r | c.w): n = max(n, full)
            pC = set(_regs(p.ops[3]))
            if c.kind == "valu" and pC & c.w: n = max(n, war)
    if p.kind == "vmem" and ("store" in p.op or "atomic" in p.op) and ("x4" in p.op or "x3" in p.op):
        data = set(_regs(p.ops[0] if p.op.startswith("buffer_") else p.ops[1]))
        if data & c.w: n = max(n, 2 if c.kind == "valu" else 1)
    return n

class Asm:
    def __init__(self):
        self.lines = []
    def __call__(self, text):
        for l in text.split("\n"):
            l = l.strip()
            if l: self.lines.append(l)
    def label(self, name):
        self.lines.append(name + ":")
    def finish(self):
        out = []; hist = []
        for l in self.lines:
            if l.startswith(";"):
                out.append("    " + l); continue
            ins = Ins(l)
            if ins.kind == "meta":
                out.append(l); continue
            need = 0
            dist = 0
            for p in reversed(hist):
                n = need_states(p, ins)
                if n > dist: need = max(need, n - dist)
                dist += p.states
                if dist >= 20: break
            while need > 0:
                k = min(need, 16)
                nop = Ins(f"s_nop {k-1}")
                out.append(f"    s_nop {k-1}"); hist.append(nop); need -= k
            out.append("    " + l); hist.append(ins)
            if len(hist) > 40: hist = hist[-40:]
        return "\n".join(out)
    def fence(self):
        self.lines.append("s_nop 11")
```

```python
from asmlib import Asm
NAME = "concat_heads__gqa_block_cached__mha_block_cached__near_ridge"

P_AX, P_AK, P_AV, P_AWQ, P_AWO, P_BX, P_BK, P_BV = 16, 18, 20, 22, 24, 26, 28, 30
P_BWQ, P_BWO, P_OUT, P_DBG, P_WS = 32, 34, 36, 38, 40
S_WAVE, S_RING, S_TMP = 3, 4, 5
SRD0, SRD1, SRDW = 8, 12, 44
WS_Q, WS_O, WS_P, WS_F = 0, 4 << 20, 8 << 20, 16 << 20
WS_BYTES = 268435456
V_LANE = 1
V_KD = 2
V_VD = 6
V_KR = 10
V_TV = 18
V_TW = 22
V_L16 = 30
V_T0 = 31
V_Q = 40
V_F = 72
V_S = 128
LDS_SCR = 131072
C_SCALE = 0.08838834764831845 * 1.4426950408889634

import struct
def f32(x): return "0x%08x" % struct.unpack("<I", struct.pack("<f", x))[0]
def vr(b, n=4): return f"v[{b}:{b+n-1}]"
def ar(b, n=4): return f"a[{b}:{b+n-1}]"
def sr(b, n=4): return f"s[{b}:{b+n-1}]"

class VM:
    def __init__(self, a): self.a = a; self.q = []
    def issue(self, tag, n=1): self.q += [tag] * n
    def wait(self, tag):
        idx = max(i for i, t in enumerate(self.q) if t == tag)
        n = len(self.q) - 1 - idx
        assert n <= 63
        self.a(f"s_waitcnt vmcnt({n})"); self.q = self.q[idx + 1:]
    def wait_all(self):
        self.a("s_waitcnt vmcnt(0)"); self.q = []

def header(launches):
    s = open("cdna_kernels/" + NAME + ".s.ref").read().split("; Override launch")[0]
    s += "".join(l + "\n" for l in launches)
    s += '.amdgcn_target "amdgcn-amd-amdhsa--gfx950"\n.text\n'
    return s

def kernel_open(name):
    return f".globl {name}\n.p2align 8\n.type {name},@function\n{name}:\n"

def descriptor(name, vgpr=512, accum=256, sgpr=102):
    return f""".amdhsa_kernel {name}
  .amdhsa_next_free_vgpr {vgpr}
  .amdhsa_next_free_sgpr {sgpr}
  .amdhsa_accum_offset {accum}
  .amdhsa_group_segment_fixed_size 0
  .amdhsa_kernarg_size 104
  .amdhsa_user_sgpr_count 2
  .amdhsa_user_sgpr_kernarg_segment_ptr 1
  .amdhsa_system_sgpr_workgroup_id_x 1
.end_amdhsa_kernel
"""

def prologue(a, nwg, end):
    a(f"""s_cmp_ge_u32 s2, {nwg}
    s_cbranch_scc1 {end}
    s_load_dwordx16 s[16:31], s[0:1], 0
    s_load_dwordx8 s[32:39], s[0:1], 64
    s_load_dwordx2 s[40:41], s[0:1], 96
    v_lshrrev_b32 v{V_T0}, 6, v0
    v_and_b32 v{V_LANE}, 63, v0
    v_readfirstlane_b32 s{S_WAVE}, v{V_T0}
    v_lshlrev_b32 v{V_L16}, 4, v{V_LANE}
    s_lshl_b32 s{S_RING}, s{S_WAVE}, 15""")

def srd(a, d, ptr, size):
    a(f"s_mov_b32 s{d}, s{ptr}\ns_mov_b32 s{d+1}, s{ptr+1}\ns_mov_b32 s{d+2}, {size}\ns_mov_b32 s{d+3}, 0x20000")

def srd_sel(a, d, cond, p0, p1, size0, size1=None):
    a(f"s_cmp_eq_u32 s{cond}, 0\ns_cselect_b32 s{d}, s{p0}, s{p1}\ns_cselect_b32 s{d+1}, s{p0+1}, s{p1+1}")
    if size1 is None or size1 == size0: a(f"s_mov_b32 s{d+2}, {size0}")
    else: a(f"s_mov_b32 s{d+2}, {size1}\ns_cmov_b32 s{d+2}, {size0}")
    a(f"s_mov_b32 s{d+3}, 0x20000")

def set_kd(a, rs, dst=V_KD):
    t = V_T0
    sh = rs.bit_length() - 1
    a(f"""v_lshrrev_b32 v{t}, 4, v{V_LANE}
    v_and_b32 v{t+1}, 15, v{V_LANE}
    v_xor_b32 v{t+1}, v{t+1}, v{t}
    v_lshlrev_b32 v{t+1}, 4, v{t+1}
    v_lshlrev_b32 v{t}, {sh}, v{t}""")
    for k in range(4):
        a(f"v_xor_b32 v{dst+k}, {64*k}, v{t+1}")
        a(f"v_add_u32 v{dst+k}, v{dst+k}, v{t}")
        if k and rs != 256: a(f"v_add_u32 v{dst+k}, {k*(4*rs-1024)}, v{dst+k}")

def set_vd(a, rs, dst=V_VD):
    t = V_T0
    sh = rs.bit_length() - 1
    a(f"""v_lshrrev_b32 v{t}, 4, v{V_LANE}
    v_and_b32 v{t+1}, 15, v{V_LANE}
    v_lshlrev_b32 v{t+2}, 2, v{t}
    v_xor_b32 v{t+1}, v{t+1}, v{t+2}
    v_lshlrev_b32 v{t+1}, 4, v{t+1}
    v_lshl_add_u32 v{dst}, v{t}, {sh}, v{t+1}""")
    for k in range(1, 4):
        a(f"v_add_u32 v{dst+k}, {k*(4*rs-1024)}, v{dst}")

def set_kr(a):
    t = V_T0
    a(f"""v_and_b32 v{t}, 31, v{V_LANE}
    v_lshrrev_b32 v{t+1}, 5, v{V_LANE}
    v_and_b32 v{t+2}, 15, v{V_LANE}
    v_xor_b32 v{t+1}, v{t+1}, v{t+2}
    v_lshlrev_b32 v{t+1}, 4, v{t+1}
    v_lshlrev_b32 v{t}, 8, v{t}
    v_add_u32 v{t}, s{S_RING}, v{t}""")
    for s in range(8):
        a(f"v_xor_b32 v{V_KR+s}, {32*s}, v{t+1}")
        a(f"v_add_u32 v{V_KR+s}, v{V_KR+s}, v{t}")

def set_tr(a, want_v=True, want_w=True):
    t = V_T0
    a(f"""v_bfe_u32 v{t}, v{V_LANE}, 2, 2
    v_bfe_u32 v{t+1}, v{V_LANE}, 4, 1
    v_lshlrev_b32 v{t+1}, 5, v{t+1}
    v_and_b32 v{t+2}, 1, v{V_LANE}
    v_lshl_add_u32 v{t+1}, v{t+2}, 4, v{t+1}
    v_bfe_u32 v{t+2}, v{V_LANE}, 1, 1
    v_lshl_add_u32 v{t+1}, v{t+2}, 3, v{t+1}
    v_lshl_add_u32 v{t+1}, v{t}, 8, v{t+1}
    v_lshrrev_b32 v{t+2}, 5, v{V_LANE}
    v_lshlrev_b32 v{t}, 6, v{t}""")
    for T in range(4):
        a(f"v_xor_b32 v{t+3}, {64*T}, v{t}")
        a(f"v_add_u32 v{t+3}, v{t+3}, v{t+1}")
        if want_w:
            a(f"v_lshl_add_u32 v{V_TW+T}, v{t+2}, 11, v{t+3}")
            a(f"v_add_u32 v{V_TW+4+T}, 0x10000, v{V_TW+T}")
    if want_v:
        for B in range(4):
            a(f"s_add_u32 s{S_TMP}, s{S_WAVE}, {B}\ns_and_b32 s{S_TMP}, s{S_TMP}, 3\ns_lshl_b32 s{S_TMP}, s{S_TMP}, 6")
            a(f"v_xor_b32 v{t+3}, s{S_TMP}, v{t}")
            a(f"v_add3_u32 v{t+3}, v{t+3}, v{t+1}, s{S_RING}")
            a(f"v_lshl_add_u32 v{V_TV+B}, v{t+2}, 10, v{t+3}")

def dma_tile(a, vm, tag, srdreg, soff, voff, rs, slot, fl, single=False):
    fl = (" " + fl) if fl else ""
    a(f"s_add_u32 m0, s{S_RING}, {slot*8192}")
    a(f"s_add_u32 s{S_TMP}, s{soff}, {16*rs}")
    for half in range(2):
        if half: a(f"s_add_u32 m0, s{S_RING}, {slot*8192+4096}")
        so = S_TMP if half else soff
        for k in range(4):
            off = f" offset:{1024*k}" if k else ""
            a(f"buffer_load_dwordx4 v{voff+(0 if single else k)}, {sr(srdreg)}, s{so} offen{off}{fl} lds")
    vm.issue(tag, 8)

def park(a, vm, tags, slots, after):
    for t in range(8):
        vm.wait(tags[t])
        for s in range(8):
            a(f"ds_read_b128 {ar(32*t+4*s)}, v{V_KR+s} offset:{slots[t]*8192}")
        a("s_waitcnt lgkmcnt(0)")
        after(t)

V_M, V_MC, V_ONE = 32, 33, 36
S_C = 6

def scores(a):
    def mx(t):
        b = V_S + 16 * t
        if t == 0:
            a(f"v_max3_f32 v{V_M}, v{b}, v{b+1}, v{b+2}")
            rest = list(range(3, 16))
        else:
            rest = list(range(16))
        out = []
        while rest:
            if len(rest) >= 2:
                out.append(f"v_max3_f32 v{V_M}, v{V_M}, v{b+rest[0]}, v{b+rest[1]}"); rest = rest[2:]
            else:
                out.append(f"v_max_f32 v{V_M}, v{V_M}, v{b+rest[0]}"); rest = rest[1:]
        return out
    pend = []
    for t in range(8):
        for s in range(8):
            c = "0" if s == 0 else vr(V_S + 16 * t, 16)
            a(f"v_mfma_f32_32x32x16_bf16 {vr(V_S+16*t,16)}, {ar(32*t+4*s)}, {vr(V_Q+4*s)}, {c}")
            if s >= 3:
                for _ in range(2):
                    if pend: a(pend.pop(0))
        while pend: a(pend.pop(0))
        if t == 0:
            pend = [f"v_max3_f32 v{V_M}, v{V_S}, v{V_S+1}, v{V_S+2}"]
            rest = list(range(3, 16))
            pend += [f"v_max3_f32 v{V_M}, v{V_M}, v{V_S+rest[i]}, v{V_S+rest[i+1]}" for i in range(0, 12, 2)]
            pend += [f"v_max_f32 v{V_M}, v{V_M}, v{V_S+15}"]
        else:
            b = V_S + 16 * t
            pend = [f"v_max3_f32 v{V_M}, v{V_M}, v{b+i}, v{b+i+1}" for i in range(0, 16, 2)]
    while pend: a(pend.pop(0))
    a(f"""v_mov_b32 v{V_MC}, v{V_M}
    v_permlane32_swap_b32 v{V_M}, v{V_MC}
    v_max_f32 v{V_M}, v{V_M}, v{V_MC}
    v_mul_f32 v{V_MC}, s{S_C}, v{V_M}""")

A_O, A_L = 0, 64

def softmax_tile(a, t):
    b = V_S + 16 * t
    out = []
    for i in range(16):
        out.append(f"v_fma_f32 v{b+i}, v{b+i}, s{S_C}, -v{V_MC}")
    ex = [f"v_exp_f32 v{b+i}, v{b+i}" for i in range(16)]
    cv = [f"v_cvt_pk_bf16_f32 v{b+k}, v{b+2*k}, v{b+2*k+1}" for k in range(8)]
    return out + ex + cv

def pv(a, vm, tags, slots, after):
    for k in range(4): a(f"v_mov_b32 v{V_ONE+k}, 0x3f803f80")
    for l in softmax_tile(a, 0): a(l)
    for t in range(8):
        vm.wait(tags[t])
        for T in range(4):
            for s in range(2):
                f = V_F + 8 * T + 4 * s
                o = slots[t] * 8192 + 16 * s * 256
                a(f"ds_read_b64_tr_b16 {vr(f,2)}, v{V_TV+T} offset:{o}")
                a(f"ds_read_b64_tr_b16 {vr(f+2,2)}, v{V_TV+T} offset:{o+8*256}")
        nxt = softmax_tile(a, t + 1) if t < 7 else []
        b = V_S + 16 * t
        for s in range(2):
            c = "0" if (t == 0 and s == 0) else ar(A_L, 16)
            a(f"v_mfma_f32_32x32x16_bf16 {ar(A_L,16)}, {vr(V_ONE)}, {vr(b+4*s)}, {c}")
            for _ in range(4):
                if nxt: a(nxt.pop(0))
        n = 0
        for T in range(4):
            for s in range(2):
                n += 1
                a(f"s_waitcnt lgkmcnt({16-2*n})" if 16 - 2 * n <= 15 else "")
                c = "0" if (t == 0 and s == 0) else ar(A_O + 16 * T, 16)
                a(f"v_mfma_f32_32x32x16_bf16 {ar(A_O+16*T,16)}, {vr(V_F+8*T+4*s)}, {vr(b+4*s)}, {c}")
                for _ in range(4):
                    if nxt: a(nxt.pop(0))
        while nxt: a(nxt.pop(0))
        after(t)

def o_epilogue(a, slot, s_dst, vm, fl="sc1", accO=A_O, accL=A_L, vm_reg=V_M):
    t = V_T0 + 3
    a(f"s_lshl_b32 s{S_TMP}, s{S_WAVE}, 13")
    a(f"s_add_u32 s{S_TMP}, s{S_TMP}, {LDS_SCR}")
    a(f"v_add_u32 v{t}, s{S_RING}, v{V_L16}")
    a(f"v_add_u32 v{t+1}, s{S_TMP}, v{V_L16}")
    a(f"v_mov_b32 v{V_F}, v{vm_reg}")
    a(f"v_accvgpr_read_b32 v{V_F+1}, a{accL}")
    a(f"ds_write_b64 v{t+1}, {vr(V_F,2)} offset:4096")
    for B in (1, 2, 3):
        for g in range(4):
            if B < 3: a(f"ds_write_b128 v{t}, {ar(accO+16*B+4*g)} offset:{slot*8192+4096*(B-1)+1024*g}")
            else:     a(f"ds_write_b128 v{t+1}, {ar(accO+16*B+4*g)} offset:{1024*g}")
    for i in range(16): a(f"v_accvgpr_read_b32 v{V_S+i}, a{accO+i}")
    for B in (1, 2, 3):
        a(f"s_sub_u32 s{S_TMP}, s{S_WAVE}, {B}\ns_and_b32 s{S_TMP}, s{S_TMP}, 3")
        a(f"s_lshl_b32 s7, s{S_TMP}, 13\ns_add_u32 s7, s7, {LDS_SCR}")
        a(f"v_add_u32 v{V_F+20+B}, s7, v{V_L16}")
        if B < 3:
            a(f"s_lshl_b32 s{S_TMP}, s{S_TMP}, 15")
            a(f"v_add_u32 v{V_F+24+B}, s{S_TMP}, v{V_L16}")
    a("s_waitcnt lgkmcnt(0)\ns_barrier")
    for B in (1, 2, 3): a(f"ds_read_b64 {vr(V_F+2*B,2)}, v{V_F+20+B} offset:4096")
    for B in (1, 2, 3):
        for g in range(4):
            if B < 3: a(f"ds_read_b128 {vr(V_S+16*B+4*g)}, v{V_F+24+B} offset:{slot*8192+4096*(B-1)+1024*g}")
            else:     a(f"ds_read_b128 {vr(V_S+16*B+4*g)}, v{V_F+20+B} offset:{1024*g}")
    a("s_waitcnt lgkmcnt(12)")
    m = [V_F + 2 * u for u in range(4)]; l = [x + 1 for x in m]
    M = V_F + 8; L = V_F + 9; f = [V_F + 10 + u for u in range(4)]
    a(f"v_max3_f32 v{M}, v{m[0]}, v{m[1]}, v{m[2]}\nv_max_f32 v{M}, v{M}, v{m[3]}")
    for u in range(4): a(f"v_sub_f32 v{f[u]}, v{m[u]}, v{M}")
    for u in range(4): a(f"v_mul_f32 v{f[u]}, s{S_C}, v{f[u]}")
    for u in range(4): a(f"v_exp_f32 v{f[u]}, v{f[u]}")
    a(f"v_mul_f32 v{L}, v{f[0]}, v{l[0]}")
    for u in range(1, 4): a(f"v_fmac_f32 v{L}, v{f[u]}, v{l[u]}")
    a(f"v_rcp_f32 v{L}, v{L}")
    for u in range(4): a(f"v_mul_f32 v{f[u]}, v{f[u]}, v{L}")
    for i in range(16): a(f"v_mul_f32 v{V_S+i}, v{V_S+i}, v{f[0]}")
    for B in (1, 2, 3):
        a(f"s_waitcnt lgkmcnt({12-4*B})")
        for i in range(16): a(f"v_fmac_f32 v{V_S+i}, v{V_S+16*B+i}, v{f[B]}")
    for k in range(8): a(f"v_cvt_pk_bf16_f32 v{V_S+k}, v{V_S+2*k}, v{V_S+2*k+1}")
    a(f"s_lshl_b32 s{S_TMP}, s{S_WAVE}, 11\ns_add_u32 s{S_TMP}, s{S_TMP}, s{s_dst}")
    a(f"buffer_store_dwordx4 {vr(V_S)}, v{V_L16}, {sr(SRDW)}, s{S_TMP} offen {fl}")
    a(f"buffer_store_dwordx4 {vr(V_S+4)}, v{V_L16}, {sr(SRDW)}, s{S_TMP} offen offset:1024 {fl}")
    vm.issue("ost", 2)

def w_step(a, slot, bfrag, first):
    items = [(w, s) for w in range(4) for s in range(2)]
    def reads(n):
        w, s = items[n]
        buf = V_F + 16 * (n % 3)
        for T in range(4):
            va = V_TW + T + (4 if w >= 2 else 0)
            o = (w & 1) * 32768 + slot * 8192 + 16 * s * 256
            a(f"ds_read_b64_tr_b16 {vr(buf+4*T,2)}, v{va} offset:{o}")
            a(f"ds_read_b64_tr_b16 {vr(buf+4*T+2,2)}, v{va} offset:{o+4*256}")
    reads(0);
    for n in range(8):
        w, s = items[n]
        if n + 1 < 8:
            reads(n + 1); a("s_waitcnt lgkmcnt(8)")
        else:
            a("s_waitcnt lgkmcnt(0)")
        buf = V_F + 16 * (n % 3)
        for T in range(4):
            c = "0" if (first and n == 0) else vr(V_S + 16 * T, 16)
            a(f"v_mfma_f32_32x32x16_bf16 {vr(V_S+16*T,16)}, {vr(buf+4*T)}, {bfrag(w, s)}, {c}")

def cvt_acc(a):
    for T in range(4):
        for k in range(8):
            a(f"v_cvt_pk_bf16_f32 v{V_S+64+8*T+k}, v{V_S+16*T+2*k}, v{V_S+16*T+2*k+1}")
```

```python
import sys
from engines import *

def k_q(fl_x="", fl_w="nt"):
    a = Asm(); vm = VM(a)
    prologue(a, 128, "L_q_end")
    set_kd(a, 2048); set_vd(a, 8192); set_kr(a); set_tr(a, want_v=False)
    a("""s_and_b32 s50, s2, 7
    s_lshr_b32 s51, s2, 3
    s_lshr_b32 s52, s51, 3          ; X
    s_and_b32 s53, s51, 3           ; hh
    s_bfe_u32 s54, s51, 0x10002     ; r
    s_lshl_b32 s55, s50, 2
    s_add_u32 s55, s55, s53         ; head
    s_lshl_b32 s56, s54, 2
    s_add_u32 s56, s56, s3          ; batch
    s_lshl_b32 s57, s56, 16         ; x offset
    s_lshl_b32 s58, s55, 8
    s_lshl_b32 s59, s3, 18
    s_add_u32 s58, s58, s59
    s_waitcnt lgkmcnt(0)""")
    srd_sel(a, SRD0, 52, P_AX, P_BX, 0x80000)
    srd_sel(a, SRD1, 52, P_AWQ, P_BWQ, 0x800000)
    srd(a, SRDW, P_WS, WS_BYTES)
    def xt(t):
        dma_tile(a, vm, f"x{t}", SRD0, 57, V_KD, 2048, t & 3, fl_x); a("s_add_u32 s57, s57, 256")
    def wt(t):
        dma_tile(a, vm, f"w{t}", SRD1, 58, V_VD, 8192, t & 3, fl_w); a(f"s_add_u32 s58, s58, {128*8192}")
    for t in range(4): xt(t)
    park(a, vm, [f"x{t}" for t in range(8)], [t & 3 for t in range(8)], lambda t: xt(t + 4) if t < 4 else wt(t - 4))
    for t in range(8):
        vm.wait(f"w{t}")
        a("s_barrier")
        if 1 <= t <= 4: wt(t + 3)
        w_step(a, t & 3, lambda w, s: ar(32 * t + 4 * (2 * w + s)), t == 0)
    cvt_acc(a)
    a("""s_lshl_b32 s60, s52, 3
    s_add_u32 s60, s60, s56
    s_lshl_b32 s60, s60, 5
    s_add_u32 s60, s60, s55
    s_lshl_b32 s60, s60, 13""")
    a(f"s_add_u32 s61, s60, 4096")
    for s in range(8):
        a(f"buffer_store_dwordx4 {vr(V_S+64+4*s)}, v{V_L16}, {sr(SRDW)}, s{60+(s>>2)} offen offset:{1024*(s&3)}")
    a.label("L_q_end"); a("s_endpgm")
    return a.finish()

def k_att(fl_b="nt", fl_a="nt"):
    a = Asm(); vm = VM(a)
    prologue(a, 512, "L_att_end")
    set_kd(a, 256); set_vd(a, 256); set_kr(a); set_tr(a, want_w=False)
    a(f"""s_and_b32 s50, s2, 7
    s_bfe_u32 s51, s2, 0x50003      ; c
    s_lshr_b32 s52, s2, 8           ; 0 -> B, 1 -> A
    s_and_b32 s53, s51, 3
    s_lshl_b32 s55, s50, 2
    s_add_u32 s55, s55, s53         ; head
    s_lshr_b32 s56, s51, 2          ; batch
    s_lshl_b32 s57, s56, 5
    s_add_u32 s57, s57, s55         ; b*32+h
    s_lshl_b32 s58, s56, 2
    s_lshr_b32 s59, s55, 3
    s_add_u32 s58, s58, s59         ; b*4+g
    s_cmp_eq_u32 s52, 0
    s_cselect_b32 s58, s57, s58
    s_lshl_b32 s58, s58, 18
    s_lshl_b32 s59, s3, 13
    s_add_u32 s58, s58, s59         ; K offset
    s_mov_b32 s59, s58              ; V offset
    s_xor_b32 s60, s52, 1           ; X (A=0,B=1)
    s_lshl_b32 s60, s60, 8
    s_add_u32 s60, s60, s57
    s_lshl_b32 s60, s60, 13         ; Q offset
    s_add_u32 s61, s60, 4096
    s_add_u32 s62, s60, {WS_O}
    s_mov_b32 s{S_C}, {f32(C_SCALE)}
    s_waitcnt lgkmcnt(0)""")
    srd_sel(a, SRD0, 52, P_BK, P_AK, 0x4000000, 0x800000)
    srd_sel(a, SRD1, 52, P_BV, P_AV, 0x4000000, 0x800000)
    srd(a, SRDW, P_WS, WS_BYTES)
    for s in range(8):
        a(f"buffer_load_dwordx4 {vr(V_Q+4*s)}, v{V_L16}, {sr(SRDW)}, s{60+(s>>2)} offen offset:{1024*(s&3)}")
    vm.issue("q", 8)
    def kt(t):
        dma_tile(a, vm, f"k{t}", SRD0, 58, V_KD, 256, t & 3, fl_b); a("s_add_u32 s58, s58, 32768")
    def vt(t):
        dma_tile(a, vm, f"v{t}", SRD1, 59, V_VD, 256, t & 3, fl_b, single=True); a("s_add_u32 s59, s59, 32768")
    for t in range(4): kt(t)
    park(a, vm, [f"k{t}" for t in range(8)], [t & 3 for t in range(8)], lambda t: kt(t + 4) if t < 4 else vt(t - 4))
    scores(a)
    pv(a, vm, [f"v{t}" for t in range(8)], [t & 3 for t in range(8)], lambda t: vt(t + 4) if t < 4 else None)
    o_epilogue(a, 3, 62, vm, fl="")
    a.label("L_att_end"); a("s_endpgm")
    return a.finish()

def k_o(fl_w="nt"):
    a = Asm(); vm = VM(a)
    prologue(a, 256, "L_o_end")
    set_vd(a, 2048); set_tr(a, want_v=False)
    a(f"""s_and_b32 s50, s2, 7            ; j
    s_lshr_b32 s51, s2, 3           ; c
    s_lshr_b32 s52, s51, 4          ; X
    s_bfe_u32 s54, s51, 0x10003     ; r
    s_and_b32 s53, s51, 7           ; cb
    s_lshl_b32 s55, s50, 2
    s_add_u32 s58, s55, s3
    s_lshl_b32 s58, s58, 18
    s_lshl_b32 s59, s53, 8
    s_add_u32 s58, s58, s59
    s_lshl_b32 s56, s54, 2
    s_add_u32 s56, s56, s3          ; batch
    s_lshl_b32 s60, s52, 3
    s_add_u32 s60, s60, s56
    s_lshl_b32 s60, s60, 5
    s_add_u32 s60, s60, s55
    s_lshl_b32 s60, s60, 13
    s_add_u32 s60, s60, {WS_O}
    s_waitcnt lgkmcnt(0)""")
    srd_sel(a, SRD1, 52, P_AWO, P_BWO, 0x800000)
    srd(a, SRDW, P_WS, WS_BYTES)
    for t in range(4):
        dma_tile(a, vm, f"w{t}", SRD1, 58, V_VD, 2048, t, fl_w); a("s_add_u32 s58, s58, 65536")
    for n in range(8):
        for k in range(4):
            a(f"buffer_load_dwordx4 {ar(16*n+4*k)}, v{V_L16}, {sr(SRDW)}, s60 offen offset:{1024*k}")
        a("s_add_u32 s60, s60, 4096")
    vm.wait_all()
    a("s_barrier")
    for i in range(4):
        w_step(a, i, lambda w, s: ar(32 * w + 4 * (2 * i + s)), i == 0)
    cvt_acc(a)
    t = V_T0
    a(f"""v_and_b32 v{t}, 15, v{V_LANE}
    v_lshlrev_b32 v{t}, 4, v{t}
    v_lshrrev_b32 v{t+1}, 5, v{V_LANE}
    v_lshl_add_u32 v{t}, v{t+1}, 8, v{t}
    v_bfe_u32 v{t+1}, v{V_LANE}, 4, 1
    v_lshl_add_u32 v{t}, v{t+1}, 15, v{t}
    s_lshl_b32 s61, s51, 3
    s_lshl_b32 s62, s3, 1
    s_add_u32 s61, s61, s62
    s_lshl_b32 s61, s61, 3
    s_add_u32 s61, s61, s50
    s_lshl_b32 s61, s61, 12
    s_add_u32 s61, s61, {WS_P}""")
    for p in range(8):
        a(f"buffer_store_dwordx4 {vr(V_S+64+4*p)}, v{t}, {sr(SRDW)}, s61 offen offset:{512*p}")
    a.label("L_o_end"); a("s_endpgm")
    return a.finish()

def reduce_body(a, vm, s_c, s_j, fl=""):
    t = V_T0
    a(f"""s_lshl_b32 s61, s{s_c}, 3
    s_add_u32 s61, s61, s{s_j}
    s_lshl_b32 s61, s61, 15
    s_add_u32 s61, s61, {WS_P}
    v_lshlrev_b32 v{t}, 4, v0""")
    for j in range(8):
        a(f"buffer_load_dwordx4 {vr(V_F+4*j)}, v{t}, {sr(SRDW)}, s61 offen {fl}")
        if j < 7: a("s_add_u32 s61, s61, 4096")
    vm.issue("p", 8)
    a(f"""s_bfe_u32 s62, s{s_c}, 0x10003
    s_lshl_b32 s62, s62, 3
    s_add_u32 s62, s62, s{s_j}
    s_lshl_b32 s62, s62, 16
    s_lshr_b32 s63, s{s_c}, 4
    s_lshl_b32 s63, s63, 11
    s_add_u32 s62, s62, s63
    s_and_b32 s63, s{s_c}, 7
    s_lshl_b32 s63, s63, 8
    s_add_u32 s62, s62, s63
    v_and_b32 v{t+1}, 15, v0
    v_lshlrev_b32 v{t+1}, 12, v{t+1}
    v_lshrrev_b32 v{t+2}, 4, v0
    v_lshl_add_u32 v{t+1}, v{t+2}, 4, v{t+1}""")
    srd(a, SRD0, P_OUT, 0x100000)
    acc = V_S
    for j in range(8):
        a(f"s_waitcnt vmcnt({7-j})")
        for k in range(4):
            src = V_F + 4 * j + k
            if j == 0:
                a(f"v_lshlrev_b32 v{acc+2*k}, 16, v{src}\nv_and_b32 v{acc+2*k+1}, 0xffff0000, v{src}")
            else:
                a(f"v_lshlrev_b32 v{acc+8}, 16, v{src}\nv_and_b32 v{acc+9}, 0xffff0000, v{src}")
                a(f"v_add_f32 v{acc+2*k}, v{acc+2*k}, v{acc+8}\nv_add_f32 v{acc+2*k+1}, v{acc+2*k+1}, v{acc+9}")
    vm.q = []
    for k in range(4): a(f"v_cvt_pk_bf16_f32 v{acc+10+k}, v{acc+2*k}, v{acc+2*k+1}")
    a(f"buffer_store_dwordx4 {vr(acc+10)}, v{t+1}, {sr(SRD0)}, s62 offen")

def k_r():
    a = Asm(); vm = VM(a)
    prologue(a, 256, "L_r_end")
    a("s_and_b32 s50, s2, 7\ns_lshr_b32 s51, s2, 3\ns_waitcnt lgkmcnt(0)")
    srd(a, SRDW, P_WS, WS_BYTES)
    reduce_body(a, vm, 51, 50)
    a.label("L_r_end"); a("s_endpgm")
    return a.finish()

def build(fl_b="nt", fl_w="nt", fl_x=""):
    s = header(["; @launch kernel=qproj_kernel grid=(128,1,1) block=(256,1,1) lds=163840",
                "; @launch kernel=attn_kernel grid=(512,1,1) block=(256,1,1) lds=163840",
                "; @launch kernel=oproj_kernel grid=(256,1,1) block=(256,1,1) lds=163840",
                "; @launch kernel=reduce_kernel grid=(256,1,1) block=(256,1,1) lds=0"])
    for n, body in (("qproj_kernel", k_q(fl_x, fl_w)), ("attn_kernel", k_att(fl_b)), ("oproj_kernel", k_o(fl_w)), ("reduce_kernel", k_r())):
        s += kernel_open(n) + body + "\n"
    s += '.section .rodata,"a"\n'
    for n in ("qproj_kernel", "attn_kernel", "oproj_kernel", "reduce_kernel"):
        s += ".p2align 6\n" + descriptor(n)
    return s

if __name__ == "__main__":
    out = sys.argv[1]
    kw = dict(x.split("=") for x in sys.argv[2:])
    open(out, "w").write(build(**kw))
```

```python
import sys
from engines import *

def k_q(fl_x="", fl_w="nt"):
    a = Asm(); vm = VM(a)
    prologue(a, 128, "L_q_end")
    set_kd(a, 2048); set_vd(a, 8192); set_kr(a); set_tr(a, want_v=False)
    a("""s_and_b32 s50, s2, 7
    s_lshr_b32 s51, s2, 3
    s_lshr_b32 s52, s51, 3          ; X
    s_and_b32 s53, s51, 3           ; hh
    s_bfe_u32 s54, s51, 0x10002     ; r
    s_lshl_b32 s55, s50, 2
    s_add_u32 s55, s55, s53         ; head
    s_lshl_b32 s56, s54, 2
    s_add_u32 s56, s56, s3          ; batch
    s_lshl_b32 s57, s56, 16         ; x offset
    s_lshl_b32 s58, s55, 8
    s_lshl_b32 s59, s3, 18
    s_add_u32 s58, s58, s59
    s_waitcnt lgkmcnt(0)""")
    srd_sel(a, SRD0, 52, P_AX, P_BX, 0x80000)
    srd_sel(a, SRD1, 52, P_AWQ, P_BWQ, 0x800000)
    srd(a, SRDW, P_WS, WS_BYTES)
    def xt(t):
        dma_tile(a, vm, f"x{t}", SRD0, 57, V_KD, 2048, t & 3, fl_x); a("s_add_u32 s57, s57, 256")
    def wt(t):
        dma_tile(a, vm, f"w{t}", SRD1, 58, V_VD, 8192, t & 3, fl_w); a(f"s_add_u32 s58, s58, {128*8192}")
    for t in range(4): xt(t)
    park(a, vm, [f"x{t}" for t in range(8)], [t & 3 for t in range(8)], lambda t: xt(t + 4) if t < 4 else wt(t - 4))
    for t in range(8):
        vm.wait(f"w{t}")
        a("s_barrier")
        if 1 <= t <= 4: wt(t + 3)
        w_step(a, t & 3, lambda w, s: ar(32 * t + 4 * (2 * w + s)), t == 0)
    cvt_acc(a)
    a("""s_lshl_b32 s60, s52, 3
    s_add_u32 s60, s60, s56
    s_lshl_b32 s60, s60, 5
    s_add_u32 s60, s60, s55
    s_lshl_b32 s60, s60, 13""")
    a(f"s_add_u32 s61, s60, 4096")
    for s in range(8):
        a(f"buffer_store_dwordx4 {vr(V_S+64+4*s)}, v{V_L16}, {sr(SRDW)}, s{60+(s>>2)} offen offset:{1024*(s&3)}")
    a.label("L_q_end"); a("s_endpgm")
    return a.finish()

def k_att(fl_b="nt", which=None):
    a = Asm(); vm = VM(a)
    tag = which or ""
    prologue(a, 512 if which is None else 256, f"L_att{tag}_end")
    if which == "A": a("s_add_u32 s2, s2, 256")
    set_kd(a, 256); set_vd(a, 256); set_kr(a); set_tr(a, want_w=False)
    a(f"""s_and_b32 s50, s2, 7
    s_bfe_u32 s51, s2, 0x50003      ; c
    s_lshr_b32 s52, s2, 8           ; 0 -> B, 1 -> A
    s_and_b32 s53, s51, 3
    s_lshl_b32 s55, s50, 2
    s_add_u32 s55, s55, s53         ; head
    s_lshr_b32 s56, s51, 2          ; batch
    s_lshl_b32 s57, s56, 5
    s_add_u32 s57, s57, s55         ; b*32+h
    s_lshl_b32 s58, s56, 2
    s_lshr_b32 s59, s55, 3
    s_add_u32 s58, s58, s59         ; b*4+g
    s_cmp_eq_u32 s52, 0
    s_cselect_b32 s58, s57, s58
    s_lshl_b32 s58, s58, 18
    s_lshl_b32 s59, s3, 13
    s_add_u32 s58, s58, s59         ; K offset
    s_mov_b32 s59, s58              ; V offset
    s_xor_b32 s60, s52, 1           ; X (A=0,B=1)
    s_lshl_b32 s60, s60, 8
    s_add_u32 s60, s60, s57
    s_lshl_b32 s60, s60, 13         ; Q offset
    s_add_u32 s61, s60, 4096
    s_add_u32 s62, s60, {WS_O}
    s_mov_b32 s{S_C}, {f32(C_SCALE)}
    s_waitcnt lgkmcnt(0)""")
    srd_sel(a, SRD0, 52, P_BK, P_AK, 0x4000000, 0x800000)
    srd_sel(a, SRD1, 52, P_BV, P_AV, 0x4000000, 0x800000)
    srd(a, SRDW, P_WS, WS_BYTES)
    for s in range(8):
        a(f"buffer_load_dwordx4 {vr(V_Q+4*s)}, v{V_L16}, {sr(SRDW)}, s{60+(s>>2)} offen offset:{1024*(s&3)}")
    vm.issue("q", 8)
    def kt(t):
        dma_tile(a, vm, f"k{t}", SRD0, 58, V_KD, 256, t & 3, fl_b); a("s_add_u32 s58, s58, 32768")
    def vt(t):
        dma_tile(a, vm, f"v{t}", SRD1, 59, V_VD, 256, t & 3, fl_b, single=True); a("s_add_u32 s59, s59, 32768")
    for t in range(4): kt(t)
    park(a, vm, [f"k{t}" for t in range(8)], [t & 3 for t in range(8)], lambda t: kt(t + 4) if t < 4 else vt(t - 4))
    scores(a)
    pv(a, vm, [f"v{t}" for t in range(8)], [t & 3 for t in range(8)], lambda t: vt(t + 4) if t < 4 else None)
    o_epilogue(a, 3, 62, vm, fl="")
    a.label(f"L_att{tag}_end"); a("s_endpgm")
    return a.finish()

def k_o(fl_w="nt"):
    a = Asm(); vm = VM(a)
    prologue(a, 256, "L_o_end")
    set_vd(a, 2048); set_tr(a, want_v=False)
    a(f"""s_and_b32 s50, s2, 7            ; j
    s_lshr_b32 s51, s2, 3           ; c
    s_lshr_b32 s52, s51, 4          ; X
    s_bfe_u32 s54, s51, 0x10003     ; r
    s_and_b32 s53, s51, 7           ; cb
    s_lshl_b32 s55, s50, 2
    s_add_u32 s58, s55, s3
    s_lshl_b32 s58, s58, 18
    s_lshl_b32 s59, s53, 8
    s_add_u32 s58, s58, s59
    s_lshl_b32 s56, s54, 2
    s_add_u32 s56, s56, s3          ; batch
    s_lshl_b32 s60, s52, 3
    s_add_u32 s60, s60, s56
    s_lshl_b32 s60, s60, 5
    s_add_u32 s60, s60, s55
    s_lshl_b32 s60, s60, 13
    s_add_u32 s60, s60, {WS_O}
    s_waitcnt lgkmcnt(0)""")
    srd_sel(a, SRD1, 52, P_AWO, P_BWO, 0x800000)
    srd(a, SRDW, P_WS, WS_BYTES)
    for t in range(4):
        dma_tile(a, vm, f"w{t}", SRD1, 58, V_VD, 2048, t, fl_w); a("s_add_u32 s58, s58, 65536")
    for n in range(8):
        for k in range(4):
            a(f"buffer_load_dwordx4 {ar(16*n+4*k)}, v{V_L16}, {sr(SRDW)}, s60 offen offset:{1024*k}")
        a("s_add_u32 s60, s60, 4096")
    vm.wait_all()
    a("s_barrier")
    for i in range(4):
        w_step(a, i, lambda w, s: ar(32 * w + 4 * (2 * i + s)), i == 0)
    cvt_acc(a)
    t = V_T0
    a(f"""v_and_b32 v{t}, 15, v{V_LANE}
    v_lshlrev_b32 v{t}, 4, v{t}
    v_lshrrev_b32 v{t+1}, 5, v{V_LANE}
    v_lshl_add_u32 v{t}, v{t+1}, 8, v{t}
    v_bfe_u32 v{t+1}, v{V_LANE}, 4, 1
    v_lshl_add_u32 v{t}, v{t+1}, 15, v{t}
    s_lshl_b32 s61, s51, 3
    s_lshl_b32 s62, s3, 1
    s_add_u32 s61, s61, s62
    s_lshl_b32 s61, s61, 3
    s_add_u32 s61, s61, s50
    s_lshl_b32 s61, s61, 12
    s_add_u32 s61, s61, {WS_P}""")
    for p in range(8):
        a(f"buffer_store_dwordx4 {vr(V_S+64+4*p)}, v{t}, {sr(SRDW)}, s61 offen offset:{512*p}")
    a.label("L_o_end"); a("s_endpgm")
    return a.finish()

def reduce_body(a, vm, s_c, s_j, fl=""):
    t = V_T0
    a(f"""s_lshl_b32 s61, s{s_c}, 3
    s_add_u32 s61, s61, s{s_j}
    s_lshl_b32 s61, s61, 15
    s_add_u32 s61, s61, {WS_P}
    v_lshlrev_b32 v{t}, 4, v0""")
    for j in range(8):
        a(f"buffer_load_dwordx4 {vr(V_F+4*j)}, v{t}, {sr(SRDW)}, s61 offen {fl}")
        if j < 7: a("s_add_u32 s61, s61, 4096")
    vm.issue("p", 8)
    a(f"""s_bfe_u32 s62, s{s_c}, 0x10003
    s_lshl_b32 s62, s62, 3
    s_add_u32 s62, s62, s{s_j}
    s_lshl_b32 s62, s62, 16
    s_lshr_b32 s63, s{s_c}, 4
    s_lshl_b32 s63, s63, 11
    s_add_u32 s62, s62, s63
    s_and_b32 s63, s{s_c}, 7
    s_lshl_b32 s63, s63, 8
    s_add_u32 s62, s62, s63
    v_and_b32 v{t+1}, 15, v0
    v_lshlrev_b32 v{t+1}, 12, v{t+1}
    v_lshrrev_b32 v{t+2}, 4, v0
    v_lshl_add_u32 v{t+1}, v{t+2}, 4, v{t+1}""")
    srd(a, SRD0, P_OUT, 0x100000)
    acc = V_S
    for j in range(8):
        a(f"s_waitcnt vmcnt({7-j})")
        for k in range(4):
            src = V_F + 4 * j + k
            if j == 0:
                a(f"v_lshlrev_b32 v{acc+2*k}, 16, v{src}\nv_and_b32 v{acc+2*k+1}, 0xffff0000, v{src}")
            else:
                a(f"v_lshlrev_b32 v{acc+8}, 16, v{src}\nv_and_b32 v{acc+9}, 0xffff0000, v{src}")
                a(f"v_add_f32 v{acc+2*k}, v{acc+2*k}, v{acc+8}\nv_add_f32 v{acc+2*k+1}, v{acc+2*k+1}, v{acc+9}")
    vm.q = []
    for k in range(4): a(f"v_cvt_pk_bf16_f32 v{acc+10+k}, v{acc+2*k}, v{acc+2*k+1}")
    a(f"buffer_store_dwordx4 {vr(acc+10)}, v{t+1}, {sr(SRD0)}, s62 offen")

def k_r():
    a = Asm(); vm = VM(a)
    prologue(a, 256, "L_r_end")
    a("s_and_b32 s50, s2, 7\ns_lshr_b32 s51, s2, 3\ns_waitcnt lgkmcnt(0)")
    srd(a, SRDW, P_WS, WS_BYTES)
    reduce_body(a, vm, 51, 50)
    a.label("L_r_end"); a("s_endpgm")
    return a.finish()

def build(fl_b="nt", fl_w="nt", fl_x=""):
    s = header(["; @launch kernel=qproj_kernel grid=(128,1,1) block=(256,1,1) lds=163840",
                "; @launch kernel=attn_kernel grid=(512,1,1) block=(256,1,1) lds=163840",
                "; @launch kernel=oproj_kernel grid=(256,1,1) block=(256,1,1) lds=163840",
                "; @launch kernel=reduce_kernel grid=(256,1,1) block=(256,1,1) lds=0"])
    for n, body in (("qproj_kernel", k_q(fl_x, fl_w)), ("attn_kernel", k_att(fl_b)), ("oproj_kernel", k_o(fl_w)), ("reduce_kernel", k_r())):
        s += kernel_open(n) + body + "\n"
    s += '.section .rodata,"a"\n'
    for n in ("qproj_kernel", "attn_kernel", "oproj_kernel", "reduce_kernel"):
        s += ".p2align 6\n" + descriptor(n)
    return s


def k_empty():
    return "    s_endpgm"

def k_stream(fl, src="kv"):
    a = Asm(); vm = VM(a)
    prologue(a, 256, "L_st_end")
    set_vd(a, 256)
    a("s_lshl_b32 s58, s2, 18\ns_lshl_b32 s59, s3, 13\ns_add_u32 s58, s58, s59\ns_waitcnt lgkmcnt(0)")
    if src == "kv":
        srd(a, SRD0, P_BK, 0x4000000); srd(a, SRD1, P_BV, 0x4000000)
    else:
        srd(a, SRD0, P_WS, WS_BYTES); srd(a, SRD1, P_WS, WS_BYTES)
        a("s_add_u32 s8, s8, 0x4000000\ns_addc_u32 s9, s9, 0\ns_add_u32 s12, s12, 0x8000000\ns_addc_u32 s13, s13, 0\ns_mov_b32 s10, 0x4000000\ns_mov_b32 s14, 0x4000000")
    for sd in (SRD0, SRD1):
        a("s_mov_b32 s60, s58")
        for t in range(8):
            if len(vm.q) >= 24: vm.wait(vm.q[0])
            dma_tile(a, vm, f"{sd}_{t}", sd, 60, V_VD, 256, t & 3, fl, single=True); a("s_add_u32 s60, s60, 32768")
    vm.wait_all()
    a.label("L_st_end"); a("s_endpgm")
    return a.finish()

def build2(fl_b="nt", fl_a="", fl_w="nt", fl_x="", pre="", twice=""):
    ks = []
    if pre == "empty": ks.append(("pre_kernel", k_empty(), 256, 0))
    if pre == "nt": ks.append(("pre_kernel", k_stream("nt"), 256, 163840))
    if pre == "plain": ks.append(("pre_kernel", k_stream(""), 256, 163840))
    if pre == "wsnt": ks.append(("pre_kernel", k_stream("nt", "ws"), 256, 163840))
    if pre == "wsplain": ks.append(("pre_kernel", k_stream("", "ws"), 256, 163840))
    ks += [("qproj_kernel", k_q(fl_x, fl_w), 128, 163840), ("attnb_kernel", k_att(fl_b, "B"), 256, 163840),
           ("attna_kernel", k_att(fl_a, "A"), 256, 163840), ("oproj_kernel", k_o(fl_w), 256, 163840), ("reduce_kernel", k_r(), 256, 0)]
    L = []
    for n, _, g, lds in ks:
        L.append(f"; @launch kernel={n} grid=({g},1,1) block=(256,1,1) lds={lds}")
        if n[:-7] == twice: L.append(L[-1])
    s = header(L)
    for n, body, _, _ in ks: s += kernel_open(n) + body + "\n"
    s += '.section .rodata,"a"\n'
    for n, _, _, _ in ks: s += ".p2align 6\n" + descriptor(n)
    return s

if __name__ == "__main__":
    out = sys.argv[1]
    kw = dict(x.split("=") for x in sys.argv[2:])
    open(out, "w").write(build2(**kw))
```

```python
from asmlib import Asm
NAME = "concat_heads__gqa_block_cached__mha_block_cached__near_ridge"

P_AX, P_AK, P_AV, P_AWQ, P_AWO, P_BX, P_BK, P_BV = 16, 18, 20, 22, 24, 26, 28, 30
P_BWQ, P_BWO, P_OUT, P_DBG, P_WS = 32, 34, 36, 38, 40
S_WAVE, S_RING, S_TMP = 3, 4, 5
SRD0, SRD1, SRDW = 8, 12, 44
WS_Q, WS_O, WS_P, WS_F = 0, 4 << 20, 8 << 20, 16 << 20
WS_BYTES = 268435456
V_LANE = 1
V_KD = 2
V_VD = 6
V_KR = 10
V_TV = 18
V_TW = 22
V_L16 = 30
V_T0 = 31
V_Q = 40
V_F = 72
V_S = 128
LDS_SCR = 131072
C_SCALE = 0.08838834764831845 * 1.4426950408889634

import struct
def f32(x): return "0x%08x" % struct.unpack("<I", struct.pack("<f", x))[0]
def vr(b, n=4): return f"v[{b}:{b+n-1}]"
def ar(b, n=4): return f"a[{b}:{b+n-1}]"
def sr(b, n=4): return f"s[{b}:{b+n-1}]"

class VM:
    def __init__(self, a): self.a = a; self.q = []
    def issue(self, tag, n=1): self.q += [tag] * n
    def wait(self, tag):
        idx = max(i for i, t in enumerate(self.q) if t == tag)
        n = len(self.q) - 1 - idx
        assert n <= 63
        self.a(f"s_waitcnt vmcnt({n})"); self.q = self.q[idx + 1:]
    def wait_all(self):
        self.a("s_waitcnt vmcnt(0)"); self.q = []

def header(launches):
    s = open("cdna_kernels/" + NAME + ".s.ref").read().split("; Override launch")[0]
    s += "".join(l + "\n" for l in launches)
    s += '.amdgcn_target "amdgcn-amd-amdhsa--gfx950"\n.text\n'
    return s

def kernel_open(name):
    return f".globl {name}\n.p2align 8\n.type {name},@function\n{name}:\n"

def descriptor(name, vgpr=512, accum=256, sgpr=102):
    return f""".amdhsa_kernel {name}
  .amdhsa_next_free_vgpr {vgpr}
  .amdhsa_next_free_sgpr {sgpr}
  .amdhsa_accum_offset {accum}
  .amdhsa_group_segment_fixed_size 0
  .amdhsa_kernarg_size 104
  .amdhsa_user_sgpr_count 2
  .amdhsa_user_sgpr_kernarg_segment_ptr 1
  .amdhsa_system_sgpr_workgroup_id_x 1
.end_amdhsa_kernel
"""

def prologue(a, nwg, end):
    a(f"""s_cmp_ge_u32 s2, {nwg}
    s_cbranch_scc1 {end}
    s_load_dwordx16 s[16:31], s[0:1], 0
    s_load_dwordx8 s[32:39], s[0:1], 64
    s_load_dwordx2 s[40:41], s[0:1], 96
    v_lshrrev_b32 v{V_T0}, 6, v0
    v_and_b32 v{V_LANE}, 63, v0
    v_readfirstlane_b32 s{S_WAVE}, v{V_T0}
    v_lshlrev_b32 v{V_L16}, 4, v{V_LANE}
    s_lshl_b32 s{S_RING}, s{S_WAVE}, 15""")

def srd(a, d, ptr, size):
    a(f"s_mov_b32 s{d}, s{ptr}\ns_mov_b32 s{d+1}, s{ptr+1}\ns_mov_b32 s{d+2}, {size}\ns_mov_b32 s{d+3}, 0x20000")

def srd_sel(a, d, cond, p0, p1, size0, size1=None):
    a(f"s_cmp_eq_u32 s{cond}, 0\ns_cselect_b32 s{d}, s{p0}, s{p1}\ns_cselect_b32 s{d+1}, s{p0+1}, s{p1+1}")
    if size1 is None or size1 == size0: a(f"s_mov_b32 s{d+2}, {size0}")
    else: a(f"s_mov_b32 s{d+2}, {size1}\ns_cmov_b32 s{d+2}, {size0}")
    a(f"s_mov_b32 s{d+3}, 0x20000")

def set_kd(a, rs, dst=V_KD):
    t = V_T0
    sh = rs.bit_length() - 1
    a(f"""v_lshrrev_b32 v{t}, 4, v{V_LANE}
    v_and_b32 v{dst}, 15, v{V_LANE}
    v_xor_b32 v{dst}, v{dst}, v{t}
    v_lshlrev_b32 v{dst}, 4, v{dst}
    v_lshlrev_b32 v{t}, {sh}, v{t}""")
    for k in (1, 2, 3):
        a(f"v_xor_b32 v{dst+k}, {64*k}, v{dst}")
        a(f"v_add_u32 v{dst+k}, v{dst+k}, v{t}")
        if rs != 256: a(f"v_add_u32 v{dst+k}, {k*(4*rs-1024)}, v{dst+k}")
    a(f"v_add_u32 v{dst}, v{dst}, v{t}")

def set_vd(a, rs, dst=V_VD):
    sh = rs.bit_length() - 1
    a(f"""v_lshrrev_b32 v{dst+1}, 4, v{V_LANE}
    v_and_b32 v{dst+2}, 15, v{V_LANE}
    v_lshlrev_b32 v{dst+3}, 2, v{dst+1}
    v_xor_b32 v{dst+2}, v{dst+2}, v{dst+3}
    v_lshlrev_b32 v{dst+2}, 4, v{dst+2}
    v_lshl_add_u32 v{dst}, v{dst+1}, {sh}, v{dst+2}""")
    if rs != 256:
        for k in range(1, 4):
            a(f"v_add_u32 v{dst+k}, {k*(4*rs-1024)}, v{dst}")

def set_kr(a):
    t = V_T0
    a(f"""v_and_b32 v{t}, 31, v{V_LANE}
    v_lshrrev_b32 v{t+1}, 5, v{V_LANE}
    v_and_b32 v{t+2}, 15, v{V_LANE}
    v_xor_b32 v{t+1}, v{t+1}, v{t+2}
    v_lshlrev_b32 v{t+1}, 4, v{t+1}
    v_lshlrev_b32 v{t}, 8, v{t}
    v_add_u32 v{t}, s{S_RING}, v{t}""")
    for s in range(8):
        a(f"v_xor_b32 v{V_KR+s}, {32*s}, v{t+1}")
        a(f"v_add_u32 v{V_KR+s}, v{V_KR+s}, v{t}")

def set_tr(a, want_v=True, want_w=True):
    t = V_T0
    a(f"""v_bfe_u32 v{t}, v{V_LANE}, 2, 2
    v_bfe_u32 v{t+1}, v{V_LANE}, 4, 1
    v_lshlrev_b32 v{t+1}, 5, v{t+1}
    v_and_b32 v{t+2}, 1, v{V_LANE}
    v_lshl_add_u32 v{t+1}, v{t+2}, 4, v{t+1}
    v_bfe_u32 v{t+2}, v{V_LANE}, 1, 1
    v_lshl_add_u32 v{t+1}, v{t+2}, 3, v{t+1}
    v_lshl_add_u32 v{t+1}, v{t}, 8, v{t+1}
    v_lshrrev_b32 v{t+2}, 5, v{V_LANE}
    v_lshlrev_b32 v{t}, 6, v{t}""")
    for T in range(4):
        a(f"v_xor_b32 v{t+3}, {64*T}, v{t}")
        a(f"v_add_u32 v{t+3}, v{t+3}, v{t+1}")
        if want_w:
            a(f"v_lshl_add_u32 v{V_TW+T}, v{t+2}, 11, v{t+3}")
            a(f"v_add_u32 v{V_TW+4+T}, 0x10000, v{V_TW+T}")
    if want_v:
        for B in range(4):
            a(f"s_add_u32 s{S_TMP}, s{S_WAVE}, {B}\ns_and_b32 s{S_TMP}, s{S_TMP}, 3\ns_lshl_b32 s{S_TMP}, s{S_TMP}, 6")
            a(f"v_xor_b32 v{t+3}, s{S_TMP}, v{t}")
            a(f"v_add3_u32 v{t+3}, v{t+3}, v{t+1}, s{S_RING}")
            a(f"v_lshl_add_u32 v{V_TV+B}, v{t+2}, 10, v{t+3}")

def dma_tile(a, vm, tag, srdreg, soff, voff, rs, slot, fl, single=False):
    fl = (" " + fl) if fl else ""
    a(f"s_add_u32 m0, s{S_RING}, {slot*8192}")
    a(f"s_add_u32 s{S_TMP}, s{soff}, {16*rs}")
    for half in range(2):
        if half: a(f"s_add_u32 m0, s{S_RING}, {slot*8192+4096}")
        so = S_TMP if half else soff
        for k in range(4):
            off = f" offset:{1024*k}" if k else ""
            a(f"buffer_load_dwordx4 v{voff+(0 if single else k)}, {sr(srdreg)}, s{so} offen{off}{fl} lds")
    vm.issue(tag, 8)

def park(a, vm, tags, slots, after):
    for t in range(8):
        vm.wait(tags[t])
        for s in range(8):
            a(f"ds_read_b128 {ar(32*t+4*s)}, v{V_KR+s} offset:{slots[t]*8192}")
        a("s_waitcnt lgkmcnt(0)")
        after(t)

V_M, V_MC, V_ONE = 32, 33, 36
S_C = 6

def scores(a):
    def mx(t):
        b = V_S + 16 * t
        if t == 0:
            a(f"v_max3_f32 v{V_M}, v{b}, v{b+1}, v{b+2}")
            rest = list(range(3, 16))
        else:
            rest = list(range(16))
        out = []
        while rest:
            if len(rest) >= 2:
                out.append(f"v_max3_f32 v{V_M}, v{V_M}, v{b+rest[0]}, v{b+rest[1]}"); rest = rest[2:]
            else:
                out.append(f"v_max_f32 v{V_M}, v{V_M}, v{b+rest[0]}"); rest = rest[1:]
        return out
    pend = []
    for t in range(8):
        for s in range(8):
            c = "0" if s == 0 else vr(V_S + 16 * t, 16)
            a(f"v_mfma_f32_32x32x16_bf16 {vr(V_S+16*t,16)}, {ar(32*t+4*s)}, {vr(V_Q+4*s)}, {c}")
            if s >= 3:
                for _ in range(2):
                    if pend: a(pend.pop(0))
        while pend: a(pend.pop(0))
        if t == 0:
            pend = [f"v_max3_f32 v{V_M}, v{V_S}, v{V_S+1}, v{V_S+2}"]
            rest = list(range(3, 16))
            pend += [f"v_max3_f32 v{V_M}, v{V_M}, v{V_S+rest[i]}, v{V_S+rest[i+1]}" for i in range(0, 12, 2)]
            pend += [f"v_max_f32 v{V_M}, v{V_M}, v{V_S+15}"]
        else:
            b = V_S + 16 * t
            pend = [f"v_max3_f32 v{V_M}, v{V_M}, v{b+i}, v{b+i+1}" for i in range(0, 16, 2)]
    while pend: a(pend.pop(0))
    a(f"""v_mov_b32 v{V_MC}, v{V_M}
    v_permlane32_swap_b32 v{V_M}, v{V_MC}
    v_max_f32 v{V_M}, v{V_M}, v{V_MC}
    v_mul_f32 v{V_MC}, s{S_C}, v{V_M}""")

A_O, A_L = 0, 64

def softmax_tile(a, t):
    b = V_S + 16 * t
    out = []
    for i in range(16):
        out.append(f"v_fma_f32 v{b+i}, v{b+i}, s{S_C}, -v{V_MC}")
    ex = [f"v_exp_f32 v{b+i}, v{b+i}" for i in range(16)]
    cv = [f"v_cvt_pk_bf16_f32 v{b+k}, v{b+2*k}, v{b+2*k+1}" for k in range(8)]
    return out + ex + cv

def pv(a, vm, tags, slots, after):
    for k in range(4): a(f"v_mov_b32 v{V_ONE+k}, 0x3f803f80")
    for l in softmax_tile(a, 0): a(l)
    for t in range(8):
        vm.wait(tags[t])
        for T in range(4):
            for s in range(2):
                f = V_F + 8 * T + 4 * s
                o = slots[t] * 8192 + 16 * s * 256
                a(f"ds_read_b64_tr_b16 {vr(f,2)}, v{V_TV+T} offset:{o}")
                a(f"ds_read_b64_tr_b16 {vr(f+2,2)}, v{V_TV+T} offset:{o+8*256}")
        nxt = softmax_tile(a, t + 1) if t < 7 else []
        b = V_S + 16 * t
        for s in range(2):
            c = "0" if (t == 0 and s == 0) else ar(A_L, 16)
            a(f"v_mfma_f32_32x32x16_bf16 {ar(A_L,16)}, {vr(V_ONE)}, {vr(b+4*s)}, {c}")
            for _ in range(4):
                if nxt: a(nxt.pop(0))
        n = 0
        for T in range(4):
            for s in range(2):
                n += 1
                a(f"s_waitcnt lgkmcnt({16-2*n})" if 16 - 2 * n <= 15 else "")
                c = "0" if (t == 0 and s == 0) else ar(A_O + 16 * T, 16)
                a(f"v_mfma_f32_32x32x16_bf16 {ar(A_O+16*T,16)}, {vr(V_F+8*T+4*s)}, {vr(b+4*s)}, {c}")
                for _ in range(4):
                    if nxt: a(nxt.pop(0))
        while nxt: a(nxt.pop(0))
        after(t)

def o_epilogue(a, slot, s_dst, vm, fl="sc1", accO=A_O, accL=A_L, vm_reg=V_M):
    t = V_T0 + 3
    a(f"s_lshl_b32 s{S_TMP}, s{S_WAVE}, 13")
    a(f"s_add_u32 s{S_TMP}, s{S_TMP}, {LDS_SCR}")
    a(f"v_add_u32 v{t}, s{S_RING}, v{V_L16}")
    a(f"v_add_u32 v{t+1}, s{S_TMP}, v{V_L16}")
    a(f"v_mov_b32 v{V_F}, v{vm_reg}")
    a(f"v_accvgpr_read_b32 v{V_F+1}, a{accL}")
    a(f"ds_write_b64 v{t+1}, {vr(V_F,2)} offset:4096")
    for B in (1, 2, 3):
        for g in range(4):
            if B < 3: a(f"ds_write_b128 v{t}, {ar(accO+16*B+4*g)} offset:{slot*8192+4096*(B-1)+1024*g}")
            else:     a(f"ds_write_b128 v{t+1}, {ar(accO+16*B+4*g)} offset:{1024*g}")
    for i in range(16): a(f"v_accvgpr_read_b32 v{V_S+i}, a{accO+i}")
    for B in (1, 2, 3):
        a(f"s_sub_u32 s{S_TMP}, s{S_WAVE}, {B}\ns_and_b32 s{S_TMP}, s{S_TMP}, 3")
        a(f"s_lshl_b32 s7, s{S_TMP}, 13\ns_add_u32 s7, s7, {LDS_SCR}")
        a(f"v_add_u32 v{V_F+20+B}, s7, v{V_L16}")
        if B < 3:
            a(f"s_lshl_b32 s{S_TMP}, s{S_TMP}, 15")
            a(f"v_add_u32 v{V_F+24+B}, s{S_TMP}, v{V_L16}")
    a("s_waitcnt lgkmcnt(0)\ns_barrier")
    for B in (1, 2, 3): a(f"ds_read_b64 {vr(V_F+2*B,2)}, v{V_F+20+B} offset:4096")
    for B in (1, 2, 3):
        for g in range(4):
            if B < 3: a(f"ds_read_b128 {vr(V_S+16*B+4*g)}, v{V_F+24+B} offset:{slot*8192+4096*(B-1)+1024*g}")
            else:     a(f"ds_read_b128 {vr(V_S+16*B+4*g)}, v{V_F+20+B} offset:{1024*g}")
    a("s_waitcnt lgkmcnt(12)")
    m = [V_F + 2 * u for u in range(4)]; l = [x + 1 for x in m]
    M = V_F + 8; L = V_F + 9; f = [V_F + 10 + u for u in range(4)]
    a(f"v_max3_f32 v{M}, v{m[0]}, v{m[1]}, v{m[2]}\nv_max_f32 v{M}, v{M}, v{m[3]}")
    for u in range(4): a(f"v_sub_f32 v{f[u]}, v{m[u]}, v{M}")
    for u in range(4): a(f"v_mul_f32 v{f[u]}, s{S_C}, v{f[u]}")
    for u in range(4): a(f"v_exp_f32 v{f[u]}, v{f[u]}")
    a(f"v_mul_f32 v{L}, v{f[0]}, v{l[0]}")
    for u in range(1, 4): a(f"v_fmac_f32 v{L}, v{f[u]}, v{l[u]}")
    a(f"v_rcp_f32 v{L}, v{L}")
    for u in range(4): a(f"v_mul_f32 v{f[u]}, v{f[u]}, v{L}")
    for i in range(16): a(f"v_mul_f32 v{V_S+i}, v{V_S+i}, v{f[0]}")
    for B in (1, 2, 3):
        a(f"s_waitcnt lgkmcnt({12-4*B})")
        for i in range(16): a(f"v_fmac_f32 v{V_S+i}, v{V_S+16*B+i}, v{f[B]}")
    for k in range(8): a(f"v_cvt_pk_bf16_f32 v{V_S+k}, v{V_S+2*k}, v{V_S+2*k+1}")
    a(f"s_lshl_b32 s{S_TMP}, s{S_WAVE}, 11\ns_add_u32 s{S_TMP}, s{S_TMP}, s{s_dst}")
    a(f"buffer_store_dwordx4 {vr(V_S)}, v{V_L16}, {sr(SRDW)}, s{S_TMP} offen {fl}")
    a(f"buffer_store_dwordx4 {vr(V_S+4)}, v{V_L16}, {sr(SRDW)}, s{S_TMP} offen offset:1024 {fl}")
    vm.issue("ost", 2)

def w_step(a, slot, bfrag, first):
    items = [(w, s) for w in range(4) for s in range(2)]
    def reads(n):
        w, s = items[n]
        buf = V_F + 16 * (n % 3)
        for T in range(4):
            va = V_TW + T + (4 if w >= 2 else 0)
            o = (w & 1) * 32768 + slot * 8192 + 16 * s * 256
            a(f"ds_read_b64_tr_b16 {vr(buf+4*T,2)}, v{va} offset:{o}")
            a(f"ds_read_b64_tr_b16 {vr(buf+4*T+2,2)}, v{va} offset:{o+4*256}")
    reads(0);
    for n in range(8):
        w, s = items[n]
        if n + 1 < 8:
            reads(n + 1); a("s_waitcnt lgkmcnt(8)")
        else:
            a("s_waitcnt lgkmcnt(0)")
        buf = V_F + 16 * (n % 3)
        for T in range(4):
            c = "0" if (first and n == 0) else vr(V_S + 16 * T, 16)
            a(f"v_mfma_f32_32x32x16_bf16 {vr(V_S+16*T,16)}, {vr(buf+4*T)}, {bfrag(w, s)}, {c}")

def cvt_acc(a):
    for T in range(4):
        for k in range(8):
            a(f"v_cvt_pk_bf16_f32 v{V_S+64+8*T+k}, v{V_S+16*T+2*k}, v{V_S+16*T+2*k+1}")
```

```python
import sys
from engines import *

WS_FQ = WS_F
WS_FO = WS_F + 0x10000
WS_FP = WS_F + 0x20000
WS_ST = WS_F + 0x100000
SPIN = 1 << 20

class Stream:
    def __init__(self, a, vm):
        self.a, self.vm = a, vm
        self.q = []
        self.busy = {}
        self.landed = set(); self.issued = {}
    def add(self, tag, slot, srdreg, soff, step, voff, rs, fl, N, single=False, pre=None, wrap=None):
        a = self.a
        fl = (" " + fl) if fl else ""
        def emit(k):
            if k == 0:
                if pre: pre()
                a(f"s_add_u32 m0, s{S_RING}, {slot*8192}")
            if k == 4:
                a(f"s_add_u32 s{soff+1}, s{soff}, {16*rs}")
                a(f"s_add_u32 m0, s{S_RING}, {slot*8192+4096}")
            so = soff + 1 if k >= 4 else soff
            off = f" offset:{1024*(k&3)}" if k & 3 else ""
            a(f"buffer_load_dwordx4 v{voff+(0 if single else k&3)}, {sr(srdreg)}, s{so} offen{off}{fl} lds")
            if k == 7:
                if wrap is None: a(f"s_add_u32 s{soff}, s{soff}, {step}")
                else:
                    a(f"s_add_u32 s{soff+2}, s{soff+2}, {step}\ns_and_b32 s{soff+2}, s{soff+2}, {wrap-1}\ns_add_u32 s{soff}, s{soff+3}, s{soff+2}")
        for k in range(8): self.q.append((tag, slot, k, emit, N))
    def can(self):
        if not self.q: return False
        tag, slot, k, _, _ = self.q[0]
        return self.busy.get(slot) in (None, tag)
    def _sync(self):
        for tag, n in self.issued.items():
            if n == 8 and tag not in self.vm.q: self.landed.add(tag)
    def piece(self, throttle=True):
        tag, slot, k, emit, N = self.q.pop(0)
        if throttle and len(self.vm.q) >= N:
            self.a(f"s_waitcnt vmcnt({N-1})"); self.vm.q = self.vm.q[len(self.vm.q) - (N - 1):] if N > 1 else []
        assert len(self.vm.q) < 63
        self.busy[slot] = tag
        emit(k); self.vm.issue(tag); self.issued[tag] = self.issued.get(tag, 0) + 1
        self._sync()
    def pump(self, n=99, throttle=True):
        while n > 0 and self.can():
            self.piece(throttle); n -= 1
    def need(self, tag):
        self._sync()
        while tag not in self.landed and self.can():
            self.piece()
        if tag not in self.landed:
            assert self.issued.get(tag) == 8, tag
            self.vm.wait(tag); self._sync()
    def release(self, tag):
        for s, t in list(self.busy.items()):
            if t == tag: self.busy[s] = None

class Ctx: pass

def stamp(c, n):
    if not c.stamps: return
    c.a(f"s_memrealtime s[{70+2*n}:{71+2*n}]\ns_waitcnt lgkmcnt(0)")

def poll(c, name, soff_expr_reg, nl, want, voff):
    a = c.a
    a(f"s_mov_b32 s68, {SPIN}")
    a.label(f"L_{name}")
    a(f"buffer_load_dword v{V_T0}, v{voff}, {sr(SRDW)}, s{soff_expr_reg} offen sc1")
    a("s_sub_u32 s68, s68, 1\ns_cbranch_scc1 " + f"L_{name}_x")
    a(f"s_waitcnt vmcnt(0)")
    a(f"v_cmp_ne_u32 vcc, {want}, v{V_T0}")
    a(f"s_cbranch_vccnz L_{name}")
    a.label(f"L_{name}_x")
    c.vm.q = []; c.st._sync()

def park2(c, tags):
    a, st = c.a, c.st
    for t in range(8):
        st.need(tags[t])
        slot = [s for s, g in st.busy.items() if g == tags[t]][0]
        for s in range(8):
            a(f"ds_read_b128 {ar(32*t+4*s)}, v{V_KR+s} offset:{slot*8192}")
        a("s_waitcnt lgkmcnt(0)")
        st.release(tags[t])

def scores2(c):
    a, st = c.a, c.st
    pend = []
    for t in range(8):
        for s in range(8):
            cc = "0" if s == 0 else vr(V_S + 16 * t, 16)
            a(f"v_mfma_f32_32x32x16_bf16 {vr(V_S+16*t,16)}, {ar(32*t+4*s)}, {vr(V_Q+4*s)}, {cc}")
            if s >= 4:
                for _ in range(2):
                    if pend: a(pend.pop(0))
        st.pump(1)
        b = V_S + 16 * t
        if t == 0:
            pend = [f"v_max3_f32 v{V_M}, v{b}, v{b+1}, v{b+2}"]
            pend += [f"v_max3_f32 v{V_M}, v{V_M}, v{b+i}, v{b+i+1}" for i in range(3, 15, 2)]
            pend += [f"v_max_f32 v{V_M}, v{V_M}, v{b+15}"]
        else:
            pend = [f"v_max3_f32 v{V_M}, v{V_M}, v{b+i}, v{b+i+1}" for i in range(0, 16, 2)]
    while pend: a(pend.pop(0))
    a(f"""v_mov_b32 v{V_MC}, v{V_M}
    v_permlane32_swap_b32 v{V_M}, v{V_MC}
    v_max_f32 v{V_M}, v{V_M}, v{V_MC}
    v_mul_f32 v{V_MC}, s{S_C}, v{V_M}""")

def sm_lines(b, mc, src=None):
    out = []
    if src is not None:
        out += [f"v_accvgpr_read_b32 v{b+i}, a{src+i}" for i in range(16)]
    out += [f"v_fma_f32 v{b+i}, v{b+i}, s{S_C}, -v{mc}" for i in range(16)]
    out += [f"v_exp_f32 v{b+i}, v{b+i}" for i in range(16)]
    out += [f"v_cvt_pk_bf16_f32 v{b+k}, v{b+2*k}, v{b+2*k+1}" for k in range(8)]
    return out

def pv2(c, tags, pumps=2, hold_last=True):
    a, st = c.a, c.st
    for k in range(4): a(f"v_mov_b32 v{V_ONE+k}, 0x3f803f80")
    for l in sm_lines(V_S, V_MC): a(l)
    for t in range(8):
        st.need(tags[t])
        slot = [s for s, g in st.busy.items() if g == tags[t]][0]
        for B in range(4):
            for s in range(2):
                f = V_F + 8 * B + 4 * s
                o = slot * 8192 + 16 * s * 256
                a(f"ds_read_b64_tr_b16 {vr(f,2)}, v{V_TV+B} offset:{o}")
                a(f"ds_read_b64_tr_b16 {vr(f+2,2)}, v{V_TV+B} offset:{o+8*256}")
        nxt = sm_lines(V_S + 16 * (t + 1), V_MC) if t < 7 else []
        b = V_S + 16 * t
        for s in range(2):
            cc = "0" if (t == 0 and s == 0) else ar(A_L, 16)
            a(f"v_mfma_f32_32x32x16_bf16 {ar(A_L,16)}, {vr(V_ONE)}, {vr(b+4*s)}, {cc}")
            for _ in range(4):
                if nxt: a(nxt.pop(0))
        n = 0
        for B in range(4):
            for s in range(2):
                n += 1
                a(f"s_waitcnt lgkmcnt({16-2*n})")
                cc = "0" if (t == 0 and s == 0) else ar(A_O + 16 * B, 16)
                a(f"v_mfma_f32_32x32x16_bf16 {ar(A_O+16*B,16)}, {vr(V_F+8*B+4*s)}, {vr(b+4*s)}, {cc}")
                for _ in range(4):
                    if nxt: a(nxt.pop(0))
                if n in (3, 6) and pumps and t < 7: st.pump(pumps // 2)
        while nxt: a(nxt.pop(0))
        if not (hold_last and t == 7): st.release(tags[t])

A_Q1, A_S1, A_L1 = 96, 128, 80
V_M1, V_MC1, V_P1 = 34, 35, 104
def o1(B): return vr(V_Q + 16 * B, 16) if B < 2 else ar(96 + 16 * (B - 2), 16)

def gqa_k(c, tags):
    a, st = c.a, c.st
    pend = []
    for t in range(8):
        st.need(tags[t])
        slot = [s for s, g in st.busy.items() if g == tags[t]][0]
        for s in range(8):
            a(f"ds_read_b128 {vr(V_F+4*s)}, v{V_KR+s} offset:{slot*8192}")
        for s in range(8):
            a(f"s_waitcnt lgkmcnt({7-s})")
            c0 = "0" if s == 0 else vr(V_S + 16 * t, 16)
            c1 = "0" if s == 0 else ar(A_S1 + 16 * t, 16)
            a(f"v_mfma_f32_32x32x16_bf16 {vr(V_S+16*t,16)}, {vr(V_F+4*s)}, {vr(V_Q+4*s)}, {c0}")
            for _ in range(2):
                if pend and s >= 2: a(pend.pop(0))
            a(f"v_mfma_f32_32x32x16_bf16 {ar(A_S1+16*t,16)}, {vr(V_F+4*s)}, {ar(A_Q1+4*s)}, {c1}")
            for _ in range(3):
                if pend and s >= 2: a(pend.pop(0))
            if s == 7:
                st.release(tags[t]); st.pump()
        while pend: a(pend.pop(0))
        b = V_S + 16 * t
        def mx(M, b):
            if t == 0:
                return ([f"v_max3_f32 v{M}, v{b}, v{b+1}, v{b+2}"] + [f"v_max3_f32 v{M}, v{M}, v{b+i}, v{b+i+1}" for i in range(3, 15, 2)]
                        + [f"v_max_f32 v{M}, v{M}, v{b+15}"])
            return [f"v_max3_f32 v{M}, v{M}, v{b+i}, v{b+i+1}" for i in range(0, 16, 2)]
        pend = mx(V_M, b) + [f"v_accvgpr_read_b32 v{V_P1+i}, a{A_S1+16*t+i}" for i in range(16)] + mx(V_M1, V_P1)
    while pend: a(pend.pop(0))
    for M, MC in ((V_M, V_MC), (V_M1, V_MC1)):
        a(f"""v_mov_b32 v{MC}, v{M}
        v_permlane32_swap_b32 v{M}, v{MC}
        v_max_f32 v{M}, v{M}, v{MC}
        v_mul_f32 v{MC}, s{S_C}, v{M}""")

def gqa_v(c, tags, hold):
    a, st = c.a, c.st
    P1 = [V_P1, V_P1 + 16 - 8]
    for k in range(4): a(f"v_mov_b32 v{V_ONE+k}, 0x3f803f80")
    RAW = V_P1 + 8
    def sm1(t):
        out = [f"v_accvgpr_read_b32 v{RAW+i}, a{A_S1+16*t+i}" for i in range(16)]
        out += [f"v_fma_f32 v{RAW+i}, v{RAW+i}, s{S_C}, -v{V_MC1}" for i in range(16)]
        out += [f"v_exp_f32 v{RAW+i}, v{RAW+i}" for i in range(16)]
        return out
    def pk1(): return [f"v_cvt_pk_bf16_f32 v{V_P1+k}, v{RAW+2*k}, v{RAW+2*k+1}" for k in range(8)]
    for l in sm_lines(V_S, V_MC) + sm1(0) + pk1(): a(l)
    for t in range(8):
        st.need(tags[t])
        slot = [s for s, g in st.busy.items() if g == tags[t]][0]
        for B in range(4):
            for s in range(2):
                f = V_F + 8 * B + 4 * s
                o = slot * 8192 + 16 * s * 256
                a(f"ds_read_b64_tr_b16 {vr(f,2)}, v{V_TV+B} offset:{o}")
                a(f"ds_read_b64_tr_b16 {vr(f+2,2)}, v{V_TV+B} offset:{o+8*256}")
        nxt = (sm_lines(V_S + 16 * (t + 1), V_MC) + sm1(t + 1)) if t < 7 else []
        b = V_S + 16 * t
        def fill(n):
            for _ in range(n):
                if nxt: a(nxt.pop(0))
        for s in range(2):
            z = t == 0 and s == 0
            a(f"v_mfma_f32_32x32x16_bf16 {ar(A_L,16)}, {vr(V_ONE)}, {vr(b+4*s)}, {'0' if z else ar(A_L,16)}"); fill(4)
            a(f"v_mfma_f32_32x32x16_bf16 {ar(A_L1,16)}, {vr(V_ONE)}, {vr(V_P1+4*s)}, {'0' if z else ar(A_L1,16)}"); fill(4)
        n = 0
        for B in range(4):
            for s in range(2):
                n += 1
                z = t == 0 and s == 0
                a(f"s_waitcnt lgkmcnt({16-2*n})")
                a(f"v_mfma_f32_32x32x16_bf16 {ar(A_O+16*B,16)}, {vr(V_F+8*B+4*s)}, {vr(b+4*s)}, {'0' if z else ar(A_O+16*B,16)}"); fill(4)
                a(f"v_mfma_f32_32x32x16_bf16 {o1(B)}, {vr(V_F+8*B+4*s)}, {vr(V_P1+4*s)}, {'0' if z else o1(B)}"); fill(5)
        if tags[t] not in hold:
            st.release(tags[t]); st.pump()
        fill(999)
        if t < 7:
            for l in pk1(): a(l)

def o_epi(c, heads):
    a = c.a
    t = V_F + 24
    a(f"s_lshl_b32 s{S_TMP}, s{S_WAVE}, 13\ns_add_u32 s{S_TMP}, s{S_TMP}, {LDS_SCR}")
    a(f"v_add_u32 v{t}, s{S_RING}, v{V_L16}\nv_add_u32 v{t+1}, s{S_TMP}, v{V_L16}")
    def loc(spec, ring, scr):
        base, off = spec
        return (scr, off) if base == "scr" else (ring, base * 8192 + off)
    def sub(txt, g):
        f, lo = txt[0], int(txt[2:txt.index(":")])
        return f"{f}[{lo+4*g}:{lo+4*g+3}]"
    for n, h in enumerate(heads):
        a(f"v_mov_b32 v{V_F+8*n}, v{h['M']}\nv_accvgpr_read_b32 v{V_F+8*n+1}, a{h['L']}")
        v, o = loc(h["st"], t, t + 1)
        a(f"ds_write_b64 v{v}, {vr(V_F+8*n,2)} offset:{o}")
        for B in (1, 2, 3):
            v, o = loc((h["slot"], 4096 * (B - 1)) if B < 3 else h["b3"], t, t + 1)
            for g in range(4): a(f"ds_write_b128 v{v}, {sub(h['acc'](B), g)} offset:{o+1024*g}")
    for n, h in enumerate(heads):
        own = h["acc"](0); lo = int(own[2:own.index(":")])
        for i in range(16):
            a(f"v_accvgpr_read_b32 v{V_S+64*n+i}, a{lo+i}" if own[0] == "a" else f"v_mov_b32 v{V_S+64*n+i}, v{lo+i}")
    for B in (1, 2, 3):
        a(f"s_sub_u32 s{S_TMP}, s{S_WAVE}, {B}\ns_and_b32 s{S_TMP}, s{S_TMP}, 3")
        a(f"s_lshl_b32 s7, s{S_TMP}, 13\ns_add_u32 s7, s7, {LDS_SCR}\ns_lshl_b32 s{S_TMP}, s{S_TMP}, 15")
        a(f"v_add_u32 v{t+2*B}, s{S_TMP}, v{V_L16}\nv_add_u32 v{t+2*B+1}, s7, v{V_L16}")
    a("s_waitcnt lgkmcnt(0)\ns_barrier")
    for n, h in enumerate(heads):
        for B in (1, 2, 3):
            v, o = loc(h["st"], t + 2 * B, t + 2 * B + 1)
            a(f"ds_read_b64 {vr(V_F+8*n+2*B,2)}, v{v} offset:{o}")
        for B in (1, 2, 3):
            v, o = loc((h["slot"], 4096 * (B - 1)) if B < 3 else h["b3"], t + 2 * B, t + 2 * B + 1)
            for g in range(4): a(f"ds_read_b128 {vr(V_S+64*n+16*B+4*g)}, v{v} offset:{o+1024*g}")
        a("s_waitcnt lgkmcnt(12)")
        m = [V_F + 8 * n + 2 * u for u in range(4)]; l = [x + 1 for x in m]
        M = V_F + 16; L = V_F + 17; f = [V_F + 18 + u for u in range(4)]
        a(f"v_max3_f32 v{M}, v{m[0]}, v{m[1]}, v{m[2]}\nv_max_f32 v{M}, v{M}, v{m[3]}")
        for u in range(4): a(f"v_sub_f32 v{f[u]}, v{m[u]}, v{M}")
        for u in range(4): a(f"v_mul_f32 v{f[u]}, s{S_C}, v{f[u]}")
        for u in range(4): a(f"v_exp_f32 v{f[u]}, v{f[u]}")
        a(f"v_mul_f32 v{L}, v{f[0]}, v{l[0]}")
        for u in range(1, 4): a(f"v_fmac_f32 v{L}, v{f[u]}, v{l[u]}")
        a(f"v_rcp_f32 v{L}, v{L}")
        for u in range(4): a(f"v_mul_f32 v{f[u]}, v{f[u]}, v{L}")
        S = V_S + 64 * n
        for i in range(16): a(f"v_mul_f32 v{S+i}, v{S+i}, v{f[0]}")
        for B in (1, 2, 3):
            a(f"s_waitcnt lgkmcnt({12-4*B})")
            for i in range(16): a(f"v_fmac_f32 v{S+i}, v{S+16*B+i}, v{f[B]}")
        for k in range(8): a(f"v_cvt_pk_bf16_f32 v{S+k}, v{S+2*k}, v{S+2*k+1}")
        a(f"s_lshl_b32 s{S_TMP}, s{S_WAVE}, 11\ns_add_u32 s{S_TMP}, s{S_TMP}, s{h['dst']}")
        a(f"buffer_store_dwordx4 {vr(S)}, v{V_L16}, {sr(SRDW)}, s{S_TMP} offen sc1")
        a(f"buffer_store_dwordx4 {vr(S+4)}, v{V_L16}, {sr(SRDW)}, s{S_TMP} offen offset:1024 sc1")
        c.vm.issue("ost", 2)

def flag_store(c, soff, nl=1):
    a = c.a
    a(f"v_mov_b32 v{V_T0}, 1\nv_lshlrev_b32 v{V_F+31}, 2, v{V_LANE}")
    a(f"s_mov_b64 exec, {(1<<nl)-1}")
    a(f"buffer_store_dword v{V_T0}, v{V_F+31}, {sr(SRDW)}, s{soff} offen sc1")
    a("s_mov_b64 exec, -1")
    c.vm.issue("flag")

def load_q(c, soff, dst):
    a = c.a
    a(f"s_add_u32 s{S_TMP}, s{soff}, 4096")
    for s in range(8):
        a(f"buffer_load_dwordx4 {dst(s)}, v{V_L16}, {sr(SRDW)}, s{S_TMP if s >= 4 else soff} offen offset:{1024*(s&3)} sc1")
    c.vm.issue("q", 8)

S_J, S_CC, S_U = 50, 51, 52
S_A = 56
S_B = 60
S_QB, S_OB, S_FQB, S_FOB = 64, 65, 66, 67
S_X0 = 92

def build(stamps=0, n_g2k=6, n_g2v=6, n_g1k=6, n_g1v=8, n_wo=8, fl_x="", fl_wq="", fl_kva="", fl_wo="", fl_kv="nt", rot=1):
    stamps = int(stamps); n_g2k, n_g2v, n_g1k, n_g1v, n_wo = map(int, (n_g2k, n_g2v, n_g1k, n_g1v, n_wo)); rot = int(rot)
    a = Asm()
    prologue(a, 256, "L_end")
    if stamps: a("s_memrealtime s[70:71]")
    a(f"""s_and_b32 s{S_J}, s2, 7
    s_lshr_b32 s{S_CC}, s2, 3
    s_and_b32 s{S_U}, s{S_CC}, 15
    s_and_b32 s53, s{S_CC}, 3
    s_lshl_b32 s7, s{S_J}, 2
    s_add_u32 s53, s53, s7
    s_lshr_b32 s54, s{S_CC}, 2
    s_lshl_b32 s55, s54, 5
    s_add_u32 s55, s55, s53         ; b*32+h
    s_lshl_b32 s{S_QB}, s55, 13
    s_add_u32 s{S_QB}, s{S_QB}, {WS_Q + (2<<20)}
    s_add_u32 s{S_OB}, s{S_QB}, {WS_O - WS_Q}
    s_lshl_b32 s{S_FQB}, s55, 6
    s_add_u32 s{S_FQB}, s{S_FQB}, {WS_FQ + 256*64}
    s_lshl_b32 s{S_FOB}, s54, 3
    s_add_u32 s{S_FOB}, s{S_FOB}, s{S_J}
    s_lshl_b32 s{S_FOB}, s{S_FOB}, 7
    s_and_b32 s7, s{S_CC}, 3
    s_lshl_b32 s7, s7, 2
    s_add_u32 s{S_FOB}, s{S_FOB}, s7
    s_add_u32 s{S_FOB}, s{S_FOB}, {WS_FO + 64*128}
    s_mov_b32 s{S_C}, {f32(C_SCALE)}
    s_cmp_ge_u32 s{S_CC}, 16
    s_cbranch_scc1 L_g2""")

    def mk():
        c = Ctx(); c.a = a; c.vm = VM(a); c.st = Stream(a, c.vm); c.stamps = stamps
        return c
    def kv_offsets():
        a(f"s_lshl_b32 s{S_A}, s55, 18\ns_lshl_b32 s7, s{S_WAVE}, 13\ns_add_u32 s{S_A}, s{S_A}, s7")
    def clear_flags(c, words, name):
        a(f"s_cmp_lg_u32 s{S_WAVE}, 0\ns_cbranch_scc1 L_{name}")
        a(f"v_mov_b32 v{V_T0}, 0")
        for so, nl, sh in words:
            a(f"v_lshlrev_b32 v{V_F+31}, {sh}, v{V_LANE}\ns_mov_b64 exec, {(1<<nl)-1}")
            a(f"buffer_store_dword v{V_T0}, v{V_F+31}, {sr(SRDW)}, s{so} offen sc1\ns_mov_b64 exec, -1")
        a.label(f"L_{name}")
    def count_in(c, name):
        a(f"s_cmp_lg_u32 s{S_WAVE}, 0\ns_cbranch_scc1 L_{name}")
        a(f"s_lshl_b32 s7, s{S_J}, 5\nv_mov_b32 v{V_T0}, 1\nv_mov_b32 v{V_F+31}, s7\ns_waitcnt vmcnt(0)\ns_mov_b64 exec, 1")
        a(f"global_atomic_add v{V_F+31}, v{V_T0}, s[{P_DBG}:{P_DBG+1}] sc1")
        a("s_mov_b64 exec, -1")
        a.label(f"L_{name}")
    def wait_cleared(c, name):
        a(f"s_mov_b32 s68, {SPIN}\nv_and_b32 v{V_F+31}, 7, v{V_LANE}\nv_lshlrev_b32 v{V_F+31}, 5, v{V_F+31}")
        a.label(f"L_{name}")
        a(f"global_load_dword v{V_T0}, v{V_F+31}, s[{P_DBG}:{P_DBG+1}] sc1")
        a(f"s_sub_u32 s68, s68, 1\ns_cbranch_scc1 L_{name}_x\ns_waitcnt vmcnt(0)")
        a(f"v_cmp_ne_u32 vcc, 32, v{V_T0}\ns_cbranch_vccnz L_{name}")
        a.label(f"L_{name}_x")
        c.vm.q = []; c.st._sync()
    def fp_word():
        a(f"s_xor_b32 s{S_X0}, s{S_CC}, 16          ; c_to")
        a(f"s_lshl_b32 s{S_X0+1}, s{S_X0}, 2\ns_add_u32 s{S_X0+1}, s{S_X0+1}, s{S_WAVE}\ns_lshl_b32 s{S_X0+1}, s{S_X0+1}, 7")
        a(f"s_lshl_b32 s7, s{S_J}, 2\ns_add_u32 s{S_X0+1}, s{S_X0+1}, s7\ns_add_u32 s{S_X0+1}, s{S_X0+1}, {WS_FP}")
    def add_wo(c, X):
        def pre():
            set_vd(a, 2048)
            srd(a, SRD1, P_BWO if X else P_AWO, 0x800000)
            a(f"s_lshl_b32 s{S_B+3}, s{S_J}, 2\ns_add_u32 s{S_B+3}, s{S_B+3}, s{S_WAVE}\ns_lshl_b32 s{S_B+3}, s{S_B+3}, 18")
            a(f"s_and_b32 s7, s{S_U}, 7\ns_lshl_b32 s7, s7, 8\ns_add_u32 s{S_B+3}, s{S_B+3}, s7")
            a(f"s_lshr_b32 s{S_B+2}, s{S_U}, 3\ns_lshl_b32 s{S_B+2}, s{S_B+2}, 17" if rot else f"s_mov_b32 s{S_B+2}, 0")
            a(f"s_add_u32 s{S_B}, s{S_B+3}, s{S_B+2}")
        for t in range(4):
            c.st.add(f"wo{t}", t, SRD1, S_B, 65536, V_VD, 2048, fl_wo, n_wo, pre=pre if t == 0 else None, wrap=262144)
    def add_kv(c, nk, nv, first):
        def prek():
            set_kd(a, 256); srd(a, SRD0, P_BK, 0x4000000); kv_offsets()
        def prev():
            set_vd(a, 256); srd(a, SRD1, P_BV, 0x4000000)
            a(f"s_lshl_b32 s{S_B}, s55, 18\ns_lshl_b32 s7, s{S_WAVE}, 13\ns_add_u32 s{S_B}, s{S_B}, s7")
        for t in range(8): c.st.add(f"k{t}", t & 3, SRD0, S_A, 32768, V_KD, 256, fl_kv, nk, pre=prek if t == 0 else None)
        for t in range(8): c.st.add(f"v{t}", t & 3, SRD1, S_B, 32768, V_VD, 256, fl_kv, nv, single=True, pre=prev if t == 0 else None)
    def mha(c, tag, sbase):
        st = c.st
        park2(c, [f"k{t}" for t in range(8)])
        stamp(c, sbase)
        if tag == "g2": st.pump()
        wait_cleared(c, tag + "clr")
        a(f"v_mov_b32 v{V_F+31}, 0")
        poll(c, tag + "q", S_FQB, 1, 1, V_F + 31)
        load_q(c, S_QB, lambda s: vr(V_Q + 4 * s))
        st.pump(2)
        c.vm.wait("q"); st._sync()
        stamp(c, sbase + 1)
        scores2(c)
        pv2(c, [f"v{t}" for t in range(8)])
        stamp(c, sbase + 2)
        o_epi(c, [dict(acc=lambda B: ar(A_O + 16 * B, 16), L=A_L, M=V_M, slot=3, b3=("scr", 0), st=("scr", 4096), dst=S_OB)])
    def publish_o(c, so, nl, name):
        c.vm.wait("ost"); c.st._sync()
        a("s_barrier")
        a(f"s_cmp_lg_u32 s{S_WAVE}, 0\ns_cbranch_scc1 L_{name}")
        q = list(c.vm.q)
        flag_store(c, so, nl)
        a.label(f"L_{name}")
        c.vm.q = q

    def oproj(c, X, tag, sbase):
        st = c.st
        a(f"""s_lshr_b32 s{S_X0+2}, s{S_U}, 3
        s_lshl_b32 s{S_X0+2}, s{S_X0+2}, 2
        s_add_u32 s{S_X0+2}, s{S_X0+2}, s{S_WAVE}
        s_add_u32 s{S_X0+2}, s{S_X0+2}, {8*X}        ; X*8 + batch
        s_lshl_b32 s{S_X0+3}, s{S_X0+2}, 3
        s_add_u32 s{S_X0+3}, s{S_X0+3}, s{S_J}
        s_lshl_b32 s{S_X0+4}, s{S_X0+3}, 15
        s_add_u32 s{S_X0+4}, s{S_X0+4}, {WS_O}       ; O offset
        s_lshl_b32 s{S_X0+3}, s{S_X0+3}, 7
        s_add_u32 s{S_X0+3}, s{S_X0+3}, {WS_FO}
        v_and_b32 v{V_F+31}, 3, v{V_LANE}
        v_lshlrev_b32 v{V_F+31}, 2, v{V_F+31}""")
        st.pump(throttle=False)
        poll(c, tag + "o", S_X0 + 3, 4, 1, V_F + 31)
        stamp(c, sbase)
        if rot: a(f"s_lshr_b32 s7, s{S_U}, 3\ns_lshl_b32 s7, s7, 12")
        else: a("s_mov_b32 s7, 0")
        for half in range(2):
            for w in range(4):
                a(f"s_add_u32 s{S_TMP}, s{S_X0+4}, s7" if w == 0 else f"s_add_u32 s{S_TMP}, s{S_TMP}, 8192")
                for k in range(4):
                    a(f"buffer_load_dwordx4 {ar(32*w+16*half+4*k)}, v{V_L16}, {sr(SRDW)}, s{S_TMP} offen offset:{1024*k} sc1")
            c.vm.issue(f"of{half}", 16)
            a("s_xor_b32 s7, s7, 4096")
        a("s_barrier")
        for i in range(4):
            if i in (0, 2): c.vm.wait(f"of{i//2}")
            w_step(a, i, lambda w, s: ar(32 * w + 4 * (2 * i + s)), i == 0)
        cvt_acc(a)
        t = V_T0
        a(f"""v_and_b32 v{t}, 15, v{V_LANE}
        v_lshlrev_b32 v{t}, 4, v{t}
        v_lshrrev_b32 v{t+1}, 5, v{V_LANE}
        v_lshl_add_u32 v{t}, v{t+1}, 8, v{t}
        v_bfe_u32 v{t+1}, v{V_LANE}, 4, 1
        v_lshl_add_u32 v{t}, v{t+1}, 15, v{t}
        s_lshl_b32 s61, s{S_X0}, 3
        s_lshl_b32 s62, s{S_WAVE}, 1
        s_add_u32 s61, s61, s62
        s_lshl_b32 s61, s61, 3
        s_add_u32 s61, s61, s{S_J}
        s_lshl_b32 s61, s61, 12
        s_add_u32 s61, s61, {WS_P}""")
        for p in range(8):
            a(f"buffer_store_dwordx4 {vr(V_S+64+4*p)}, v{t}, {sr(SRDW)}, s61 offen offset:{512*p} sc1")
        stamp(c, sbase + 1)
        c.vm.wait_all()
        flag_store(c, S_X0 + 1)
        a("s_branch L_red")

    c = mk(); st = c.st
    set_kd(a, 2048)
    a(f"""s_lshr_b32 s{S_X0+5}, s{S_U}, 3           ; X
    s_and_b32 s{S_X0+6}, s{S_U}, 3            ; hh
    s_bfe_u32 s{S_X0+7}, s{S_U}, 0x10002      ; r
    s_lshl_b32 s{S_X0+8}, s{S_X0+7}, 2
    s_add_u32 s{S_X0+8}, s{S_X0+8}, s{S_WAVE}   ; batch
    s_lshl_b32 s{S_A+3}, s{S_X0+8}, 16
    s_lshl_b32 s7, s{S_J}, 2
    s_add_u32 s{S_X0+9}, s{S_X0+6}, s7          ; head
    s_lshl_b32 s{S_X0+2}, s{S_X0+6}, 1
    s_lshl_b32 s7, s{S_X0+7}, 2
    s_add_u32 s{S_X0+2}, s{S_X0+2}, s7
    s_and_b32 s{S_X0+2}, s{S_X0+2}, {7 if rot else 0}
    s_lshl_b32 s{S_A+2}, s{S_X0+2}, 8
    s_add_u32 s{S_A}, s{S_A+3}, s{S_A+2}
    s_waitcnt lgkmcnt(0)""")
    srd_sel(a, SRD0, S_X0 + 5, P_AX, P_BX, 0x80000)
    for t in range(8): st.add(f"x{t}", t & 3, SRD0, S_A, 256, V_KD, 2048, fl_x, 32, wrap=2048)
    st.pump()
    srd(a, SRDW, P_WS, WS_BYTES)
    def prew():
        set_vd(a, 8192)
        srd_sel(a, SRD1, S_X0 + 5, P_AWQ, P_BWQ, 0x800000)
        a(f"s_lshl_b32 s{S_B+3}, s{S_X0+9}, 8\ns_lshl_b32 s7, s{S_WAVE}, 18\ns_add_u32 s{S_B+3}, s{S_B+3}, s7")
        a(f"s_lshl_b32 s{S_B+2}, s{S_X0+2}, 20\ns_add_u32 s{S_B}, s{S_B+3}, s{S_B+2}")
    for t in range(8): st.add(f"w{t}", t & 3, SRD1, S_B, 1 << 20, V_VD, 8192, fl_wq, 32, pre=prew if t == 0 else None, wrap=8 << 20)
    add_kv(c, n_g1k, n_g1v, False)
    add_wo(c, 1)
    a(f"""s_lshl_b32 s{S_X0+3}, s{S_X0+5}, 3
    s_add_u32 s{S_X0+3}, s{S_X0+3}, s{S_X0+8}
    s_lshl_b32 s{S_X0+3}, s{S_X0+3}, 5
    s_add_u32 s{S_X0+3}, s{S_X0+3}, s{S_X0+9}
    s_lshl_b32 s{S_X0+4}, s{S_X0+3}, 6
    s_add_u32 s{S_X0+4}, s{S_X0+4}, {WS_FQ}
    s_lshl_b32 s{S_X0+3}, s{S_X0+3}, 13""")
    fp_word()
    clear_flags(c, [(S_X0 + 4, 4, 11), (S_FOB, 1, 2), (S_X0 + 1, 4, 7)], "g1clear")
    set_kr(a); set_tr(a)
    count_in(c, "g1count")
    park2(c, [f"x{t}" for t in range(8)])
    stamp(c, 1)
    for t in range(8):
        st.need(f"w{t}")
        a("s_barrier")
        if t: st.release(f"w{t-1}")
        st.pump(8, throttle=False)
        w_step(a, t & 3, lambda w, s: ar(32 * t + 4 * (2 * w + s)), t == 0)
    a("s_barrier"); st.release("w7")
    cvt_acc(a)
    a(f"s_add_u32 s{S_TMP}, s{S_X0+3}, 4096")
    for s in range(8):
        a(f"buffer_store_dwordx4 {vr(V_S+64+4*s)}, v{V_L16}, {sr(SRDW)}, s{S_TMP if s>=4 else S_X0+3} offen offset:{1024*(s&3)} sc1")
    c.vm.issue("qst", 8)
    c.vm.wait("qst"); st._sync()
    flag_store(c, S_X0 + 4)
    stamp(c, 2)
    mha(c, "g1", 3)
    publish_o(c, S_FOB, 1, "g1pub")
    st.release("v7")
    stamp(c, 6)
    oproj(c, 1, "g1", 7)

    a.label("L_g2")
    c = mk(); st = c.st
    a("s_waitcnt lgkmcnt(0)")
    add_kv(c, n_g2k, n_g2v, True)
    st.pump(n_g2k)
    srd(a, SRDW, P_WS, WS_BYTES)
    a(f"""s_lshl_b32 s{S_X0+5}, s{S_U}, 1
    s_lshl_b32 s{S_X0+6}, s{S_J}, 5
    s_add_u32 s{S_X0+6}, s{S_X0+6}, s{S_X0+5}   ; b*32+h
    s_lshl_b32 s{S_X0+7}, s{S_X0+6}, 6
    s_add_u32 s{S_X0+7}, s{S_X0+7}, {WS_FQ}     ; Q flag
    s_lshl_b32 s{S_X0+6}, s{S_X0+6}, 13
    s_lshl_b32 s{S_X0+8}, s{S_J}, 3
    s_lshr_b32 s7, s{S_U}, 1
    s_add_u32 s{S_X0+8}, s{S_X0+8}, s7
    s_lshl_b32 s{S_X0+8}, s{S_X0+8}, 7
    s_and_b32 s7, s{S_U}, 1
    s_lshl_b32 s7, s7, 3
    s_add_u32 s{S_X0+8}, s{S_X0+8}, s7
    s_add_u32 s{S_X0+8}, s{S_X0+8}, {WS_FO}
    s_add_u32 s{S_X0+9}, s{S_X0+8}, 4""")
    def kva_off(S):
        a(f"s_lshl_b32 s{S+3}, s{S_J}, 2\ns_lshr_b32 s7, s{S_U}, 2\ns_add_u32 s{S+3}, s{S+3}, s7\ns_lshl_b32 s{S+3}, s{S+3}, 18")
        a(f"s_lshl_b32 s7, s{S_WAVE}, 13\ns_add_u32 s{S+3}, s{S+3}, s7")
        a(f"s_and_b32 s{S+2}, s{S_U}, {3 if rot else 0}\ns_lshl_b32 s{S+2}, s{S+2}, 16\ns_add_u32 s{S}, s{S+3}, s{S+2}")
    def preka(): srd(a, SRD0, P_AK, 0x800000); kva_off(S_A)
    def preva(): srd(a, SRD1, P_AV, 0x800000); kva_off(S_B)
    for t in range(8): st.add(f"ka{t}", t & 3, SRD0, S_A, 32768, V_KD, 256, fl_kva, 32, pre=preka if t == 0 else None, wrap=262144)
    for t in range(8): st.add(f"va{t}", t & 3, SRD1, S_B, 32768, V_VD, 256, fl_kva, 32, single=True, pre=preva if t == 0 else None, wrap=262144)
    add_wo(c, 0)
    fp_word()
    clear_flags(c, [(S_FOB, 1, 2), (S_X0 + 8, 2, 2), (S_X0 + 1, 4, 7)], "g2clear")
    set_kr(a); set_tr(a)
    count_in(c, "g2count")
    mha(c, "g2", 1)
    publish_o(c, S_FOB, 1, "g2pub")
    st.release("v7"); st.pump()
    a(f"v_and_b32 v{V_F+31}, 1, v{V_LANE}\nv_lshlrev_b32 v{V_F+31}, 6, v{V_F+31}")
    poll(c, "g2qa", S_X0 + 7, 2, 1, V_F + 31)
    load_q(c, S_X0 + 6, lambda s: vr(V_Q + 4 * s))
    a(f"s_add_u32 s{S_X0+7}, s{S_X0+6}, 8192")
    load_q(c, S_X0 + 7, lambda s: ar(A_Q1 + 4 * s))
    c.vm.wait("q"); st._sync()
    stamp(c, 4)
    gqa_k(c, [f"ka{t}" for t in range(8)])
    stamp(c, 5)
    gqa_v(c, [f"va{t}" for t in range(8)], hold=("va5", "va6", "va7"))
    a(f"s_add_u32 s{S_X0+6}, s{S_X0+6}, {WS_O}\ns_add_u32 s{S_X0+7}, s{S_X0+7}, {WS_O}")
    o_epi(c, [dict(acc=lambda B: ar(A_O + 16 * B, 16), L=A_L, M=V_M, slot=3, b3=("scr", 0), st=(1, 0), dst=S_X0 + 6),
              dict(acc=o1, L=A_L1, M=V_M1, slot=2, b3=("scr", 4096), st=(1, 1024), dst=S_X0 + 7)])
    publish_o(c, S_X0 + 8, 2, "g2pub2")
    for g in ("va5", "va6", "va7"): st.release(g)
    stamp(c, 6)
    oproj(c, 0, "g2", 7)

    a.label("L_red")
    c = mk()
    a(f"""s_lshl_b32 s{S_X0+2}, s{S_X0}, 2
    s_lshr_b32 s7, s{S_J}, 1
    s_add_u32 s{S_X0+2}, s{S_X0+2}, s7
    s_lshl_b32 s{S_X0+2}, s{S_X0+2}, 7
    s_add_u32 s{S_X0+2}, s{S_X0+2}, {WS_FP}
    v_and_b32 v{V_F+31}, 7, v{V_LANE}
    v_lshlrev_b32 v{V_F+31}, 2, v{V_F+31}""")
    poll(c, "redp", S_X0 + 2, 8, 1, V_F + 31)
    stamp(c, 9)
    from gen_v1 import reduce_body
    reduce_body(a, c.vm, S_X0, S_J, fl="sc1")
    if stamps:
        a("s_waitcnt vmcnt(0)\ns_memrealtime s[90:91]\ns_waitcnt lgkmcnt(0)")
        a(f"s_lshl_b32 s7, s2, 2\ns_add_u32 s7, s7, s{S_WAVE}\ns_lshl_b32 s7, s7, 6\ns_add_u32 s7, s7, {WS_ST}")
        for n in range(11): a(f"v_mov_b32 v{V_S+n}, s{70+2*n}")
        a(f"v_mov_b32 v{V_T0}, 0\ns_mov_b64 exec, 1")
        for q in range(3): a(f"buffer_store_dwordx4 {vr(V_S+4*q)}, v{V_T0}, {sr(SRDW)}, s7 offen offset:{16*q}")
    a.label("L_end"); a("s_endpgm")
    s = header(["; @launch grid=(256,1,1) block=(256,1,1) lds=163840"])
    s += kernel_open(NAME + "_kernel") + a.finish() + "\n"
    s += '.section .rodata,"a"\n.p2align 6\n' + descriptor(NAME + "_kernel")
    return s

if __name__ == "__main__":
    out = sys.argv[1]
    kw = dict(x.split("=") for x in sys.argv[2:])
    open(out, "w").write(build(**kw))
```

```python
import sys
from engines import *

WS_FQ = WS_F
WS_FO = WS_F + 0x10000
WS_FP = WS_F + 0x20000
WS_ST = WS_F + 0x100000
SPIN = 1 << 20

class Stream:
    def __init__(self, a, vm):
        self.a, self.vm = a, vm
        self.q = []
        self.busy = {}
        self.landed = set(); self.issued = {}
    def add(self, tag, slot, srdreg, soff, step, voff, rs, fl, N, single=False, pre=None, wrap=None):
        a = self.a
        fl = (" " + fl) if fl else ""
        def emit(k):
            if k == 0:
                if pre: pre()
                a(f"s_add_u32 m0, s{S_RING}, {slot*8192}")
            if k == 4:
                a(f"s_add_u32 s{soff+1}, s{soff}, {16*rs}")
                a(f"s_add_u32 m0, s{S_RING}, {slot*8192+4096}")
            so = soff + 1 if k >= 4 else soff
            off = f" offset:{1024*(k&3)}" if k & 3 else ""
            a(f"buffer_load_dwordx4 v{voff+(0 if single else k&3)}, {sr(srdreg)}, s{so} offen{off}{fl} lds")
            if k == 7:
                if wrap is None: a(f"s_add_u32 s{soff}, s{soff}, {step}")
                else:
                    a(f"s_add_u32 s{soff+2}, s{soff+2}, {step}\ns_and_b32 s{soff+2}, s{soff+2}, {wrap-1}\ns_add_u32 s{soff}, s{soff+3}, s{soff+2}")
        for k in range(8): self.q.append((tag, slot, k, emit, N))
    def can(self):
        if not self.q: return False
        tag, slot, k, _, _ = self.q[0]
        return self.busy.get(slot) in (None, tag)
    def _sync(self):
        for tag, n in self.issued.items():
            if n == 8 and tag not in self.vm.q: self.landed.add(tag)
    def piece(self, throttle=True):
        tag, slot, k, emit, N = self.q.pop(0)
        if throttle and len(self.vm.q) >= N:
            self.a(f"s_waitcnt vmcnt({N-1})"); self.vm.q = self.vm.q[len(self.vm.q) - (N - 1):] if N > 1 else []
        assert len(self.vm.q) < 63
        self.busy[slot] = tag
        emit(k); self.vm.issue(tag); self.issued[tag] = self.issued.get(tag, 0) + 1
        self._sync()
    def pump(self, n=99, throttle=True):
        while n > 0 and self.can():
            self.piece(throttle); n -= 1
    def need(self, tag):
        self._sync()
        while tag not in self.landed and self.can():
            self.piece()
        if tag not in self.landed:
            assert self.issued.get(tag) == 8, tag
            self.vm.wait(tag); self._sync()
    def release(self, tag):
        for s, t in list(self.busy.items()):
            if t == tag: self.busy[s] = None

class Ctx: pass

def stamp(c, n):
    if not c.stamps: return
    c.a(f"s_memrealtime s[{70+2*n}:{71+2*n}]\ns_waitcnt lgkmcnt(0)")

def poll(c, name, soff_expr_reg, nl, want, voff):
    a = c.a
    a(f"s_mov_b32 s68, {SPIN}")
    a.label(f"L_{name}")
    a(f"buffer_load_dword v{V_T0}, v{voff}, {sr(SRDW)}, s{soff_expr_reg} offen sc1")
    a("s_sub_u32 s68, s68, 1\ns_cbranch_scc1 " + f"L_{name}_x")
    a(f"s_waitcnt vmcnt(0)")
    a(f"v_cmp_ne_u32 vcc, {want}, v{V_T0}")
    a(f"s_cbranch_vccnz L_{name}")
    a.label(f"L_{name}_x")
    c.vm.q = []; c.st._sync()

def park2(c, tags):
    a, st = c.a, c.st
    for t in range(8):
        st.need(tags[t])
        slot = [s for s, g in st.busy.items() if g == tags[t]][0]
        for s in range(8):
            a(f"ds_read_b128 {ar(32*t+4*s)}, v{V_KR+s} offset:{slot*8192}")
        a("s_waitcnt lgkmcnt(0)")
        st.release(tags[t])

def scores2(c):
    a, st = c.a, c.st
    pend = []
    for t in range(8):
        for s in range(8):
            cc = "0" if s == 0 else vr(V_S + 16 * t, 16)
            a(f"v_mfma_f32_32x32x16_bf16 {vr(V_S+16*t,16)}, {ar(32*t+4*s)}, {vr(V_Q+4*s)}, {cc}")
            if s >= 4:
                for _ in range(2):
                    if pend: a(pend.pop(0))
        st.pump(1)
        b = V_S + 16 * t
        if t == 0:
            pend = [f"v_max3_f32 v{V_M}, v{b}, v{b+1}, v{b+2}"]
            pend += [f"v_max3_f32 v{V_M}, v{V_M}, v{b+i}, v{b+i+1}" for i in range(3, 15, 2)]
            pend += [f"v_max_f32 v{V_M}, v{V_M}, v{b+15}"]
        else:
            pend = [f"v_max3_f32 v{V_M}, v{V_M}, v{b+i}, v{b+i+1}" for i in range(0, 16, 2)]
    while pend: a(pend.pop(0))
    a(f"""v_mov_b32 v{V_MC}, v{V_M}
    v_permlane32_swap_b32 v{V_M}, v{V_MC}
    v_max_f32 v{V_M}, v{V_M}, v{V_MC}
    v_mul_f32 v{V_MC}, s{S_C}, v{V_M}""")

def sm_lines(b, mc, src=None):
    out = []
    if src is not None:
        out += [f"v_accvgpr_read_b32 v{b+i}, a{src+i}" for i in range(16)]
    out += [f"v_fma_f32 v{b+i}, v{b+i}, s{S_C}, -v{mc}" for i in range(16)]
    out += [f"v_exp_f32 v{b+i}, v{b+i}" for i in range(16)]
    out += [f"v_cvt_pk_bf16_f32 v{b+k}, v{b+2*k}, v{b+2*k+1}" for k in range(8)]
    return out

def pv2(c, tags, pumps=2, hold_last=True):
    a, st = c.a, c.st
    for k in range(4): a(f"v_mov_b32 v{V_ONE+k}, 0x3f803f80")
    for l in sm_lines(V_S, V_MC): a(l)
    for t in range(8):
        st.need(tags[t])
        slot = [s for s, g in st.busy.items() if g == tags[t]][0]
        for B in range(4):
            for s in range(2):
                f = V_F + 8 * B + 4 * s
                o = slot * 8192 + 16 * s * 256
                a(f"ds_read_b64_tr_b16 {vr(f,2)}, v{V_TV+B} offset:{o}")
                a(f"ds_read_b64_tr_b16 {vr(f+2,2)}, v{V_TV+B} offset:{o+8*256}")
        nxt = sm_lines(V_S + 16 * (t + 1), V_MC) if t < 7 else []
        b = V_S + 16 * t
        for s in range(2):
            cc = "0" if (t == 0 and s == 0) else ar(A_L, 16)
            a(f"v_mfma_f32_32x32x16_bf16 {ar(A_L,16)}, {vr(V_ONE)}, {vr(b+4*s)}, {cc}")
            for _ in range(4):
                if nxt: a(nxt.pop(0))
        n = 0
        for B in range(4):
            for s in range(2):
                n += 1
                a(f"s_waitcnt lgkmcnt({16-2*n})")
                cc = "0" if (t == 0 and s == 0) else ar(A_O + 16 * B, 16)
                a(f"v_mfma_f32_32x32x16_bf16 {ar(A_O+16*B,16)}, {vr(V_F+8*B+4*s)}, {vr(b+4*s)}, {cc}")
                for _ in range(4):
                    if nxt: a(nxt.pop(0))
                if n in (3, 6) and pumps and t < 7: st.pump(pumps // 2)
        while nxt: a(nxt.pop(0))
        if not (hold_last and t == 7): st.release(tags[t])

A_Q1, A_S1, A_L1 = 96, 128, 80
V_M1, V_MC1, V_P1 = 34, 35, 104
def o1(B): return vr(V_Q + 16 * B, 16) if B < 2 else ar(96 + 16 * (B - 2), 16)

def gqa_k(c, tags):
    a, st = c.a, c.st
    pend = []
    for t in range(8):
        st.need(tags[t])
        slot = [s for s, g in st.busy.items() if g == tags[t]][0]
        for s in range(8):
            a(f"ds_read_b128 {vr(V_F+4*s)}, v{V_KR+s} offset:{slot*8192}")
        for s in range(8):
            a(f"s_waitcnt lgkmcnt({7-s})")
            c0 = "0" if s == 0 else vr(V_S + 16 * t, 16)
            c1 = "0" if s == 0 else ar(A_S1 + 16 * t, 16)
            a(f"v_mfma_f32_32x32x16_bf16 {vr(V_S+16*t,16)}, {vr(V_F+4*s)}, {vr(V_Q+4*s)}, {c0}")
            for _ in range(2):
                if pend and s >= 2: a(pend.pop(0))
            a(f"v_mfma_f32_32x32x16_bf16 {ar(A_S1+16*t,16)}, {vr(V_F+4*s)}, {ar(A_Q1+4*s)}, {c1}")
            for _ in range(3):
                if pend and s >= 2: a(pend.pop(0))
            if s == 7:
                st.release(tags[t]); st.pump()
        while pend: a(pend.pop(0))
        b = V_S + 16 * t
        def mx(M, b):
            if t == 0:
                return ([f"v_max3_f32 v{M}, v{b}, v{b+1}, v{b+2}"] + [f"v_max3_f32 v{M}, v{M}, v{b+i}, v{b+i+1}" for i in range(3, 15, 2)]
                        + [f"v_max_f32 v{M}, v{M}, v{b+15}"])
            return [f"v_max3_f32 v{M}, v{M}, v{b+i}, v{b+i+1}" for i in range(0, 16, 2)]
        pend = mx(V_M, b) + [f"v_accvgpr_read_b32 v{V_P1+i}, a{A_S1+16*t+i}" for i in range(16)] + mx(V_M1, V_P1)
    while pend: a(pend.pop(0))
    for M, MC in ((V_M, V_MC), (V_M1, V_MC1)):
        a(f"""v_mov_b32 v{MC}, v{M}
        v_permlane32_swap_b32 v{M}, v{MC}
        v_max_f32 v{M}, v{M}, v{MC}
        v_mul_f32 v{MC}, s{S_C}, v{M}""")

def gqa_v(c, tags, hold):
    a, st = c.a, c.st
    P1 = [V_P1, V_P1 + 16 - 8]
    for k in range(4): a(f"v_mov_b32 v{V_ONE+k}, 0x3f803f80")
    RAW = V_P1 + 8
    def sm1(t):
        out = [f"v_accvgpr_read_b32 v{RAW+i}, a{A_S1+16*t+i}" for i in range(16)]
        out += [f"v_fma_f32 v{RAW+i}, v{RAW+i}, s{S_C}, -v{V_MC1}" for i in range(16)]
        out += [f"v_exp_f32 v{RAW+i}, v{RAW+i}" for i in range(16)]
        return out
    def pk1(): return [f"v_cvt_pk_bf16_f32 v{V_P1+k}, v{RAW+2*k}, v{RAW+2*k+1}" for k in range(8)]
    for l in sm_lines(V_S, V_MC) + sm1(0) + pk1(): a(l)
    for t in range(8):
        st.need(tags[t])
        slot = [s for s, g in st.busy.items() if g == tags[t]][0]
        for B in range(4):
            for s in range(2):
                f = V_F + 8 * B + 4 * s
                o = slot * 8192 + 16 * s * 256
                a(f"ds_read_b64_tr_b16 {vr(f,2)}, v{V_TV+B} offset:{o}")
                a(f"ds_read_b64_tr_b16 {vr(f+2,2)}, v{V_TV+B} offset:{o+8*256}")
        nxt = (sm_lines(V_S + 16 * (t + 1), V_MC) + sm1(t + 1)) if t < 7 else []
        b = V_S + 16 * t
        def fill(n):
            for _ in range(n):
                if nxt: a(nxt.pop(0))
        for s in range(2):
            z = t == 0 and s == 0
            a(f"v_mfma_f32_32x32x16_bf16 {ar(A_L,16)}, {vr(V_ONE)}, {vr(b+4*s)}, {'0' if z else ar(A_L,16)}"); fill(4)
            a(f"v_mfma_f32_32x32x16_bf16 {ar(A_L1,16)}, {vr(V_ONE)}, {vr(V_P1+4*s)}, {'0' if z else ar(A_L1,16)}"); fill(4)
        n = 0
        for B in range(4):
            for s in range(2):
                n += 1
                z = t == 0 and s == 0
                a(f"s_waitcnt lgkmcnt({16-2*n})")
                a(f"v_mfma_f32_32x32x16_bf16 {ar(A_O+16*B,16)}, {vr(V_F+8*B+4*s)}, {vr(b+4*s)}, {'0' if z else ar(A_O+16*B,16)}"); fill(4)
                a(f"v_mfma_f32_32x32x16_bf16 {o1(B)}, {vr(V_F+8*B+4*s)}, {vr(V_P1+4*s)}, {'0' if z else o1(B)}"); fill(5)
        if tags[t] not in hold:
            st.release(tags[t]); st.pump()
        fill(999)
        if t < 7:
            for l in pk1(): a(l)

def o_epi(c, heads):
    a = c.a
    t = V_F + 24
    a(f"s_lshl_b32 s{S_TMP}, s{S_WAVE}, 13\ns_add_u32 s{S_TMP}, s{S_TMP}, {LDS_SCR}")
    a(f"v_add_u32 v{t}, s{S_RING}, v{V_L16}\nv_add_u32 v{t+1}, s{S_TMP}, v{V_L16}")
    def loc(spec, ring, scr):
        base, off = spec
        return (scr, off) if base == "scr" else (ring, base * 8192 + off)
    def sub(txt, g):
        f, lo = txt[0], int(txt[2:txt.index(":")])
        return f"{f}[{lo+4*g}:{lo+4*g+3}]"
    for n, h in enumerate(heads):
        a(f"v_mov_b32 v{V_F+8*n}, v{h['M']}\nv_accvgpr_read_b32 v{V_F+8*n+1}, a{h['L']}")
        v, o = loc(h["st"], t, t + 1)
        a(f"ds_write_b64 v{v}, {vr(V_F+8*n,2)} offset:{o}")
        for B in (1, 2, 3):
            v, o = loc((h["slot"], 4096 * (B - 1)) if B < 3 else h["b3"], t, t + 1)
            for g in range(4): a(f"ds_write_b128 v{v}, {sub(h['acc'](B), g)} offset:{o+1024*g}")
    for n, h in enumerate(heads):
        own = h["acc"](0); lo = int(own[2:own.index(":")])
        for i in range(16):
            a(f"v_accvgpr_read_b32 v{V_S+64*n+i}, a{lo+i}" if own[0] == "a" else f"v_mov_b32 v{V_S+64*n+i}, v{lo+i}")
    for B in (1, 2, 3):
        a(f"s_sub_u32 s{S_TMP}, s{S_WAVE}, {B}\ns_and_b32 s{S_TMP}, s{S_TMP}, 3")
        a(f"s_lshl_b32 s7, s{S_TMP}, 13\ns_add_u32 s7, s7, {LDS_SCR}\ns_lshl_b32 s{S_TMP}, s{S_TMP}, 15")
        a(f"v_add_u32 v{t+2*B}, s{S_TMP}, v{V_L16}\nv_add_u32 v{t+2*B+1}, s7, v{V_L16}")
    a("s_waitcnt lgkmcnt(0)\ns_barrier")
    for n, h in enumerate(heads):
        for B in (1, 2, 3):
            v, o = loc(h["st"], t + 2 * B, t + 2 * B + 1)
            a(f"ds_read_b64 {vr(V_F+8*n+2*B,2)}, v{v} offset:{o}")
        for B in (1, 2, 3):
            v, o = loc((h["slot"], 4096 * (B - 1)) if B < 3 else h["b3"], t + 2 * B, t + 2 * B + 1)
            for g in range(4): a(f"ds_read_b128 {vr(V_S+64*n+16*B+4*g)}, v{v} offset:{o+1024*g}")
        a("s_waitcnt lgkmcnt(12)")
        m = [V_F + 8 * n + 2 * u for u in range(4)]; l = [x + 1 for x in m]
        M = V_F + 16; L = V_F + 17; f = [V_F + 18 + u for u in range(4)]
        a(f"v_max3_f32 v{M}, v{m[0]}, v{m[1]}, v{m[2]}\nv_max_f32 v{M}, v{M}, v{m[3]}")
        for u in range(4): a(f"v_sub_f32 v{f[u]}, v{m[u]}, v{M}")
        for u in range(4): a(f"v_mul_f32 v{f[u]}, s{S_C}, v{f[u]}")
        for u in range(4): a(f"v_exp_f32 v{f[u]}, v{f[u]}")
        a(f"v_mul_f32 v{L}, v{f[0]}, v{l[0]}")
        for u in range(1, 4): a(f"v_fmac_f32 v{L}, v{f[u]}, v{l[u]}")
        a(f"v_rcp_f32 v{L}, v{L}")
        for u in range(4): a(f"v_mul_f32 v{f[u]}, v{f[u]}, v{L}")
        S = V_S + 64 * n
        for i in range(16): a(f"v_mul_f32 v{S+i}, v{S+i}, v{f[0]}")
        for B in (1, 2, 3):
            a(f"s_waitcnt lgkmcnt({12-4*B})")
            for i in range(16): a(f"v_fmac_f32 v{S+i}, v{S+16*B+i}, v{f[B]}")
        for k in range(8): a(f"v_cvt_pk_bf16_f32 v{S+k}, v{S+2*k}, v{S+2*k+1}")
        a(f"s_lshl_b32 s{S_TMP}, s{S_WAVE}, 11\ns_add_u32 s{S_TMP}, s{S_TMP}, s{h['dst']}")
        a(f"buffer_store_dwordx4 {vr(S)}, v{V_L16}, {sr(SRDW)}, s{S_TMP} offen sc1")
        a(f"buffer_store_dwordx4 {vr(S+4)}, v{V_L16}, {sr(SRDW)}, s{S_TMP} offen offset:1024 sc1")
        c.vm.issue("ost", 2)

def flag_store(c, soff, nl=1):
    a = c.a
    a(f"v_mov_b32 v{V_T0}, 1\nv_lshlrev_b32 v{V_F+31}, 2, v{V_LANE}")
    a(f"s_mov_b64 exec, {(1<<nl)-1}")
    a(f"buffer_store_dword v{V_T0}, v{V_F+31}, {sr(SRDW)}, s{soff} offen sc1")
    a("s_mov_b64 exec, -1")
    c.vm.issue("flag")

def load_q(c, soff, dst):
    a = c.a
    a(f"s_add_u32 s{S_TMP}, s{soff}, 4096")
    for s in range(8):
        a(f"buffer_load_dwordx4 {dst(s)}, v{V_L16}, {sr(SRDW)}, s{S_TMP if s >= 4 else soff} offen offset:{1024*(s&3)} sc1")
    c.vm.issue("q", 8)

S_J, S_CC, S_U = 50, 51, 52
S_A = 56
S_B = 60
S_QB, S_OB, S_FQB, S_FOB = 64, 65, 66, 67
S_X0 = 92

def build(stamps=0, n_g2k=6, n_g2v=6, n_g1k=6, n_g1v=8, n_wo=8, fl_x="", fl_wq="", fl_kva="", fl_wo="", fl_kv="nt", rot=1):
    stamps = int(stamps); n_g2k, n_g2v, n_g1k, n_g1v, n_wo = map(int, (n_g2k, n_g2v, n_g1k, n_g1v, n_wo)); rot = int(rot)
    a = Asm()
    prologue(a, 256, "L_end")
    if stamps: a("s_memrealtime s[70:71]")
    a(f"""s_and_b32 s{S_J}, s2, 7
    s_lshr_b32 s{S_CC}, s2, 3
    s_and_b32 s{S_U}, s{S_CC}, 15
    s_and_b32 s53, s{S_CC}, 3
    s_lshl_b32 s7, s{S_J}, 2
    s_add_u32 s53, s53, s7
    s_lshr_b32 s54, s{S_CC}, 2
    s_lshl_b32 s55, s54, 5
    s_add_u32 s55, s55, s53         ; b*32+h
    s_lshl_b32 s{S_QB}, s55, 13
    s_add_u32 s{S_QB}, s{S_QB}, {WS_Q + (2<<20)}
    s_add_u32 s{S_OB}, s{S_QB}, {WS_O - WS_Q}
    s_lshl_b32 s{S_FQB}, s55, 6
    s_add_u32 s{S_FQB}, s{S_FQB}, {WS_FQ + 256*64}
    s_lshl_b32 s{S_FOB}, s54, 3
    s_add_u32 s{S_FOB}, s{S_FOB}, s{S_J}
    s_lshl_b32 s{S_FOB}, s{S_FOB}, 7
    s_and_b32 s7, s{S_CC}, 3
    s_lshl_b32 s7, s7, 2
    s_add_u32 s{S_FOB}, s{S_FOB}, s7
    s_add_u32 s{S_FOB}, s{S_FOB}, {WS_FO + 64*128}
    s_mov_b32 s{S_C}, {f32(C_SCALE)}
    s_cmp_ge_u32 s{S_CC}, 16
    s_cbranch_scc1 L_g2""")

    def mk():
        c = Ctx(); c.a = a; c.vm = VM(a); c.st = Stream(a, c.vm); c.stamps = stamps
        return c
    def kv_offsets():
        a(f"s_lshl_b32 s{S_A}, s55, 18\ns_lshl_b32 s7, s{S_WAVE}, 13\ns_add_u32 s{S_A}, s{S_A}, s7")
    def clear_flags(c, words, name):
        a(f"s_cmp_lg_u32 s{S_WAVE}, 0\ns_cbranch_scc1 L_{name}")
        a(f"v_mov_b32 v{V_T0}, 0")
        for so, nl, sh in words:
            a(f"v_lshlrev_b32 v{V_F+31}, {sh}, v{V_LANE}\ns_mov_b64 exec, {(1<<nl)-1}")
            a(f"buffer_store_dword v{V_T0}, v{V_F+31}, {sr(SRDW)}, s{so} offen sc1\ns_mov_b64 exec, -1")
        a.label(f"L_{name}")
    def count_in(c, name):
        a(f"s_cmp_lg_u32 s{S_WAVE}, 0\ns_cbranch_scc1 L_{name}")
        a(f"s_lshl_b32 s7, s{S_J}, 5\nv_mov_b32 v{V_T0}, 1\nv_mov_b32 v{V_F+31}, s7\ns_waitcnt vmcnt(0)\ns_mov_b64 exec, 1")
        a(f"global_atomic_add v{V_F+31}, v{V_T0}, s[{P_DBG}:{P_DBG+1}] sc1")
        a("s_mov_b64 exec, -1")
        a.label(f"L_{name}")
    def wait_cleared(c, name):
        a(f"s_mov_b32 s68, {SPIN}\nv_and_b32 v{V_F+31}, 7, v{V_LANE}\nv_lshlrev_b32 v{V_F+31}, 5, v{V_F+31}")
        a.label(f"L_{name}")
        a(f"global_load_dword v{V_T0}, v{V_F+31}, s[{P_DBG}:{P_DBG+1}] sc1")
        a(f"s_sub_u32 s68, s68, 1\ns_cbranch_scc1 L_{name}_x\ns_waitcnt vmcnt(0)")
        a(f"v_cmp_gt_u32 vcc, 32, v{V_T0}\ns_cbranch_vccnz L_{name}")
        a.label(f"L_{name}_x")
        c.vm.q = []; c.st._sync()
    def fp_word():
        a(f"s_xor_b32 s{S_X0}, s{S_CC}, 16          ; c_to")
        a(f"s_lshl_b32 s{S_X0+1}, s{S_X0}, 2\ns_add_u32 s{S_X0+1}, s{S_X0+1}, s{S_WAVE}\ns_lshl_b32 s{S_X0+1}, s{S_X0+1}, 7")
        a(f"s_lshl_b32 s7, s{S_J}, 2\ns_add_u32 s{S_X0+1}, s{S_X0+1}, s7\ns_add_u32 s{S_X0+1}, s{S_X0+1}, {WS_FP}")
    def add_wo(c, X):
        def pre():
            set_vd(a, 2048)
            srd(a, SRD1, P_BWO if X else P_AWO, 0x800000)
            a(f"s_lshl_b32 s{S_B+3}, s{S_J}, 2\ns_add_u32 s{S_B+3}, s{S_B+3}, s{S_WAVE}\ns_lshl_b32 s{S_B+3}, s{S_B+3}, 18")
            a(f"s_and_b32 s7, s{S_U}, 7\ns_lshl_b32 s7, s7, 8\ns_add_u32 s{S_B+3}, s{S_B+3}, s7")
            a(f"s_lshr_b32 s{S_B+2}, s{S_U}, 3\ns_lshl_b32 s{S_B+2}, s{S_B+2}, 17" if rot else f"s_mov_b32 s{S_B+2}, 0")
            a(f"s_add_u32 s{S_B}, s{S_B+3}, s{S_B+2}")
        for t in range(4):
            c.st.add(f"wo{t}", t, SRD1, S_B, 65536, V_VD, 2048, fl_wo, n_wo, pre=pre if t == 0 else None, wrap=262144)
    def add_kv(c, nk, nv, first):
        def prek():
            set_kd(a, 256); srd(a, SRD0, P_BK, 0x4000000); kv_offsets()
        def prev():
            set_vd(a, 256); srd(a, SRD1, P_BV, 0x4000000)
            a(f"s_lshl_b32 s{S_B}, s55, 18\ns_lshl_b32 s7, s{S_WAVE}, 13\ns_add_u32 s{S_B}, s{S_B}, s7")
        for t in range(8): c.st.add(f"k{t}", t & 3, SRD0, S_A, 32768, V_KD, 256, fl_kv, nk, pre=prek if t == 0 else None)
        for t in range(8): c.st.add(f"v{t}", t & 3, SRD1, S_B, 32768, V_VD, 256, fl_kv, nv, single=True, pre=prev if t == 0 else None)
    def mha(c, tag, sbase):
        st = c.st
        park2(c, [f"k{t}" for t in range(8)])
        stamp(c, sbase)
        if tag == "g2": st.pump()
        wait_cleared(c, tag + "clr")
        a(f"v_mov_b32 v{V_F+31}, 0")
        poll(c, tag + "q", S_FQB, 1, 1, V_F + 31)
        load_q(c, S_QB, lambda s: vr(V_Q + 4 * s))
        st.pump(2)
        c.vm.wait("q"); st._sync()
        stamp(c, sbase + 1)
        scores2(c)
        pv2(c, [f"v{t}" for t in range(8)])
        stamp(c, sbase + 2)
        o_epi(c, [dict(acc=lambda B: ar(A_O + 16 * B, 16), L=A_L, M=V_M, slot=3, b3=("scr", 0), st=("scr", 4096), dst=S_OB)])
    def publish_o(c, so, nl, name):
        c.vm.wait("ost"); c.st._sync()
        a("s_barrier")
        a(f"s_cmp_lg_u32 s{S_WAVE}, 0\ns_cbranch_scc1 L_{name}")
        q = list(c.vm.q)
        flag_store(c, so, nl)
        a.label(f"L_{name}")
        c.vm.q = q

    def oproj(c, X, tag, sbase):
        st = c.st
        a(f"""s_lshr_b32 s{S_X0+2}, s{S_U}, 3
        s_lshl_b32 s{S_X0+2}, s{S_X0+2}, 2
        s_add_u32 s{S_X0+2}, s{S_X0+2}, s{S_WAVE}
        s_add_u32 s{S_X0+2}, s{S_X0+2}, {8*X}        ; X*8 + batch
        s_lshl_b32 s{S_X0+3}, s{S_X0+2}, 3
        s_add_u32 s{S_X0+3}, s{S_X0+3}, s{S_J}
        s_lshl_b32 s{S_X0+4}, s{S_X0+3}, 15
        s_add_u32 s{S_X0+4}, s{S_X0+4}, {WS_O}       ; O offset
        s_lshl_b32 s{S_X0+3}, s{S_X0+3}, 7
        s_add_u32 s{S_X0+3}, s{S_X0+3}, {WS_FO}
        v_and_b32 v{V_F+31}, 3, v{V_LANE}
        v_lshlrev_b32 v{V_F+31}, 2, v{V_F+31}""")
        st.pump(throttle=False)
        poll(c, tag + "o", S_X0 + 3, 4, 1, V_F + 31)
        stamp(c, sbase)
        if rot: a(f"s_lshr_b32 s7, s{S_U}, 3\ns_lshl_b32 s7, s7, 12")
        else: a("s_mov_b32 s7, 0")
        for half in range(2):
            for w in range(4):
                a(f"s_add_u32 s{S_TMP}, s{S_X0+4}, s7" if w == 0 else f"s_add_u32 s{S_TMP}, s{S_TMP}, 8192")
                for k in range(4):
                    a(f"buffer_load_dwordx4 {ar(32*w+16*half+4*k)}, v{V_L16}, {sr(SRDW)}, s{S_TMP} offen offset:{1024*k} sc1")
            c.vm.issue(f"of{half}", 16)
            a("s_xor_b32 s7, s7, 4096")
        a("s_barrier")
        for i in range(4):
            if i in (0, 2): c.vm.wait(f"of{i//2}")
            w_step(a, i, lambda w, s: ar(32 * w + 4 * (2 * i + s)), i == 0)
        cvt_acc(a)
        t = V_T0
        a(f"""v_and_b32 v{t}, 15, v{V_LANE}
        v_lshlrev_b32 v{t}, 4, v{t}
        v_lshrrev_b32 v{t+1}, 5, v{V_LANE}
        v_lshl_add_u32 v{t}, v{t+1}, 8, v{t}
        v_bfe_u32 v{t+1}, v{V_LANE}, 4, 1
        v_lshl_add_u32 v{t}, v{t+1}, 15, v{t}
        s_lshl_b32 s61, s{S_X0}, 3
        s_lshl_b32 s62, s{S_WAVE}, 1
        s_add_u32 s61, s61, s62
        s_lshl_b32 s61, s61, 3
        s_add_u32 s61, s61, s{S_J}
        s_lshl_b32 s61, s61, 12
        s_add_u32 s61, s61, {WS_P}""")
        for p in range(8):
            a(f"buffer_store_dwordx4 {vr(V_S+64+4*p)}, v{t}, {sr(SRDW)}, s61 offen offset:{512*p} sc1")
        stamp(c, sbase + 1)
        c.vm.wait_all()
        flag_store(c, S_X0 + 1)
        a("s_branch L_red")

    c = mk(); st = c.st
    set_kd(a, 2048)
    a(f"""s_lshr_b32 s{S_X0+5}, s{S_U}, 3           ; X
    s_and_b32 s{S_X0+6}, s{S_U}, 3            ; hh
    s_bfe_u32 s{S_X0+7}, s{S_U}, 0x10002      ; r
    s_lshl_b32 s{S_X0+8}, s{S_X0+7}, 2
    s_add_u32 s{S_X0+8}, s{S_X0+8}, s{S_WAVE}   ; batch
    s_lshl_b32 s{S_A+3}, s{S_X0+8}, 16
    s_lshl_b32 s7, s{S_J}, 2
    s_add_u32 s{S_X0+9}, s{S_X0+6}, s7          ; head
    s_lshl_b32 s{S_X0+2}, s{S_X0+6}, 1
    s_lshl_b32 s7, s{S_X0+7}, 2
    s_add_u32 s{S_X0+2}, s{S_X0+2}, s7
    s_and_b32 s{S_X0+2}, s{S_X0+2}, {7 if rot else 0}
    s_lshl_b32 s{S_A+2}, s{S_X0+2}, 8
    s_add_u32 s{S_A}, s{S_A+3}, s{S_A+2}
    s_waitcnt lgkmcnt(0)""")
    srd_sel(a, SRD0, S_X0 + 5, P_AX, P_BX, 0x80000)
    for t in range(8): st.add(f"x{t}", t & 3, SRD0, S_A, 256, V_KD, 2048, fl_x, 32, wrap=2048)
    st.pump()
    srd(a, SRDW, P_WS, WS_BYTES)
    def prew():
        set_vd(a, 8192)
        srd_sel(a, SRD1, S_X0 + 5, P_AWQ, P_BWQ, 0x800000)
        a(f"s_lshl_b32 s{S_B+3}, s{S_X0+9}, 8\ns_lshl_b32 s7, s{S_WAVE}, 18\ns_add_u32 s{S_B+3}, s{S_B+3}, s7")
        a(f"s_lshl_b32 s{S_B+2}, s{S_X0+2}, 20\ns_add_u32 s{S_B}, s{S_B+3}, s{S_B+2}")
    for t in range(8): st.add(f"w{t}", t & 3, SRD1, S_B, 1 << 20, V_VD, 8192, fl_wq, 32, pre=prew if t == 0 else None, wrap=8 << 20)
    add_kv(c, n_g1k, n_g1v, False)
    add_wo(c, 1)
    a(f"""s_lshl_b32 s{S_X0+3}, s{S_X0+5}, 3
    s_add_u32 s{S_X0+3}, s{S_X0+3}, s{S_X0+8}
    s_lshl_b32 s{S_X0+3}, s{S_X0+3}, 5
    s_add_u32 s{S_X0+3}, s{S_X0+3}, s{S_X0+9}
    s_lshl_b32 s{S_X0+4}, s{S_X0+3}, 6
    s_add_u32 s{S_X0+4}, s{S_X0+4}, {WS_FQ}
    s_lshl_b32 s{S_X0+3}, s{S_X0+3}, 13""")
    fp_word()
    clear_flags(c, [(S_X0 + 4, 4, 11), (S_FOB, 1, 2), (S_X0 + 1, 4, 7)], "g1clear")
    set_kr(a); set_tr(a)
    count_in(c, "g1count")
    park2(c, [f"x{t}" for t in range(8)])
    stamp(c, 1)
    for t in range(8):
        st.need(f"w{t}")
        a("s_barrier")
        if t: st.release(f"w{t-1}")
        st.pump(8, throttle=False)
        w_step(a, t & 3, lambda w, s: ar(32 * t + 4 * (2 * w + s)), t == 0)
    a("s_barrier"); st.release("w7")
    cvt_acc(a)
    a(f"s_add_u32 s{S_TMP}, s{S_X0+3}, 4096")
    for s in range(8):
        a(f"buffer_store_dwordx4 {vr(V_S+64+4*s)}, v{V_L16}, {sr(SRDW)}, s{S_TMP if s>=4 else S_X0+3} offen offset:{1024*(s&3)} sc1")
    c.vm.issue("qst", 8)
    c.vm.wait("qst"); st._sync()
    flag_store(c, S_X0 + 4)
    stamp(c, 2)
    mha(c, "g1", 3)
    publish_o(c, S_FOB, 1, "g1pub")
    st.release("v7")
    stamp(c, 6)
    oproj(c, 1, "g1", 7)

    a.label("L_g2")
    c = mk(); st = c.st
    a("s_waitcnt lgkmcnt(0)")
    add_kv(c, n_g2k, n_g2v, True)
    st.pump(n_g2k)
    srd(a, SRDW, P_WS, WS_BYTES)
    a(f"""s_lshl_b32 s{S_X0+5}, s{S_U}, 1
    s_lshl_b32 s{S_X0+6}, s{S_J}, 5
    s_add_u32 s{S_X0+6}, s{S_X0+6}, s{S_X0+5}   ; b*32+h
    s_lshl_b32 s{S_X0+7}, s{S_X0+6}, 6
    s_add_u32 s{S_X0+7}, s{S_X0+7}, {WS_FQ}     ; Q flag
    s_lshl_b32 s{S_X0+6}, s{S_X0+6}, 13
    s_lshl_b32 s{S_X0+8}, s{S_J}, 3
    s_lshr_b32 s7, s{S_U}, 1
    s_add_u32 s{S_X0+8}, s{S_X0+8}, s7
    s_lshl_b32 s{S_X0+8}, s{S_X0+8}, 7
    s_and_b32 s7, s{S_U}, 1
    s_lshl_b32 s7, s7, 3
    s_add_u32 s{S_X0+8}, s{S_X0+8}, s7
    s_add_u32 s{S_X0+8}, s{S_X0+8}, {WS_FO}
    s_add_u32 s{S_X0+9}, s{S_X0+8}, 4""")
    def kva_off(S):
        a(f"s_lshl_b32 s{S+3}, s{S_J}, 2\ns_lshr_b32 s7, s{S_U}, 2\ns_add_u32 s{S+3}, s{S+3}, s7\ns_lshl_b32 s{S+3}, s{S+3}, 18")
        a(f"s_lshl_b32 s7, s{S_WAVE}, 13\ns_add_u32 s{S+3}, s{S+3}, s7")
        a(f"s_and_b32 s{S+2}, s{S_U}, {3 if rot else 0}\ns_lshl_b32 s{S+2}, s{S+2}, 16\ns_add_u32 s{S}, s{S+3}, s{S+2}")
    def preka(): srd(a, SRD0, P_AK, 0x800000); kva_off(S_A)
    def preva(): srd(a, SRD1, P_AV, 0x800000); kva_off(S_B)
    for t in range(8): st.add(f"ka{t}", t & 3, SRD0, S_A, 32768, V_KD, 256, fl_kva, 32, pre=preka if t == 0 else None, wrap=262144)
    for t in range(8): st.add(f"va{t}", t & 3, SRD1, S_B, 32768, V_VD, 256, fl_kva, 32, single=True, pre=preva if t == 0 else None, wrap=262144)
    add_wo(c, 0)
    fp_word()
    clear_flags(c, [(S_FOB, 1, 2), (S_X0 + 8, 2, 2), (S_X0 + 1, 4, 7)], "g2clear")
    set_kr(a); set_tr(a)
    count_in(c, "g2count")
    mha(c, "g2", 1)
    publish_o(c, S_FOB, 1, "g2pub")
    st.release("v7"); st.pump()
    a(f"v_and_b32 v{V_F+31}, 1, v{V_LANE}\nv_lshlrev_b32 v{V_F+31}, 6, v{V_F+31}")
    poll(c, "g2qa", S_X0 + 7, 2, 1, V_F + 31)
    load_q(c, S_X0 + 6, lambda s: vr(V_Q + 4 * s))
    a(f"s_add_u32 s{S_X0+7}, s{S_X0+6}, 8192")
    load_q(c, S_X0 + 7, lambda s: ar(A_Q1 + 4 * s))
    c.vm.wait("q"); st._sync()
    stamp(c, 4)
    gqa_k(c, [f"ka{t}" for t in range(8)])
    stamp(c, 5)
    gqa_v(c, [f"va{t}" for t in range(8)], hold=("va5", "va6", "va7"))
    a(f"s_add_u32 s{S_X0+6}, s{S_X0+6}, {WS_O}\ns_add_u32 s{S_X0+7}, s{S_X0+7}, {WS_O}")
    o_epi(c, [dict(acc=lambda B: ar(A_O + 16 * B, 16), L=A_L, M=V_M, slot=3, b3=("scr", 0), st=(1, 0), dst=S_X0 + 6),
              dict(acc=o1, L=A_L1, M=V_M1, slot=2, b3=("scr", 4096), st=(1, 1024), dst=S_X0 + 7)])
    publish_o(c, S_X0 + 8, 2, "g2pub2")
    for g in ("va5", "va6", "va7"): st.release(g)
    stamp(c, 6)
    oproj(c, 0, "g2", 7)

    a.label("L_red")
    c = mk()
    a(f"""s_lshl_b32 s{S_X0+2}, s{S_X0}, 2
    s_lshr_b32 s7, s{S_J}, 1
    s_add_u32 s{S_X0+2}, s{S_X0+2}, s7
    s_lshl_b32 s{S_X0+2}, s{S_X0+2}, 7
    s_add_u32 s{S_X0+2}, s{S_X0+2}, {WS_FP}
    v_and_b32 v{V_F+31}, 7, v{V_LANE}
    v_lshlrev_b32 v{V_F+31}, 2, v{V_F+31}""")
    poll(c, "redp", S_X0 + 2, 8, 1, V_F + 31)
    stamp(c, 9)
    from gen_v1 import reduce_body
    reduce_body(a, c.vm, S_X0, S_J, fl="sc1")
    if stamps:
        a("s_waitcnt vmcnt(0)\ns_memrealtime s[90:91]\ns_waitcnt lgkmcnt(0)")
        a(f"s_lshl_b32 s7, s2, 2\ns_add_u32 s7, s7, s{S_WAVE}\ns_lshl_b32 s7, s7, 6\ns_add_u32 s7, s7, {WS_ST}")
        for n in range(11): a(f"v_mov_b32 v{V_S+n}, s{70+2*n}")
        a(f"v_mov_b32 v{V_T0}, 0\ns_mov_b64 exec, 1")
        for q in range(3): a(f"buffer_store_dwordx4 {vr(V_S+4*q)}, v{V_T0}, {sr(SRDW)}, s7 offen offset:{16*q}")
    if stamps == 2:
        a("s_not_b32 s70, s70")
        for n, wd in enumerate((1, 2, 3, 4, 5, 6, 7, 9, 10, 11, 12)):
            a(f"v_mov_b32 v{V_S+20}, s{70+2*n}\nv_mov_b32 v{V_S+21}, {4*wd}")
            a(f"global_atomic_umax v{V_S+21}, v{V_S+20}, s[{P_DBG}:{P_DBG+1}] sc1\ns_nop 4")
    a.label("L_end"); a("s_endpgm")
    s = header(["; @launch grid=(256,1,1) block=(256,1,1) lds=163840"])
    s += kernel_open(NAME + "_kernel") + a.finish() + "\n"
    s += '.section .rodata,"a"\n.p2align 6\n' + descriptor(NAME + "_kernel")
    return s

if __name__ == "__main__":
    out = sys.argv[1]
    kw = dict(x.split("=") for x in sys.argv[2:])
    open(out, "w").write(build(**kw))
```

```python
from asmlib import Asm
NAME = "concat_heads__gqa_block_cached__mha_block_cached__near_ridge"

P_AX, P_AK, P_AV, P_AWQ, P_AWO, P_BX, P_BK, P_BV = 16, 18, 20, 22, 24, 26, 28, 30
P_BWQ, P_BWO, P_OUT, P_DBG, P_WS = 32, 34, 36, 38, 40
S_WAVE, S_RING, S_TMP = 3, 4, 5
SRD0, SRD1, SRDW = 8, 12, 44
WS_Q, WS_O, WS_P, WS_F = 0, 4 << 20, 8 << 20, 16 << 20
WS_BYTES = 268435456
V_LANE = 1
V_KD = 2
V_VD = 6
V_KR = 10
V_TV = 18
V_TW = 22
V_L16 = 30
V_T0 = 31
V_Q = 40
V_F = 72
V_S = 128
LDS_SCR = 131072
C_SCALE = 0.08838834764831845 * 1.4426950408889634

import struct
def f32(x): return "0x%08x" % struct.unpack("<I", struct.pack("<f", x))[0]
def vr(b, n=4): return f"v[{b}:{b+n-1}]"
def ar(b, n=4): return f"a[{b}:{b+n-1}]"
def sr(b, n=4): return f"s[{b}:{b+n-1}]"

class VM:
    def __init__(self, a): self.a = a; self.q = []
    def issue(self, tag, n=1): self.q += [tag] * n
    def wait(self, tag):
        idx = max(i for i, t in enumerate(self.q) if t == tag)
        n = len(self.q) - 1 - idx
        assert n <= 63
        self.a(f"s_waitcnt vmcnt({n})"); self.q = self.q[idx + 1:]
    def wait_all(self):
        self.a("s_waitcnt vmcnt(0)"); self.q = []

def header(launches):
    s = open("cdna_kernels/" + NAME + ".s.ref").read().split("; Override launch")[0]
    s += "".join(l + "\n" for l in launches)
    s += '.amdgcn_target "amdgcn-amd-amdhsa--gfx950"\n.text\n'
    return s

def kernel_open(name):
    return f".globl {name}\n.p2align 8\n.type {name},@function\n{name}:\n"

def descriptor(name, vgpr=512, accum=256, sgpr=102):
    return f""".amdhsa_kernel {name}
  .amdhsa_next_free_vgpr {vgpr}
  .amdhsa_next_free_sgpr {sgpr}
  .amdhsa_accum_offset {accum}
  .amdhsa_group_segment_fixed_size 0
  .amdhsa_kernarg_size 104
  .amdhsa_user_sgpr_count 2
  .amdhsa_user_sgpr_kernarg_segment_ptr 1
  .amdhsa_system_sgpr_workgroup_id_x 1
.end_amdhsa_kernel
"""

def prologue(a, nwg, end):
    a(f"""s_cmp_ge_u32 s2, {nwg}
    s_cbranch_scc1 {end}
    s_load_dwordx16 s[16:31], s[0:1], 0
    s_load_dwordx8 s[32:39], s[0:1], 64
    s_load_dwordx2 s[40:41], s[0:1], 96
    v_lshrrev_b32 v{V_T0}, 6, v0
    v_and_b32 v{V_LANE}, 63, v0
    v_readfirstlane_b32 s{S_WAVE}, v{V_T0}
    v_lshlrev_b32 v{V_L16}, 4, v{V_LANE}
    s_lshl_b32 s{S_RING}, s{S_WAVE}, 15""")

def srd(a, d, ptr, size):
    a(f"s_mov_b32 s{d}, s{ptr}\ns_mov_b32 s{d+1}, s{ptr+1}\ns_mov_b32 s{d+2}, {size}\ns_mov_b32 s{d+3}, 0x20000")

def srd_sel(a, d, cond, p0, p1, size0, size1=None):
    a(f"s_cmp_eq_u32 s{cond}, 0\ns_cselect_b32 s{d}, s{p0}, s{p1}\ns_cselect_b32 s{d+1}, s{p0+1}, s{p1+1}")
    if size1 is None or size1 == size0: a(f"s_mov_b32 s{d+2}, {size0}")
    else: a(f"s_mov_b32 s{d+2}, {size1}\ns_cmov_b32 s{d+2}, {size0}")
    a(f"s_mov_b32 s{d+3}, 0x20000")

def set_kd(a, rs, dst=V_KD):
    t = V_T0
    sh = rs.bit_length() - 1
    a(f"""v_lshrrev_b32 v{t}, 4, v{V_LANE}
    v_and_b32 v{dst}, 15, v{V_LANE}
    v_xor_b32 v{dst}, v{dst}, v{t}
    v_lshlrev_b32 v{dst}, 4, v{dst}
    v_lshlrev_b32 v{t}, {sh}, v{t}""")
    for k in (1, 2, 3):
        a(f"v_xor_b32 v{dst+k}, {64*k}, v{dst}")
        a(f"v_add_u32 v{dst+k}, v{dst+k}, v{t}")
        if rs != 256: a(f"v_add_u32 v{dst+k}, {k*(4*rs-1024)}, v{dst+k}")
    a(f"v_add_u32 v{dst}, v{dst}, v{t}")

def set_vd(a, rs, dst=V_VD):
    sh = rs.bit_length() - 1
    a(f"""v_lshrrev_b32 v{dst+1}, 4, v{V_LANE}
    v_and_b32 v{dst+2}, 15, v{V_LANE}
    v_lshlrev_b32 v{dst+3}, 2, v{dst+1}
    v_xor_b32 v{dst+2}, v{dst+2}, v{dst+3}
    v_lshlrev_b32 v{dst+2}, 4, v{dst+2}
    v_lshl_add_u32 v{dst}, v{dst+1}, {sh}, v{dst+2}""")
    if rs != 256:
        for k in range(1, 4):
            a(f"v_add_u32 v{dst+k}, {k*(4*rs-1024)}, v{dst}")

def set_kr(a, base=S_RING):
    t = V_T0
    a(f"""v_and_b32 v{t}, 31, v{V_LANE}
    v_lshrrev_b32 v{t+1}, 5, v{V_LANE}
    v_and_b32 v{t+2}, 15, v{V_LANE}
    v_xor_b32 v{t+1}, v{t+1}, v{t+2}
    v_lshlrev_b32 v{t+1}, 4, v{t+1}
    v_lshlrev_b32 v{t}, 8, v{t}
    v_add_u32 v{t}, s{base}, v{t}""")
    for s in range(8):
        a(f"v_xor_b32 v{V_KR+s}, {32*s}, v{t+1}")
        a(f"v_add_u32 v{V_KR+s}, v{V_KR+s}, v{t}")

def set_tr(a, want_v=True, want_w=True):
    t = V_T0
    a(f"""v_bfe_u32 v{t}, v{V_LANE}, 2, 2
    v_bfe_u32 v{t+1}, v{V_LANE}, 4, 1
    v_lshlrev_b32 v{t+1}, 5, v{t+1}
    v_and_b32 v{t+2}, 1, v{V_LANE}
    v_lshl_add_u32 v{t+1}, v{t+2}, 4, v{t+1}
    v_bfe_u32 v{t+2}, v{V_LANE}, 1, 1
    v_lshl_add_u32 v{t+1}, v{t+2}, 3, v{t+1}
    v_lshl_add_u32 v{t+1}, v{t}, 8, v{t+1}
    v_lshrrev_b32 v{t+2}, 5, v{V_LANE}
    v_lshlrev_b32 v{t}, 6, v{t}""")
    for T in range(4):
        a(f"v_xor_b32 v{t+3}, {64*T}, v{t}")
        a(f"v_add_u32 v{t+3}, v{t+3}, v{t+1}")
        if want_w:
            a(f"v_lshl_add_u32 v{V_TW+T}, v{t+2}, 11, v{t+3}")
            a(f"v_add_u32 v{V_TW+4+T}, 0x10000, v{V_TW+T}")
    if want_v:
        for B in range(4):
            a(f"s_add_u32 s{S_TMP}, s{S_WAVE}, {B}\ns_and_b32 s{S_TMP}, s{S_TMP}, 3\ns_lshl_b32 s{S_TMP}, s{S_TMP}, 6")
            a(f"v_xor_b32 v{t+3}, s{S_TMP}, v{t}")
            a(f"v_add3_u32 v{t+3}, v{t+3}, v{t+1}, s{S_RING}")
            a(f"v_lshl_add_u32 v{V_TV+B}, v{t+2}, 10, v{t+3}")

def dma_tile(a, vm, tag, srdreg, soff, voff, rs, slot, fl, single=False):
    fl = (" " + fl) if fl else ""
    a(f"s_add_u32 m0, s{S_RING}, {slot*8192}")
    a(f"s_add_u32 s{S_TMP}, s{soff}, {16*rs}")
    for half in range(2):
        if half: a(f"s_add_u32 m0, s{S_RING}, {slot*8192+4096}")
        so = S_TMP if half else soff
        for k in range(4):
            off = f" offset:{1024*k}" if k else ""
            a(f"buffer_load_dwordx4 v{voff+(0 if single else k)}, {sr(srdreg)}, s{so} offen{off}{fl} lds")
    vm.issue(tag, 8)

def park(a, vm, tags, slots, after):
    for t in range(8):
        vm.wait(tags[t])
        for s in range(8):
            a(f"ds_read_b128 {ar(32*t+4*s)}, v{V_KR+s} offset:{slots[t]*8192}")
        a("s_waitcnt lgkmcnt(0)")
        after(t)

V_M, V_MC, V_ONE = 32, 33, 36
S_C = 6

def scores(a):
    def mx(t):
        b = V_S + 16 * t
        if t == 0:
            a(f"v_max3_f32 v{V_M}, v{b}, v{b+1}, v{b+2}")
            rest = list(range(3, 16))
        else:
            rest = list(range(16))
        out = []
        while rest:
            if len(rest) >= 2:
                out.append(f"v_max3_f32 v{V_M}, v{V_M}, v{b+rest[0]}, v{b+rest[1]}"); rest = rest[2:]
            else:
                out.append(f"v_max_f32 v{V_M}, v{V_M}, v{b+rest[0]}"); rest = rest[1:]
        return out
    pend = []
    for t in range(8):
        for s in range(8):
            c = "0" if s == 0 else vr(V_S + 16 * t, 16)
            a(f"v_mfma_f32_32x32x16_bf16 {vr(V_S+16*t,16)}, {ar(32*t+4*s)}, {vr(V_Q+4*s)}, {c}")
            if s >= 3:
                for _ in range(2):
                    if pend: a(pend.pop(0))
        while pend: a(pend.pop(0))
        if t == 0:
            pend = [f"v_max3_f32 v{V_M}, v{V_S}, v{V_S+1}, v{V_S+2}"]
            rest = list(range(3, 16))
            pend += [f"v_max3_f32 v{V_M}, v{V_M}, v{V_S+rest[i]}, v{V_S+rest[i+1]}" for i in range(0, 12, 2)]
            pend += [f"v_max_f32 v{V_M}, v{V_M}, v{V_S+15}"]
        else:
            b = V_S + 16 * t
            pend = [f"v_max3_f32 v{V_M}, v{V_M}, v{b+i}, v{b+i+1}" for i in range(0, 16, 2)]
    while pend: a(pend.pop(0))
    a(f"""v_mov_b32 v{V_MC}, v{V_M}
    v_permlane32_swap_b32 v{V_M}, v{V_MC}
    v_max_f32 v{V_M}, v{V_M}, v{V_MC}
    v_mul_f32 v{V_MC}, s{S_C}, v{V_M}""")

A_O, A_L = 0, 64

def softmax_tile(a, t):
    b = V_S + 16 * t
    out = []
    for i in range(16):
        out.append(f"v_fma_f32 v{b+i}, v{b+i}, s{S_C}, -v{V_MC}")
    ex = [f"v_exp_f32 v{b+i}, v{b+i}" for i in range(16)]
    cv = [f"v_cvt_pk_bf16_f32 v{b+k}, v{b+2*k}, v{b+2*k+1}" for k in range(8)]
    return out + ex + cv

def pv(a, vm, tags, slots, after):
    for k in range(4): a(f"v_mov_b32 v{V_ONE+k}, 0x3f803f80")
    for l in softmax_tile(a, 0): a(l)
    for t in range(8):
        vm.wait(tags[t])
        for T in range(4):
            for s in range(2):
                f = V_F + 8 * T + 4 * s
                o = slots[t] * 8192 + 16 * s * 256
                a(f"ds_read_b64_tr_b16 {vr(f,2)}, v{V_TV+T} offset:{o}")
                a(f"ds_read_b64_tr_b16 {vr(f+2,2)}, v{V_TV+T} offset:{o+8*256}")
        nxt = softmax_tile(a, t + 1) if t < 7 else []
        b = V_S + 16 * t
        for s in range(2):
            c = "0" if (t == 0 and s == 0) else ar(A_L, 16)
            a(f"v_mfma_f32_32x32x16_bf16 {ar(A_L,16)}, {vr(V_ONE)}, {vr(b+4*s)}, {c}")
            for _ in range(4):
                if nxt: a(nxt.pop(0))
        n = 0
        for T in range(4):
            for s in range(2):
                n += 1
                a(f"s_waitcnt lgkmcnt({16-2*n})" if 16 - 2 * n <= 15 else "")
                c = "0" if (t == 0 and s == 0) else ar(A_O + 16 * T, 16)
                a(f"v_mfma_f32_32x32x16_bf16 {ar(A_O+16*T,16)}, {vr(V_F+8*T+4*s)}, {vr(b+4*s)}, {c}")
                for _ in range(4):
                    if nxt: a(nxt.pop(0))
        while nxt: a(nxt.pop(0))
        after(t)

def o_epilogue(a, slot, s_dst, vm, fl="sc1", accO=A_O, accL=A_L, vm_reg=V_M):
    t = V_T0 + 3
    a(f"s_lshl_b32 s{S_TMP}, s{S_WAVE}, 13")
    a(f"s_add_u32 s{S_TMP}, s{S_TMP}, {LDS_SCR}")
    a(f"v_add_u32 v{t}, s{S_RING}, v{V_L16}")
    a(f"v_add_u32 v{t+1}, s{S_TMP}, v{V_L16}")
    a(f"v_mov_b32 v{V_F}, v{vm_reg}")
    a(f"v_accvgpr_read_b32 v{V_F+1}, a{accL}")
    a(f"ds_write_b64 v{t+1}, {vr(V_F,2)} offset:4096")
    for B in (1, 2, 3):
        for g in range(4):
            if B < 3: a(f"ds_write_b128 v{t}, {ar(accO+16*B+4*g)} offset:{slot*8192+4096*(B-1)+1024*g}")
            else:     a(f"ds_write_b128 v{t+1}, {ar(accO+16*B+4*g)} offset:{1024*g}")
    for i in range(16): a(f"v_accvgpr_read_b32 v{V_S+i}, a{accO+i}")
    for B in (1, 2, 3):
        a(f"s_sub_u32 s{S_TMP}, s{S_WAVE}, {B}\ns_and_b32 s{S_TMP}, s{S_TMP}, 3")
        a(f"s_lshl_b32 s7, s{S_TMP}, 13\ns_add_u32 s7, s7, {LDS_SCR}")
        a(f"v_add_u32 v{V_F+20+B}, s7, v{V_L16}")
        if B < 3:
            a(f"s_lshl_b32 s{S_TMP}, s{S_TMP}, 15")
            a(f"v_add_u32 v{V_F+24+B}, s{S_TMP}, v{V_L16}")
    a("s_waitcnt lgkmcnt(0)\ns_barrier")
    for B in (1, 2, 3): a(f"ds_read_b64 {vr(V_F+2*B,2)}, v{V_F+20+B} offset:4096")
    for B in (1, 2, 3):
        for g in range(4):
            if B < 3: a(f"ds_read_b128 {vr(V_S+16*B+4*g)}, v{V_F+24+B} offset:{slot*8192+4096*(B-1)+1024*g}")
            else:     a(f"ds_read_b128 {vr(V_S+16*B+4*g)}, v{V_F+20+B} offset:{1024*g}")
    a("s_waitcnt lgkmcnt(12)")
    m = [V_F + 2 * u for u in range(4)]; l = [x + 1 for x in m]
    M = V_F + 8; L = V_F + 9; f = [V_F + 10 + u for u in range(4)]
    a(f"v_max3_f32 v{M}, v{m[0]}, v{m[1]}, v{m[2]}\nv_max_f32 v{M}, v{M}, v{m[3]}")
    for u in range(4): a(f"v_sub_f32 v{f[u]}, v{m[u]}, v{M}")
    for u in range(4): a(f"v_mul_f32 v{f[u]}, s{S_C}, v{f[u]}")
    for u in range(4): a(f"v_exp_f32 v{f[u]}, v{f[u]}")
    a(f"v_mul_f32 v{L}, v{f[0]}, v{l[0]}")
    for u in range(1, 4): a(f"v_fmac_f32 v{L}, v{f[u]}, v{l[u]}")
    a(f"v_rcp_f32 v{L}, v{L}")
    for u in range(4): a(f"v_mul_f32 v{f[u]}, v{f[u]}, v{L}")
    for i in range(16): a(f"v_mul_f32 v{V_S+i}, v{V_S+i}, v{f[0]}")
    for B in (1, 2, 3):
        a(f"s_waitcnt lgkmcnt({12-4*B})")
        for i in range(16): a(f"v_fmac_f32 v{V_S+i}, v{V_S+16*B+i}, v{f[B]}")
    for k in range(8): a(f"v_cvt_pk_bf16_f32 v{V_S+k}, v{V_S+2*k}, v{V_S+2*k+1}")
    a(f"s_lshl_b32 s{S_TMP}, s{S_WAVE}, 11\ns_add_u32 s{S_TMP}, s{S_TMP}, s{s_dst}")
    a(f"buffer_store_dwordx4 {vr(V_S)}, v{V_L16}, {sr(SRDW)}, s{S_TMP} offen {fl}")
    a(f"buffer_store_dwordx4 {vr(V_S+4)}, v{V_L16}, {sr(SRDW)}, s{S_TMP} offen offset:1024 {fl}")
    vm.issue("ost", 2)

def w_steps(a, steps, first=True, between=None, opened=None):
    items = [(i, w, s) for i in range(len(steps)) for w in range(4) for s in range(2)]
    def reads(n):
        i, w, s = items[n]
        slot = steps[i][0]
        buf = V_F + 16 * (n % 2)
        out = []
        for T in range(4):
            va = V_TW + T + (4 if w >= 2 else 0)
            o = (w & 1) * 32768 + slot * 8192 + 16 * s * 256
            out.append(f"ds_read_b64_tr_b16 {vr(buf+4*T,2)}, v{va} offset:{o}")
            out.append(f"ds_read_b64_tr_b16 {vr(buf+4*T+2,2)}, v{va} offset:{o+4*256}")
        return out
    if steps[0][2]: steps[0][2]()
    for l in reads(0): a(l)
    for n, (i, w, s) in enumerate(items):
        last = n + 1 == len(items)
        cross = (not last) and items[n + 1][0] != i and steps[i + 1][2] is not None
        if cross:
            a("s_waitcnt lgkmcnt(0)")
            steps[i + 1][2]()
        nxt = [] if last else reads(n + 1)
        buf = V_F + 16 * (n % 2)
        for T in range(4):
            if not cross: a(f"s_waitcnt lgkmcnt({6 - 2*T if last else 6})")
            if opened and T == 0 and w == 0 and s == 0: opened(i)
            c = "0" if (first and n == 0) else vr(V_S + 16 * T, 16)
            b = steps[i][1](w, s)
            a(f"v_mfma_f32_32x32x16_bf16 {vr(V_S+16*T,16)}, {vr(buf+4*T)}, {b}, {c}")
            if T == 0 and between: between(n)
            if nxt: a(nxt.pop(0)); a(nxt.pop(0))

def w_items(a, items, bfrag):
    def reads(n):
        w, slot, s = items[n]
        buf = V_F + 16 * (n % 2)
        out = []
        for T in range(4):
            va = V_TW + T + (4 if w >= 2 else 0)
            o = (w & 1) * 32768 + slot * 8192 + 16 * s * 256
            out.append(f"ds_read_b64_tr_b16 {vr(buf+4*T,2)}, v{va} offset:{o}")
            out.append(f"ds_read_b64_tr_b16 {vr(buf+4*T+2,2)}, v{va} offset:{o+4*256}")
        return out
    for l in reads(0): a(l)
    for n, it in enumerate(items):
        last = n + 1 == len(items)
        nxt = [] if last else reads(n + 1)
        buf = V_F + 16 * (n % 2)
        for T in range(4):
            a(f"s_waitcnt lgkmcnt({6 - 2*T if last else 6})")
            c = "0" if n == 0 else vr(V_S + 16 * T, 16)
            b = bfrag(*it)
            a(f"v_mfma_f32_32x32x16_bf16 {vr(V_S+16*T,16)}, {vr(buf+4*T)}, {b}, {c}")
            if nxt: a(nxt.pop(0)); a(nxt.pop(0))

def cvt_acc(a):
    for T in range(4):
        for k in range(8):
            a(f"v_cvt_pk_bf16_f32 v{V_S+64+8*T+k}, v{V_S+16*T+2*k}, v{V_S+16*T+2*k+1}")
```

```python
import sys
from engines import *

WS_FQ = WS_F
WS_FO = WS_F + 0x10000
WS_FP = WS_F + 0x20000
WS_ST = WS_F + 0x100000
S_SCR = 69
SPIN = 1 << 20
SRDT = 88

class Stream:
    def __init__(self, a, vm):
        self.a, self.vm = a, vm
        self.q = []
        self.busy = {}
        self.landed = set(); self.issued = {}; self.m0_dirty = False; self.pres = {}
    def run_pre(self, tag):
        box = self.pres[tag]
        if box[0]: box[0](); box[0] = None
    def add(self, tag, slot, srdreg, soff, step, voff, rs, fl, N, single=False, pre=None, wrap=None):
        a = self.a
        fl = (" " + fl) if fl else ""
        sb, so_ = (S_SCR, 0) if slot == 4 else (S_RING, slot * 8192)
        box = [pre]
        def emit(k):
            if k == 0:
                if box[0]: box[0]()
                a(f"s_add_u32 m0, s{sb}, {so_}")
            if k == 4:
                a(f"s_add_u32 s{soff+1}, s{soff}, {16*rs}")
                a(f"s_add_u32 m0, s{sb}, {so_+4096}")
            if self.m0_dirty and k & 3: a(f"s_add_u32 m0, s{sb}, {so_+(k&4)*1024}")
            self.m0_dirty = False
            so = soff + 1 if k >= 4 else soff
            off = f" offset:{1024*(k&3)}" if k & 3 else ""
            a(f"buffer_load_dwordx4 v{voff+(0 if single else k&3)}, {sr(srdreg)}, s{so} offen{off}{fl} lds")
            if k == 7:
                if wrap is None: a(f"s_add_u32 s{soff}, s{soff}, {step}")
                else:
                    a(f"s_add_u32 s{soff+2}, s{soff+2}, {step}\ns_and_b32 s{soff+2}, s{soff+2}, {wrap-1}\ns_add_u32 s{soff}, s{soff+3}, s{soff+2}")
        for k in range(8): self.q.append((tag, slot, k, emit, N))
        self.pres[tag] = box
    def can(self):
        if not self.q: return False
        tag, slot, k, _, _ = self.q[0]
        return self.busy.get(slot) in (None, tag)
    def _sync(self):
        for tag, n in self.issued.items():
            if n == 8 and tag not in self.vm.q: self.landed.add(tag)
    def piece(self, throttle=True):
        tag, slot, k, emit, N = self.q.pop(0)
        if throttle and len(self.vm.q) >= N:
            self.a(f"s_waitcnt vmcnt({N-1})"); self.vm.q = self.vm.q[len(self.vm.q) - (N - 1):] if N > 1 else []
        assert len(self.vm.q) < 63
        self.busy[slot] = tag
        emit(k); self.vm.issue(tag); self.issued[tag] = self.issued.get(tag, 0) + 1
        self._sync()
    def pump(self, n=99, throttle=True):
        while n > 0 and self.can():
            self.piece(throttle); n -= 1
    def need(self, tag, fill=True):
        self._sync()
        while tag not in self.landed and self.can() and (fill or self.issued.get(tag, 0) < 8):
            self.piece()
        if tag not in self.landed:
            assert self.issued.get(tag) == 8, tag
            self.vm.wait(tag); self._sync()
    def release(self, tag):
        for s, t in list(self.busy.items()):
            if t == tag: self.busy[s] = None

class Ctx: pass

def cyc(c, n, start, mode=1):
    if c.stamps != mode: return
    c.a("s_memtime s[42:43]\ns_waitcnt lgkmcnt(0)")
    if start: c.a(f"s_mov_b32 s{70+n}, s42")
    else: c.a(f"s_sub_u32 s{70+n}, s42, s{70+n}\ns_add_u32 s{70+n}, s{70+n}, s70")

def stamp(c, n, mode=1):
    if c.stamps != mode and not (c.stamps and n in (1, 2, 19)): return
    c.a(f"s_memrealtime s[42:43]\ns_waitcnt lgkmcnt(0)\ns_mov_b32 s{70+n}, s42")

def poll(c, name, soff_expr_reg, nl, want, voff):
    a = c.a
    a(f"s_mov_b32 s68, {SPIN}")
    a.label(f"L_{name}")
    a(f"buffer_load_dword v{V_T0}, v{voff}, {sr(SRDW)}, s{soff_expr_reg} offen sc1")
    a("s_sub_u32 s68, s68, 1\ns_cbranch_scc1 " + f"L_{name}_x")
    a(f"s_waitcnt vmcnt(0)")
    a(f"v_cmp_ne_u32 vcc, {want}, v{V_T0}")
    a(f"s_cbranch_vccnz L_{name}")
    a.label(f"L_{name}_x")
    c.vm.q = []; c.st._sync()

V_CK, V_CA = 34, 35
def ck_issue(c, kind, arg):
    a = c.a
    if kind == "dbg":
        a(f"v_and_b32 v{V_CA}, 7, v{V_LANE}\nv_lshlrev_b32 v{V_CA}, 5, v{V_CA}")
        ld = f"global_load_dword v{V_CK}, v{V_CA}, s[{P_DBG}:{P_DBG+1}] sc1"
        cmp_ = f"v_cmp_gt_u32 vcc, 32, v{V_CK}"
    else:
        so, nl, sh = arg
        a(f"v_and_b32 v{V_CA}, {nl-1}, v{V_LANE}\nv_lshlrev_b32 v{V_CA}, {sh}, v{V_CA}")
        ld = f"buffer_load_dword v{V_CK}, v{V_CA}, {sr(SRDW)}, s{so} offen sc1"
        cmp_ = f"v_cmp_ne_u32 vcc, 1, v{V_CK}"
    a(ld); c.vm.issue("ck"); c.ck = (ld, cmp_)
def ck_verify(c, name):
    a = c.a; ld, cmp_ = c.ck
    if "ck" in c.vm.q: c.vm.wait("ck")
    c.st._sync()
    a(f"s_mov_b32 s68, {SPIN}")
    a.label(f"L_{name}")
    a(f"{cmp_}\ns_cbranch_vccz L_{name}_x")
    a(f"{ld}\ns_sub_u32 s68, s68, 1\ns_waitcnt vmcnt(0)\ns_cbranch_scc0 L_{name}")
    a.label(f"L_{name}_x")

def park2(c, tags, hook=None):
    a, st = c.a, c.st
    for t in range(8):
        st.need(tags[t])
        slot = [s for s, g in st.busy.items() if g == tags[t]][0]
        for s in range(8):
            a(f"ds_read_b128 {ar(32*t+4*s)}, v{V_KR+s} offset:{slot*8192}")
        a("s_waitcnt lgkmcnt(0)")
        st.release(tags[t])
        stamp(c, 3 + t, 8)
        if hook: hook(t)

V_SH = 104
V_SH0, V_SH1 = 10, 14
def finish_max(a, M, T, sh):
    a(f"""v_mov_b32 v{T}, v{M}
    v_permlane32_swap_b32 v{M}, v{T}
    v_max_f32 v{M}, v{M}, v{T}
    v_mul_f32 v{M}, -0.5, v{M}
    v_cvt_pk_bf16_f32 v{T}, v{M}, v{M}
    v_lshlrev_b32 v{T}, 16, v{T}
    v_sub_f32 v{M}, v{M}, v{T}
    v_cvt_pk_bf16_f32 v{sh}, v{T}, v{M}
    v_and_b32 v{M}, 0xffff0000, v{sh}
    v_add_f32 v{M}, v{M}, v{T}
    v_mul_f32 v{M}, -2.0, v{M}
    v_mov_b32 v{sh+1}, 0
    v_mov_b32 v{sh+2}, 0
    v_mov_b32 v{sh+3}, 0""")
def shift(S, sh): return f"v_mfma_f32_32x32x16_bf16 {S}, {vr(V_ONE)}, {vr(sh)}, {S}"

def scores2(c, npump=1):
    a, st = c.a, c.st
    pend = []
    for t in range(8):
        for s in range(8):
            cc = "0" if s == 0 else vr(V_S + 16 * t, 16)
            a(f"v_mfma_f32_32x32x16_bf16 {vr(V_S+16*t,16)}, {ar(32*t+4*s)}, {vr(V_Q+4*s)}, {cc}")
            if s >= 4:
                for _ in range(2):
                    if pend: a(pend.pop(0))
            if s == 0 or (s == 2 and npump > 1): st.pump(1)
        b = V_S + 16 * t
        if t == 0:
            pend = [f"v_max3_f32 v{V_M}, v{b}, v{b+1}, v{b+2}"]
            pend += [f"v_max3_f32 v{V_M}, v{V_M}, v{b+i}, v{b+i+1}" for i in range(3, 15, 2)]
            pend += [f"v_max_f32 v{V_M}, v{V_M}, v{b+15}"]
        else:
            pend = [f"v_max3_f32 v{V_M}, v{V_M}, v{b+i}, v{b+i+1}" for i in range(0, 16, 2)]
    while pend: a(pend.pop(0))
    finish_max(a, V_M, V_MC, V_SH)

def sm_lines(b):
    out = [f"v_exp_f32 v{b+i}, v{b+i}" for i in range(16)]
    out += [f"v_cvt_pk_bf16_f32 v{b+k}, v{b+2*k}, v{b+2*k+1}" for k in range(8)]
    return out

def pv2(c, tags, last_pump=False, hold_last=True, hook=None):
    a, st = c.a, c.st
    for k in range(4): a(f"v_mov_b32 v{V_ONE+k}, 0x3f803f80")
    a(shift(vr(V_S, 16), V_SH)); a(shift(vr(V_S + 16, 16), V_SH))
    for l in sm_lines(V_S): a(l)
    for t in range(8):
        if t < 6: a(shift(vr(V_S + 16 * (t + 2), 16), V_SH))
        st.need(tags[t], fill=False)
        slot = [s for s, g in st.busy.items() if g == tags[t]][0]
        for B in range(4):
            for s in range(2):
                f = V_F + 8 * B + 4 * s
                o = slot * 8192 + 16 * s * 256
                a(f"ds_read_b64_tr_b16 {vr(f,2)}, v{V_TV+B} offset:{o}")
                a(f"ds_read_b64_tr_b16 {vr(f+2,2)}, v{V_TV+B} offset:{o+8*256}")
        nxt = sm_lines(V_S + 16 * (t + 1)) if t < 7 else []
        b = V_S + 16 * t
        for s in range(2):
            cc = "0" if (t == 0 and s == 0) else ar(A_L, 16)
            a(f"v_mfma_f32_32x32x16_bf16 {ar(A_L,16)}, {vr(V_ONE)}, {vr(b+4*s)}, {cc}")
            for _ in range(3):
                if nxt: a(nxt.pop(0))
        n = 0
        for B in range(4):
            for s in range(2):
                n += 1
                if s == 0: a(f"s_waitcnt lgkmcnt({12-4*B})")
                cc = "0" if (t == 0 and s == 0) else ar(A_O + 16 * B, 16)
                a(f"v_mfma_f32_32x32x16_bf16 {ar(A_O+16*B,16)}, {vr(V_F+8*B+4*s)}, {vr(b+4*s)}, {cc}")
                for _ in range(3):
                    if nxt: a(nxt.pop(0))
                if t < 7 or last_pump: st.pump(1)
        while nxt: a(nxt.pop(0))
        if not (hold_last and t == 7): st.release(tags[t])
        stamp(c, 3 + t, 4)
        if hook: hook(t)

LQ_ORDER = [4, 5, 6, 7, 0, 1, 2, 3]
LQ_P, LQ_RAW, LQ_SH = 104, 112, V_Q
def lq_s(t):
    i = LQ_ORDER.index(t)
    return ("v", LQ_RAW) if i == 0 else ("a", 32 * LQ_ORDER[i - 1])
def lq_o(B): return ar((16, 48, 80, 144)[B], 16)
LQ_L = 176
def v_reads(dst, slot):
    out = []
    for B in range(4):
        for s in range(2):
            o = slot * 8192 + 16 * s * 256
            out.append(f"ds_read_b64_tr_b16 {vr(dst+8*B+4*s,2)}, v{V_TV+B} offset:{o}")
            out.append(f"ds_read_b64_tr_b16 {vr(dst+8*B+4*s+2,2)}, v{V_TV+B} offset:{o+8*256}")
    return out
def lq_park_v(c, tags, hook=None):
    a, st = c.a, c.st
    for t in range(4):
        st.need(tags[t])
        for l in v_reads(V_S + 32 * t, t): a(l)
        a("s_waitcnt lgkmcnt(0)")
        st.release(tags[t])
        stamp(c, 11 + t, 8)
        if hook: hook(t)
def lq_scores(c, npump):
    a, st = c.a, c.st
    pend = []; T = V_F
    for i, t in enumerate(LQ_ORDER):
        f, b = lq_s(t); S = f"{f}[{b}:{b+15}]"
        for s in range(8):
            a(f"v_mfma_f32_32x32x16_bf16 {S}, {ar(32*t+4*s)}, {vr(V_Q+4*s)}, {'0' if s == 0 else S}")
            if s >= 2:
                for _ in range(4):
                    if pend: a(pend.pop(0))
            if s == 0 or (s == 1 and npump > 1): st.pump(1)
        if i == 0:
            pend = [f"v_max3_f32 v{V_M}, v{b}, v{b+1}, v{b+2}"] + [f"v_max3_f32 v{V_M}, v{V_M}, v{b+k}, v{b+k+1}" for k in range(3, 15, 2)] + [f"v_max_f32 v{V_M}, v{V_M}, v{b+15}"]
        else:
            pend = [f"v_accvgpr_read_b32 v{T+k}, a{b+k}" for k in range(16)] + [f"v_max3_f32 v{V_M}, v{V_M}, v{T+k}, v{T+k+1}" for k in range(0, 16, 2)]
    while pend: a(pend.pop(0))
    finish_max(a, V_M, V_MC, LQ_SH)
def lq_pv(c, tags, hook=None):
    a, st = c.a, c.st
    for k in range(4): a(f"v_mov_b32 v{V_ONE+k}, 0x3f803f80")
    def sh(i):
        f, b = lq_s(LQ_ORDER[i]); a(shift(f"{f}[{b}:{b+15}]", LQ_SH))
    def ex(i):
        f, b = lq_s(LQ_ORDER[i])
        out = [] if f == "v" else [f"v_accvgpr_read_b32 v{LQ_RAW+k}, a{b+k}" for k in range(16)]
        return out + [f"v_exp_f32 v{LQ_RAW+k}, v{LQ_RAW+k}" for k in range(16)]
    pk = [f"v_cvt_pk_bf16_f32 v{LQ_P+k}, v{LQ_RAW+2*k}, v{LQ_RAW+2*k+1}" for k in range(8)]
    sh(0); sh(1)
    st.need(tags[4], fill=False)
    for l in v_reads(V_F, 0): a(l)
    for l in ex(0) + pk: a(l)
    for i, t in enumerate(LQ_ORDER):
        if i < 6: sh(i + 2)
        nxt = ex(i + 1) if i < 7 else []
        def fill(n):
            for _ in range(n):
                if nxt: a(nxt.pop(0))
        fr = V_F if t >= 4 else V_S + 32 * t
        for s in range(2):
            a(f"v_mfma_f32_32x32x16_bf16 {ar(LQ_L,16)}, {vr(V_ONE)}, {vr(LQ_P+4*s)}, {'0' if i == 0 and s == 0 else ar(LQ_L,16)}"); fill(4)
        if t >= 4:
            a("s_waitcnt lgkmcnt(0)")
            if t != 7: st.release(tags[t])
        for B in range(4):
            for s in range(2):
                a(f"v_mfma_f32_32x32x16_bf16 {lq_o(B)}, {vr(fr+8*B+4*s)}, {vr(LQ_P+4*s)}, {'0' if i == 0 and s == 0 else lq_o(B)}")
                st.pump(1); fill(3)
        fill(99)
        if i < 3:
            st.need(tags[t + 1], fill=False)
            for l in v_reads(V_F, t + 1 - 4): a(l)
        if i < 7:
            for l in pk: a(l)
        stamp(c, 3 + i, 4)
        if hook: hook(i)

A_Q1, A_S1, A_L1 = 96, 128, 80
V_M1, V_MC1, V_P1 = 34, 35, 104
def o1(B): return vr(V_Q + 16 * B, 16) if B < 2 else ar(96 + 16 * (B - 2), 16)

def gqa_k(c, tags):
    a, st = c.a, c.st
    pend = []
    for t in range(8):
        st.need(tags[t], fill=False)
        slot = [s for s, g in st.busy.items() if g == tags[t]][0]
        for s in range(8):
            a(f"ds_read_b128 {vr(V_F+4*s)}, v{V_KR+s} offset:{slot*8192}")
        for s in range(8):
            if s in (0, 1, 2, 4): a(f"s_waitcnt lgkmcnt({ {0: 7, 1: 6, 2: 4, 4: 0}[s] })")
            c0 = "0" if s == 0 else vr(V_S + 16 * t, 16)
            c1 = "0" if s == 0 else ar(A_S1 + 16 * t, 16)
            a(f"v_mfma_f32_32x32x16_bf16 {vr(V_S+16*t,16)}, {vr(V_F+4*s)}, {vr(V_Q+4*s)}, {c0}")
            for _ in range(2):
                if pend and s >= 2: a(pend.pop(0))
            a(f"v_mfma_f32_32x32x16_bf16 {ar(A_S1+16*t,16)}, {vr(V_F+4*s)}, {ar(A_Q1+4*s)}, {c1}")
            for _ in range(3):
                if pend and s >= 2: a(pend.pop(0))
            st.pump(1)
            if s == 7: st.release(tags[t])
        while pend: a(pend.pop(0))
        stamp(c, 3 + t, 5)
        if t == 1: stamp(c, 3, 7); cyc(c, 5, True, 7)
        if t == 4: stamp(c, 4, 7); cyc(c, 5, False, 7)
        b = V_S + 16 * t
        def mx(M, b):
            if t == 0:
                return ([f"v_max3_f32 v{M}, v{b}, v{b+1}, v{b+2}"] + [f"v_max3_f32 v{M}, v{M}, v{b+i}, v{b+i+1}" for i in range(3, 15, 2)]
                        + [f"v_max_f32 v{M}, v{M}, v{b+15}"])
            return [f"v_max3_f32 v{M}, v{M}, v{b+i}, v{b+i+1}" for i in range(0, 16, 2)]
        pend = mx(V_M, b) + [f"v_accvgpr_read_b32 v{V_P1+i}, a{A_S1+16*t+i}" for i in range(16)] + mx(V_M1, V_P1)
    while pend: a(pend.pop(0))
    finish_max(a, V_M, V_MC, V_SH0); finish_max(a, V_M1, V_MC1, V_SH1)

def gqa_v(c, tags, hold):
    a, st = c.a, c.st
    P1 = [V_P1, V_P1 + 16 - 8]
    for k in range(4): a(f"v_mov_b32 v{V_ONE+k}, 0x3f803f80")
    RAW = V_P1 + 8
    def sm1(t):
        out = [f"v_accvgpr_read_b32 v{RAW+i}, a{A_S1+16*t+i}" for i in range(16)]
        out += [f"v_exp_f32 v{RAW+i}, v{RAW+i}" for i in range(16)]
        return out
    def pk1(): return [f"v_cvt_pk_bf16_f32 v{V_P1+k}, v{RAW+2*k}, v{RAW+2*k+1}" for k in range(8)]
    def sh(t): a(shift(vr(V_S + 16 * t, 16), V_SH0)); a(shift(ar(A_S1 + 16 * t, 16), V_SH1))
    sh(0); sh(1)
    for l in sm_lines(V_S) + sm1(0) + pk1(): a(l)
    for t in range(8):
        if t < 6: sh(t + 2)
        st.need(tags[t], fill=False)
        slot = [s for s, g in st.busy.items() if g == tags[t]][0]
        for B in range(4):
            for s in range(2):
                f = V_F + 8 * B + 4 * s
                o = slot * 8192 + 16 * s * 256
                a(f"ds_read_b64_tr_b16 {vr(f,2)}, v{V_TV+B} offset:{o}")
                a(f"ds_read_b64_tr_b16 {vr(f+2,2)}, v{V_TV+B} offset:{o+8*256}")
        nxt = (sm1(t + 1)[:16] + sm_lines(V_S + 16 * (t + 1)) + sm1(t + 1)[16:]) if t < 7 else []
        b = V_S + 16 * t
        def fill(n):
            for _ in range(n):
                if nxt: a(nxt.pop(0))
        for s in range(2):
            z = t == 0 and s == 0
            a(f"v_mfma_f32_32x32x16_bf16 {ar(A_L,16)}, {vr(V_ONE)}, {vr(b+4*s)}, {'0' if z else ar(A_L,16)}"); fill(4)
            a(f"v_mfma_f32_32x32x16_bf16 {ar(A_L1,16)}, {vr(V_ONE)}, {vr(V_P1+4*s)}, {'0' if z else ar(A_L1,16)}"); fill(4)
        n = 0
        for B in range(4):
            for s in range(2):
                n += 1
                z = t == 0 and s == 0
                if s == 0: a(f"s_waitcnt lgkmcnt({12-4*B})")
                a(f"v_mfma_f32_32x32x16_bf16 {ar(A_O+16*B,16)}, {vr(V_F+8*B+4*s)}, {vr(b+4*s)}, {'0' if z else ar(A_O+16*B,16)}"); fill(3)
                a(f"v_mfma_f32_32x32x16_bf16 {o1(B)}, {vr(V_F+8*B+4*s)}, {vr(V_P1+4*s)}, {'0' if z else o1(B)}"); fill(2)
                if t < 7: st.pump(1)
        if tags[t] not in hold: st.release(tags[t])
        fill(999)
        if t < 7:
            for l in pk1(): a(l)
        stamp(c, 11 + t, 5); stamp(c, 3 + t, 6)
        if t == 1: stamp(c, 6, 7); cyc(c, 8, True, 7)
        if t == 4: stamp(c, 7, 7); cyc(c, 8, False, 7)

def o_epi(c, heads):
    a = c.a
    t = V_F + 24
    a(f"s_lshl_b32 s{S_TMP}, s{S_WAVE}, 13\ns_add_u32 s{S_TMP}, s{S_TMP}, {LDS_SCR}")
    a(f"v_add_u32 v{t}, s{S_RING}, v{V_L16}\nv_add_u32 v{t+1}, s{S_TMP}, v{V_L16}")
    def loc(spec, ring, scr):
        base, off = spec
        return (scr, off) if base == "scr" else (ring, base * 8192 + off)
    def sub(txt, g):
        f, lo = txt[0], int(txt[2:txt.index(":")])
        return f"{f}[{lo+4*g}:{lo+4*g+3}]"
    for n, h in enumerate(heads):
        a(f"v_mov_b32 v{V_F+8*n}, v{h['M']}\nv_accvgpr_read_b32 v{V_F+8*n+1}, a{h['L']}")
        v, o = loc(h["st"], t, t + 1)
        a(f"ds_write_b64 v{v}, {vr(V_F+8*n,2)} offset:{o}")
        for B in (1, 2, 3):
            v, o = loc((h["slot"], 4096 * (B - 1)) if B < 3 else h["b3"], t, t + 1)
            for g in range(4): a(f"ds_write_b128 v{v}, {sub(h['acc'](B), g)} offset:{o+1024*g}")
    for n, h in enumerate(heads):
        own = h["acc"](0); lo = int(own[2:own.index(":")])
        for i in range(16):
            a(f"v_accvgpr_read_b32 v{V_S+64*n+i}, a{lo+i}" if own[0] == "a" else f"v_mov_b32 v{V_S+64*n+i}, v{lo+i}")
    for B in (1, 2, 3):
        a(f"s_sub_u32 s{S_TMP}, s{S_WAVE}, {B}\ns_and_b32 s{S_TMP}, s{S_TMP}, 3")
        a(f"s_lshl_b32 s7, s{S_TMP}, 13\ns_add_u32 s7, s7, {LDS_SCR}\ns_lshl_b32 s{S_TMP}, s{S_TMP}, 15")
        a(f"v_add_u32 v{t+2*B}, s{S_TMP}, v{V_L16}\nv_add_u32 v{t+2*B+1}, s7, v{V_L16}")
    md = 4 if len(heads) == 1 else 6
    a("s_waitcnt lgkmcnt(0)"); stamp(c, 11, md); a("s_barrier"); stamp(c, 12, md)
    for n, h in enumerate(heads):
        for B in (1, 2, 3):
            v, o = loc(h["st"], t + 2 * B, t + 2 * B + 1)
            a(f"ds_read_b64 {vr(V_F+8*n+2*B,2)}, v{v} offset:{o}")
        for B in (1, 2, 3):
            v, o = loc((h["slot"], 4096 * (B - 1)) if B < 3 else h["b3"], t + 2 * B, t + 2 * B + 1)
            for g in range(4): a(f"ds_read_b128 {vr(V_S+64*n+16*B+4*g)}, v{v} offset:{o+1024*g}")
        a("s_waitcnt lgkmcnt(12)")
        m = [V_F + 8 * n + 2 * u for u in range(4)]; l = [x + 1 for x in m]
        M = V_F + 16; L = V_F + 17; f = [V_F + 18 + u for u in range(4)]
        a(f"v_max3_f32 v{M}, v{m[0]}, v{m[1]}, v{m[2]}\nv_max_f32 v{M}, v{M}, v{m[3]}")
        for u in range(4): a(f"v_sub_f32 v{f[u]}, v{m[u]}, v{M}")
        for u in range(4): a(f"v_exp_f32 v{f[u]}, v{f[u]}")
        a(f"v_mul_f32 v{L}, v{f[0]}, v{l[0]}")
        for u in range(1, 4): a(f"v_fmac_f32 v{L}, v{f[u]}, v{l[u]}")
        a(f"v_rcp_f32 v{L}, v{L}")
        for u in range(4): a(f"v_mul_f32 v{f[u]}, v{f[u]}, v{L}")
        S = V_S + 64 * n
        def sel(r): return ("op_sel_hi:[1,0", vr(r, 2)) if r % 2 == 0 else ("op_sel:[0,1", vr(r - 1, 2))
        md_, fr = sel(f[0])
        for i in range(0, 16, 2): a(f"v_pk_mul_f32 {vr(S+i,2)}, {vr(S+i,2)}, {fr} {md_}]")
        for B in (1, 2, 3):
            a(f"s_waitcnt lgkmcnt({12-4*B})")
            md_, fr = sel(f[B])
            tail = ",1]" if md_.startswith("op_sel_hi") else ",0]"
            for i in range(0, 16, 2): a(f"v_pk_fma_f32 {vr(S+i,2)}, {vr(S+16*B+i,2)}, {fr}, {vr(S+i,2)} {md_}{tail}")
        if n == len(heads) - 1:
            stamp(c, 13, md); a("s_barrier"); stamp(c, 14, md)
        for k in range(8): a(f"v_cvt_pk_bf16_f32 v{S+k}, v{S+2*k}, v{S+2*k+1}")
        a(f"s_lshl_b32 s{S_TMP}, s{S_WAVE}, 11\ns_add_u32 s{S_TMP}, s{S_TMP}, s{h['dst']}")
        a(f"buffer_store_dwordx4 {vr(S)}, v{V_L16}, {sr(SRDW)}, s{S_TMP} offen sc1")
        a(f"buffer_store_dwordx4 {vr(S+4)}, v{V_L16}, {sr(SRDW)}, s{S_TMP} offen offset:1024 sc1")
        c.vm.issue("ost", 2)
    stamp(c, 15, md)

def flag_store(c, soff, nl=1):
    a = c.a
    a(f"v_mov_b32 v{V_T0}, 1\nv_lshlrev_b32 v{V_F+31}, 2, v{V_LANE}")
    a(f"s_mov_b64 exec, {(1<<nl)-1}")
    a(f"buffer_store_dword v{V_T0}, v{V_F+31}, {sr(SRDW)}, s{soff} offen sc1")
    a("s_mov_b64 exec, -1")
    c.vm.issue("flag")

def q_dma(c, soff, lds_off, tag):
    a = c.a
    a(f"s_lshl_b32 s{S_TMP}, s{S_WAVE}, 13\ns_add_u32 m0, s{S_TMP}, {LDS_SCR+lds_off}")
    a(f"s_lshl_b32 s{S_TMP}, s{S_WAVE}, 11\ns_add_u32 s{S_TMP}, s{S_TMP}, s{soff}")
    for k in range(2):
        a(f"buffer_load_dwordx4 v{V_L16}, {sr(SRDW)}, s{S_TMP} offen offset:{1024*k} sc1 lds")
    c.vm.issue(tag, 2); c.st.m0_dirty = True
def q_read(c, lds_off, dst):
    a = c.a
    a(f"v_add_u32 v{V_CA}, {LDS_SCR}, v{V_L16}")
    for s in range(8): a(f"ds_read_b128 {dst(s)}, v{V_CA} offset:{(s>>1)*8192+lds_off+(s&1)*1024}")

S_J, S_CC, S_U = 50, 51, 52
S_A = 56
S_B = 60
S_QB, S_OB, S_FQB, S_FOB = 64, 65, 66, 67
S_X0 = 92

def code_touch(a, first, last, est, share, name):
    per = -(-est // (share * 8192)) * 8192
    a(f"s_cmp_lg_u32 s{S_WAVE}, 3\ns_cbranch_scc1 L_{name}_x")
    a(f"s_getpc_b64 s[48:49]")
    a.label(f"L_{name}")
    a(f"s_add_u32 s48, s48, {first}-L_{name}\ns_addc_u32 s49, s49, 0")
    a(f"s_and_b32 s7, s{S_CC}, {share-1}\ns_mul_i32 s7, s7, {per}")
    a(f"v_lshl_add_u32 v{V_F+30}, v{V_LANE}, 7, s7")
    for k in range(per // 8192):
        a(f"v_min_u32 v{V_F+29}, {last}-{first}-4, v{V_F+30}")
        a(f"global_load_dword v{V_T0}, v{V_F+29}, s[48:49]")
        a(f"v_add_u32 v{V_F+30}, 8192, v{V_F+30}")
    a.label(f"L_{name}_x")

class PerTile:
    def __init__(self, v): self.v = [int(x) for x in str(v).split(",")]
    def __getitem__(self, t): return self.v[min(t, len(self.v) - 1)]

def build(stamps=0, pf=1, n_early=0, kvpf=0, nog1=0, n_qpre=8, n_spump=1, n_look=8, n_x=32, n_wq=32, n_kva=32, n_vva=32, n_g2k=6, n_g2v=6, n_g1k=6, n_g1v=8, n_wo=8, fl_x="", fl_wq="", fl_kva="", fl_wo="", fl_kv="nt", rot=1):
    stamps = int(stamps); pf = int(pf); n_early = int(n_early); kvpf = int(kvpf); n_qpre = int(n_qpre); n_spump = int(n_spump); n_look = int(n_look);  n_g2k, n_g2v, n_g1k, n_g1v, n_wo, n_x, n_wq, n_kva, n_vva = map(PerTile, (n_g2k, n_g2v, n_g1k, n_g1v, n_wo, n_x, n_wq, n_kva, n_vva)); rot = int(rot)
    a = Asm()
    prologue(a, 256, "L_end")
    if stamps:
        a("s_memrealtime s[70:71]\ns_waitcnt lgkmcnt(0)")
        for n in range(1, 20): a(f"s_mov_b32 s{70+n}, s70")
    a(f"""s_and_b32 s{S_J}, s2, 7
    s_lshr_b32 s{S_CC}, s2, 3
    s_and_b32 s{S_U}, s{S_CC}, 15
    s_and_b32 s53, s{S_CC}, 3
    s_lshl_b32 s7, s{S_J}, 2
    s_add_u32 s53, s53, s7          ; head of the MHA task
    s_lshr_b32 s54, s{S_CC}, 2      ; batch of the MHA task
    s_lshl_b32 s55, s54, 5
    s_add_u32 s55, s55, s53         ; b*32+h
    s_lshl_b32 s{S_QB}, s55, 13
    s_add_u32 s{S_QB}, s{S_QB}, {WS_Q + (2<<20)}
    s_add_u32 s{S_OB}, s{S_QB}, {WS_O - WS_Q}
    s_lshl_b32 s{S_FQB}, s55, 6
    s_add_u32 s{S_FQB}, s{S_FQB}, {WS_FQ + 256*64}
    s_lshl_b32 s{S_FOB}, s54, 3
    s_add_u32 s{S_FOB}, s{S_FOB}, s{S_J}
    s_lshl_b32 s{S_FOB}, s{S_FOB}, 7
    s_and_b32 s7, s{S_CC}, 3
    s_lshl_b32 s7, s7, 2
    s_add_u32 s{S_FOB}, s{S_FOB}, s7
    s_add_u32 s{S_FOB}, s{S_FOB}, {WS_FO + 64*128}
    s_mov_b32 s{S_C}, {f32(C_SCALE)}
    s_cmp_ge_u32 s{S_CC}, 16
    s_cbranch_scc1 L_g2""")

    def mk():
        c = Ctx(); c.a = a; c.vm = VM(a); c.st = Stream(a, c.vm); c.stamps = stamps
        return c
    def kv_offsets():
        a(f"s_lshl_b32 s{S_A}, s55, 18\ns_lshl_b32 s7, s{S_WAVE}, 13\ns_add_u32 s{S_A}, s{S_A}, s7")
    def clear_flags(c, words, name):
        a(f"s_cmp_lg_u32 s{S_WAVE}, 0\ns_cbranch_scc1 L_{name}")
        a(f"v_mov_b32 v{V_T0}, 0")
        for so, nl, sh in words:
            a(f"v_lshlrev_b32 v{V_F+31}, {sh}, v{V_LANE}\ns_mov_b64 exec, {(1<<nl)-1}")
            a(f"buffer_store_dword v{V_T0}, v{V_F+31}, {sr(SRDW)}, s{so} offen sc1\ns_mov_b64 exec, -1")
        a.label(f"L_{name}")
    def count_in(c, name):
        a(f"s_cmp_lg_u32 s{S_WAVE}, 0\ns_cbranch_scc1 L_{name}")
        a(f"s_lshl_b32 s7, s{S_J}, 5\nv_mov_b32 v{V_T0}, 1\nv_mov_b32 v{V_F+31}, s7\ns_mov_b64 exec, 1")
        a(f"global_atomic_add v{V_F+31}, v{V_T0}, s[{P_DBG}:{P_DBG+1}] sc1")
        a("s_mov_b64 exec, -1")
        a.label(f"L_{name}")
    def wait_cleared(c, name):
        a(f"s_mov_b32 s68, {SPIN}\nv_and_b32 v{V_F+31}, 7, v{V_LANE}\nv_lshlrev_b32 v{V_F+31}, 5, v{V_F+31}")
        a.label(f"L_{name}")
        a(f"global_load_dword v{V_T0}, v{V_F+31}, s[{P_DBG}:{P_DBG+1}] sc1")
        a(f"s_sub_u32 s68, s68, 1\ns_cbranch_scc1 L_{name}_x\ns_waitcnt vmcnt(0)")
        a(f"v_cmp_gt_u32 vcc, 32, v{V_T0}\ns_cbranch_vccnz L_{name}")
        a.label(f"L_{name}_x")
        c.vm.q = []; c.st._sync()
    def fp_word():
        a(f"s_xor_b32 s{S_X0}, s{S_CC}, 16          ; c_to")
        a(f"s_lshl_b32 s{S_X0+1}, s{S_X0}, 2\ns_add_u32 s{S_X0+1}, s{S_X0+1}, s{S_WAVE}\ns_lshl_b32 s{S_X0+1}, s{S_X0+1}, 7")
        a(f"s_lshl_b32 s7, s{S_J}, 2\ns_add_u32 s{S_X0+1}, s{S_X0+1}, s7\ns_add_u32 s{S_X0+1}, s{S_X0+1}, {WS_FP}")
    def add_wo(c, X):
        def pre():
            set_vd(a, 2048)
            srd(a, SRD1, P_BWO if X else P_AWO, 0x800000)
            a(f"s_add_u32 s7, s{S_WAVE}, s{S_U}\ns_and_b32 s7, s7, 3")
            a(f"s_lshl_b32 s{S_B+3}, s{S_J}, 2\ns_add_u32 s{S_B+3}, s{S_B+3}, s7\ns_lshl_b32 s{S_B+3}, s{S_B+3}, 18")
            a(f"s_and_b32 s7, s{S_U}, 7\ns_lshl_b32 s7, s7, 8\ns_add_u32 s{S_B+3}, s{S_B+3}, s7")
            a(f"s_lshr_b32 s{S_B+2}, s{S_U}, 3\ns_lshl_b32 s{S_B+2}, s{S_B+2}, 17" if rot else f"s_mov_b32 s{S_B+2}, 0")
            a(f"s_add_u32 s{S_B}, s{S_B+3}, s{S_B+2}")
        for t in range(4):
            c.st.add(f"wo{t}", t, SRD1, S_B, 65536, V_VD, 2048, fl_wo, n_wo[t], pre=pre if t == 0 else None, wrap=262144)
    def add_kv(c, nk, nv, first):
        def prek():
            set_kd(a, 256); srd(a, SRD0, P_BK, 0x4000000); kv_offsets()
        def prev():
            set_vd(a, 256); srd(a, SRD1, P_BV, 0x4000000)
            a(f"s_lshl_b32 s{S_B}, s55, 18\ns_lshl_b32 s7, s{S_WAVE}, 13\ns_add_u32 s{S_B}, s{S_B}, s7")
        for t in range(8): c.st.add(f"k{t}", t & 3, SRD0, S_A, 32768, V_KD, 256, fl_kv, nk[t], pre=prek if t == 0 else None)
        for t in range(8): c.st.add(f"v{t}", t & 3, SRD1, S_B, 32768, V_VD, 256, fl_kv, nv[t], single=True, pre=prev if t == 0 else None)
    def touch(c, ptr, size, base_asm, step, rs, fl):
        a(base_asm)
        a(f"s_add_u32 s49, s48, {step}")
        a(f"v_lshrrev_b32 v{V_CA}, 1, v{V_LANE}\nv_lshlrev_b32 v{V_CA}, {rs.bit_length()-1}, v{V_CA}")
        a(f"v_and_b32 v{V_T0}, 1, v{V_LANE}\nv_lshl_add_u32 v{V_CA}, v{V_T0}, 7, v{V_CA}")
        srd(a, SRDT, ptr, size)
        for so in (48, 49):
            a(f"buffer_load_dword v{V_T0}, v{V_CA}, {sr(SRDT)}, s{so} offen {fl}")
            c.vm.issue("pf")
    KVA_BASE = (f"s_lshl_b32 s48, s{S_J}, 2\ns_lshr_b32 s7, s{S_U}, 2\ns_add_u32 s48, s48, s7\ns_lshl_b32 s48, s48, 18\n"
                f"s_lshl_b32 s7, s{S_WAVE}, 13\ns_add_u32 s48, s48, s7\n"
                f"s_and_b32 s7, s{S_U}, 3\ns_lshl_b32 s7, s7, 16\ns_add_u32 s48, s48, s7")
    WO_BASE = (f"s_add_u32 s7, s{S_WAVE}, s{S_U}\ns_and_b32 s7, s7, 3\ns_lshl_b32 s48, s{S_J}, 2\ns_add_u32 s48, s48, s7\ns_lshl_b32 s48, s48, 18\n"
               f"s_and_b32 s7, s{S_U}, 7\ns_lshl_b32 s7, s7, 8\ns_add_u32 s48, s48, s7\n"
               f"s_lshr_b32 s7, s{S_U}, 3\ns_lshl_b32 s7, s7, 17\ns_add_u32 s48, s48, s7")
    def get_q(c):
        if "q" in c.vm.q: c.vm.wait("q")
        c.st._sync()
        a("s_barrier")
        q_read(c, 5120, lambda s: vr(V_Q + 4 * s))
        a("s_waitcnt lgkmcnt(0)")
    def mha1(c):
        st = c.st
        def hook(t):
            if t == 1: ck_issue(c, "dbg", None)
            if t == 3: ck_verify(c, "g1clr"); ck_issue(c, "ws", (S_FQB, 1, 2))
            if t == 5: ck_verify(c, "g1q"); q_dma(c, S_QB, 5120, "q")
        park2(c, [f"k{t}" for t in range(8)], hook)
        stamp(c, 3)
        get_q(c)
        stamp(c, 4)
        if pf:
            code_touch(a, "L_g1tail", "L_g2", 8192, 1, "g1pf2"); code_touch(a, "L_red", "L_end", 8192, 1, "g1pf3")
        scores2(c, n_spump)
        stamp(c, 5)
        pv2(c, [f"v{t}" for t in range(8)], last_pump=True)
        stamp(c, 6)
        a.label("L_g1tail")
        o_epi(c, [dict(acc=lambda B: ar(A_O + 16 * B, 16), L=A_L, M=V_M, slot=3, b3=("scr", 0), st=("scr", 4096), dst=S_OB)])
    def mha2(c, pvhook):
        st = c.st
        park2(c, [f"k{t}" for t in range(8)], lambda t: count_in(c, "g2count") if t == 0 else None)
        stamp(c, 1)
        def hook(t):
            if t == 0: ck_issue(c, "dbg", None)
            if t == 2: ck_verify(c, "g2clr")
        lq_park_v(c, [f"v{t}" for t in range(8)], hook)
        st.pump(n_qpre)
        stamp(c, 15, 8)
        ck_issue(c, "ws", (S_FQB, 1, 2)); ck_verify(c, "g2q")
        q_dma(c, S_QB, 5120, "q")
        get_q(c)
        stamp(c, 2)
        lq_scores(c, n_spump)
        stamp(c, 3)
        lq_pv(c, [f"v{t}" for t in range(8)], pvhook)
        stamp(c, 4)
        o_epi(c, [dict(acc=lq_o, L=LQ_L, M=V_M, slot=3, b3=("scr", 0), st=("scr", 4096), dst=S_OB)])
    def publish_o(c, words, name, n, held):
        stamp(c, n)
        for g in held: c.st.release(g)
        c.st.pump(2, throttle=False)
        c.vm.wait("ost"); c.st._sync()
        stamp(c, n + 1)
        a("s_barrier")
        a(f"s_cmp_lg_u32 s{S_WAVE}, 0\ns_cbranch_scc1 L_{name}")
        q = list(c.vm.q)
        for so, nl in words: flag_store(c, so, nl)
        a.label(f"L_{name}")
        c.vm.q = q

    def oproj(c, X, tag, sbase):
        st = c.st
        a(f"""s_lshr_b32 s{S_X0+2}, s{S_U}, 3
        s_lshl_b32 s{S_X0+2}, s{S_X0+2}, 2
        s_add_u32 s{S_X0+2}, s{S_X0+2}, s{S_WAVE}
        s_add_u32 s{S_X0+2}, s{S_X0+2}, {8*X}        ; X*8 + batch
        s_lshl_b32 s{S_X0+3}, s{S_X0+2}, 3
        s_add_u32 s{S_X0+3}, s{S_X0+3}, s{S_J}
        s_lshl_b32 s{S_X0+4}, s{S_X0+3}, 15
        s_add_u32 s{S_X0+4}, s{S_X0+4}, {WS_O}       ; O offset
        s_lshl_b32 s{S_X0+3}, s{S_X0+3}, 7
        s_add_u32 s{S_X0+3}, s{S_X0+3}, {WS_FO}
        v_and_b32 v{V_F+31}, 3, v{V_LANE}
        v_lshlrev_b32 v{V_F+31}, 2, v{V_F+31}""")
        st.pump(throttle=False)
        c.vm.wait_all(); st._sync()
        stamp(c, 8)
        a("s_barrier")
        stamp(c, 9)
        poll(c, tag + "o", S_X0 + 3, 4, 1, V_F + 31)
        stamp(c, sbase)
        if rot: a(f"s_lshr_b32 s59, s{S_U}, 3\ns_lshl_b32 s59, s59, 12")
        else: a("s_mov_b32 s59, 0")
        items = [(w, i, s_) for w in range(4) for i in range(4) for s_ in range(2)]
        todo = list(items)
        def fetch():
            if not todo: return
            w, i, s_ = todo.pop(0)
            if i == 0 and s_ == 0:
                a(f"s_add_u32 s7, s{S_U}, {w}\ns_and_b32 s7, s7, 3\ns_lshl_b32 s7, s7, 13\ns_add_u32 s7, s7, s{S_X0+4}")
                a(f"s_add_u32 s56, s7, s59\ns_xor_b32 s57, s59, 4096\ns_add_u32 s57, s7, s57")
            a(f"buffer_load_dwordx4 {ar(32*w+8*i+4*s_)}, v{V_L16}, {sr(SRDW)}, s{56+(i>>1)} offen offset:{1024*(2*(i&1)+s_)} sc1")
            c.vm.issue(f"of{w}_{i}_{s_}")
        for _ in range(n_look): fetch()
        cyc(c, 17, True)
        def bf(w, i, s_):
            if f"of{w}_{i}_{s_}" in c.vm.q:
                c.vm.wait(f"of{w}_{i}_{s_}"); fetch()
            return ar(32 * w + 8 * i + 4 * s_)
        w_items(a, items, bf)
        cyc(c, 17, False); stamp(c, 18)
        cvt_acc(a)
        t = V_T0
        a(f"""v_and_b32 v{t}, 15, v{V_LANE}
        v_lshlrev_b32 v{t}, 4, v{t}
        v_lshrrev_b32 v{t+1}, 5, v{V_LANE}
        v_lshl_add_u32 v{t}, v{t+1}, 8, v{t}
        v_bfe_u32 v{t+1}, v{V_LANE}, 4, 1
        v_lshl_add_u32 v{t}, v{t+1}, 15, v{t}
        s_lshl_b32 s61, s{S_X0}, 3
        s_lshl_b32 s62, s{S_WAVE}, 1
        s_add_u32 s61, s61, s62
        s_lshl_b32 s61, s61, 3
        s_add_u32 s61, s61, s{S_J}
        s_lshl_b32 s61, s61, 12
        s_add_u32 s61, s61, {WS_P}""")
        for p in range(8):
            a(f"buffer_store_dwordx4 {vr(V_S+64+4*p)}, v{t}, {sr(SRDW)}, s61 offen offset:{512*p} sc1")
        stamp(c, sbase + 1)
        c.vm.wait_all()
        stamp(c, sbase + 2)
        flag_store(c, S_X0 + 1)
        a("s_branch L_red")

    c = mk(); st = c.st
    if int(nog1):
        global SPIN; SPIN = 4
        a("s_waitcnt lgkmcnt(0)"); srd(a, SRDW, P_WS, WS_BYTES); fp_word(); a("s_branch L_red")
    set_kd(a, 2048)
    a(f"""s_lshr_b32 s{S_X0+5}, s{S_U}, 3           ; X
    s_and_b32 s{S_X0+6}, s{S_U}, 3            ; hh
    s_bfe_u32 s{S_X0+7}, s{S_U}, 0x10002      ; r
    s_lshl_b32 s{S_X0+8}, s{S_X0+7}, 2
    s_add_u32 s{S_X0+8}, s{S_X0+8}, s{S_WAVE}   ; batch
    s_lshl_b32 s{S_A+3}, s{S_X0+8}, 16
    s_lshl_b32 s7, s{S_J}, 2
    s_add_u32 s{S_X0+9}, s{S_X0+6}, s7          ; head
    s_lshl_b32 s{S_X0+2}, s{S_X0+6}, 1
    s_lshl_b32 s7, s{S_X0+7}, 2
    s_add_u32 s{S_X0+2}, s{S_X0+2}, s7
    s_and_b32 s{S_X0+2}, s{S_X0+2}, {7 if rot else 0}   ; rotation of the k tiles
    s_lshl_b32 s{S_A+2}, s{S_X0+2}, 8
    s_add_u32 s{S_A}, s{S_A+3}, s{S_A+2}
    s_waitcnt lgkmcnt(0)""")
    srd_sel(a, SRD0, S_X0 + 5, P_AX, P_BX, 0x80000)
    srd(a, SRDW, P_WS, WS_BYTES)
    a(f"""s_lshl_b32 s{S_X0+3}, s{S_X0+5}, 3
    s_add_u32 s{S_X0+3}, s{S_X0+3}, s{S_X0+8}
    s_lshl_b32 s{S_X0+3}, s{S_X0+3}, 5
    s_add_u32 s{S_X0+3}, s{S_X0+3}, s{S_X0+9}
    s_lshl_b32 s{S_X0+4}, s{S_X0+3}, 6
    s_add_u32 s{S_X0+4}, s{S_X0+4}, {WS_FQ}
    s_lshl_b32 s{S_X0+3}, s{S_X0+3}, 13""")
    fp_word()
    clear_flags(c, [(S_X0 + 4, 4, 11), (S_FOB, 1, 2), (S_X0 + 1, 4, 7)], "g1clear")
    a(f"s_lshl_b32 s{S_SCR}, s{S_WAVE}, 13\ns_add_u32 s{S_SCR}, s{S_SCR}, {LDS_SCR}")
    def prew():
        set_vd(a, 8192)
        srd_sel(a, SRD1, S_X0 + 5, P_AWQ, P_BWQ, 0x800000)
        a(f"s_lshl_b32 s{S_B+3}, s{S_X0+9}, 8\ns_lshl_b32 s7, s{S_WAVE}, 18\ns_add_u32 s{S_B+3}, s{S_B+3}, s7")
        a(f"s_lshl_b32 s{S_B+2}, s{S_X0+2}, 20\ns_add_u32 s{S_B}, s{S_B+3}, s{S_B+2}")
    for g in ["x0", "w0", "w1"] + [g for t in range(1, 7) for g in (f"x{t}", f"w{t+1}")] + ["x7"]:
        t = int(g[1])
        if g[0] == "x": st.add(g, 4, SRD0, S_A, 256, V_KD, 2048, fl_x, n_x[t], wrap=2048)
        else: st.add(g, t & 3, SRD1, S_B, 1 << 20, V_VD, 8192, fl_wq, n_wq[t], pre=prew if t == 0 else None, wrap=8 << 20)
    st.pump(8)
    add_kv(c, n_g1k, n_g1v, False)
    add_wo(c, 1)
    set_kr(a, S_SCR); set_tr(a)
    if pf: code_touch(a, "L_g1pf_x", "L_g2", 32768, 4, "g1pf")
    early = [n_early]
    def gated_pump(throttle):
        if st.can() and st.q[0][0][0] == "k":
            if early[0] <= 0: return
            early[0] -= 1
        st.pump(1, throttle)
    def wpre(t):
        def f():
            st.need(f"x{t}", fill=(t < 6))
            for s in range(8): a(f"ds_read_b128 {ar(32*t+4*s)}, v{V_KR+s}")
            if t == 0: count_in(c, "g1count"); stamp(c, 1)
            st.need(f"w{t}", fill=(t < 6))
            stamp(c, 3 + 2 * t, 3)
            a("s_barrier")
            stamp(c, 4 + 2 * t, 3)
            if t == 3: stamp(c, 3, 7); cyc(c, 5, True, 7)
            if t == 6: stamp(c, 4, 7); cyc(c, 5, False, 7)
            if t: st.release(f"w{t-1}")
            if t == 7:
                assert st.issued["x7"] == 8
                st.run_pre("k0")
        return f
    w_steps(a, [(t & 3, (lambda t: lambda w, s: ar(32 * t + 4 * (2 * w + s)))(t), wpre(t)) for t in range(8)],
            between=lambda n: (gated_pump(True), gated_pump(True)), opened=lambda i: (st.release(f"x{i}"), set_kr(a) if i == 7 else None))
    a(f"s_add_u32 s{S_TMP}, s{S_X0+3}, 4096")
    for T in range(4):
        for i in range(0, 16, 2):
            a(f"v_pk_mul_f32 {vr(V_S+16*T+i,2)}, {vr(V_S+16*T+i,2)}, s[{S_C}:{S_C+1}] op_sel_hi:[1,0]")
        for k in range(8): a(f"v_cvt_pk_bf16_f32 v{V_S+64+8*T+k}, v{V_S+16*T+2*k}, v{V_S+16*T+2*k+1}")
        for s in (2 * T, 2 * T + 1):
            a(f"buffer_store_dwordx4 {vr(V_S+64+4*s)}, v{V_L16}, {sr(SRDW)}, s{S_TMP if s>=4 else S_X0+3} offen offset:{1024*(s&3)} sc1")
    c.vm.issue("qst", 8)
    st.pump(3, throttle=False)
    c.vm.wait("qst"); st._sync()
    flag_store(c, S_X0 + 4)
    a("s_barrier"); st.release("w7")
    stamp(c, 2)
    mha1(c)
    publish_o(c, [(S_FOB, 1)], "g1pub", 10, ["v7"])
    stamp(c, 12)
    oproj(c, 1, "g1", 13)

    a.label("L_g2")
    c = mk(); st = c.st
    a("s_waitcnt lgkmcnt(0)")
    srd(a, SRDW, P_WS, WS_BYTES)
    a(f"""s_lshl_b32 s{S_X0+5}, s{S_U}, 1
    s_lshl_b32 s{S_X0+6}, s{S_J}, 5
    s_add_u32 s{S_X0+6}, s{S_X0+6}, s{S_X0+5}   ; b*32+h
    s_lshl_b32 s{S_X0+7}, s{S_X0+6}, 6
    s_add_u32 s{S_X0+7}, s{S_X0+7}, {WS_FQ}     ; Q flag
    s_lshl_b32 s{S_X0+6}, s{S_X0+6}, 13         ; Q offset (O = +WS_O)
    s_lshl_b32 s{S_X0+8}, s{S_J}, 3
    s_lshr_b32 s7, s{S_U}, 1
    s_add_u32 s{S_X0+8}, s{S_X0+8}, s7
    s_lshl_b32 s{S_X0+8}, s{S_X0+8}, 7
    s_and_b32 s7, s{S_U}, 1
    s_lshl_b32 s7, s7, 3
    s_add_u32 s{S_X0+8}, s{S_X0+8}, s7
    s_add_u32 s{S_X0+8}, s{S_X0+8}, {WS_FO}
    s_add_u32 s{S_X0+9}, s{S_X0+8}, 4""")
    def kva_off(S):
        a(f"s_lshl_b32 s{S+3}, s{S_J}, 2\ns_lshr_b32 s7, s{S_U}, 2\ns_add_u32 s{S+3}, s{S+3}, s7\ns_lshl_b32 s{S+3}, s{S+3}, 18")
        a(f"s_lshl_b32 s7, s{S_WAVE}, 13\ns_add_u32 s{S+3}, s{S+3}, s7")
        a(f"s_and_b32 s{S+2}, s{S_U}, {3 if rot else 0}\ns_lshl_b32 s{S+2}, s{S+2}, 16\ns_add_u32 s{S}, s{S+3}, s{S+2}")
    def preka(): srd(a, SRD0, P_AK, 0x800000); kva_off(S_A)
    def preva(): srd(a, SRD1, P_AV, 0x800000); kva_off(S_B)
    fp_word()
    clear_flags(c, [(S_FOB, 1, 2), (S_X0 + 8, 2, 2), (S_X0 + 1, 4, 7)], "g2clear")
    add_kv(c, n_g2k, n_g2v, True)
    st.pump(n_g2k[0])
    for t in range(8): st.add(f"ka{t}", t & 3, SRD0, S_A, 32768, V_KD, 256, fl_kva, n_kva[t], pre=preka if t == 0 else None, wrap=262144)
    for t in range(8): st.add(f"va{t}", t & 3, SRD1, S_B, 32768, V_VD, 256, fl_kva, n_vva[t], single=True, pre=preva if t == 0 else None, wrap=262144)
    add_wo(c, 0)
    set_kr(a); set_tr(a)
    if pf: code_touch(a, "L_g2pf_x", "L_end", 32768, 4, "g2pf")
    def qa_hook(t):
        if t == 1: ck_issue(c, "ws", (S_X0 + 7, 2, 6))
        if t == 3:
            ck_verify(c, "g2qa")
            q_dma(c, S_X0 + 6, 0, "qa")
            a(f"s_add_u32 s{S_X0+7}, s{S_X0+6}, 8192")
            q_dma(c, S_X0 + 7, 2048, "qa")
        if t == 7:
            if "qa" in c.vm.q: c.vm.wait("qa")
            st._sync()
            a("s_barrier")
            q_read(c, 0, lambda s: vr(V_Q + 4 * s)); a("s_waitcnt lgkmcnt(4)")
            q_read(c, 2048, lambda s: ar(A_Q1 + 4 * s))
            a("s_waitcnt lgkmcnt(0)\ns_barrier")
    mha2(c, qa_hook)
    st.release("v7")
    if kvpf & 2: touch(c, P_AV, 0x800000, KVA_BASE, 32768, 256, fl_kva)
    stamp(c, 5)
    if pf: code_touch(a, "L_g2tail2", "L_end", 16384, 2, "g2pf2")
    gqa_k(c, [f"ka{t}" for t in range(8)])
    stamp(c, 6)
    if kvpf & 4: touch(c, P_AWO, 0x800000, WO_BASE.replace(f"v{V_CA}", f"v{V_CA}"), 65536, 2048, fl_wo)
    gqa_v(c, [f"va{t}" for t in range(8)], hold=("va5", "va6", "va7"))
    stamp(c, 7)
    a.label("L_g2tail2")
    a(f"s_add_u32 s{S_X0+6}, s{S_X0+6}, {WS_O}\ns_add_u32 s{S_X0+7}, s{S_X0+7}, {WS_O}")
    o_epi(c, [dict(acc=lambda B: ar(A_O + 16 * B, 16), L=A_L, M=V_M, slot=3, b3=("scr", 0), st=(1, 0), dst=S_X0 + 6),
              dict(acc=o1, L=A_L1, M=V_M1, slot=2, b3=("scr", 4096), st=(1, 1024), dst=S_X0 + 7)])
    publish_o(c, [(S_X0 + 8, 2), (S_FOB, 1)], "g2pub2", 10, ["va5", "va6", "va7"])
    stamp(c, 12)
    oproj(c, 0, "g2", 13)

    a.label("L_red")
    c = mk()
    a(f"""s_lshl_b32 s{S_X0+2}, s{S_X0}, 2
    s_lshr_b32 s7, s{S_J}, 1
    s_add_u32 s{S_X0+2}, s{S_X0+2}, s7
    s_lshl_b32 s{S_X0+2}, s{S_X0+2}, 7
    s_add_u32 s{S_X0+2}, s{S_X0+2}, {WS_FP}
    v_and_b32 v{V_F+31}, 7, v{V_LANE}
    v_lshlrev_b32 v{V_F+31}, 2, v{V_F+31}""")
    poll(c, "redp", S_X0 + 2, 8, 1, V_F + 31)
    stamp(c, 16)
    from gen_v1 import reduce_body
    reduce_body(a, c.vm, S_X0, S_J, fl="sc1")
    if stamps:
        a("s_waitcnt vmcnt(0)"); stamp(c, 19)
        a(f"s_lshl_b32 s7, s2, 2\ns_add_u32 s7, s7, s{S_WAVE}\ns_lshl_b32 s7, s7, 7\ns_add_u32 s7, s7, {WS_ST}")
        for n in range(20): a(f"v_mov_b32 v{V_S+n}, s{70+n}")
        a(f"v_mov_b32 v{V_T0}, 0\ns_mov_b64 exec, 1")
        for q in range(5): a(f"buffer_store_dwordx4 {vr(V_S+4*q)}, v{V_T0}, {sr(SRDW)}, s7 offen offset:{16*q}")
    a.label("L_end"); a("s_endpgm")
    s = header(["; @launch grid=(256,1,1) block=(256,1,1) lds=163840"])
    s += kernel_open(NAME + "_kernel") + a.finish() + "\n"
    s += '.section .rodata,"a"\n.p2align 6\n' + descriptor(NAME + "_kernel")
    return s

if __name__ == "__main__":
    out = sys.argv[1]
    kw = dict(x.split("=") for x in sys.argv[2:])
    open(out, "w").write(build(**kw))
```

```python
import sys
from engines import *

WS_FQ = WS_F
WS_FO = WS_F + 0x10000
WS_FP = WS_F + 0x20000
WS_ST = WS_F + 0x100000
S_SCR = 69
SPIN = 1 << 20
SRDT = 88

class Stream:
    def __init__(self, a, vm):
        self.a, self.vm = a, vm
        self.q = []
        self.busy = {}
        self.landed = set(); self.issued = {}; self.m0_dirty = False; self.pres = {}; self.gates = set()
    def run_pre(self, tag):
        box = self.pres[tag]
        if box[0]: box[0](); box[0] = None
    def add(self, tag, slot, srdreg, soff, step, voff, rs, fl, N, single=False, pre=None, wrap=None):
        a = self.a
        fl = (" " + fl) if fl else ""
        sb, so_ = (S_SCR, 0) if slot == 4 else (S_RING, slot * 8192)
        box = [pre]
        def emit(k):
            if k == 0:
                if box[0]: box[0](); box[0] = None
                a(f"s_add_u32 m0, s{sb}, {so_}")
            if k == 4:
                a(f"s_add_u32 s{soff+1}, s{soff}, {16*rs}")
                a(f"s_add_u32 m0, s{sb}, {so_+4096}")
            if self.m0_dirty and k & 3: a(f"s_add_u32 m0, s{sb}, {so_+(k&4)*1024}")
            self.m0_dirty = False
            so = soff + 1 if k >= 4 else soff
            off = f" offset:{1024*(k&3)}" if k & 3 else ""
            a(f"buffer_load_dwordx4 v{voff+(0 if single else k&3)}, {sr(srdreg)}, s{so} offen{off}{fl} lds")
            if k == 7:
                if wrap is None: a(f"s_add_u32 s{soff}, s{soff}, {step}")
                else:
                    a(f"s_add_u32 s{soff+2}, s{soff+2}, {step}\ns_and_b32 s{soff+2}, s{soff+2}, {wrap-1}\ns_add_u32 s{soff}, s{soff+3}, s{soff+2}")
        for k in range(8): self.q.append((tag, slot, k, emit, N))
        self.pres[tag] = box
    def can(self):
        if not self.q: return False
        tag, slot, k, _, _ = self.q[0]
        if (tag, k) in self.gates: return False
        return self.busy.get(slot) in (None, tag)
    def gate(self, tag, k=0): self.gates.add((tag, k))
    def open(self, tag, k=0): self.gates.discard((tag, k))
    def _sync(self):
        for tag, n in self.issued.items():
            if n == 8 and tag not in self.vm.q: self.landed.add(tag)
    def piece(self, throttle=True):
        tag, slot, k, emit, N = self.q.pop(0)
        if throttle and len(self.vm.q) >= N:
            self.a(f"s_waitcnt vmcnt({N-1})"); self.vm.q = self.vm.q[len(self.vm.q) - (N - 1):] if N > 1 else []
        assert len(self.vm.q) < 63
        self.busy[slot] = tag
        emit(k); self.vm.issue(tag); self.issued[tag] = self.issued.get(tag, 0) + 1
        self._sync()
    def pump(self, n=99, throttle=True):
        while n > 0 and self.can():
            self.piece(throttle); n -= 1
    def need(self, tag, fill=True):
        self._sync()
        while tag not in self.landed and self.can() and (fill or self.issued.get(tag, 0) < 8):
            self.piece()
        if tag not in self.landed:
            assert self.issued.get(tag) == 8, tag
            self.vm.wait(tag); self._sync()
    def release(self, tag):
        for s, t in list(self.busy.items()):
            if t == tag: self.busy[s] = None

class Ctx: pass

def cyc(c, n, start, mode=1):
    if c.stamps != mode: return
    c.a("s_memtime s[42:43]\ns_waitcnt lgkmcnt(0)")
    if start: c.a(f"s_mov_b32 s{70+n}, s42")
    else: c.a(f"s_sub_u32 s{70+n}, s42, s{70+n}\ns_add_u32 s{70+n}, s{70+n}, s70")

def stamp(c, n, mode=1):
    if c.stamps != mode and not (c.stamps and n in (1, 2, 19)): return
    c.a(f"s_memrealtime s[42:43]\ns_waitcnt lgkmcnt(0)\ns_mov_b32 s{70+n}, s42")

def poll(c, name, soff_expr_reg, nl, want, voff):
    a = c.a
    a(f"s_mov_b32 s68, {SPIN}")
    a.label(f"L_{name}")
    a(f"buffer_load_dword v{V_T0}, v{voff}, {sr(SRDW)}, s{soff_expr_reg} offen sc1")
    a("s_sub_u32 s68, s68, 1\ns_cbranch_scc1 " + f"L_{name}_x")
    a(f"s_waitcnt vmcnt(0)")
    a(f"v_cmp_ne_u32 vcc, {want}, v{V_T0}")
    a(f"s_cbranch_vccnz L_{name}")
    a.label(f"L_{name}_x")
    c.vm.q = []; c.st._sync()

V_CK, V_CA = 34, 35
def ck_issue(c, kind, arg):
    a = c.a
    if kind == "dbg":
        a(f"v_and_b32 v{V_CA}, 7, v{V_LANE}\nv_lshlrev_b32 v{V_CA}, 5, v{V_CA}")
        ld = f"global_load_dword v{V_CK}, v{V_CA}, s[{P_DBG}:{P_DBG+1}] sc1"
        cmp_ = f"v_cmp_gt_u32 vcc, 32, v{V_CK}"
    else:
        so, nl, sh = arg
        a(f"v_and_b32 v{V_CA}, {nl-1}, v{V_LANE}\nv_lshlrev_b32 v{V_CA}, {sh}, v{V_CA}")
        ld = f"buffer_load_dword v{V_CK}, v{V_CA}, {sr(SRDW)}, s{so} offen sc1"
        cmp_ = f"v_cmp_ne_u32 vcc, 1, v{V_CK}"
    a(ld); c.vm.issue("ck"); c.ck = (ld, cmp_)
def ck_verify(c, name):
    a = c.a; ld, cmp_ = c.ck
    if "ck" in c.vm.q: c.vm.wait("ck")
    c.st._sync()
    a(f"s_mov_b32 s68, {SPIN}")
    a.label(f"L_{name}")
    a(f"{cmp_}\ns_cbranch_vccz L_{name}_x")
    a(f"{ld}\ns_sub_u32 s68, s68, 1\ns_waitcnt vmcnt(0)\ns_cbranch_scc0 L_{name}")
    a.label(f"L_{name}_x")

def park2(c, tags, hook=None):
    a, st = c.a, c.st
    for t in range(8):
        st.need(tags[t])
        slot = [s for s, g in st.busy.items() if g == tags[t]][0]
        for s in range(8):
            a(f"ds_read_b128 {ar(32*t+4*s)}, v{V_KR+s} offset:{slot*8192}")
        a("s_waitcnt lgkmcnt(0)")
        st.release(tags[t])
        stamp(c, 3 + t, 8)
        if hook: hook(t)

V_SH = 104
V_SH0, V_SH1 = 10, 14
def finish_max(a, M, T, sh):
    a(f"""v_mov_b32 v{T}, v{M}
    v_permlane32_swap_b32 v{M}, v{T}
    v_max_f32 v{M}, v{M}, v{T}
    v_mul_f32 v{M}, -0.5, v{M}
    v_cvt_pk_bf16_f32 v{T}, v{M}, v{M}
    v_lshlrev_b32 v{T}, 16, v{T}
    v_sub_f32 v{M}, v{M}, v{T}
    v_cvt_pk_bf16_f32 v{sh}, v{T}, v{M}
    v_and_b32 v{M}, 0xffff0000, v{sh}
    v_add_f32 v{M}, v{M}, v{T}
    v_mul_f32 v{M}, -2.0, v{M}
    v_mov_b32 v{sh+1}, 0
    v_mov_b32 v{sh+2}, 0
    v_mov_b32 v{sh+3}, 0""")
def shift(S, sh): return f"v_mfma_f32_32x32x16_bf16 {S}, {vr(V_ONE)}, {vr(sh)}, {S}"

def scores2(c, npump=1):
    a, st = c.a, c.st
    pend = []
    for t in range(8):
        for s in range(8):
            cc = "0" if s == 0 else vr(V_S + 16 * t, 16)
            a(f"v_mfma_f32_32x32x16_bf16 {vr(V_S+16*t,16)}, {ar(32*t+4*s)}, {vr(V_Q+4*s)}, {cc}")
            if s >= 4:
                for _ in range(2):
                    if pend: a(pend.pop(0))
            if s == 0 or (s == 2 and npump > 1): st.pump(1)
        b = V_S + 16 * t
        if t == 0:
            pend = [f"v_max3_f32 v{V_M}, v{b}, v{b+1}, v{b+2}"]
            pend += [f"v_max3_f32 v{V_M}, v{V_M}, v{b+i}, v{b+i+1}" for i in range(3, 15, 2)]
            pend += [f"v_max_f32 v{V_M}, v{V_M}, v{b+15}"]
        else:
            pend = [f"v_max3_f32 v{V_M}, v{V_M}, v{b+i}, v{b+i+1}" for i in range(0, 16, 2)]
    while pend: a(pend.pop(0))
    finish_max(a, V_M, V_MC, V_SH)

def sm_lines(b):
    out = [f"v_exp_f32 v{b+i}, v{b+i}" for i in range(16)]
    out += [f"v_cvt_pk_bf16_f32 v{b+k}, v{b+2*k}, v{b+2*k+1}" for k in range(8)]
    return out

def pv2(c, tags, last_pump=False, hold_last=True, hook=None, last=None):
    a, st = c.a, c.st
    for k in range(4): a(f"v_mov_b32 v{V_ONE+k}, 0x3f803f80")
    a(shift(vr(V_S, 16), V_SH)); a(shift(vr(V_S + 16, 16), V_SH))
    for l in sm_lines(V_S): a(l)
    for t in range(8):
        if t < 6: a(shift(vr(V_S + 16 * (t + 2), 16), V_SH))
        st.need(tags[t], fill=False)
        if t == 7 and last: last()
        slot = [s for s, g in st.busy.items() if g == tags[t]][0]
        for B in range(4):
            for s in range(2):
                f = V_F + 8 * B + 4 * s
                o = slot * 8192 + 16 * s * 256
                a(f"ds_read_b64_tr_b16 {vr(f,2)}, v{V_TV+B} offset:{o}")
                a(f"ds_read_b64_tr_b16 {vr(f+2,2)}, v{V_TV+B} offset:{o+8*256}")
        nxt = sm_lines(V_S + 16 * (t + 1)) if t < 7 else []
        b = V_S + 16 * t
        for s in range(2):
            cc = "0" if (t == 0 and s == 0) else ar(A_L, 16)
            a(f"v_mfma_f32_32x32x16_bf16 {ar(A_L,16)}, {vr(V_ONE)}, {vr(b+4*s)}, {cc}")
            for _ in range(3):
                if nxt: a(nxt.pop(0))
        n = 0
        for B in range(4):
            for s in range(2):
                n += 1
                if s == 0: a(f"s_waitcnt lgkmcnt({12-4*B})")
                cc = "0" if (t == 0 and s == 0) else ar(A_O + 16 * B, 16)
                a(f"v_mfma_f32_32x32x16_bf16 {ar(A_O+16*B,16)}, {vr(V_F+8*B+4*s)}, {vr(b+4*s)}, {cc}")
                for _ in range(3):
                    if nxt: a(nxt.pop(0))
                if t < 7 or last_pump: st.pump(1)
        while nxt: a(nxt.pop(0))
        if not (hold_last and t == 7): st.release(tags[t])
        stamp(c, 3 + t, 4)
        if hook: hook(t)

LQ_ORDER = list(range(8))
LQ_P, LQ_RAW, LQ_SH = 104, 112, V_Q
def lq_s(t):
    i = LQ_ORDER.index(t)
    return ("v", LQ_RAW) if i == 0 else ("a", 32 * LQ_ORDER[i - 1])
def lq_o(B): return ar((16, 48, 80, 144)[B], 16)
LQ_L = 176
def v_reads(dst, slot):
    out = []
    for B in range(4):
        for s in range(2):
            o = slot * 8192 + 16 * s * 256
            out.append(f"ds_read_b64_tr_b16 {vr(dst+8*B+4*s,2)}, v{V_TV+B} offset:{o}")
            out.append(f"ds_read_b64_tr_b16 {vr(dst+8*B+4*s+2,2)}, v{V_TV+B} offset:{o+8*256}")
    return out
def lq_park_v(c, tags, npark, hook=None):
    a, st = c.a, c.st
    for t in range(npark):
        st.need(tags[t])
        for l in v_reads(V_S + 32 * t, t): a(l)
        a("s_waitcnt lgkmcnt(0)")
        st.release(tags[t])
        stamp(c, 11 + t, 8)
        if hook: hook(t)
def lq_scores(c, npump):
    a, st = c.a, c.st
    pend = []; T = V_F
    for i, t in enumerate(LQ_ORDER):
        f, b = lq_s(t); S = f"{f}[{b}:{b+15}]"
        for s in range(8):
            a(f"v_mfma_f32_32x32x16_bf16 {S}, {ar(32*t+4*s)}, {vr(V_Q+4*s)}, {'0' if s == 0 else S}")
            if s >= 2:
                for _ in range(4):
                    if pend: a(pend.pop(0))
            if s == 0 or (s == 1 and npump > 1): st.pump(1)
        if i == 0:
            pend = [f"v_max3_f32 v{V_M}, v{b}, v{b+1}, v{b+2}"] + [f"v_max3_f32 v{V_M}, v{V_M}, v{b+k}, v{b+k+1}" for k in range(3, 15, 2)] + [f"v_max_f32 v{V_M}, v{V_M}, v{b+15}"]
        else:
            pend = [f"v_accvgpr_read_b32 v{T+k}, a{b+k}" for k in range(16)] + [f"v_max3_f32 v{V_M}, v{V_M}, v{T+k}, v{T+k+1}" for k in range(0, 16, 2)]
    while pend: a(pend.pop(0))
    finish_max(a, V_M, V_MC, LQ_SH)
def lq_pv(c, tags, npark, hook=None, last=None):
    a, st = c.a, c.st
    for k in range(4): a(f"v_mov_b32 v{V_ONE+k}, 0x3f803f80")
    def sh(i):
        f, b = lq_s(i); a(shift(f"{f}[{b}:{b+15}]", LQ_SH))
    def ex(i):
        f, b = lq_s(i)
        out = [] if f == "v" else [f"v_accvgpr_read_b32 v{LQ_RAW+k}, a{b+k}" for k in range(16)]
        return out + [f"v_exp_f32 v{LQ_RAW+k}, v{LQ_RAW+k}" for k in range(16)]
    pk = [f"v_cvt_pk_bf16_f32 v{LQ_P+k}, v{LQ_RAW+2*k}, v{LQ_RAW+2*k+1}" for k in range(8)]
    sh(0); sh(1)
    for l in ex(0) + pk: a(l)
    for t in range(8):
        if t < 6: sh(t + 2)
        ring = t >= npark
        if ring:
            st.need(tags[t], fill=False)
            if t == 7 and last: last()
            for l in v_reads(V_F, t & 3): a(l)
        nxt = ex(t + 1) if t < 7 else []
        def fill(n):
            for _ in range(n):
                if nxt: a(nxt.pop(0))
        fr = V_F if ring else V_S + 32 * t
        for s in range(2):
            a(f"v_mfma_f32_32x32x16_bf16 {ar(LQ_L,16)}, {vr(V_ONE)}, {vr(LQ_P+4*s)}, {'0' if t == 0 and s == 0 else ar(LQ_L,16)}"); fill(4)
        for B in range(4):
            if ring: a(f"s_waitcnt lgkmcnt({12-4*B})")
            for s in range(2):
                a(f"v_mfma_f32_32x32x16_bf16 {lq_o(B)}, {vr(fr+8*B+4*s)}, {vr(LQ_P+4*s)}, {'0' if t == 0 and s == 0 else lq_o(B)}")
                st.pump(1); fill(3)
        if ring and t != 7: st.release(tags[t])
        fill(99)
        if t < 7:
            for l in pk: a(l)
        stamp(c, 3 + t, 4)
        if hook: hook(t)

A_Q1, A_S1, A_L1 = 96, 128, 80
V_M1, V_MC1, V_P1 = 34, 35, 104
def o1(B): return vr(V_Q + 16 * B, 16) if B < 2 else ar(96 + 16 * (B - 2), 16)

def gqa_k(c, tags, hook=None):
    a, st = c.a, c.st
    pend = []
    for t in range(8):
        st.need(tags[t], fill=False)
        slot = [s for s, g in st.busy.items() if g == tags[t]][0]
        for s in range(8):
            a(f"ds_read_b128 {vr(V_F+4*s)}, v{V_KR+s} offset:{slot*8192}")
        for s in range(8):
            if s in (0, 1, 2, 4): a(f"s_waitcnt lgkmcnt({ {0: 7, 1: 6, 2: 4, 4: 0}[s] })")
            c0 = "0" if s == 0 else vr(V_S + 16 * t, 16)
            c1 = "0" if s == 0 else ar(A_S1 + 16 * t, 16)
            a(f"v_mfma_f32_32x32x16_bf16 {vr(V_S+16*t,16)}, {vr(V_F+4*s)}, {vr(V_Q+4*s)}, {c0}")
            for _ in range(2):
                if pend and s >= 2: a(pend.pop(0))
            a(f"v_mfma_f32_32x32x16_bf16 {ar(A_S1+16*t,16)}, {vr(V_F+4*s)}, {ar(A_Q1+4*s)}, {c1}")
            for _ in range(3):
                if pend and s >= 2: a(pend.pop(0))
            st.pump(1)
            if s == 7: st.release(tags[t])
        while pend: a(pend.pop(0))
        if hook: hook(t)
        stamp(c, 3 + t, 5)
        if t == 1: stamp(c, 3, 7); cyc(c, 5, True, 7)
        if t == 4: stamp(c, 4, 7); cyc(c, 5, False, 7)
        b = V_S + 16 * t
        def mx(M, b):
            if t == 0:
                return ([f"v_max3_f32 v{M}, v{b}, v{b+1}, v{b+2}"] + [f"v_max3_f32 v{M}, v{M}, v{b+i}, v{b+i+1}" for i in range(3, 15, 2)]
                        + [f"v_max_f32 v{M}, v{M}, v{b+15}"])
            return [f"v_max3_f32 v{M}, v{M}, v{b+i}, v{b+i+1}" for i in range(0, 16, 2)]
        pend = mx(V_M, b) + [f"v_accvgpr_read_b32 v{V_P1+i}, a{A_S1+16*t+i}" for i in range(16)] + mx(V_M1, V_P1)
    while pend: a(pend.pop(0))
    finish_max(a, V_M, V_MC, V_SH0); finish_max(a, V_M1, V_MC1, V_SH1)

def gqa_v(c, tags, hold):
    a, st = c.a, c.st
    P1 = [V_P1, V_P1 + 16 - 8]
    for k in range(4): a(f"v_mov_b32 v{V_ONE+k}, 0x3f803f80")
    RAW = V_P1 + 8
    def sm1(t):
        out = [f"v_accvgpr_read_b32 v{RAW+i}, a{A_S1+16*t+i}" for i in range(16)]
        out += [f"v_exp_f32 v{RAW+i}, v{RAW+i}" for i in range(16)]
        return out
    def pk1(): return [f"v_cvt_pk_bf16_f32 v{V_P1+k}, v{RAW+2*k}, v{RAW+2*k+1}" for k in range(8)]
    def sh(t): a(shift(vr(V_S + 16 * t, 16), V_SH0)); a(shift(ar(A_S1 + 16 * t, 16), V_SH1))
    sh(0); sh(1)
    for l in sm_lines(V_S) + sm1(0) + pk1(): a(l)
    for t in range(8):
        if t < 6: sh(t + 2)
        st.need(tags[t], fill=False)
        slot = [s for s, g in st.busy.items() if g == tags[t]][0]
        for B in range(4):
            for s in range(2):
                f = V_F + 8 * B + 4 * s
                o = slot * 8192 + 16 * s * 256
                a(f"ds_read_b64_tr_b16 {vr(f,2)}, v{V_TV+B} offset:{o}")
                a(f"ds_read_b64_tr_b16 {vr(f+2,2)}, v{V_TV+B} offset:{o+8*256}")
        nxt = (sm1(t + 1)[:16] + sm_lines(V_S + 16 * (t + 1)) + sm1(t + 1)[16:]) if t < 7 else []
        b = V_S + 16 * t
        def fill(n):
            for _ in range(n):
                if nxt: a(nxt.pop(0))
        for s in range(2):
            z = t == 0 and s == 0
            a(f"v_mfma_f32_32x32x16_bf16 {ar(A_L,16)}, {vr(V_ONE)}, {vr(b+4*s)}, {'0' if z else ar(A_L,16)}"); fill(4)
            a(f"v_mfma_f32_32x32x16_bf16 {ar(A_L1,16)}, {vr(V_ONE)}, {vr(V_P1+4*s)}, {'0' if z else ar(A_L1,16)}"); fill(4)
        n = 0
        for B in range(4):
            for s in range(2):
                n += 1
                z = t == 0 and s == 0
                if s == 0: a(f"s_waitcnt lgkmcnt({12-4*B})")
                a(f"v_mfma_f32_32x32x16_bf16 {ar(A_O+16*B,16)}, {vr(V_F+8*B+4*s)}, {vr(b+4*s)}, {'0' if z else ar(A_O+16*B,16)}"); fill(3)
                a(f"v_mfma_f32_32x32x16_bf16 {o1(B)}, {vr(V_F+8*B+4*s)}, {vr(V_P1+4*s)}, {'0' if z else o1(B)}"); fill(2)
                if t < 7: st.pump(1)
        if tags[t] not in hold: st.release(tags[t])
        fill(999)
        if t < 7:
            for l in pk1(): a(l)
        stamp(c, 11 + t, 5); stamp(c, 3 + t, 6)
        if t == 1: stamp(c, 6, 7); cyc(c, 8, True, 7)
        if t == 4: stamp(c, 7, 7); cyc(c, 8, False, 7)

def o_epi(c, heads, mid=None):
    a = c.a
    t = V_F + 24
    a(f"s_lshl_b32 s{S_TMP}, s{S_WAVE}, 13\ns_add_u32 s{S_TMP}, s{S_TMP}, {LDS_SCR}")
    a(f"v_add_u32 v{t}, s{S_RING}, v{V_L16}\nv_add_u32 v{t+1}, s{S_TMP}, v{V_L16}")
    def loc(spec, ring, scr):
        base, off = spec
        return (scr, off) if base == "scr" else (ring, base * 8192 + off)
    def sub(txt, g):
        f, lo = txt[0], int(txt[2:txt.index(":")])
        return f"{f}[{lo+4*g}:{lo+4*g+3}]"
    for n, h in enumerate(heads):
        a(f"v_mov_b32 v{V_F+8*n}, v{h['M']}\nv_accvgpr_read_b32 v{V_F+8*n+1}, a{h['L']}")
        v, o = loc(h["st"], t, t + 1)
        a(f"ds_write_b64 v{v}, {vr(V_F+8*n,2)} offset:{o}")
        for B in (1, 2, 3):
            v, o = loc((h["slot"], 4096 * (B - 1)) if B < 3 else h["b3"], t, t + 1)
            for g in range(4): a(f"ds_write_b128 v{v}, {sub(h['acc'](B), g)} offset:{o+1024*g}")
    for n, h in enumerate(heads):
        own = h["acc"](0); lo = int(own[2:own.index(":")])
        for i in range(16):
            a(f"v_accvgpr_read_b32 v{V_S+64*n+i}, a{lo+i}" if own[0] == "a" else f"v_mov_b32 v{V_S+64*n+i}, v{lo+i}")
    for B in (1, 2, 3):
        a(f"s_sub_u32 s{S_TMP}, s{S_WAVE}, {B}\ns_and_b32 s{S_TMP}, s{S_TMP}, 3")
        a(f"s_lshl_b32 s7, s{S_TMP}, 13\ns_add_u32 s7, s7, {LDS_SCR}\ns_lshl_b32 s{S_TMP}, s{S_TMP}, 15")
        a(f"v_add_u32 v{t+2*B}, s{S_TMP}, v{V_L16}\nv_add_u32 v{t+2*B+1}, s7, v{V_L16}")
    md = 4 if len(heads) == 1 else 6
    a("s_waitcnt lgkmcnt(0)"); stamp(c, 11, md); a("s_barrier"); stamp(c, 12, md)
    for n, h in enumerate(heads):
        for B in (1, 2, 3):
            v, o = loc(h["st"], t + 2 * B, t + 2 * B + 1)
            a(f"ds_read_b64 {vr(V_F+8*n+2*B,2)}, v{v} offset:{o}")
        for B in (1, 2, 3):
            v, o = loc((h["slot"], 4096 * (B - 1)) if B < 3 else h["b3"], t + 2 * B, t + 2 * B + 1)
            for g in range(4): a(f"ds_read_b128 {vr(V_S+64*n+16*B+4*g)}, v{v} offset:{o+1024*g}")
        if mid and n == 0: mid()
        a("s_waitcnt lgkmcnt(12)")
        m = [V_F + 8 * n + 2 * u for u in range(4)]; l = [x + 1 for x in m]
        M = V_F + 16; L = V_F + 17; f = [V_F + 18 + u for u in range(4)]
        a(f"v_max3_f32 v{M}, v{m[0]}, v{m[1]}, v{m[2]}\nv_max_f32 v{M}, v{M}, v{m[3]}")
        for u in range(4): a(f"v_sub_f32 v{f[u]}, v{m[u]}, v{M}")
        for u in range(4): a(f"v_exp_f32 v{f[u]}, v{f[u]}")
        a(f"v_mul_f32 v{L}, v{f[0]}, v{l[0]}")
        for u in range(1, 4): a(f"v_fmac_f32 v{L}, v{f[u]}, v{l[u]}")
        a(f"v_rcp_f32 v{L}, v{L}")
        for u in range(4): a(f"v_mul_f32 v{f[u]}, v{f[u]}, v{L}")
        S = V_S + 64 * n
        def sel(r): return ("op_sel_hi:[1,0", vr(r, 2)) if r % 2 == 0 else ("op_sel:[0,1", vr(r - 1, 2))
        md_, fr = sel(f[0])
        for i in range(0, 16, 2): a(f"v_pk_mul_f32 {vr(S+i,2)}, {vr(S+i,2)}, {fr} {md_}]")
        for B in (1, 2, 3):
            a(f"s_waitcnt lgkmcnt({12-4*B})")
            md_, fr = sel(f[B])
            tail = ",1]" if md_.startswith("op_sel_hi") else ",0]"
            for i in range(0, 16, 2): a(f"v_pk_fma_f32 {vr(S+i,2)}, {vr(S+16*B+i,2)}, {fr}, {vr(S+i,2)} {md_}{tail}")
        if n == len(heads) - 1:
            stamp(c, 13, md); a("s_barrier"); stamp(c, 14, md)
        for k in range(8): a(f"v_cvt_pk_bf16_f32 v{S+k}, v{S+2*k}, v{S+2*k+1}")
        a(f"s_lshl_b32 s{S_TMP}, s{S_WAVE}, 11\ns_add_u32 s{S_TMP}, s{S_TMP}, s{h['dst']}")
        a(f"buffer_store_dwordx4 {vr(S)}, v{V_L16}, {sr(SRDW)}, s{S_TMP} offen sc1")
        a(f"buffer_store_dwordx4 {vr(S+4)}, v{V_L16}, {sr(SRDW)}, s{S_TMP} offen offset:1024 sc1")
        c.vm.issue("ost", 2)
    stamp(c, 15, md)

def flag_store(c, soff, nl=1):
    a = c.a
    a(f"v_mov_b32 v{V_T0}, 1\nv_lshlrev_b32 v{V_F+31}, 2, v{V_LANE}")
    a(f"s_mov_b64 exec, {(1<<nl)-1}")
    a(f"buffer_store_dword v{V_T0}, v{V_F+31}, {sr(SRDW)}, s{soff} offen sc1")
    a("s_mov_b64 exec, -1")
    c.vm.issue("flag")

def q_dma(c, soff, lds_off, tag):
    a = c.a
    a(f"s_lshl_b32 s{S_TMP}, s{S_WAVE}, 13\ns_add_u32 m0, s{S_TMP}, {LDS_SCR+lds_off}")
    a(f"s_lshl_b32 s{S_TMP}, s{S_WAVE}, 11\ns_add_u32 s{S_TMP}, s{S_TMP}, s{soff}")
    for k in range(2):
        a(f"buffer_load_dwordx4 v{V_L16}, {sr(SRDW)}, s{S_TMP} offen offset:{1024*k} sc1 lds")
    c.vm.issue(tag, 2); c.st.m0_dirty = True
def q_read(c, lds_off, dst):
    a = c.a
    a(f"v_add_u32 v{V_CA}, {LDS_SCR}, v{V_L16}")
    for s in range(8): a(f"ds_read_b128 {dst(s)}, v{V_CA} offset:{(s>>1)*8192+lds_off+(s&1)*1024}")

S_J, S_CC, S_U = 50, 51, 52
S_A = 56
S_B = 60
S_QB, S_OB, S_FQB, S_FOB = 64, 65, 66, 67
S_X0 = 92

def code_touch(a, first, last, est, share, name):
    per = -(-est // (share * 8192)) * 8192
    a(f"s_cmp_lg_u32 s{S_WAVE}, 3\ns_cbranch_scc1 L_{name}_x")
    a(f"s_getpc_b64 s[48:49]")
    a.label(f"L_{name}")
    a(f"s_add_u32 s48, s48, {first}-L_{name}\ns_addc_u32 s49, s49, 0")
    a(f"s_and_b32 s7, s{S_CC}, {share-1}\ns_mul_i32 s7, s7, {per}")
    a(f"v_lshl_add_u32 v{V_F+30}, v{V_LANE}, 7, s7")
    for k in range(per // 8192):
        a(f"v_min_u32 v{V_F+29}, {last}-{first}-4, v{V_F+30}")
        a(f"global_load_dword v{V_T0}, v{V_F+29}, s[48:49]")
        a(f"v_add_u32 v{V_F+30}, 8192, v{V_F+30}")
    a.label(f"L_{name}_x")

class PerTile:
    def __init__(self, v): self.v = [int(x) for x in str(v).split(",")]
    def __getitem__(self, t): return self.v[min(t, len(self.v) - 1)]

def build(stamps=0, pf=1, n_early=0, kvpf=0, qpf='', qthr=0, rotq=1, nog1=0, perm=0, npark=2, g1wo=0, va1=7, n_qpre=4, n_spump=1, n_look=8, n_x=32, n_wq=32, n_kva=32, n_vva=32, n_g2k=6, n_g2v=6, n_g1k=6, n_g1v=8, n_wo=8, fl_x="", fl_wq="", fl_kva="", fl_wo="", fl_kv="nt", rot=1):
    stamps = int(stamps); pf = int(pf); n_early = int(n_early); kvpf = int(kvpf); n_qpre = int(n_qpre); npark = int(npark); g1wo = int(g1wo); va1 = int(va1); n_spump = int(n_spump); n_look = int(n_look);  n_g2k, n_g2v, n_g1k, n_g1v, n_wo, n_x, n_wq, n_kva, n_vva = map(PerTile, (n_g2k, n_g2v, n_g1k, n_g1v, n_wo, n_x, n_wq, n_kva, n_vva)); rot = int(rot)
    a = Asm()
    prologue(a, 256, "L_end")
    if stamps: a("s_memrealtime s[70:71]")
    if int(perm): a(f"s_xor_b32 s2, s2, {int(perm)}")
    a(f"""s_and_b32 s{S_J}, s2, 7
    s_lshr_b32 s{S_CC}, s2, 3
    s_and_b32 s{S_U}, s{S_CC}, 15
    s_and_b32 s53, s{S_CC}, 3
    s_lshl_b32 s7, s{S_J}, 2
    s_add_u32 s53, s53, s7          ; head of the MHA task
    s_lshr_b32 s54, s{S_CC}, 2      ; batch of the MHA task
    s_lshl_b32 s55, s54, 5
    s_add_u32 s55, s55, s53         ; b*32+h
    s_cmp_lt_u32 s{S_CC}, 16
    s_cbranch_scc1 L_g1""")
    def common():
        if stamps:
            for n in range(1, 20): a(f"s_mov_b32 s{70+n}, s70")
        srd(a, SRDW, P_WS, WS_BYTES)
        a(f"""s_lshl_b32 s{S_QB}, s55, 13
        s_add_u32 s{S_QB}, s{S_QB}, {WS_Q + (2<<20)}
        s_add_u32 s{S_OB}, s{S_QB}, {WS_O - WS_Q}
        s_lshl_b32 s{S_FQB}, s55, 6
        s_add_u32 s{S_FQB}, s{S_FQB}, {WS_FQ + 256*64}
        s_lshl_b32 s{S_FOB}, s54, 3
        s_add_u32 s{S_FOB}, s{S_FOB}, s{S_J}
        s_lshl_b32 s{S_FOB}, s{S_FOB}, 7
        s_and_b32 s7, s{S_CC}, 3
        s_lshl_b32 s7, s7, 2
        s_add_u32 s{S_FOB}, s{S_FOB}, s7
        s_add_u32 s{S_FOB}, s{S_FOB}, {WS_FO + 64*128}
        s_mov_b32 s{S_C}, {f32(C_SCALE)}""")

    def mk():
        c = Ctx(); c.a = a; c.vm = VM(a); c.st = Stream(a, c.vm); c.stamps = stamps
        return c
    def kv_offsets():
        a(f"s_lshl_b32 s{S_A}, s55, 18\ns_lshl_b32 s7, s{S_WAVE}, 13\ns_add_u32 s{S_A}, s{S_A}, s7")
    def clear_flags(c, words, name):
        a(f"s_cmp_lg_u32 s{S_WAVE}, 0\ns_cbranch_scc1 L_{name}")
        a(f"v_mov_b32 v{V_T0}, 0")
        for so, nl, sh in words:
            a(f"v_lshlrev_b32 v{V_F+31}, {sh}, v{V_LANE}\ns_mov_b64 exec, {(1<<nl)-1}")
            a(f"buffer_store_dword v{V_T0}, v{V_F+31}, {sr(SRDW)}, s{so} offen sc1\ns_mov_b64 exec, -1")
        a.label(f"L_{name}")
    def count_in(c, name):
        a(f"s_cmp_lg_u32 s{S_WAVE}, 0\ns_cbranch_scc1 L_{name}")
        a(f"s_lshl_b32 s7, s{S_J}, 5\nv_mov_b32 v{V_T0}, 1\nv_mov_b32 v{V_F+31}, s7\ns_mov_b64 exec, 1")
        a(f"global_atomic_add v{V_F+31}, v{V_T0}, s[{P_DBG}:{P_DBG+1}] sc1")
        a("s_mov_b64 exec, -1")
        a.label(f"L_{name}")
    def wait_cleared(c, name):
        a(f"s_mov_b32 s68, {SPIN}\nv_and_b32 v{V_F+31}, 7, v{V_LANE}\nv_lshlrev_b32 v{V_F+31}, 5, v{V_F+31}")
        a.label(f"L_{name}")
        a(f"global_load_dword v{V_T0}, v{V_F+31}, s[{P_DBG}:{P_DBG+1}] sc1")
        a(f"s_sub_u32 s68, s68, 1\ns_cbranch_scc1 L_{name}_x\ns_waitcnt vmcnt(0)")
        a(f"v_cmp_gt_u32 vcc, 32, v{V_T0}\ns_cbranch_vccnz L_{name}")
        a.label(f"L_{name}_x")
        c.vm.q = []; c.st._sync()
    def fp_word():
        a(f"s_xor_b32 s{S_X0}, s{S_CC}, 16          ; c_to")
        a(f"s_lshl_b32 s{S_X0+1}, s{S_X0}, 2\ns_add_u32 s{S_X0+1}, s{S_X0+1}, s{S_WAVE}\ns_lshl_b32 s{S_X0+1}, s{S_X0+1}, 7")
        a(f"s_lshl_b32 s7, s{S_J}, 2\ns_add_u32 s{S_X0+1}, s{S_X0+1}, s7\ns_add_u32 s{S_X0+1}, s{S_X0+1}, {WS_FP}")
    def add_wo(c, X):
        def pre():
            set_vd(a, 2048)
            srd(a, SRD1, P_BWO if X else P_AWO, 0x800000)
            a(f"s_add_u32 s7, s{S_WAVE}, s{S_U}\ns_and_b32 s7, s7, 3")
            a(f"s_lshl_b32 s{S_B+3}, s{S_J}, 2\ns_add_u32 s{S_B+3}, s{S_B+3}, s7\ns_lshl_b32 s{S_B+3}, s{S_B+3}, 18")
            a(f"s_and_b32 s7, s{S_U}, 7\ns_lshl_b32 s7, s7, 8\ns_add_u32 s{S_B+3}, s{S_B+3}, s7")
            a(f"s_lshr_b32 s{S_B+2}, s{S_U}, 3\ns_lshl_b32 s{S_B+2}, s{S_B+2}, 17" if rot else f"s_mov_b32 s{S_B+2}, 0")
            a(f"s_add_u32 s{S_B}, s{S_B+3}, s{S_B+2}")
        for t in range(4):
            c.st.add(f"wo{t}", t, SRD1, S_B, 65536, V_VD, 2048, fl_wo, n_wo[t], pre=pre if t == 0 else None, wrap=262144)
    def add_kv(c, nk, nv, first):
        def prek():
            set_kd(a, 256); kv_offsets()
            if first: a("s_waitcnt lgkmcnt(0)")
            srd(a, SRD0, P_BK, 0x4000000)
        def prev():
            set_vd(a, 256); srd(a, SRD1, P_BV, 0x4000000)
            a(f"s_lshl_b32 s{S_B}, s55, 18\ns_lshl_b32 s7, s{S_WAVE}, 13\ns_add_u32 s{S_B}, s{S_B}, s7")
        for t in range(8): c.st.add(f"k{t}", t & 3, SRD0, S_A, 32768, V_KD, 256, fl_kv, nk[t], pre=prek if t == 0 else None)
        for t in range(8): c.st.add(f"v{t}", t & 3, SRD1, S_B, 32768, V_VD, 256, fl_kv, nv[t], single=True, pre=prev if t == 0 else None)
    def touch(c, ptr, size, base_asm, step, rs, fl):
        a(base_asm)
        a(f"s_add_u32 s49, s48, {step}")
        a(f"v_lshrrev_b32 v{V_CA}, 1, v{V_LANE}\nv_lshlrev_b32 v{V_CA}, {rs.bit_length()-1}, v{V_CA}")
        a(f"v_and_b32 v{V_T0}, 1, v{V_LANE}\nv_lshl_add_u32 v{V_CA}, v{V_T0}, 7, v{V_CA}")
        srd(a, SRDT, ptr, size)
        for so in (48, 49):
            a(f"buffer_load_dword v{V_T0}, v{V_CA}, {sr(SRDT)}, s{so} offen {fl}")
            c.vm.issue("pf")
    KVA_BASE = (f"s_lshl_b32 s48, s{S_J}, 2\ns_lshr_b32 s7, s{S_U}, 2\ns_add_u32 s48, s48, s7\ns_lshl_b32 s48, s48, 18\n"
                f"s_lshl_b32 s7, s{S_WAVE}, 13\ns_add_u32 s48, s48, s7\n"
                f"s_and_b32 s7, s{S_U}, 3\ns_lshl_b32 s7, s7, 16\ns_add_u32 s48, s48, s7")
    WO_BASE = (f"s_add_u32 s7, s{S_WAVE}, s{S_U}\ns_and_b32 s7, s7, 3\ns_lshl_b32 s48, s{S_J}, 2\ns_add_u32 s48, s48, s7\ns_lshl_b32 s48, s48, 18\n"
               f"s_and_b32 s7, s{S_U}, 7\ns_lshl_b32 s7, s7, 8\ns_add_u32 s48, s48, s7\n"
               f"s_lshr_b32 s7, s{S_U}, 3\ns_lshl_b32 s7, s7, 17\ns_add_u32 s48, s48, s7")
    def get_q(c):
        if "q" in c.vm.q: c.vm.wait("q")
        c.st._sync()
        a("s_barrier")
        q_read(c, 5120, lambda s: vr(V_Q + 4 * s))
        a("s_waitcnt lgkmcnt(0)")
    def mha1(c):
        st = c.st
        def hook(t):
            if t == 1: ck_issue(c, "dbg", None)
            if t == 3: ck_verify(c, "g1clr"); ck_issue(c, "ws", (S_FQB, 1, 2))
            if t == 5: ck_verify(c, "g1q"); q_dma(c, S_QB, 5120, "q")
        park2(c, [f"k{t}" for t in range(8)], hook)
        stamp(c, 3)
        get_q(c)
        stamp(c, 4)
        if pf:
            code_touch(a, "L_g1tail", "L_g2", 8192, 1, "g1pf2"); code_touch(a, "L_red", "L_end", 8192, 1, "g1pf3")
        scores2(c, n_spump)
        stamp(c, 5)
        for g in range(g1wo, 3): st.gate(f"wo{g}")
        pv2(c, [f"v{t}" for t in range(8)], last_pump=True, last=lambda: (st.run_pre("wo0"), st.open(f"wo{g1wo}")))
        stamp(c, 6)
        a.label("L_g1tail")
        o_epi(c, [dict(acc=lambda B: ar(A_O + 16 * B, 16), L=A_L, M=V_M, slot=3, b3=("scr", 0), st=("scr", 4096), dst=S_OB)],
              mid=lambda: (st.open(f"wo{g1wo+1}"), st.pump(8, False)))
        for g in range(3): st.open(f"wo{g}")
    def mha2(c, pvhook):
        st = c.st
        end = 7 + npark
        def hook(p):
            if p == 1: count_in(c, "g2count")
            if p == end - 3: ck_issue(c, "dbg", None)
            if p == end - 2: ck_verify(c, "g2clr")
            if p == end - 1: ck_issue(c, "ws", (S_FQB, 1, 2))
        park2(c, [f"k{t}" for t in range(8)], hook)
        stamp(c, 1)
        lq_park_v(c, [f"v{t}" for t in range(8)], npark, lambda t: hook(8 + t))
        stamp(c, 15, 8)
        ck_verify(c, "g2q")
        q_dma(c, S_QB, 5120, "q")
        st.pump(n_qpre)
        get_q(c)
        stamp(c, 2)
        lq_scores(c, n_spump)
        stamp(c, 3)
        for g in ("ka0", "ka1", "ka2"): st.gate(g)
        lq_pv(c, [f"v{t}" for t in range(8)], npark, pvhook, last=lambda: (st.run_pre("ka0"), st.open("ka0")))
        stamp(c, 4)
        o_epi(c, [dict(acc=lq_o, L=LQ_L, M=V_M, slot=3, b3=("scr", 0), st=("scr", 4096), dst=S_OB)],
              mid=lambda: (st.open("ka1"), st.pump(8, False)))
        st.open("ka2")
    def publish_o(c, words, name, n, held):
        stamp(c, n)
        for g in held: c.st.release(g)
        c.st.open("wo1", 7)
        c.st.pump(2, throttle=False)
        c.vm.wait("ost"); c.st._sync()
        stamp(c, n + 1)
        a("s_barrier")
        a(f"s_cmp_lg_u32 s{S_WAVE}, 0\ns_cbranch_scc1 L_{name}")
        q = list(c.vm.q)
        for so, nl in words: flag_store(c, so, nl)
        a.label(f"L_{name}")
        c.vm.q = q

    def oproj(c, X, tag, sbase):
        st = c.st
        a(f"""s_lshr_b32 s{S_X0+2}, s{S_U}, 3
        s_lshl_b32 s{S_X0+2}, s{S_X0+2}, 2
        s_add_u32 s{S_X0+2}, s{S_X0+2}, s{S_WAVE}
        s_add_u32 s{S_X0+2}, s{S_X0+2}, {8*X}        ; X*8 + batch
        s_lshl_b32 s{S_X0+3}, s{S_X0+2}, 3
        s_add_u32 s{S_X0+3}, s{S_X0+3}, s{S_J}
        s_lshl_b32 s{S_X0+4}, s{S_X0+3}, 15
        s_add_u32 s{S_X0+4}, s{S_X0+4}, {WS_O}       ; O offset
        s_lshl_b32 s{S_X0+3}, s{S_X0+3}, 7
        s_add_u32 s{S_X0+3}, s{S_X0+3}, {WS_FO}
        v_and_b32 v{V_F+31}, 3, v{V_LANE}
        v_lshlrev_b32 v{V_F+31}, 2, v{V_F+31}""")
        st.pump(throttle=False)
        c.vm.wait_all(); st._sync()
        stamp(c, 8)
        a("s_barrier")
        stamp(c, 9)
        poll(c, tag + "o", S_X0 + 3, 4, 1, V_F + 31)
        stamp(c, sbase)
        if rot: a(f"s_lshr_b32 s59, s{S_U}, 3\ns_lshl_b32 s59, s59, 12")
        else: a("s_mov_b32 s59, 0")
        items = [(w, i, s_) for w in range(4) for i in range(4) for s_ in range(2)]
        todo = list(items)
        def fetch():
            if not todo: return
            w, i, s_ = todo.pop(0)
            if i == 0 and s_ == 0:
                a(f"s_add_u32 s7, s{S_U}, {w}\ns_and_b32 s7, s7, 3\ns_lshl_b32 s7, s7, 13\ns_add_u32 s7, s7, s{S_X0+4}")
                a(f"s_add_u32 s56, s7, s59\ns_xor_b32 s57, s59, 4096\ns_add_u32 s57, s7, s57")
            a(f"buffer_load_dwordx4 {ar(32*w+8*i+4*s_)}, v{V_L16}, {sr(SRDW)}, s{56+(i>>1)} offen offset:{1024*(2*(i&1)+s_)} sc1")
            c.vm.issue(f"of{w}_{i}_{s_}")
        for _ in range(n_look): fetch()
        cyc(c, 17, True)
        def bf(w, i, s_):
            if f"of{w}_{i}_{s_}" in c.vm.q:
                c.vm.wait(f"of{w}_{i}_{s_}"); fetch()
            return ar(32 * w + 8 * i + 4 * s_)
        w_items(a, items, bf)
        cyc(c, 17, False); stamp(c, 18)
        cvt_acc(a)
        t = V_T0
        a(f"""v_and_b32 v{t}, 15, v{V_LANE}
        v_lshlrev_b32 v{t}, 4, v{t}
        v_lshrrev_b32 v{t+1}, 5, v{V_LANE}
        v_lshl_add_u32 v{t}, v{t+1}, 8, v{t}
        v_bfe_u32 v{t+1}, v{V_LANE}, 4, 1
        v_lshl_add_u32 v{t}, v{t+1}, 15, v{t}
        s_lshl_b32 s61, s{S_X0}, 3
        s_lshl_b32 s62, s{S_WAVE}, 1
        s_add_u32 s61, s61, s62
        s_lshl_b32 s61, s61, 3
        s_add_u32 s61, s61, s{S_J}
        s_lshl_b32 s61, s61, 12
        s_add_u32 s61, s61, {WS_P}""")
        for p in range(8):
            a(f"buffer_store_dwordx4 {vr(V_S+64+4*p)}, v{t}, {sr(SRDW)}, s61 offen offset:{512*p} sc1")
        stamp(c, sbase + 1)
        c.vm.wait_all()
        stamp(c, sbase + 2)
        flag_store(c, S_X0 + 1)
        a("s_branch L_red")

    c2 = mk()
    if qpf:
        a(f"""s_and_b32 s60, s{S_U}, 7
        s_lshl_b32 s60, s60, 2
        s_add_u32 s60, s60, s{S_WAVE}          ; 0..31
        s_lshr_b32 s61, s{S_U}, 3              ; h
        v_lshrrev_b32 v40, 3, v{V_LANE}
        v_and_b32 v41, 7, v{V_LANE}
        v_lshlrev_b32 v41, 7, v41
        v_lshl_add_u32 v40, v40, 13, v41
        v_lshrrev_b32 v41, 1, v{V_LANE}
        v_and_b32 v42, 1, v{V_LANE}
        v_lshlrev_b32 v42, 7, v42
        v_lshl_add_u32 v41, v41, 11, v42       ; 32 rows x 256 B
        s_and_b32 s62, s60, 15
        s_lshl_b32 s62, s62, 16
        s_lshl_b32 s7, s61, 20
        s_add_u32 s62, s62, s7
        s_lshl_b32 s7, s{S_J}, 10
        s_add_u32 s62, s62, s7                 ; Wq offset of k-tile h
        s_and_b32 s63, s60, 7
        s_lshl_b32 s63, s63, 16
        s_lshr_b32 s7, s60, 4
        s_lshl_b32 s7, s7, 8
        s_add_u32 s63, s63, s7
        s_lshl_b32 s7, s61, 9
        s_add_u32 s63, s63, s7                 ; x offset of k-tile 2h + (0|1)
        s_waitcnt lgkmcnt(0)
        s_bitcmp1_b32 s60, 4
        s_cselect_b32 s12, s{P_BWQ}, s{P_AWQ}
        s_cselect_b32 s13, s{P_BWQ+1}, s{P_AWQ+1}
        s_mov_b32 s14, 0x800000
        s_mov_b32 s15, 0x20000
        s_bitcmp1_b32 s60, 3
        s_cselect_b32 s{SRDT}, s{P_BX}, s{P_AX}
        s_cselect_b32 s{SRDT+1}, s{P_BX+1}, s{P_AX+1}
        s_mov_b32 s{SRDT+2}, 0x80000
        s_mov_b32 s{SRDT+3}, 0x20000""")
        for n, kind in enumerate("xWWxWW"):
            if qpf[n] == "1":
                if kind == "x": a(f"buffer_load_dword v43, v41, {sr(SRDT)}, s63 offen")
                else: a("buffer_load_dword v43, v40, s[12:15], s62 offen")
                c2.vm.issue("pf")
                if int(qthr): a(f"s_waitcnt vmcnt({int(qthr)-1})")
            a("s_add_u32 s63, s63, 1024" if kind == "x" else f"s_add_u32 s62, s62, {2<<20}")
    add_kv(c2, n_g2k, n_g2v, True)
    if stamps == 9: c2.st.run_pre("k0"); a("s_memrealtime s[62:63]")
    c2.st.pump(n_g2k[0])
    if stamps == 9:
        a(f"s_memrealtime s[64:65]\ns_waitcnt vmcnt({n_g2k[0]-1})\ns_memrealtime s[66:67]\ns_waitcnt vmcnt(0)\ns_memrealtime s[68:69]\ns_waitcnt lgkmcnt(0)")
        a("s_mov_b32 s92, s62\ns_mov_b32 s93, s64\ns_mov_b32 s94, s66\ns_mov_b32 s95, s68")
    a("s_branch L_g2")
    a.label("L_g1")
    c = mk(); st = c.st
    if int(nog1):
        global SPIN; SPIN = 4
        a("s_waitcnt lgkmcnt(0)"); common(); fp_word(); a("s_branch L_red")
    set_kd(a, 2048)
    a(f"""s_lshr_b32 s{S_X0+5}, s{S_U}, 3           ; X
    s_and_b32 s{S_X0+6}, s{S_U}, 3            ; hh
    s_bfe_u32 s{S_X0+7}, s{S_U}, 0x10002      ; r
    s_lshl_b32 s{S_X0+8}, s{S_X0+7}, 2
    s_add_u32 s{S_X0+8}, s{S_X0+8}, s{S_WAVE}   ; batch
    s_lshl_b32 s{S_A+3}, s{S_X0+8}, 16
    s_lshl_b32 s7, s{S_J}, 2
    s_add_u32 s{S_X0+9}, s{S_X0+6}, s7          ; head
    s_lshl_b32 s{S_X0+2}, s{S_X0+6}, 1
    s_lshl_b32 s7, s{S_X0+7}, 2
    s_add_u32 s{S_X0+2}, s{S_X0+2}, s7
    s_and_b32 s{S_X0+2}, s{S_X0+2}, {7 if int(rotq) else 0}   ; rotation of the k tiles
    s_lshl_b32 s{S_A+2}, s{S_X0+2}, 8
    s_add_u32 s{S_A}, s{S_A+3}, s{S_A+2}
    s_waitcnt lgkmcnt(0)""")
    srd_sel(a, SRD0, S_X0 + 5, P_AX, P_BX, 0x80000)
    a(f"s_lshl_b32 s{S_SCR}, s{S_WAVE}, 13\ns_add_u32 s{S_SCR}, s{S_SCR}, {LDS_SCR}")
    def prew():
        set_vd(a, 8192)
        srd_sel(a, SRD1, S_X0 + 5, P_AWQ, P_BWQ, 0x800000)
        a(f"s_lshl_b32 s{S_B+3}, s{S_X0+9}, 8\ns_lshl_b32 s7, s{S_WAVE}, 18\ns_add_u32 s{S_B+3}, s{S_B+3}, s7")
        a(f"s_lshl_b32 s{S_B+2}, s{S_X0+2}, 20\ns_add_u32 s{S_B}, s{S_B+3}, s{S_B+2}")
    for g in ["x0", "w0", "w1"] + [g for t in range(1, 7) for g in (f"x{t}", f"w{t+1}")] + ["x7"]:
        t = int(g[1])
        if g[0] == "x": st.add(g, 4, SRD0, S_A, 256, V_KD, 2048, fl_x, n_x[t], wrap=2048)
        else: st.add(g, t & 3, SRD1, S_B, 1 << 20, V_VD, 8192, fl_wq, n_wq[t], pre=prew if t == 0 else None, wrap=8 << 20)
    st.pump(8)
    common()
    a(f"""s_lshl_b32 s{S_X0+3}, s{S_X0+5}, 3
    s_add_u32 s{S_X0+3}, s{S_X0+3}, s{S_X0+8}
    s_lshl_b32 s{S_X0+3}, s{S_X0+3}, 5
    s_add_u32 s{S_X0+3}, s{S_X0+3}, s{S_X0+9}
    s_lshl_b32 s{S_X0+4}, s{S_X0+3}, 6
    s_add_u32 s{S_X0+4}, s{S_X0+4}, {WS_FQ}
    s_lshl_b32 s{S_X0+3}, s{S_X0+3}, 13""")
    fp_word()
    clear_flags(c, [(S_X0 + 4, 4, 11), (S_FOB, 1, 2), (S_X0 + 1, 4, 7)], "g1clear")
    add_kv(c, n_g1k, n_g1v, False)
    add_wo(c, 1)
    set_kr(a, S_SCR); set_tr(a)
    if pf: code_touch(a, "L_g1pf_x", "L_g2", 32768, 4, "g1pf")
    early = [n_early]
    def gated_pump(throttle):
        if st.can() and st.q[0][0][0] == "k":
            if early[0] <= 0: return
            early[0] -= 1
        st.pump(1, throttle)
    def wpre(t):
        def f():
            st.need(f"x{t}", fill=(t < 6))
            for s in range(8): a(f"ds_read_b128 {ar(32*t+4*s)}, v{V_KR+s}")
            if t == 0: stamp(c, 1)
            st.need(f"w{t}", fill=(t < 6))
            if t == 0: count_in(c, "g1count")
            stamp(c, 3 + 2 * t, 3)
            a("s_barrier")
            stamp(c, 4 + 2 * t, 3)
            if t == 3: stamp(c, 3, 7); cyc(c, 5, True, 7)
            if t == 6: stamp(c, 4, 7); cyc(c, 5, False, 7)
            if t: st.release(f"w{t-1}")
            if t == 7:
                assert st.issued["x7"] == 8
                st.run_pre("k0")
        return f
    w_steps(a, [(t & 3, (lambda t: lambda w, s: ar(32 * t + 4 * (2 * w + s)))(t), wpre(t)) for t in range(8)],
            between=lambda n: (gated_pump(True), gated_pump(True)), opened=lambda i: (st.release(f"x{i}"), set_kr(a) if i == 7 else None))
    a(f"s_add_u32 s{S_TMP}, s{S_X0+3}, 4096")
    for T in range(4):
        for i in range(0, 16, 2):
            a(f"v_pk_mul_f32 {vr(V_S+16*T+i,2)}, {vr(V_S+16*T+i,2)}, s[{S_C}:{S_C+1}] op_sel_hi:[1,0]")
        for k in range(8): a(f"v_cvt_pk_bf16_f32 v{V_S+64+8*T+k}, v{V_S+16*T+2*k}, v{V_S+16*T+2*k+1}")
        for s in (2 * T, 2 * T + 1):
            a(f"buffer_store_dwordx4 {vr(V_S+64+4*s)}, v{V_L16}, {sr(SRDW)}, s{S_TMP if s>=4 else S_X0+3} offen offset:{1024*(s&3)} sc1")
    c.vm.issue("qst", 8)
    st.pump(3, throttle=False)
    c.vm.wait("qst"); st._sync()
    flag_store(c, S_X0 + 4)
    a("s_barrier"); st.release("w7")
    stamp(c, 2)
    mha1(c)
    publish_o(c, [(S_FOB, 1)], "g1pub", 10, ["v7"])
    stamp(c, 12)
    oproj(c, 1, "g1", 13)

    a.label("L_g2")
    c = c2; st = c.st
    common()
    if stamps == 9: a("s_mov_b32 s73, s92\ns_mov_b32 s74, s93\ns_mov_b32 s75, s94\ns_mov_b32 s76, s95"); stamp(c, 7, 9)
    a(f"""s_lshl_b32 s{S_X0+5}, s{S_U}, 1
    s_lshl_b32 s{S_X0+6}, s{S_J}, 5
    s_add_u32 s{S_X0+6}, s{S_X0+6}, s{S_X0+5}   ; b*32+h
    s_lshl_b32 s{S_X0+7}, s{S_X0+6}, 6
    s_add_u32 s{S_X0+7}, s{S_X0+7}, {WS_FQ}     ; Q flag
    s_lshl_b32 s{S_X0+6}, s{S_X0+6}, 13         ; Q offset (O = +WS_O)
    s_lshl_b32 s{S_X0+8}, s{S_J}, 3
    s_lshr_b32 s7, s{S_U}, 1
    s_add_u32 s{S_X0+8}, s{S_X0+8}, s7
    s_lshl_b32 s{S_X0+8}, s{S_X0+8}, 7
    s_and_b32 s7, s{S_U}, 1
    s_lshl_b32 s7, s7, 3
    s_add_u32 s{S_X0+8}, s{S_X0+8}, s7
    s_add_u32 s{S_X0+8}, s{S_X0+8}, {WS_FO}
    s_add_u32 s{S_X0+9}, s{S_X0+8}, 4""")
    def kva_off(S):
        a(f"s_lshl_b32 s{S+3}, s{S_J}, 2\ns_lshr_b32 s7, s{S_U}, 2\ns_add_u32 s{S+3}, s{S+3}, s7\ns_lshl_b32 s{S+3}, s{S+3}, 18")
        a(f"s_lshl_b32 s7, s{S_WAVE}, 13\ns_add_u32 s{S+3}, s{S+3}, s7")
        a(f"s_and_b32 s{S+2}, s{S_U}, {3 if rot else 0}\ns_lshl_b32 s{S+2}, s{S+2}, 16\ns_add_u32 s{S}, s{S+3}, s{S+2}")
    def preka(): srd(a, SRD0, P_AK, 0x800000); kva_off(S_A)
    def preva(): srd(a, SRD1, P_AV, 0x800000); kva_off(S_B)
    fp_word()
    clear_flags(c, [(S_FOB, 1, 2), (S_X0 + 8, 2, 2), (S_X0 + 1, 4, 7)], "g2clear")
    for t in range(8): st.add(f"ka{t}", t & 3, SRD0, S_A, 32768, V_KD, 256, fl_kva, n_kva[t], pre=preka if t == 0 else None, wrap=262144)
    for t in range(8): st.add(f"va{t}", t & 3, SRD1, S_B, 32768, V_VD, 256, fl_kva, n_vva[t], single=True, pre=preva if t == 0 else None, wrap=262144)
    add_wo(c, 0)
    set_kr(a); set_tr(a)
    if pf: code_touch(a, "L_g2pf_x", "L_end", 32768, 4, "g2pf")
    def qa_hook(t):
        if t == 1: ck_issue(c, "ws", (S_X0 + 7, 2, 6))
        if t == 3:
            ck_verify(c, "g2qa")
            q_dma(c, S_X0 + 6, 0, "qa")
            a(f"s_add_u32 s{S_X0+7}, s{S_X0+6}, 8192")
            q_dma(c, S_X0 + 7, 2048, "qa")
        if t == 7:
            if "qa" in c.vm.q: c.vm.wait("qa")
            st._sync()
            a("s_barrier")
            q_read(c, 0, lambda s: vr(V_Q + 4 * s)); a("s_waitcnt lgkmcnt(4)")
            q_read(c, 2048, lambda s: ar(A_Q1 + 4 * s))
            a("s_waitcnt lgkmcnt(0)\ns_barrier")
    mha2(c, qa_hook)
    st.release("v7")
    if kvpf & 2: touch(c, P_AV, 0x800000, KVA_BASE, 32768, 256, fl_kva)
    stamp(c, 5)
    if pf: code_touch(a, "L_g2tail2", "L_end", 16384, 2, "g2pf2")
    st.gate("va1"); st.gate("wo1", 7)
    gqa_k(c, [f"ka{t}" for t in range(8)], lambda t: st.open("va1") if t == va1 - 1 else None)
    st.open("va1"); st.pump(8 if va1 == 8 else 0, False)
    stamp(c, 6)
    if kvpf & 4: touch(c, P_AWO, 0x800000, WO_BASE.replace(f"v{V_CA}", f"v{V_CA}"), 65536, 2048, fl_wo)
    gqa_v(c, [f"va{t}" for t in range(8)], hold=("va6", "va7"))
    stamp(c, 7)
    a.label("L_g2tail2")
    a(f"s_add_u32 s{S_X0+6}, s{S_X0+6}, {WS_O}\ns_add_u32 s{S_X0+7}, s{S_X0+7}, {WS_O}")
    o_epi(c, [dict(acc=lambda B: ar(A_O + 16 * B, 16), L=A_L, M=V_M, slot=3, b3=("scr", 0), st=(1, 7168), dst=S_X0 + 6),
              dict(acc=o1, L=A_L1, M=V_M1, slot=2, b3=("scr", 4096), st=(1, 7168 + 8), dst=S_X0 + 7)])
    publish_o(c, [(S_X0 + 8, 2), (S_FOB, 1)], "g2pub2", 10, ["va6", "va7"])
    stamp(c, 12)
    oproj(c, 0, "g2", 13)

    a.label("L_red")
    c = mk()
    a(f"""s_lshl_b32 s{S_X0+2}, s{S_X0}, 2
    s_lshr_b32 s7, s{S_J}, 1
    s_add_u32 s{S_X0+2}, s{S_X0+2}, s7
    s_lshl_b32 s{S_X0+2}, s{S_X0+2}, 7
    s_add_u32 s{S_X0+2}, s{S_X0+2}, {WS_FP}
    v_and_b32 v{V_F+31}, 7, v{V_LANE}
    v_lshlrev_b32 v{V_F+31}, 2, v{V_F+31}""")
    poll(c, "redp", S_X0 + 2, 8, 1, V_F + 31)
    stamp(c, 16)
    from gen_v1 import reduce_body
    reduce_body(a, c.vm, S_X0, S_J, fl="sc1")
    if stamps:
        a("s_waitcnt vmcnt(0)"); stamp(c, 19)
        if stamps == 4: a("s_getreg_b32 s88, hwreg(HW_REG_HW_ID)\ns_bfe_u32 s88, s88, 0x80008\ns_mul_i32 s88, s88, 100\ns_add_u32 s88, s88, s70")
        a(f"s_lshl_b32 s7, s2, 2\ns_add_u32 s7, s7, s{S_WAVE}\ns_lshl_b32 s7, s7, 7\ns_add_u32 s7, s7, {WS_ST}")
        for n in range(20): a(f"v_mov_b32 v{V_S+n}, s{70+n}")
        a(f"v_mov_b32 v{V_T0}, 0\ns_mov_b64 exec, 1")
        for q in range(5): a(f"buffer_store_dwordx4 {vr(V_S+4*q)}, v{V_T0}, {sr(SRDW)}, s7 offen offset:{16*q}")
    a.label("L_end"); a("s_endpgm")
    s = header(["; @launch grid=(256,1,1) block=(256,1,1) lds=163840"])
    s += kernel_open(NAME + "_kernel") + a.finish() + "\n"
    s += '.section .rodata,"a"\n.p2align 6\n' + descriptor(NAME + "_kernel")
    return s

if __name__ == "__main__":
    out = sys.argv[1]
    kw = dict(x.split("=") for x in sys.argv[2:])
    open(out, "w").write(build(**kw))
```

```python
import sys
from engines import *

WS_FQ = WS_F
WS_FO = WS_F + 0x200000
WS_FP = WS_F + 0x400000
WS_ST = WS_F + 0x100000
FS = 7
SLEEP = 0
S_SCR = 69
SPIN = 1 << 20
SRDT = 88

class Stream:
    def __init__(self, a, vm):
        self.a, self.vm = a, vm
        self.q = []
        self.busy = {}
        self.landed = set(); self.issued = {}; self.m0_dirty = False; self.pres = {}; self.gates = set()
    def run_pre(self, tag):
        box = self.pres[tag]
        if box[0]: box[0](); box[0] = None
    def add(self, tag, slot, srdreg, soff, step, voff, rs, fl, N, single=False, pre=None, wrap=None):
        a = self.a
        fl = (" " + fl) if fl else ""
        sb, so_ = (S_SCR, 0) if slot == 4 else (S_RING, slot * 8192)
        box = [pre]
        def emit(k):
            if k == 0:
                if box[0]: box[0](); box[0] = None
                a(f"s_add_u32 m0, s{sb}, {so_}")
            if k == 4:
                a(f"s_add_u32 s{soff+1}, s{soff}, {16*rs}")
                a(f"s_add_u32 m0, s{sb}, {so_+4096}")
            if self.m0_dirty and k & 3: a(f"s_add_u32 m0, s{sb}, {so_+(k&4)*1024}")
            self.m0_dirty = False
            so = soff + 1 if k >= 4 else soff
            off = f" offset:{1024*(k&3)}" if k & 3 else ""
            a(f"buffer_load_dwordx4 v{voff+(0 if single else k&3)}, {sr(srdreg)}, s{so} offen{off}{fl} lds")
            if k == 7:
                if wrap is None: a(f"s_add_u32 s{soff}, s{soff}, {step}")
                else:
                    a(f"s_add_u32 s{soff+2}, s{soff+2}, {step}\ns_and_b32 s{soff+2}, s{soff+2}, {wrap-1}\ns_add_u32 s{soff}, s{soff+3}, s{soff+2}")
        for k in range(8): self.q.append((tag, slot, k, emit, N))
        self.pres[tag] = box
    def can(self):
        if not self.q: return False
        tag, slot, k, _, _ = self.q[0]
        if (tag, k) in self.gates: return False
        return self.busy.get(slot) in (None, tag)
    def gate(self, tag, k=0): self.gates.add((tag, k))
    def open(self, tag, k=0): self.gates.discard((tag, k))
    def _sync(self):
        for tag, n in self.issued.items():
            if n == 8 and tag not in self.vm.q: self.landed.add(tag)
    def piece(self, throttle=True):
        tag, slot, k, emit, N = self.q.pop(0)
        if throttle and len(self.vm.q) >= N:
            self.a(f"s_waitcnt vmcnt({N-1})"); self.vm.q = self.vm.q[len(self.vm.q) - (N - 1):] if N > 1 else []
        assert len(self.vm.q) < 63
        self.busy[slot] = tag
        emit(k); self.vm.issue(tag); self.issued[tag] = self.issued.get(tag, 0) + 1
        self._sync()
    def pump(self, n=99, throttle=True):
        while n > 0 and self.can():
            self.piece(throttle); n -= 1
    def need(self, tag, fill=True):
        self._sync()
        while tag not in self.landed and self.can() and (fill or self.issued.get(tag, 0) < 8):
            self.piece()
        if tag not in self.landed:
            assert self.issued.get(tag) == 8, tag
            self.vm.wait(tag); self._sync()
    def release(self, tag):
        for s, t in list(self.busy.items()):
            if t == tag: self.busy[s] = None

class Ctx: pass

def cyc(c, n, start, mode=1):
    if c.stamps != mode: return
    c.a("s_memtime s[42:43]\ns_waitcnt lgkmcnt(0)")
    if start: c.a(f"s_mov_b32 s{70+n}, s42")
    else: c.a(f"s_sub_u32 s{70+n}, s42, s{70+n}\ns_add_u32 s{70+n}, s{70+n}, s70")

def stamp(c, n, mode=1):
    if c.stamps != mode and not (c.stamps and n in (1, 2, 19)) and not (c.stamps == 11 and mode == 1): return
    c.a(f"s_memrealtime s[42:43]\ns_waitcnt lgkmcnt(0)\ns_mov_b32 s{70+n}, s42")

def poll(c, name, soff_expr_reg, nl, want, voff):
    a = c.a
    a(f"s_mov_b32 s68, {SPIN}")
    a.label(f"L_{name}")
    a(f"buffer_load_dword v{V_T0}, v{voff}, {sr(SRDW)}, s{soff_expr_reg} offen sc1")
    a("s_sub_u32 s68, s68, 1\ns_cbranch_scc1 " + f"L_{name}_x")
    a(f"s_waitcnt vmcnt(0)")
    a(f"v_cmp_ne_u32 vcc, {want}, v{V_T0}")
    if SLEEP:
        a(f"s_cbranch_vccz L_{name}_x\ns_sleep {SLEEP}\ns_branch L_{name}")
    else:
        a(f"s_cbranch_vccnz L_{name}")
    a.label(f"L_{name}_x")
    c.vm.q = []; c.st._sync()

V_CK, V_CA = 34, 35
def ck_issue(c, kind, arg):
    a = c.a
    if kind == "dbg":
        a(f"v_and_b32 v{V_CA}, 7, v{V_LANE}\nv_lshlrev_b32 v{V_CA}, 5, v{V_CA}")
        ld = f"global_load_dword v{V_CK}, v{V_CA}, s[{P_DBG}:{P_DBG+1}] sc1"
        cmp_ = f"v_cmp_gt_u32 vcc, 32, v{V_CK}"
    else:
        so, nl, sh = arg
        a(f"v_and_b32 v{V_CA}, {nl-1}, v{V_LANE}\nv_lshlrev_b32 v{V_CA}, {sh}, v{V_CA}")
        ld = f"buffer_load_dword v{V_CK}, v{V_CA}, {sr(SRDW)}, s{so} offen sc1"
        cmp_ = f"v_cmp_ne_u32 vcc, 1, v{V_CK}"
    a(ld); c.vm.issue("ck"); c.ck = (ld, cmp_)
def ck_verify(c, name):
    a = c.a; ld, cmp_ = c.ck
    if "ck" in c.vm.q: c.vm.wait("ck")
    c.st._sync()
    a(f"s_mov_b32 s68, {SPIN}")
    a.label(f"L_{name}")
    a(f"{cmp_}\ns_cbranch_vccz L_{name}_x")
    if SLEEP: a(f"s_sleep {SLEEP}")
    a(f"{ld}\ns_sub_u32 s68, s68, 1\ns_waitcnt vmcnt(0)\ns_cbranch_scc0 L_{name}")
    a.label(f"L_{name}_x")

def park2(c, tags, hook=None):
    a, st = c.a, c.st
    for t in range(8):
        st.need(tags[t])
        slot = [s for s, g in st.busy.items() if g == tags[t]][0]
        for s in range(8):
            a(f"ds_read_b128 {ar(32*t+4*s)}, v{V_KR+s} offset:{slot*8192}")
        a("s_waitcnt lgkmcnt(0)")
        st.release(tags[t])
        stamp(c, 3 + t, 8)
        if hook: hook(t)

V_SH = 104
V_SH0, V_SH1 = 10, 14
def finish_max(a, M, T, sh):
    a(f"""v_mov_b32 v{T}, v{M}
    v_permlane32_swap_b32 v{M}, v{T}
    v_max_f32 v{M}, v{M}, v{T}
    v_mul_f32 v{M}, -0.5, v{M}
    v_cvt_pk_bf16_f32 v{T}, v{M}, v{M}
    v_lshlrev_b32 v{T}, 16, v{T}
    v_sub_f32 v{M}, v{M}, v{T}
    v_cvt_pk_bf16_f32 v{sh}, v{T}, v{M}
    v_and_b32 v{M}, 0xffff0000, v{sh}
    v_add_f32 v{M}, v{M}, v{T}
    v_mul_f32 v{M}, -2.0, v{M}
    v_mov_b32 v{sh+1}, 0
    v_mov_b32 v{sh+2}, 0
    v_mov_b32 v{sh+3}, 0""")
V_SEL = 26
def set_ones(a):
    for k in range(4): a(f"v_mov_b32 v{V_ONE+k}, 0x3f803f80")
    a(f"""v_lshrrev_b32 v{V_SEL}, 4, v{V_LANE}
    v_xor_b32 v{V_SEL}, v{V_SEL}, v{V_LANE}
    v_and_b32 v{V_SEL}, 1, v{V_SEL}
    v_add_u32 v{V_SEL}, -1, v{V_SEL}
    v_and_b32 v{V_SEL}, 0x3f803f80, v{V_SEL}
    v_mov_b32 v{V_SEL+1}, v{V_SEL}
    v_mov_b32 v{V_SEL+2}, v{V_SEL}
    v_mov_b32 v{V_SEL+3}, v{V_SEL}""")
def rowsum(L, P, first):
    return f"v_mfma_f32_16x16x32_bf16 {ar(L)}, {vr(V_SEL)}, {vr(P)}, {'0' if first else ar(L)}"
def shift(S, sh): return f"v_mfma_f32_32x32x16_bf16 {S}, {vr(V_ONE)}, {vr(sh)}, {S}"

def scores2(c, npump=1):
    a, st = c.a, c.st
    pend = []
    for t in range(8):
        for s in range(8):
            cc = "0" if s == 0 else vr(V_S + 16 * t, 16)
            a(f"v_mfma_f32_32x32x16_bf16 {vr(V_S+16*t,16)}, {ar(32*t+4*s)}, {vr(V_Q+4*s)}, {cc}")
            if s >= 4:
                for _ in range(2):
                    if pend: a(pend.pop(0))
            if s == 0 or (s == 2 and npump > 1): st.pump(1)
        b = V_S + 16 * t
        if t == 0:
            pend = [f"v_max3_f32 v{V_M}, v{b}, v{b+1}, v{b+2}"]
            pend += [f"v_max3_f32 v{V_M}, v{V_M}, v{b+i}, v{b+i+1}" for i in range(3, 15, 2)]
            pend += [f"v_max_f32 v{V_M}, v{V_M}, v{b+15}"]
        else:
            pend = [f"v_max3_f32 v{V_M}, v{V_M}, v{b+i}, v{b+i+1}" for i in range(0, 16, 2)]
    while pend: a(pend.pop(0))
    finish_max(a, V_M, V_MC, V_SH)

class LagScores:
    def __init__(self, c): self.c = c; self.pend = []
    def tile(self, t):
        a, st, pend = self.c.a, self.c.st, self.pend
        for s in range(8):
            cc = "0" if s == 0 else vr(V_S + 16 * t, 16)
            a(f"v_mfma_f32_32x32x16_bf16 {vr(V_S+16*t,16)}, {ar(32*t+4*s)}, {vr(V_Q+4*s)}, {cc}")
            if s >= 4:
                for _ in range(2):
                    if pend: a(pend.pop(0))
            if s in (0, 2): st.pump(1)
        b = V_S + 16 * t
        if t == 0:
            pend += [f"v_max3_f32 v{V_M}, v{b}, v{b+1}, v{b+2}"]
            pend += [f"v_max3_f32 v{V_M}, v{V_M}, v{b+i}, v{b+i+1}" for i in range(3, 15, 2)]
            pend += [f"v_max_f32 v{V_M}, v{V_M}, v{b+15}"]
        else:
            pend += [f"v_max3_f32 v{V_M}, v{V_M}, v{b+i}, v{b+i+1}" for i in range(0, 16, 2)]
    def finish(self):
        for l in self.pend: self.c.a(l)
        finish_max(self.c.a, V_M, V_MC, V_SH)

def sm_lines(b):
    out = [f"v_exp_f32 v{b+i}, v{b+i}" for i in range(16)]
    out += [f"v_cvt_pk_bf16_f32 v{b+k}, v{b+2*k}, v{b+2*k+1}" for k in range(8)]
    return out

def pv2(c, tags, last_pump=False, hold_last=True, hook=None, last=None):
    a, st = c.a, c.st
    set_ones(a)
    a(shift(vr(V_S, 16), V_SH)); a(shift(vr(V_S + 16, 16), V_SH))
    for l in sm_lines(V_S): a(l)
    for t in range(8):
        if t < 6: a(shift(vr(V_S + 16 * (t + 2), 16), V_SH))
        st.need(tags[t], fill=False)
        if t == 7 and last: last()
        slot = [s for s, g in st.busy.items() if g == tags[t]][0]
        for B in range(4):
            for s in range(2):
                f = V_F + 8 * B + 4 * s
                o = slot * 8192 + 16 * s * 256
                a(f"ds_read_b64_tr_b16 {vr(f,2)}, v{V_TV+B} offset:{o}")
                a(f"ds_read_b64_tr_b16 {vr(f+2,2)}, v{V_TV+B} offset:{o+8*256}")
        nxt = sm_lines(V_S + 16 * (t + 1)) if t < 7 else []
        b = V_S + 16 * t
        for s in range(2):
            a(rowsum(A_L, b + 4 * s, t == 0 and s == 0))
            for _ in range(2):
                if nxt: a(nxt.pop(0))
        n = 0
        for B in range(4):
            for s in range(2):
                n += 1
                if s == 0: a(f"s_waitcnt lgkmcnt({12-4*B})")
                cc = "0" if (t == 0 and s == 0) else ar(A_O + 16 * B, 16)
                a(f"v_mfma_f32_32x32x16_bf16 {ar(A_O+16*B,16)}, {vr(V_F+8*B+4*s)}, {vr(b+4*s)}, {cc}")
                for _ in range(3):
                    if nxt: a(nxt.pop(0))
                if t < 7 or last_pump: st.pump(1)
        while nxt: a(nxt.pop(0))
        if not (hold_last and t == 7): st.release(tags[t])
        stamp(c, 3 + t, 4); stamp(c, 3 + t, 10)
        if hook: hook(t)

LQ_ORDER = list(range(8))
LQ_P, LQ_RAW, LQ_SH = 104, 112, V_Q
def lq_s(t):
    i = LQ_ORDER.index(t)
    return ("v", LQ_RAW) if i == 0 else ("a", 32 * LQ_ORDER[i - 1])
def lq_o(B): return ar((16, 48, 80, 144)[B], 16)
LQ_L = 176
def v_reads(dst, slot):
    out = []
    for B in range(4):
        for s in range(2):
            o = slot * 8192 + 16 * s * 256
            out.append(f"ds_read_b64_tr_b16 {vr(dst+8*B+4*s,2)}, v{V_TV+B} offset:{o}")
            out.append(f"ds_read_b64_tr_b16 {vr(dst+8*B+4*s+2,2)}, v{V_TV+B} offset:{o+8*256}")
    return out
def lq_park_v(c, tags, npark, hook=None):
    a, st = c.a, c.st
    for t in range(npark):
        st.need(tags[t])
        for l in v_reads(V_S + 32 * t, t): a(l)
        a("s_waitcnt lgkmcnt(0)")
        st.release(tags[t])
        stamp(c, 11 + t, 8)
        if hook: hook(t)
def lq_scores(c, npump):
    a, st = c.a, c.st
    pend = []; T = V_F
    for i, t in enumerate(LQ_ORDER):
        f, b = lq_s(t); S = f"{f}[{b}:{b+15}]"
        for s in range(8):
            a(f"v_mfma_f32_32x32x16_bf16 {S}, {ar(32*t+4*s)}, {vr(V_Q+4*s)}, {'0' if s == 0 else S}")
            if s >= 2:
                for _ in range(4):
                    if pend: a(pend.pop(0))
            if s == 0 or (s == 1 and npump > 1): st.pump(1)
        if i == 0:
            pend = [f"v_max3_f32 v{V_M}, v{b}, v{b+1}, v{b+2}"] + [f"v_max3_f32 v{V_M}, v{V_M}, v{b+k}, v{b+k+1}" for k in range(3, 15, 2)] + [f"v_max_f32 v{V_M}, v{V_M}, v{b+15}"]
        else:
            pend = [f"v_accvgpr_read_b32 v{T+k}, a{b+k}" for k in range(16)] + [f"v_max3_f32 v{V_M}, v{V_M}, v{T+k}, v{T+k+1}" for k in range(0, 16, 2)]
    while pend: a(pend.pop(0))
    finish_max(a, V_M, V_MC, LQ_SH)
def lq_pv(c, tags, npark, hook=None, last=None):
    a, st = c.a, c.st
    set_ones(a)
    def sh(i):
        f, b = lq_s(i); a(shift(f"{f}[{b}:{b+15}]", LQ_SH))
    def ex(i):
        f, b = lq_s(i)
        out = [] if f == "v" else [f"v_accvgpr_read_b32 v{LQ_RAW+k}, a{b+k}" for k in range(16)]
        return out + [f"v_exp_f32 v{LQ_RAW+k}, v{LQ_RAW+k}" for k in range(16)]
    pk = [f"v_cvt_pk_bf16_f32 v{LQ_P+k}, v{LQ_RAW+2*k}, v{LQ_RAW+2*k+1}" for k in range(8)]
    sh(0); sh(1)
    for l in ex(0) + pk: a(l)
    for t in range(8):
        if t < 6: sh(t + 2)
        ring = t >= npark
        if ring:
            st.need(tags[t], fill=False)
            if t == 7 and last: last()
            for l in v_reads(V_F, t & 3): a(l)
        nxt = ex(t + 1) if t < 7 else []
        def fill(n):
            for _ in range(n):
                if nxt: a(nxt.pop(0))
        fr = V_F if ring else V_S + 32 * t
        for s in range(2):
            a(rowsum(LQ_L, LQ_P + 4 * s, t == 0 and s == 0)); fill(2)
        for B in range(4):
            if ring: a(f"s_waitcnt lgkmcnt({12-4*B})")
            for s in range(2):
                a(f"v_mfma_f32_32x32x16_bf16 {lq_o(B)}, {vr(fr+8*B+4*s)}, {vr(LQ_P+4*s)}, {'0' if t == 0 and s == 0 else lq_o(B)}")
                st.pump(1); fill(4)
        if ring and t != 7: st.release(tags[t])
        fill(99)
        if t < 7:
            for l in pk: a(l)
        stamp(c, 3 + t, 4)
        if hook: hook(t)

A_Q1, A_S1, A_L1 = 96, 128, 80
V_M1, V_MC1, V_P1 = 34, 35, 104
def o1(B): return vr(V_Q + 16 * B, 16) if B < 2 else ar(96 + 16 * (B - 2), 16)

def gqa_k(c, tags, hook=None):
    a, st = c.a, c.st
    pend = []
    for t in range(8):
        st.need(tags[t], fill=False)
        slot = [s for s, g in st.busy.items() if g == tags[t]][0]
        for s in range(8):
            a(f"ds_read_b128 {vr(V_F+4*s)}, v{V_KR+s} offset:{slot*8192}")
        for s in range(8):
            if s in (0, 1, 2, 4): a(f"s_waitcnt lgkmcnt({ {0: 7, 1: 6, 2: 4, 4: 0}[s] })")
            c0 = "0" if s == 0 else vr(V_S + 16 * t, 16)
            c1 = "0" if s == 0 else ar(A_S1 + 16 * t, 16)
            a(f"v_mfma_f32_32x32x16_bf16 {vr(V_S+16*t,16)}, {vr(V_F+4*s)}, {vr(V_Q+4*s)}, {c0}")
            for _ in range(2):
                if pend and s >= 2: a(pend.pop(0))
            a(f"v_mfma_f32_32x32x16_bf16 {ar(A_S1+16*t,16)}, {vr(V_F+4*s)}, {ar(A_Q1+4*s)}, {c1}")
            for _ in range(3):
                if pend and s >= 2: a(pend.pop(0))
            st.pump(1)
            if s == 7: st.release(tags[t])
        while pend: a(pend.pop(0))
        if hook: hook(t)
        stamp(c, 3 + t, 5)
        if t == 1: stamp(c, 3, 7); cyc(c, 5, True, 7)
        if t == 4: stamp(c, 4, 7); cyc(c, 5, False, 7)
        b = V_S + 16 * t
        def mx(M, b):
            if t == 0:
                return ([f"v_max3_f32 v{M}, v{b}, v{b+1}, v{b+2}"] + [f"v_max3_f32 v{M}, v{M}, v{b+i}, v{b+i+1}" for i in range(3, 15, 2)]
                        + [f"v_max_f32 v{M}, v{M}, v{b+15}"])
            return [f"v_max3_f32 v{M}, v{M}, v{b+i}, v{b+i+1}" for i in range(0, 16, 2)]
        pend = mx(V_M, b) + [f"v_accvgpr_read_b32 v{V_P1+i}, a{A_S1+16*t+i}" for i in range(16)] + mx(V_M1, V_P1)
    while pend: a(pend.pop(0))
    finish_max(a, V_M, V_MC, V_SH0); finish_max(a, V_M1, V_MC1, V_SH1)

def gqa_v(c, tags, hold):
    a, st = c.a, c.st
    P1 = [V_P1, V_P1 + 16 - 8]
    RAW = V_P1 + 8
    def sm1(t):
        out = [f"v_accvgpr_read_b32 v{RAW+i}, a{A_S1+16*t+i}" for i in range(16)]
        out += [f"v_exp_f32 v{RAW+i}, v{RAW+i}" for i in range(16)]
        return out
    def pk1(): return [f"v_cvt_pk_bf16_f32 v{V_P1+k}, v{RAW+2*k}, v{RAW+2*k+1}" for k in range(8)]
    def sh(t): a(shift(vr(V_S + 16 * t, 16), V_SH0)); a(shift(ar(A_S1 + 16 * t, 16), V_SH1))
    sh(0); sh(1)
    for l in sm_lines(V_S) + sm1(0) + pk1(): a(l)
    for t in range(8):
        if t < 6: sh(t + 2)
        st.need(tags[t], fill=False)
        slot = [s for s, g in st.busy.items() if g == tags[t]][0]
        for B in range(4):
            for s in range(2):
                f = V_F + 8 * B + 4 * s
                o = slot * 8192 + 16 * s * 256
                a(f"ds_read_b64_tr_b16 {vr(f,2)}, v{V_TV+B} offset:{o}")
                a(f"ds_read_b64_tr_b16 {vr(f+2,2)}, v{V_TV+B} offset:{o+8*256}")
        nxt = (sm1(t + 1)[:16] + sm_lines(V_S + 16 * (t + 1)) + sm1(t + 1)[16:]) if t < 7 else []
        b = V_S + 16 * t
        def fill(n):
            for _ in range(n):
                if nxt: a(nxt.pop(0))
        for s in range(2):
            z = t == 0 and s == 0
            a(rowsum(A_L, b + 4 * s, z)); fill(2)
            a(rowsum(A_L1, V_P1 + 4 * s, z)); fill(2)
        n = 0
        for B in range(4):
            for s in range(2):
                n += 1
                z = t == 0 and s == 0
                if s == 0: a(f"s_waitcnt lgkmcnt({12-4*B})")
                a(f"v_mfma_f32_32x32x16_bf16 {ar(A_O+16*B,16)}, {vr(V_F+8*B+4*s)}, {vr(b+4*s)}, {'0' if z else ar(A_O+16*B,16)}"); fill(3)
                a(f"v_mfma_f32_32x32x16_bf16 {o1(B)}, {vr(V_F+8*B+4*s)}, {vr(V_P1+4*s)}, {'0' if z else o1(B)}"); fill(3)
                st.pump(2 if t < 5 else 1)
        if tags[t] not in hold: st.release(tags[t])
        fill(999)
        if t < 7:
            for l in pk1(): a(l)
        stamp(c, 11 + t, 5); stamp(c, 3 + t, 6); stamp(c, 3 + t, 10)
        if t == 1: stamp(c, 6, 7); cyc(c, 8, True, 7)
        if t == 4: stamp(c, 7, 7); cyc(c, 8, False, 7)

def o_epi(c, heads, mid=None):
    a = c.a
    t = V_F + 24
    a(f"s_lshl_b32 s{S_TMP}, s{S_WAVE}, 13\ns_add_u32 s{S_TMP}, s{S_TMP}, {LDS_SCR}")
    a(f"v_add_u32 v{t}, s{S_RING}, v{V_L16}\nv_add_u32 v{t+1}, s{S_TMP}, v{V_L16}")
    def loc(spec, ring, scr):
        base, off = spec
        return (scr, off) if base == "scr" else (ring, base * 8192 + off)
    def sub(txt, g):
        f, lo = txt[0], int(txt[2:txt.index(":")])
        return f"{f}[{lo+4*g}:{lo+4*g+3}]"
    for n, h in enumerate(heads):
        a(f"v_mov_b32 v{V_F+8*n}, v{h['M']}\nv_accvgpr_read_b32 v{V_F+8*n+1}, a{h['L']}\nv_accvgpr_read_b32 v{V_F+8*n+2}, a{h['L']+1}")
        if n == 0: a("s_mov_b32 vcc_lo, 0xffff0000\ns_mov_b32 vcc_hi, 0xffff0000")
        a(f"v_cndmask_b32 v{V_F+8*n+1}, v{V_F+8*n+1}, v{V_F+8*n+2}, vcc")
        v, o = loc(h["st"], t, t + 1)
        a(f"ds_write_b64 v{v}, {vr(V_F+8*n,2)} offset:{o}")
        for B in (1, 2, 3):
            v, o = loc((h["slot"], 4096 * (B - 1)) if B < 3 else h["b3"], t, t + 1)
            for g in range(4): a(f"ds_write_b128 v{v}, {sub(h['acc'](B), g)} offset:{o+1024*g}")
    for n, h in enumerate(heads):
        own = h["acc"](0); lo = int(own[2:own.index(":")])
        for i in range(16):
            a(f"v_accvgpr_read_b32 v{V_S+64*n+i}, a{lo+i}" if own[0] == "a" else f"v_mov_b32 v{V_S+64*n+i}, v{lo+i}")
    for B in (1, 2, 3):
        a(f"s_sub_u32 s{S_TMP}, s{S_WAVE}, {B}\ns_and_b32 s{S_TMP}, s{S_TMP}, 3")
        a(f"s_lshl_b32 s7, s{S_TMP}, 13\ns_add_u32 s7, s7, {LDS_SCR}\ns_lshl_b32 s{S_TMP}, s{S_TMP}, 15")
        a(f"v_add_u32 v{t+2*B}, s{S_TMP}, v{V_L16}\nv_add_u32 v{t+2*B+1}, s7, v{V_L16}")
    md = 4 if len(heads) == 1 else 6
    a("s_waitcnt lgkmcnt(0)"); stamp(c, 11, md); a("s_barrier"); stamp(c, 12, md)
    for n, h in enumerate(heads):
        for B in (1, 2, 3):
            v, o = loc(h["st"], t + 2 * B, t + 2 * B + 1)
            a(f"ds_read_b64 {vr(V_F+8*n+2*B,2)}, v{v} offset:{o}")
        for B in (1, 2, 3):
            v, o = loc((h["slot"], 4096 * (B - 1)) if B < 3 else h["b3"], t + 2 * B, t + 2 * B + 1)
            for g in range(4): a(f"ds_read_b128 {vr(V_S+64*n+16*B+4*g)}, v{v} offset:{o+1024*g}")
        if mid and n == 0: mid()
        a("s_waitcnt lgkmcnt(12)")
        m = [V_F + 8 * n + 2 * u for u in range(4)]; l = [x + 1 for x in m]
        M = V_F + 16; L = V_F + 17; f = [V_F + 18 + u for u in range(4)]
        a(f"v_max3_f32 v{M}, v{m[0]}, v{m[1]}, v{m[2]}\nv_max_f32 v{M}, v{M}, v{m[3]}")
        for u in range(4): a(f"v_sub_f32 v{f[u]}, v{m[u]}, v{M}")
        for u in range(4): a(f"v_exp_f32 v{f[u]}, v{f[u]}")
        a(f"v_mul_f32 v{L}, v{f[0]}, v{l[0]}")
        for u in range(1, 4): a(f"v_fmac_f32 v{L}, v{f[u]}, v{l[u]}")
        a(f"v_rcp_f32 v{L}, v{L}")
        for u in range(4): a(f"v_mul_f32 v{f[u]}, v{f[u]}, v{L}")
        S = V_S + 64 * n
        def sel(r): return ("op_sel_hi:[1,0", vr(r, 2)) if r % 2 == 0 else ("op_sel:[0,1", vr(r - 1, 2))
        md_, fr = sel(f[0])
        for i in range(0, 16, 2): a(f"v_pk_mul_f32 {vr(S+i,2)}, {vr(S+i,2)}, {fr} {md_}]")
        for B in (1, 2, 3):
            a(f"s_waitcnt lgkmcnt({12-4*B})")
            md_, fr = sel(f[B])
            tail = ",1]" if md_.startswith("op_sel_hi") else ",0]"
            for i in range(0, 16, 2): a(f"v_pk_fma_f32 {vr(S+i,2)}, {vr(S+16*B+i,2)}, {fr}, {vr(S+i,2)} {md_}{tail}")
        if n == len(heads) - 1:
            stamp(c, 13, md); a("s_barrier"); stamp(c, 14, md)
        for k in range(8): a(f"v_cvt_pk_bf16_f32 v{S+k}, v{S+2*k}, v{S+2*k+1}")
        a(f"s_lshl_b32 s{S_TMP}, s{S_WAVE}, 11\ns_add_u32 s{S_TMP}, s{S_TMP}, s{h['dst']}")
        a(f"buffer_store_dwordx4 {vr(S)}, v{V_L16}, {sr(SRDW)}, s{S_TMP} offen sc1")
        a(f"buffer_store_dwordx4 {vr(S+4)}, v{V_L16}, {sr(SRDW)}, s{S_TMP} offen offset:1024 sc1")
        c.vm.issue("ost", 2)
    stamp(c, 15, md)

def flag_store(c, soff, nl=1):
    a = c.a
    a(f"v_mov_b32 v{V_T0}, 1\nv_lshlrev_b32 v{V_F+31}, 2, v{V_LANE}")
    a(f"s_mov_b64 exec, {(1<<nl)-1}")
    a(f"buffer_store_dword v{V_T0}, v{V_F+31}, {sr(SRDW)}, s{soff} offen sc1")
    a("s_mov_b64 exec, -1")
    c.vm.issue("flag")

def q_dma(c, soff, lds_off, tag):
    a = c.a
    a(f"s_lshl_b32 s{S_TMP}, s{S_WAVE}, 13\ns_add_u32 m0, s{S_TMP}, {LDS_SCR+lds_off}")
    a(f"s_lshl_b32 s{S_TMP}, s{S_WAVE}, 11\ns_add_u32 s{S_TMP}, s{S_TMP}, s{soff}")
    for k in range(2):
        a(f"buffer_load_dwordx4 v{V_L16}, {sr(SRDW)}, s{S_TMP} offen offset:{1024*k} sc1 lds")
    c.vm.issue(tag, 2); c.st.m0_dirty = True
def q_read(c, lds_off, dst):
    a = c.a
    a(f"v_add_u32 v{V_CA}, {LDS_SCR}, v{V_L16}")
    for s in range(8): a(f"ds_read_b128 {dst(s)}, v{V_CA} offset:{(s>>1)*8192+lds_off+(s&1)*1024}")

S_J, S_CC, S_U = 50, 51, 52
S_A = 56
S_B = 60
S_QB, S_OB, S_FQB, S_FOB = 64, 65, 66, 67
S_X0 = 92

def code_touch(a, first, last, est, share, name):
    per = -(-est // (share * 8192)) * 8192
    a(f"s_cmp_lg_u32 s{S_WAVE}, 3\ns_cbranch_scc1 L_{name}_x")
    a(f"s_getpc_b64 s[48:49]")
    a.label(f"L_{name}")
    a(f"s_add_u32 s48, s48, {first}-L_{name}\ns_addc_u32 s49, s49, 0")
    a(f"s_and_b32 s7, s{S_CC}, {share-1}\ns_mul_i32 s7, s7, {per}")
    a(f"v_lshl_add_u32 v{V_F+30}, v{V_LANE}, 7, s7")
    for k in range(per // 8192):
        a(f"v_min_u32 v{V_F+29}, {last}-{first}-4, v{V_F+30}")
        a(f"global_load_dword v{V_T0}, v{V_F+29}, s[48:49]")
        a(f"v_add_u32 v{V_F+30}, 8192, v{V_F+30}")
    a.label(f"L_{name}_x")

class PerTile:
    def __init__(self, v): self.v = [int(x) for x in str(v).split(",")]
    def __getitem__(self, t): return self.v[min(t, len(self.v) - 1)]

def build(stamps=0, q0=3, hack='', rotkv=0, tlb=0, fs=7, sleep=0, pf=1, n_early=0, kvpf=0, qpf='', qthr=0, rotq=1, nog1=0, perm=0, npark=2, g1wo=0, va1=7, n_qpre=0, n_spump=1, n_look=8, n_x=32, n_wq=32, n_kva=32, n_vva=32, n_g2k=6, n_g2v=6, n_g1k=6, n_g1v=8, n_wo=8, fl_x="", fl_wq="", fl_kva="", fl_wo="", fl_kv="nt", rot=1):
    global FS, SLEEP; FS = int(fs); SLEEP = int(sleep)
    stamps = int(stamps); q0 = int(q0); pf = int(pf); n_early = int(n_early); kvpf = int(kvpf); n_qpre = int(n_qpre); npark = int(npark); g1wo = int(g1wo); va1 = int(va1); n_spump = int(n_spump); n_look = int(n_look);  n_g2k, n_g2v, n_g1k, n_g1v, n_wo, n_x, n_wq, n_kva, n_vva = map(PerTile, (n_g2k, n_g2v, n_g1k, n_g1v, n_wo, n_x, n_wq, n_kva, n_vva)); rot = int(rot)
    a = Asm()
    prologue(a, 256, "L_end")
    if stamps: a("s_memrealtime s[70:71]")
    if int(perm): a(f"s_xor_b32 s2, s2, {int(perm)}")
    a(f"""s_and_b32 s{S_J}, s2, 7
    s_lshr_b32 s{S_CC}, s2, 3
    s_and_b32 s{S_U}, s{S_CC}, 15
    s_and_b32 s53, s{S_CC}, 3
    s_lshl_b32 s7, s{S_J}, 2
    s_add_u32 s53, s53, s7          ; head of the MHA task
    s_lshr_b32 s54, s{S_CC}, 2      ; batch of the MHA task
    s_lshl_b32 s55, s54, 5
    s_add_u32 s55, s55, s53         ; b*32+h
    s_cmp_lt_u32 s{S_CC}, 16
    s_cbranch_scc1 L_g1""")
    def common():
        if stamps:
            for n in range(1, 20): a(f"s_mov_b32 s{70+n}, s70")
        srd(a, SRDW, P_WS, WS_BYTES)
        a(f"""s_lshl_b32 s{S_QB}, s55, 13
        s_add_u32 s{S_QB}, s{S_QB}, {WS_Q + (2<<20)}
        s_add_u32 s{S_OB}, s{S_QB}, {WS_O - WS_Q}
        s_lshl_b32 s{S_FQB}, s55, 6
        s_add_u32 s{S_FQB}, s{S_FQB}, {WS_FQ + 256*64}
        s_lshl_b32 s{S_FOB}, s54, 3
        s_add_u32 s{S_FOB}, s{S_FOB}, s{S_J}
        s_lshl_b32 s{S_FOB}, s{S_FOB}, {FS}
        s_and_b32 s7, s{S_CC}, 3
        s_lshl_b32 s7, s7, 2
        s_add_u32 s{S_FOB}, s{S_FOB}, s7
        s_add_u32 s{S_FOB}, s{S_FOB}, {WS_FO + (64 << FS)}
        s_mov_b32 s{S_C}, {f32(C_SCALE)}""")

    def mk():
        c = Ctx(); c.a = a; c.vm = VM(a); c.st = Stream(a, c.vm); c.stamps = stamps
        return c
    def kv_offsets():
        a(f"s_lshl_b32 s{S_A}, s55, 18\ns_lshl_b32 s7, s{S_WAVE}, 13\ns_add_u32 s{S_A}, s{S_A}, s7")
    def clear_flags(c, words, name):
        a(f"s_cmp_lg_u32 s{S_WAVE}, 0\ns_cbranch_scc1 L_{name}")
        a(f"v_mov_b32 v{V_T0}, 0")
        for so, nl, sh in words:
            a(f"v_lshlrev_b32 v{V_F+31}, {sh}, v{V_LANE}\ns_mov_b64 exec, {(1<<nl)-1}")
            a(f"buffer_store_dword v{V_T0}, v{V_F+31}, {sr(SRDW)}, s{so} offen sc1\ns_mov_b64 exec, -1")
        a.label(f"L_{name}")
    def count_in(c, name):
        a(f"s_cmp_lg_u32 s{S_WAVE}, 0\ns_cbranch_scc1 L_{name}")
        a(f"s_lshl_b32 s7, s{S_J}, 5\nv_mov_b32 v{V_T0}, 1\nv_mov_b32 v{V_F+31}, s7\ns_mov_b64 exec, 1")
        a(f"global_atomic_add v{V_F+31}, v{V_T0}, s[{P_DBG}:{P_DBG+1}] sc1")
        a("s_mov_b64 exec, -1")
        a.label(f"L_{name}")
    def wait_cleared(c, name):
        a(f"s_mov_b32 s68, {SPIN}\nv_and_b32 v{V_F+31}, 7, v{V_LANE}\nv_lshlrev_b32 v{V_F+31}, 5, v{V_F+31}")
        a.label(f"L_{name}")
        a(f"global_load_dword v{V_T0}, v{V_F+31}, s[{P_DBG}:{P_DBG+1}] sc1")
        a(f"s_sub_u32 s68, s68, 1\ns_cbranch_scc1 L_{name}_x\ns_waitcnt vmcnt(0)")
        a(f"v_cmp_gt_u32 vcc, 32, v{V_T0}\ns_cbranch_vccnz L_{name}")
        a.label(f"L_{name}_x")
        c.vm.q = []; c.st._sync()
    def fp_word():
        a(f"s_xor_b32 s{S_X0}, s{S_CC}, 16          ; c_to")
        a(f"s_lshl_b32 s{S_X0+1}, s{S_X0}, 2\ns_add_u32 s{S_X0+1}, s{S_X0+1}, s{S_WAVE}\ns_lshl_b32 s{S_X0+1}, s{S_X0+1}, {FS}")
        a(f"s_lshl_b32 s7, s{S_J}, 2\ns_add_u32 s{S_X0+1}, s{S_X0+1}, s7\ns_add_u32 s{S_X0+1}, s{S_X0+1}, {WS_FP}")
    def add_wo(c, X):
        def pre():
            set_vd(a, 2048)
            srd(a, SRD1, P_BWO if X else P_AWO, 0x800000)
            a(f"s_add_u32 s7, s{S_WAVE}, s{S_U}\ns_and_b32 s7, s7, 3")
            a(f"s_lshl_b32 s{S_B+3}, s{S_J}, 2\ns_add_u32 s{S_B+3}, s{S_B+3}, s7\ns_lshl_b32 s{S_B+3}, s{S_B+3}, 18")
            a(f"s_and_b32 s7, s{S_U}, 7\ns_lshl_b32 s7, s7, 8\ns_add_u32 s{S_B+3}, s{S_B+3}, s7")
            a(f"s_lshr_b32 s{S_B+2}, s{S_U}, 3\ns_lshl_b32 s{S_B+2}, s{S_B+2}, 17" if rot else f"s_mov_b32 s{S_B+2}, 0")
            a(f"s_add_u32 s{S_B}, s{S_B+3}, s{S_B+2}")
        for t in range(4):
            c.st.add(f"wo{t}", t, SRD1, S_B, 65536, V_VD, 2048, fl_wo, n_wo[t], pre=pre if t == 0 else None, wrap=262144)
    def add_kv(c, nk, nv, first):
        rk = int(rotkv)
        def offs(S):
            a(f"s_lshl_b32 s{S+3}, s55, 18\ns_lshl_b32 s7, s{S_WAVE}, 13\ns_add_u32 s{S+3}, s{S+3}, s7")
            if rk:
                a(f"s_lshr_b32 s7, s{S_J}, {rk-1}\ns_add_u32 s7, s7, s{S_CC}\ns_and_b32 s7, s7, 7\ns_lshl_b32 s{S+2}, s7, 15\ns_add_u32 s{S}, s{S+3}, s{S+2}")
            else: a(f"s_mov_b32 s{S}, s{S+3}")
        def prek():
            set_kd(a, 256); offs(S_A)
            if first: a("s_waitcnt lgkmcnt(0)")
            srd(a, SRD0, P_BK, 0x4000000)
        def prev():
            set_vd(a, 256); srd(a, SRD1, P_BV, 0x4000000); offs(S_B)
        wr = 262144 if rk else None
        for t in range(8): c.st.add(f"k{t}", t & 3, SRD0, S_A, 32768, V_KD, 256, fl_kv, nk[t], pre=prek if t == 0 else None, wrap=wr)
        for t in range(8): c.st.add(f"v{t}", t & 3, SRD1, S_B, 32768, V_VD, 256, fl_kv, nv[t], single=True, pre=prev if t == 0 else None, wrap=wr)
    def touch(c, ptr, size, base_asm, step, rs, fl):
        a(base_asm)
        a(f"s_add_u32 s49, s48, {step}")
        a(f"v_lshrrev_b32 v{V_CA}, 1, v{V_LANE}\nv_lshlrev_b32 v{V_CA}, {rs.bit_length()-1}, v{V_CA}")
        a(f"v_and_b32 v{V_T0}, 1, v{V_LANE}\nv_lshl_add_u32 v{V_CA}, v{V_T0}, 7, v{V_CA}")
        srd(a, SRDT, ptr, size)
        for so in (48, 49):
            a(f"buffer_load_dword v{V_T0}, v{V_CA}, {sr(SRDT)}, s{so} offen {fl}")
            c.vm.issue("pf")
    KVA_BASE = (f"s_lshl_b32 s48, s{S_J}, 2\ns_lshr_b32 s7, s{S_U}, 2\ns_add_u32 s48, s48, s7\ns_lshl_b32 s48, s48, 18\n"
                f"s_lshl_b32 s7, s{S_WAVE}, 13\ns_add_u32 s48, s48, s7\n"
                f"s_and_b32 s7, s{S_U}, 3\ns_lshl_b32 s7, s7, 16\ns_add_u32 s48, s48, s7")
    WO_BASE = (f"s_add_u32 s7, s{S_WAVE}, s{S_U}\ns_and_b32 s7, s7, 3\ns_lshl_b32 s48, s{S_J}, 2\ns_add_u32 s48, s48, s7\ns_lshl_b32 s48, s48, 18\n"
               f"s_and_b32 s7, s{S_U}, 7\ns_lshl_b32 s7, s7, 8\ns_add_u32 s48, s48, s7\n"
               f"s_lshr_b32 s7, s{S_U}, 3\ns_lshl_b32 s7, s7, 17\ns_add_u32 s48, s48, s7")
    def get_q(c):
        if "q" in c.vm.q: c.vm.wait("q")
        c.st._sync()
        a("s_barrier")
        q_read(c, 5120, lambda s: vr(V_Q + 4 * s))
        a("s_waitcnt lgkmcnt(0)")
    def mha1(c):
        st = c.st
        ls = LagScores(c)
        plan = {q0: [0, 1]}
        nxt = 2
        for t in range(q0 + 1, 8):
            plan[t] = [u for u in (nxt, nxt + 1) if u <= t] if t < 7 else list(range(nxt, 8))
            nxt += len(plan[t])
        def hook(t):
            if t == q0 - 3: ck_issue(c, "dbg", None)
            if t == q0 - 2: ck_verify(c, "g1clr"); ck_issue(c, "ws", (S_FQB, 1, 2))
            if t == q0 - 1: ck_verify(c, "g1q"); q_dma(c, S_QB, 5120, "q")
            if t == q0:
                get_q(c); stamp(c, 4)
            if t == 5 and pf:
                code_touch(a, "L_g1tail", "L_g2", 8192, 1, "g1pf2"); code_touch(a, "L_red", "L_end", 8192, 1, "g1pf3")
            for u in plan.get(t, []): ls.tile(u)
        park2(c, [f"k{t}" for t in range(8)], hook)
        stamp(c, 3)
        ls.finish()
        stamp(c, 5)
        for g in range(g1wo, 3): st.gate(f"wo{g}")
        pv2(c, [f"v{t}" for t in range(8)], last_pump=True, last=lambda: (st.run_pre("wo0"), st.open(f"wo{g1wo}")))
        stamp(c, 6)
        a.label("L_g1tail")
        o_epi(c, [dict(acc=lambda B: ar(A_O + 16 * B, 16), L=A_L, M=V_M, slot=3, b3=("scr", 0), st=("scr", 4096), dst=S_OB)],
              mid=lambda: (st.open(f"wo{g1wo+1}"), st.pump(8, False)))
        for g in range(3): st.open(f"wo{g}")
    def mha2(c, pvhook):
        st = c.st
        end = 7 + npark
        def hook(p):
            if p == 1: count_in(c, "g2count")
            if p == end - 3: ck_issue(c, "dbg", None)
            if p == end - 2: ck_verify(c, "g2clr")
            if p == end - 1 and not n_qpre: ck_issue(c, "ws", (S_FQB, 1, 2))
        park2(c, [f"k{t}" for t in range(8)], hook)
        stamp(c, 1)
        lq_park_v(c, [f"v{t}" for t in range(8)], npark, lambda t: hook(8 + t))
        stamp(c, 15, 8)
        if n_qpre:
            st.pump(n_qpre - 4); ck_issue(c, "ws", (S_FQB, 1, 2)); st.pump(4)
        ck_verify(c, "g2q")
        q_dma(c, S_QB, 5120, "q")
        st.pump(4)
        get_q(c)
        stamp(c, 2)
        lq_scores(c, n_spump)
        stamp(c, 3)
        for g in ("ka0", "ka1", "ka2"): st.gate(g)
        lq_pv(c, [f"v{t}" for t in range(8)], npark, pvhook, last=lambda: (st.run_pre("ka0"), st.open("ka0")))
        stamp(c, 4)
        o_epi(c, [dict(acc=lq_o, L=LQ_L, M=V_M, slot=3, b3=("scr", 0), st=("scr", 4096), dst=S_OB)],
              mid=lambda: (st.open("ka1"), st.pump(8, False)))
        st.open("ka2")
    def publish_o(c, words, name, n, held):
        stamp(c, n); stamp(c, 11, 10)
        for g in held: c.st.release(g)
        c.st.open("wo1", 7)
        c.st.pump(2, throttle=False)
        c.vm.wait("ost"); c.st._sync()
        stamp(c, n + 1); stamp(c, 12, 10)
        a("s_barrier")
        a(f"s_cmp_lg_u32 s{S_WAVE}, 0\ns_cbranch_scc1 L_{name}")
        q = list(c.vm.q)
        for so, nl in words: flag_store(c, so, nl)
        a.label(f"L_{name}")
        c.vm.q = q

    def oproj(c, X, tag, sbase):
        st = c.st
        a(f"""s_lshr_b32 s{S_X0+2}, s{S_U}, 3
        s_lshl_b32 s{S_X0+2}, s{S_X0+2}, 2
        s_add_u32 s{S_X0+2}, s{S_X0+2}, s{S_WAVE}
        s_add_u32 s{S_X0+2}, s{S_X0+2}, {8*X}        ; X*8 + batch
        s_lshl_b32 s{S_X0+3}, s{S_X0+2}, 3
        s_add_u32 s{S_X0+3}, s{S_X0+3}, s{S_J}
        s_lshl_b32 s{S_X0+4}, s{S_X0+3}, 15
        s_add_u32 s{S_X0+4}, s{S_X0+4}, {WS_O}       ; O offset
        s_lshl_b32 s{S_X0+3}, s{S_X0+3}, {FS}
        s_add_u32 s{S_X0+3}, s{S_X0+3}, {WS_FO}
        v_and_b32 v{V_F+31}, 3, v{V_LANE}
        v_lshlrev_b32 v{V_F+31}, 2, v{V_F+31}""")
        for T in range(4): a(f"v_add_u32 v{V_TW+4+T}, 0x10000, v{V_TW+T}")
        st.pump(throttle=False)
        stamp(c, 17, 11)
        c.vm.wait_all(); st._sync()
        stamp(c, 8); stamp(c, 13, 10)
        a("s_barrier")
        stamp(c, 9)
        poll(c, tag + "o", S_X0 + 3, 4, 1, V_F + 31)
        stamp(c, sbase); stamp(c, 14, 10)
        if rot: a(f"s_lshr_b32 s59, s{S_U}, 3\ns_lshl_b32 s59, s59, 12")
        else: a("s_mov_b32 s59, 0")
        items = [(w, i, s_) for w in range(4) for i in range(4) for s_ in range(2)]
        todo = list(items)
        def fetch():
            if not todo: return
            w, i, s_ = todo.pop(0)
            if i == 0 and s_ == 0:
                a(f"s_add_u32 s7, s{S_U}, {w}\ns_and_b32 s7, s7, 3\ns_lshl_b32 s7, s7, 13\ns_add_u32 s7, s7, s{S_X0+4}")
                a(f"s_add_u32 s56, s7, s59\ns_xor_b32 s57, s59, 4096\ns_add_u32 s57, s7, s57")
            a(f"buffer_load_dwordx4 {ar(32*w+8*i+4*s_)}, v{V_L16}, {sr(SRDW)}, s{56+(i>>1)} offen offset:{1024*(2*(i&1)+s_)} sc1")
            c.vm.issue(f"of{w}_{i}_{s_}")
        for _ in range(n_look): fetch()
        cyc(c, 17, True)
        def bf(w, i, s_):
            if f"of{w}_{i}_{s_}" in c.vm.q:
                c.vm.wait(f"of{w}_{i}_{s_}"); fetch()
            return ar(32 * w + 8 * i + 4 * s_)
        w_items(a, items, bf)
        cyc(c, 17, False); stamp(c, 18); stamp(c, 15, 10)
        cvt_acc(a)
        t = V_T0
        a(f"""v_and_b32 v{t}, 15, v{V_LANE}
        v_lshlrev_b32 v{t}, 4, v{t}
        v_lshrrev_b32 v{t+1}, 5, v{V_LANE}
        v_lshl_add_u32 v{t}, v{t+1}, 8, v{t}
        v_bfe_u32 v{t+1}, v{V_LANE}, 4, 1
        v_lshl_add_u32 v{t}, v{t+1}, 15, v{t}
        s_lshl_b32 s61, s{S_X0}, 3
        s_lshl_b32 s62, s{S_WAVE}, 1
        s_add_u32 s61, s61, s62
        s_lshl_b32 s61, s61, 3
        s_add_u32 s61, s61, s{S_J}
        s_lshl_b32 s61, s61, 12
        s_add_u32 s61, s61, {WS_P}""")
        for p in range(8):
            a(f"buffer_store_dwordx4 {vr(V_S+64+4*p)}, v{t}, {sr(SRDW)}, s61 offen offset:{512*p} sc1")
        stamp(c, sbase + 1)
        c.vm.wait_all()
        stamp(c, sbase + 2); stamp(c, 16, 10)
        flag_store(c, S_X0 + 1)
        a("s_branch L_red")

    c2 = mk()
    if qpf:
        a(f"""s_and_b32 s60, s{S_U}, 7
        s_lshl_b32 s60, s60, 2
        s_add_u32 s60, s60, s{S_WAVE}          ; 0..31
        s_lshr_b32 s61, s{S_U}, 3              ; h
        v_lshrrev_b32 v40, 3, v{V_LANE}
        v_and_b32 v41, 7, v{V_LANE}
        v_lshlrev_b32 v41, 7, v41
        v_lshl_add_u32 v40, v40, 13, v41
        v_lshrrev_b32 v41, 1, v{V_LANE}
        v_and_b32 v42, 1, v{V_LANE}
        v_lshlrev_b32 v42, 7, v42
        v_lshl_add_u32 v41, v41, 11, v42       ; 32 rows x 256 B
        s_and_b32 s62, s60, 15
        s_lshl_b32 s62, s62, 16
        s_lshl_b32 s7, s61, 20
        s_add_u32 s62, s62, s7
        s_lshl_b32 s7, s{S_J}, 10
        s_add_u32 s62, s62, s7                 ; Wq offset of k-tile h
        s_and_b32 s63, s60, 7
        s_lshl_b32 s63, s63, 16
        s_lshr_b32 s7, s60, 4
        s_lshl_b32 s7, s7, 8
        s_add_u32 s63, s63, s7
        s_lshl_b32 s7, s61, 9
        s_add_u32 s63, s63, s7                 ; x offset of k-tile 2h + (0|1)
        s_waitcnt lgkmcnt(0)
        s_bitcmp1_b32 s60, 4
        s_cselect_b32 s12, s{P_BWQ}, s{P_AWQ}
        s_cselect_b32 s13, s{P_BWQ+1}, s{P_AWQ+1}
        s_mov_b32 s14, 0x800000
        s_mov_b32 s15, 0x20000
        s_bitcmp1_b32 s60, 3
        s_cselect_b32 s{SRDT}, s{P_BX}, s{P_AX}
        s_cselect_b32 s{SRDT+1}, s{P_BX+1}, s{P_AX+1}
        s_mov_b32 s{SRDT+2}, 0x80000
        s_mov_b32 s{SRDT+3}, 0x20000""")
        for n, kind in enumerate("xWWxWW"):
            if qpf[n] == "1":
                if kind == "x": a(f"buffer_load_dword v43, v41, {sr(SRDT)}, s63 offen")
                else: a("buffer_load_dword v43, v40, s[12:15], s62 offen")
                c2.vm.issue("pf")
                if int(qthr): a(f"s_waitcnt vmcnt({int(qthr)-1})")
            a("s_add_u32 s63, s63, 1024" if kind == "x" else f"s_add_u32 s62, s62, {2<<20}")
    add_kv(c2, n_g2k, n_g2v, True)
    if stamps == 9: c2.st.run_pre("k0"); a("s_memrealtime s[62:63]")
    c2.st.pump(n_g2k[0])
    if stamps == 9:
        a(f"s_memrealtime s[64:65]\ns_waitcnt vmcnt({n_g2k[0]-1})\ns_memrealtime s[66:67]\ns_waitcnt vmcnt(0)\ns_memrealtime s[68:69]\ns_waitcnt lgkmcnt(0)")
        a("s_mov_b32 s92, s62\ns_mov_b32 s93, s64\ns_mov_b32 s94, s66\ns_mov_b32 s95, s68")
    a("s_branch L_g2")
    a.label("L_g1")
    c = mk(); st = c.st
    if int(nog1):
        global SPIN; SPIN = 4
        a("s_waitcnt lgkmcnt(0)"); common(); fp_word(); a("s_branch L_red")
    set_kd(a, 2048)
    a(f"""s_lshr_b32 s{S_X0+5}, s{S_U}, 3           ; X
    s_and_b32 s{S_X0+6}, s{S_U}, 3            ; hh
    s_bfe_u32 s{S_X0+7}, s{S_U}, 0x10002      ; r
    s_lshl_b32 s{S_X0+8}, s{S_X0+7}, 2
    s_add_u32 s{S_X0+8}, s{S_X0+8}, s{S_WAVE}   ; batch
    s_lshl_b32 s{S_A+3}, s{S_X0+8}, 16
    s_lshl_b32 s7, s{S_J}, 2
    s_add_u32 s{S_X0+9}, s{S_X0+6}, s7          ; head
    s_lshl_b32 s{S_X0+2}, s{S_X0+6}, 1
    s_lshl_b32 s7, s{S_X0+7}, 2
    s_add_u32 s{S_X0+2}, s{S_X0+2}, s7
    s_and_b32 s{S_X0+2}, s{S_X0+2}, {7 if int(rotq) else 0}   ; rotation of the k tiles
    s_lshl_b32 s{S_A+2}, s{S_X0+2}, 8
    s_add_u32 s{S_A}, s{S_A+3}, s{S_A+2}
    s_waitcnt lgkmcnt(0)""")
    srd_sel(a, SRD0, S_X0 + 5, P_AX, P_BX, 0x80000)
    a(f"s_lshl_b32 s{S_SCR}, s{S_WAVE}, 13\ns_add_u32 s{S_SCR}, s{S_SCR}, {LDS_SCR}")
    def prew():
        set_vd(a, 8192)
        srd_sel(a, SRD1, S_X0 + 5, P_AWQ, P_BWQ, 0x800000)
        a(f"s_lshl_b32 s{S_B+3}, s{S_X0+9}, 8\ns_lshl_b32 s7, s{S_WAVE}, 18\ns_add_u32 s{S_B+3}, s{S_B+3}, s7")
        a(f"s_lshl_b32 s{S_B+2}, s{S_X0+2}, 20\ns_add_u32 s{S_B}, s{S_B+3}, s{S_B+2}")
    for g in ["x0", "w0", "w1"] + [g for t in range(1, 7) for g in (f"x{t}", f"w{t+1}")] + ["x7"]:
        t = int(g[1])
        if g[0] == "x": st.add(g, 4, SRD0, S_A, 256, V_KD, 2048, fl_x, n_x[t], wrap=2048)
        else: st.add(g, t & 3, SRD1, S_B, 1 << 20, V_VD, 8192, fl_wq, n_wq[t], pre=prew if t == 0 else None, wrap=8 << 20)
    st.pump(8)
    common()
    a(f"""s_lshl_b32 s{S_X0+3}, s{S_X0+5}, 3
    s_add_u32 s{S_X0+3}, s{S_X0+3}, s{S_X0+8}
    s_lshl_b32 s{S_X0+3}, s{S_X0+3}, 5
    s_add_u32 s{S_X0+3}, s{S_X0+3}, s{S_X0+9}
    s_lshl_b32 s{S_X0+4}, s{S_X0+3}, 6
    s_add_u32 s{S_X0+4}, s{S_X0+4}, {WS_FQ}
    s_lshl_b32 s{S_X0+3}, s{S_X0+3}, 13""")
    fp_word()
    clear_flags(c, [(S_X0 + 4, 4, 11), (S_FOB, 1, 2), (S_X0 + 1, 4, FS)], "g1clear")
    add_kv(c, n_g1k, n_g1v, False)
    add_wo(c, 1)
    set_kr(a, S_SCR); set_tr(a)
    if pf: code_touch(a, "L_g1pf_x", "L_g2", 32768, 4, "g1pf")
    early = [n_early]
    def gated_pump(throttle):
        if st.can() and st.q[0][0][0] == "k":
            if early[0] <= 0: return
            early[0] -= 1
        st.pump(1, throttle)
    def wpre(t):
        def f():
            st.need(f"x{t}", fill=(t < 6))
            for s in range(8): a(f"ds_read_b128 {ar(32*t+4*s)}, v{V_KR+s}")
            if t == 0: stamp(c, 1)
            st.need(f"w{t}", fill=(t < 6))
            if t == 0: count_in(c, "g1count")
            stamp(c, 3 + 2 * t, 3)
            a("s_barrier")
            stamp(c, 4 + 2 * t, 3)
            if t == 3: stamp(c, 3, 7); cyc(c, 5, True, 7)
            if t == 6: stamp(c, 4, 7); cyc(c, 5, False, 7)
            if t: st.release(f"w{t-1}")
            if t == 7:
                assert st.issued["x7"] == 8
                st.run_pre("k0")
        return f
    w_steps(a, [(t & 3, (lambda t: lambda w, s: ar(32 * t + 4 * (2 * w + s)))(t), wpre(t)) for t in range(8)],
            between=lambda n: (gated_pump(True), gated_pump(True)), opened=lambda i: (st.release(f"x{i}"), set_kr(a) if i == 7 else None))
    a(f"s_add_u32 s{S_TMP}, s{S_X0+3}, 4096")
    for T in range(4):
        for i in range(0, 16, 2):
            a(f"v_pk_mul_f32 {vr(V_S+16*T+i,2)}, {vr(V_S+16*T+i,2)}, s[{S_C}:{S_C+1}] op_sel_hi:[1,0]")
        for k in range(8): a(f"v_cvt_pk_bf16_f32 v{V_S+64+8*T+k}, v{V_S+16*T+2*k}, v{V_S+16*T+2*k+1}")
        for s in (2 * T, 2 * T + 1):
            a(f"buffer_store_dwordx4 {vr(V_S+64+4*s)}, v{V_L16}, {sr(SRDW)}, s{S_TMP if s>=4 else S_X0+3} offen offset:{1024*(s&3)} sc1")
    c.vm.issue("qst", 8)
    st.pump(3, throttle=False)
    c.vm.wait("qst"); st._sync()
    flag_store(c, S_X0 + 4)
    a("s_barrier"); st.release("w7")
    stamp(c, 2)
    mha1(c)
    publish_o(c, [(S_FOB, 1)], "g1pub", 10, ["v7"])
    stamp(c, 12)
    oproj(c, 1, "g1", 13)

    a.label("L_g2")
    c = c2; st = c.st
    common()
    if stamps == 9: a("s_mov_b32 s73, s92\ns_mov_b32 s74, s93\ns_mov_b32 s75, s94\ns_mov_b32 s76, s95"); stamp(c, 7, 9)
    a(f"""s_lshl_b32 s{S_X0+5}, s{S_U}, 1
    s_lshl_b32 s{S_X0+6}, s{S_J}, 5
    s_add_u32 s{S_X0+6}, s{S_X0+6}, s{S_X0+5}   ; b*32+h
    s_lshl_b32 s{S_X0+7}, s{S_X0+6}, 6
    s_add_u32 s{S_X0+7}, s{S_X0+7}, {WS_FQ}     ; Q flag
    s_lshl_b32 s{S_X0+6}, s{S_X0+6}, 13         ; Q offset (O = +WS_O)
    s_lshl_b32 s{S_X0+8}, s{S_J}, 3
    s_lshr_b32 s7, s{S_U}, 1
    s_add_u32 s{S_X0+8}, s{S_X0+8}, s7
    s_lshl_b32 s{S_X0+8}, s{S_X0+8}, {FS}
    s_and_b32 s7, s{S_U}, 1
    s_lshl_b32 s7, s7, 3
    s_add_u32 s{S_X0+8}, s{S_X0+8}, s7
    s_add_u32 s{S_X0+8}, s{S_X0+8}, {WS_FO}
    s_add_u32 s{S_X0+9}, s{S_X0+8}, 4""")
    def kva_off(S):
        a(f"s_lshl_b32 s{S+3}, s{S_J}, 2\ns_lshr_b32 s7, s{S_U}, 2\ns_add_u32 s{S+3}, s{S+3}, s7\ns_lshl_b32 s{S+3}, s{S+3}, 18")
        a(f"s_lshl_b32 s7, s{S_WAVE}, 13\ns_add_u32 s{S+3}, s{S+3}, s7")
        a(f"s_and_b32 s{S+2}, s{S_U}, {3 if rot else 0}\ns_lshl_b32 s{S+2}, s{S+2}, 16\ns_add_u32 s{S}, s{S+3}, s{S+2}")
    def preka(): srd(a, SRD0, P_AK, 0x800000); kva_off(S_A)
    def preva(): srd(a, SRD1, P_AV, 0x800000); kva_off(S_B)
    fp_word()
    clear_flags(c, [(S_FOB, 1, 2), (S_X0 + 8, 2, 2), (S_X0 + 1, 4, FS)], "g2clear")
    for t in range(8): st.add(f"ka{t}", t & 3, SRD0, S_A, 32768, V_KD, 256, fl_kva, n_kva[t], pre=preka if t == 0 else None, wrap=262144)
    for t in range(8): st.add(f"va{t}", t & 3, SRD1, S_B, 32768, V_VD, 256, fl_kva, n_vva[t], single=True, pre=preva if t == 0 else None, wrap=262144)
    add_wo(c, 0)
    set_kr(a); set_tr(a)
    if pf: code_touch(a, "L_g2pf_x", "L_end", 32768, 4, "g2pf")
    if int(tlb):
        a(f"s_cmp_lg_u32 s{S_WAVE}, 2\ns_cbranch_scc1 L_tlb_x")
        a(f"v_lshlrev_b32 v{V_F+29}, 20, v{V_LANE}")
        for p, n in ((P_AWO, 8), (P_BWO, 8), (P_AK, 8), (P_AV, 8), (P_OUT, 1), (P_WS, 24)):
            srd(a, SRDT, p, n << 20)
            a(f"buffer_load_dword v{V_T0}, v{V_F+29}, {sr(SRDT)}, 0 offen")
        a.label("L_tlb_x")
    def qa_hook(t):
        if t == 1: ck_issue(c, "ws", (S_X0 + 7, 2, 6))
        if t == 3:
            ck_verify(c, "g2qa")
            q_dma(c, S_X0 + 6, 0, "qa")
            a(f"s_add_u32 s{S_X0+7}, s{S_X0+6}, 8192")
            q_dma(c, S_X0 + 7, 2048, "qa")
        if t == 7:
            if "qa" in c.vm.q: c.vm.wait("qa")
            st._sync()
            a("s_barrier")
            q_read(c, 0, lambda s: vr(V_Q + 4 * s)); a("s_waitcnt lgkmcnt(4)")
            q_read(c, 2048, lambda s: ar(A_Q1 + 4 * s))
            a("s_waitcnt lgkmcnt(0)\ns_barrier")
    mha2(c, qa_hook)
    st.release("v7")
    if kvpf & 2: touch(c, P_AV, 0x800000, KVA_BASE, 32768, 256, fl_kva)
    stamp(c, 5)
    if pf: code_touch(a, "L_g2tail2", "L_end", 16384, 2, "g2pf2")
    st.gate("va1"); st.gate("wo1", 7)
    gqa_k(c, [f"ka{t}" for t in range(8)], lambda t: st.open("va1") if t == va1 - 1 else None)
    st.open("va1"); st.pump(8 if va1 == 8 else 0, False)
    stamp(c, 6)
    a.label("L_gv")
    if kvpf & 4: touch(c, P_AWO, 0x800000, WO_BASE.replace(f"v{V_CA}", f"v{V_CA}"), 65536, 2048, fl_wo)
    gqa_v(c, [f"va{t}" for t in range(8)], hold=("va6", "va7"))
    stamp(c, 7)
    a.label("L_g2tail2")
    a(f"s_add_u32 s{S_X0+6}, s{S_X0+6}, {WS_O}\ns_add_u32 s{S_X0+7}, s{S_X0+7}, {WS_O}")
    o_epi(c, [dict(acc=lambda B: ar(A_O + 16 * B, 16), L=A_L, M=V_M, slot=3, b3=("scr", 0), st=(1, 7168), dst=S_X0 + 6),
              dict(acc=o1, L=A_L1, M=V_M1, slot=2, b3=("scr", 4096), st=(1, 7168 + 8), dst=S_X0 + 7)])
    publish_o(c, [(S_X0 + 8, 2), (S_FOB, 1)], "g2pub2", 10, ["va6", "va7"])
    stamp(c, 12)
    oproj(c, 0, "g2", 13)

    a.label("L_red")
    c = mk()
    a(f"""s_lshl_b32 s{S_X0+2}, s{S_X0}, 2
    s_lshr_b32 s7, s{S_J}, 1
    s_add_u32 s{S_X0+2}, s{S_X0+2}, s7
    s_lshl_b32 s{S_X0+2}, s{S_X0+2}, {FS}
    s_add_u32 s{S_X0+2}, s{S_X0+2}, {WS_FP}
    v_and_b32 v{V_F+31}, 7, v{V_LANE}
    v_lshlrev_b32 v{V_F+31}, 2, v{V_F+31}""")
    poll(c, "redp", S_X0 + 2, 8, 1, V_F + 31)
    stamp(c, 16); stamp(c, 17, 10)
    from gen_v1 import reduce_body
    reduce_body(a, c.vm, S_X0, S_J, fl="sc1")
    if stamps:
        a("s_waitcnt vmcnt(0)"); stamp(c, 19)
        if stamps == 4: a("s_getreg_b32 s88, hwreg(HW_REG_HW_ID)\ns_bfe_u32 s88, s88, 0x80008\ns_mul_i32 s88, s88, 100\ns_add_u32 s88, s88, s70")
        a(f"s_lshl_b32 s7, s2, 2\ns_add_u32 s7, s7, s{S_WAVE}\ns_lshl_b32 s7, s7, 7\ns_add_u32 s7, s7, {WS_ST}")
        for n in range(20): a(f"v_mov_b32 v{V_S+n}, s{70+n}")
        a(f"v_mov_b32 v{V_T0}, 0\ns_mov_b64 exec, 1")
        for q in range(5): a(f"buffer_store_dwordx4 {vr(V_S+4*q)}, v{V_T0}, {sr(SRDW)}, s7 offen offset:{16*q}")
    a.label("L_end"); a("s_endpgm")
    if "L" in hack: a.lines = [l for l in a.lines if not (l.startswith("v_mfma") and f", {vr(V_ONE)}," in l)]
    if "E" in hack: a.lines = [l.replace("v_exp_f32", "v_mov_b32") for l in a.lines]
    def strip(l0, l1, pred):
        i0 = a.lines.index(l0); i1 = a.lines.index(l1)
        a.lines[i0:i1] = [l for l in a.lines[i0:i1] if not pred(l)]
    if "K" in hack: strip("L_g2pf2_x:", "L_gv:", lambda l: l.startswith("v_mfma"))
    if "V" in hack: strip("L_gv:", "L_g2tail2:", lambda l: l.startswith("v_mfma"))
    if "P" in hack: strip("L_g1pf3_x:", "L_g1tail:", lambda l: l.startswith("v_mfma"))
    if "R" in hack: strip("L_g2pf2_x:", "L_g2tail2:", lambda l: l.startswith("ds_read"))
    if "H" in hack: strip("L_gv:", "L_g2tail2:", lambda l: l.startswith("v_mfma_f32_32") and (l.split()[1].startswith("v[4") or l.split()[1].startswith("v[5") or l.split()[1].startswith("a[96") or l.split()[1].startswith("a[112")))
    if "M" in hack:
        i0 = a.lines.index("L_g2pf2_x:"); i1 = a.lines.index("L_g2tail2:")
        a.lines[i0:i1] = [l for n, l in enumerate(a.lines[i0:i1]) if not l.startswith("v_mfma")]
    s = header(["; @launch grid=(256,1,1) block=(256,1,1) lds=163840"])
    s += kernel_open(NAME + "_kernel") + a.finish() + "\n"
    s += '.section .rodata,"a"\n.p2align 6\n' + descriptor(NAME + "_kernel")
    return s

if __name__ == "__main__":
    out = sys.argv[1]
    kw = dict(x.split("=") for x in sys.argv[2:])
    open(out, "w").write(build(**kw))
```

```python
from asmlib import Asm
NAME = "concat_heads__gqa_block_cached__mha_block_cached__near_ridge"

P_AX, P_AK, P_AV, P_AWQ, P_AWO, P_BX, P_BK, P_BV = 16, 18, 20, 22, 24, 26, 28, 30
P_BWQ, P_BWO, P_OUT, P_DBG, P_WS = 32, 34, 36, 38, 40
S_WAVE, S_RING, S_TMP = 3, 4, 5
SRD0, SRD1, SRDW = 8, 12, 44
WS_Q, WS_O, WS_P, WS_F = 0, 4 << 20, 8 << 20, 16 << 20
WS_BYTES = 268435456
V_LANE = 1
V_KD = 2
V_VD = 6
V_KR = 10
V_TV = 18
V_TW = 22
V_L16 = 30
V_T0 = 31
V_Q = 40
V_F = 72
V_S = 128
LDS_SCR = 131072
C_SCALE = 0.08838834764831845 * 1.4426950408889634

import struct
def f32(x): return "0x%08x" % struct.unpack("<I", struct.pack("<f", x))[0]
def vr(b, n=4): return f"v[{b}:{b+n-1}]"
def ar(b, n=4): return f"a[{b}:{b+n-1}]"
def sr(b, n=4): return f"s[{b}:{b+n-1}]"

class VM:
    def __init__(self, a): self.a = a; self.q = []
    def issue(self, tag, n=1): self.q += [tag] * n
    def wait(self, tag):
        idx = max(i for i, t in enumerate(self.q) if t == tag)
        n = len(self.q) - 1 - idx
        assert n <= 63
        self.a(f"s_waitcnt vmcnt({n})"); self.q = self.q[idx + 1:]
    def wait_all(self):
        self.a("s_waitcnt vmcnt(0)"); self.q = []

def header(launches):
    s = open("cdna_kernels/" + NAME + ".s.ref").read().split("; Override launch")[0]
    s += "".join(l + "\n" for l in launches)
    s += '.amdgcn_target "amdgcn-amd-amdhsa--gfx950"\n.text\n'
    return s

def kernel_open(name):
    return f".globl {name}\n.p2align 8\n.type {name},@function\n{name}:\n"

def descriptor(name, vgpr=512, accum=256, sgpr=102):
    return f""".amdhsa_kernel {name}
  .amdhsa_next_free_vgpr {vgpr}
  .amdhsa_next_free_sgpr {sgpr}
  .amdhsa_accum_offset {accum}
  .amdhsa_group_segment_fixed_size 0
  .amdhsa_kernarg_size 104
  .amdhsa_user_sgpr_count 2
  .amdhsa_user_sgpr_kernarg_segment_ptr 1
  .amdhsa_system_sgpr_workgroup_id_x 1
.end_amdhsa_kernel
"""

def prologue(a, nwg, end):
    a(f"""s_cmp_ge_u32 s2, {nwg}
    s_cbranch_scc1 {end}
    s_load_dwordx16 s[16:31], s[0:1], 0
    s_load_dwordx8 s[32:39], s[0:1], 64
    s_load_dwordx2 s[40:41], s[0:1], 96
    v_lshrrev_b32 v{V_T0}, 6, v0
    v_and_b32 v{V_LANE}, 63, v0
    v_readfirstlane_b32 s{S_WAVE}, v{V_T0}
    v_lshlrev_b32 v{V_L16}, 4, v{V_LANE}
    s_lshl_b32 s{S_RING}, s{S_WAVE}, 15""")

def srd(a, d, ptr, size):
    a(f"s_mov_b32 s{d}, s{ptr}\ns_mov_b32 s{d+1}, s{ptr+1}\ns_mov_b32 s{d+2}, {size}\ns_mov_b32 s{d+3}, 0x20000")

def srd_sel(a, d, cond, p0, p1, size0, size1=None):
    a(f"s_cmp_eq_u32 s{cond}, 0\ns_cselect_b32 s{d}, s{p0}, s{p1}\ns_cselect_b32 s{d+1}, s{p0+1}, s{p1+1}")
    if size1 is None or size1 == size0: a(f"s_mov_b32 s{d+2}, {size0}")
    else: a(f"s_mov_b32 s{d+2}, {size1}\ns_cmov_b32 s{d+2}, {size0}")
    a(f"s_mov_b32 s{d+3}, 0x20000")

def set_kd(a, rs, dst=V_KD):
    t = V_T0
    sh = rs.bit_length() - 1
    a(f"""v_lshrrev_b32 v{t}, 4, v{V_LANE}
    v_and_b32 v{dst}, 15, v{V_LANE}
    v_xor_b32 v{dst}, v{dst}, v{t}
    v_lshlrev_b32 v{dst}, 4, v{dst}
    v_lshlrev_b32 v{t}, {sh}, v{t}""")
    for k in (1, 2, 3):
        a(f"v_xor_b32 v{dst+k}, {64*k}, v{dst}")
        a(f"v_add_u32 v{dst+k}, v{dst+k}, v{t}")
        if rs != 256: a(f"v_add_u32 v{dst+k}, {k*(4*rs-1024)}, v{dst+k}")
    a(f"v_add_u32 v{dst}, v{dst}, v{t}")

def set_vd(a, rs, dst=V_VD):
    sh = rs.bit_length() - 1
    a(f"""v_lshrrev_b32 v{dst+1}, 4, v{V_LANE}
    v_and_b32 v{dst+2}, 15, v{V_LANE}
    v_lshlrev_b32 v{dst+3}, 2, v{dst+1}
    v_xor_b32 v{dst+2}, v{dst+2}, v{dst+3}
    v_lshlrev_b32 v{dst+2}, 4, v{dst+2}
    v_lshl_add_u32 v{dst}, v{dst+1}, {sh}, v{dst+2}""")
    if rs != 256:
        for k in range(1, 4):
            a(f"v_add_u32 v{dst+k}, {k*(4*rs-1024)}, v{dst}")

def set_kr(a, base=S_RING):
    t = V_T0
    a(f"""v_and_b32 v{t}, 31, v{V_LANE}
    v_lshrrev_b32 v{t+1}, 5, v{V_LANE}
    v_and_b32 v{t+2}, 15, v{V_LANE}
    v_xor_b32 v{t+1}, v{t+1}, v{t+2}
    v_lshlrev_b32 v{t+1}, 4, v{t+1}
    v_lshlrev_b32 v{t}, 8, v{t}
    v_add_u32 v{t}, s{base}, v{t}""")
    for s in range(8):
        a(f"v_xor_b32 v{V_KR+s}, {32*s}, v{t+1}")
        a(f"v_add_u32 v{V_KR+s}, v{V_KR+s}, v{t}")

def set_tr(a, want_v=True, want_w=True):
    t = V_T0
    a(f"""v_bfe_u32 v{t}, v{V_LANE}, 2, 2
    v_bfe_u32 v{t+1}, v{V_LANE}, 4, 1
    v_lshlrev_b32 v{t+1}, 5, v{t+1}
    v_and_b32 v{t+2}, 1, v{V_LANE}
    v_lshl_add_u32 v{t+1}, v{t+2}, 4, v{t+1}
    v_bfe_u32 v{t+2}, v{V_LANE}, 1, 1
    v_lshl_add_u32 v{t+1}, v{t+2}, 3, v{t+1}
    v_lshl_add_u32 v{t+1}, v{t}, 8, v{t+1}
    v_lshrrev_b32 v{t+2}, 5, v{V_LANE}
    v_lshlrev_b32 v{t}, 6, v{t}""")
    for T in range(4):
        a(f"v_xor_b32 v{t+3}, {64*T}, v{t}")
        a(f"v_add_u32 v{t+3}, v{t+3}, v{t+1}")
        if want_w:
            a(f"v_lshl_add_u32 v{V_TW+T}, v{t+2}, 11, v{t+3}")
            a(f"v_add_u32 v{V_TW+4+T}, 0x10000, v{V_TW+T}")
    if want_v:
        for B in range(4):
            a(f"s_add_u32 s{S_TMP}, s{S_WAVE}, {B}\ns_and_b32 s{S_TMP}, s{S_TMP}, 3\ns_lshl_b32 s{S_TMP}, s{S_TMP}, 6")
            a(f"v_xor_b32 v{t+3}, s{S_TMP}, v{t}")
            a(f"v_add3_u32 v{t+3}, v{t+3}, v{t+1}, s{S_RING}")
            a(f"v_lshl_add_u32 v{V_TV+B}, v{t+2}, 10, v{t+3}")

def dma_tile(a, vm, tag, srdreg, soff, voff, rs, slot, fl, single=False):
    fl = (" " + fl) if fl else ""
    a(f"s_add_u32 m0, s{S_RING}, {slot*8192}")
    a(f"s_add_u32 s{S_TMP}, s{soff}, {16*rs}")
    for half in range(2):
        if half: a(f"s_add_u32 m0, s{S_RING}, {slot*8192+4096}")
        so = S_TMP if half else soff
        for k in range(4):
            off = f" offset:{1024*k}" if k else ""
            a(f"buffer_load_dwordx4 v{voff+(0 if single else k)}, {sr(srdreg)}, s{so} offen{off}{fl} lds")
    vm.issue(tag, 8)

def park(a, vm, tags, slots, after):
    for t in range(8):
        vm.wait(tags[t])
        for s in range(8):
            a(f"ds_read_b128 {ar(32*t+4*s)}, v{V_KR+s} offset:{slots[t]*8192}")
        a("s_waitcnt lgkmcnt(0)")
        after(t)

V_M, V_MC, V_ONE = 32, 33, 36
S_C = 6

def scores(a):
    def mx(t):
        b = V_S + 16 * t
        if t == 0:
            a(f"v_max3_f32 v{V_M}, v{b}, v{b+1}, v{b+2}")
            rest = list(range(3, 16))
        else:
            rest = list(range(16))
        out = []
        while rest:
            if len(rest) >= 2:
                out.append(f"v_max3_f32 v{V_M}, v{V_M}, v{b+rest[0]}, v{b+rest[1]}"); rest = rest[2:]
            else:
                out.append(f"v_max_f32 v{V_M}, v{V_M}, v{b+rest[0]}"); rest = rest[1:]
        return out
    pend = []
    for t in range(8):
        for s in range(8):
            c = "0" if s == 0 else vr(V_S + 16 * t, 16)
            a(f"v_mfma_f32_32x32x16_bf16 {vr(V_S+16*t,16)}, {ar(32*t+4*s)}, {vr(V_Q+4*s)}, {c}")
            if s >= 3:
                for _ in range(2):
                    if pend: a(pend.pop(0))
        while pend: a(pend.pop(0))
        if t == 0:
            pend = [f"v_max3_f32 v{V_M}, v{V_S}, v{V_S+1}, v{V_S+2}"]
            rest = list(range(3, 16))
            pend += [f"v_max3_f32 v{V_M}, v{V_M}, v{V_S+rest[i]}, v{V_S+rest[i+1]}" for i in range(0, 12, 2)]
            pend += [f"v_max_f32 v{V_M}, v{V_M}, v{V_S+15}"]
        else:
            b = V_S + 16 * t
            pend = [f"v_max3_f32 v{V_M}, v{V_M}, v{b+i}, v{b+i+1}" for i in range(0, 16, 2)]
    while pend: a(pend.pop(0))
    a(f"""v_mov_b32 v{V_MC}, v{V_M}
    v_permlane32_swap_b32 v{V_M}, v{V_MC}
    v_max_f32 v{V_M}, v{V_M}, v{V_MC}
    v_mul_f32 v{V_MC}, s{S_C}, v{V_M}""")

A_O, A_L = 0, 64

def softmax_tile(a, t):
    b = V_S + 16 * t
    out = []
    for i in range(16):
        out.append(f"v_fma_f32 v{b+i}, v{b+i}, s{S_C}, -v{V_MC}")
    ex = [f"v_exp_f32 v{b+i}, v{b+i}" for i in range(16)]
    cv = [f"v_cvt_pk_bf16_f32 v{b+k}, v{b+2*k}, v{b+2*k+1}" for k in range(8)]
    return out + ex + cv

def pv(a, vm, tags, slots, after):
    for k in range(4): a(f"v_mov_b32 v{V_ONE+k}, 0x3f803f80")
    for l in softmax_tile(a, 0): a(l)
    for t in range(8):
        vm.wait(tags[t])
        for T in range(4):
            for s in range(2):
                f = V_F + 8 * T + 4 * s
                o = slots[t] * 8192 + 16 * s * 256
                a(f"ds_read_b64_tr_b16 {vr(f,2)}, v{V_TV+T} offset:{o}")
                a(f"ds_read_b64_tr_b16 {vr(f+2,2)}, v{V_TV+T} offset:{o+8*256}")
        nxt = softmax_tile(a, t + 1) if t < 7 else []
        b = V_S + 16 * t
        for s in range(2):
            c = "0" if (t == 0 and s == 0) else ar(A_L, 16)
            a(f"v_mfma_f32_32x32x16_bf16 {ar(A_L,16)}, {vr(V_ONE)}, {vr(b+4*s)}, {c}")
            for _ in range(4):
                if nxt: a(nxt.pop(0))
        n = 0
        for T in range(4):
            for s in range(2):
                n += 1
                a(f"s_waitcnt lgkmcnt({16-2*n})" if 16 - 2 * n <= 15 else "")
                c = "0" if (t == 0 and s == 0) else ar(A_O + 16 * T, 16)
                a(f"v_mfma_f32_32x32x16_bf16 {ar(A_O+16*T,16)}, {vr(V_F+8*T+4*s)}, {vr(b+4*s)}, {c}")
                for _ in range(4):
                    if nxt: a(nxt.pop(0))
        while nxt: a(nxt.pop(0))
        after(t)

def o_epilogue(a, slot, s_dst, vm, fl="sc1", accO=A_O, accL=A_L, vm_reg=V_M):
    t = V_T0 + 3
    a(f"s_lshl_b32 s{S_TMP}, s{S_WAVE}, 13")
    a(f"s_add_u32 s{S_TMP}, s{S_TMP}, {LDS_SCR}")
    a(f"v_add_u32 v{t}, s{S_RING}, v{V_L16}")
    a(f"v_add_u32 v{t+1}, s{S_TMP}, v{V_L16}")
    a(f"v_mov_b32 v{V_F}, v{vm_reg}")
    a(f"v_accvgpr_read_b32 v{V_F+1}, a{accL}")
    a(f"ds_write_b64 v{t+1}, {vr(V_F,2)} offset:4096")
    for B in (1, 2, 3):
        for g in range(4):
            if B < 3: a(f"ds_write_b128 v{t}, {ar(accO+16*B+4*g)} offset:{slot*8192+4096*(B-1)+1024*g}")
            else:     a(f"ds_write_b128 v{t+1}, {ar(accO+16*B+4*g)} offset:{1024*g}")
    for i in range(16): a(f"v_accvgpr_read_b32 v{V_S+i}, a{accO+i}")
    for B in (1, 2, 3):
        a(f"s_sub_u32 s{S_TMP}, s{S_WAVE}, {B}\ns_and_b32 s{S_TMP}, s{S_TMP}, 3")
        a(f"s_lshl_b32 s7, s{S_TMP}, 13\ns_add_u32 s7, s7, {LDS_SCR}")
        a(f"v_add_u32 v{V_F+20+B}, s7, v{V_L16}")
        if B < 3:
            a(f"s_lshl_b32 s{S_TMP}, s{S_TMP}, 15")
            a(f"v_add_u32 v{V_F+24+B}, s{S_TMP}, v{V_L16}")
    a("s_waitcnt lgkmcnt(0)\ns_barrier")
    for B in (1, 2, 3): a(f"ds_read_b64 {vr(V_F+2*B,2)}, v{V_F+20+B} offset:4096")
    for B in (1, 2, 3):
        for g in range(4):
            if B < 3: a(f"ds_read_b128 {vr(V_S+16*B+4*g)}, v{V_F+24+B} offset:{slot*8192+4096*(B-1)+1024*g}")
            else:     a(f"ds_read_b128 {vr(V_S+16*B+4*g)}, v{V_F+20+B} offset:{1024*g}")
    a("s_waitcnt lgkmcnt(12)")
    m = [V_F + 2 * u for u in range(4)]; l = [x + 1 for x in m]
    M = V_F + 8; L = V_F + 9; f = [V_F + 10 + u for u in range(4)]
    a(f"v_max3_f32 v{M}, v{m[0]}, v{m[1]}, v{m[2]}\nv_max_f32 v{M}, v{M}, v{m[3]}")
    for u in range(4): a(f"v_sub_f32 v{f[u]}, v{m[u]}, v{M}")
    for u in range(4): a(f"v_mul_f32 v{f[u]}, s{S_C}, v{f[u]}")
    for u in range(4): a(f"v_exp_f32 v{f[u]}, v{f[u]}")
    a(f"v_mul_f32 v{L}, v{f[0]}, v{l[0]}")
    for u in range(1, 4): a(f"v_fmac_f32 v{L}, v{f[u]}, v{l[u]}")
    a(f"v_rcp_f32 v{L}, v{L}")
    for u in range(4): a(f"v_mul_f32 v{f[u]}, v{f[u]}, v{L}")
    for i in range(16): a(f"v_mul_f32 v{V_S+i}, v{V_S+i}, v{f[0]}")
    for B in (1, 2, 3):
        a(f"s_waitcnt lgkmcnt({12-4*B})")
        for i in range(16): a(f"v_fmac_f32 v{V_S+i}, v{V_S+16*B+i}, v{f[B]}")
    for k in range(8): a(f"v_cvt_pk_bf16_f32 v{V_S+k}, v{V_S+2*k}, v{V_S+2*k+1}")
    a(f"s_lshl_b32 s{S_TMP}, s{S_WAVE}, 11\ns_add_u32 s{S_TMP}, s{S_TMP}, s{s_dst}")
    a(f"buffer_store_dwordx4 {vr(V_S)}, v{V_L16}, {sr(SRDW)}, s{S_TMP} offen {fl}")
    a(f"buffer_store_dwordx4 {vr(V_S+4)}, v{V_L16}, {sr(SRDW)}, s{S_TMP} offen offset:1024 {fl}")
    vm.issue("ost", 2)

def w_steps(a, steps, first=True, between=None, opened=None):
    items = [(i, w, s) for i in range(len(steps)) for w in range(4) for s in range(2)]
    def reads(n):
        i, w, s = items[n]
        slot = steps[i][0]
        buf = V_F + 16 * (n % 2)
        out = []
        for T in range(4):
            va = V_TW + T + (4 if w >= 2 else 0)
            o = (w & 1) * 32768 + slot * 8192 + 16 * s * 256
            out.append(f"ds_read_b64_tr_b16 {vr(buf+4*T,2)}, v{va} offset:{o}")
            out.append(f"ds_read_b64_tr_b16 {vr(buf+4*T+2,2)}, v{va} offset:{o+4*256}")
        return out
    if steps[0][2]: steps[0][2]()
    for l in reads(0): a(l)
    for n, (i, w, s) in enumerate(items):
        last = n + 1 == len(items)
        cross = (not last) and items[n + 1][0] != i and steps[i + 1][2] is not None
        if cross:
            a("s_waitcnt lgkmcnt(0)")
            steps[i + 1][2]()
        nxt = [] if last else reads(n + 1)
        buf = V_F + 16 * (n % 2)
        for T in range(4):
            if not cross: a(f"s_waitcnt lgkmcnt({6 - 2*T if last else 6})")
            if opened and T == 0 and w == 0 and s == 0: opened(i)
            c = "0" if (first and n == 0) else vr(V_S + 16 * T, 16)
            b = steps[i][1](w, s)
            a(f"v_mfma_f32_32x32x16_bf16 {vr(V_S+16*T,16)}, {vr(buf+4*T)}, {b}, {c}")
            if T == 0 and between: between(n)
            if nxt: a(nxt.pop(0)); a(nxt.pop(0))

def w_items(a, items, bfrag, before={}, lo=0, hi=None):
    def reads(n):
        w, slot, s = items[n]
        buf = V_F + 16 * (n % 2)
        out = []
        for T in range(4):
            va = V_TW + T + (4 if w >= 2 else 0)
            o = (w & 1) * 32768 + slot * 8192 + 16 * s * 256
            out.append(f"ds_read_b64_tr_b16 {vr(buf+4*T,2)}, v{va} offset:{o}")
            out.append(f"ds_read_b64_tr_b16 {vr(buf+4*T+2,2)}, v{va} offset:{o+4*256}")
        return out
    if lo == 0:
        for l in reads(0): a(l)
    for n, it in list(enumerate(items))[lo:hi]:
        last = n + 1 == len(items)
        if n + 1 in before: before[n + 1]()
        nxt = [] if last else reads(n + 1)
        buf = V_F + 16 * (n % 2)
        for T in range(4):
            a(f"s_waitcnt lgkmcnt({6 - 2*T if last else 6})")
            c = "0" if n == 0 else vr(V_S + 16 * T, 16)
            b = bfrag(*it)
            a(f"v_mfma_f32_32x32x16_bf16 {vr(V_S+16*T,16)}, {vr(buf+4*T)}, {b}, {c}")
            if nxt: a(nxt.pop(0)); a(nxt.pop(0))

def w_ops(a, ops, bfrag, lo=0, hi=None, fill=None, smap=(0, 1, 2, 3)):
    def reads(n):
        w, slot, s, T = ops[n]
        buf = V_F + 4 * (n % 8)
        va = V_TW + T + (4 if w >= 2 else 0)
        o = (w & 1) * 32768 + smap[slot] * 8192 + 16 * s * 256
        return [f"ds_read_b64_tr_b16 {vr(buf,2)}, v{va} offset:{o}", f"ds_read_b64_tr_b16 {vr(buf+2,2)}, v{va} offset:{o+4*256}"]
    if lo == 0:
        for n in range(4):
            for l in reads(n): a(l)
    started = {op[3] for op in ops[:lo]}
    for n in range(lo, len(ops) if hi is None else hi):
        w, slot, s, T = ops[n]
        a(f"s_waitcnt lgkmcnt({min(6, 2 * (len(ops) - 1 - n))})")
        c = vr(V_S + 16 * T, 16) if T in started else "0"
        started.add(T)
        b = bfrag(w, slot, s)
        a(f"v_mfma_f32_32x32x16_bf16 {vr(V_S+16*T,16)}, {vr(V_F+4*(n%8))}, {b}, {c}")
        if n + 4 < len(ops):
            for l in reads(n + 4): a(l)
        if fill: fill(n)

def cvt_acc(a):
    for T in range(4):
        for k in range(8):
            a(f"v_cvt_pk_bf16_f32 v{V_S+64+8*T+k}, v{V_S+16*T+2*k}, v{V_S+16*T+2*k+1}")
```

```python
import sys
from engines import *

WS_FQ = WS_F
WS_FO = WS_F + 0x200000
WS_FP = WS_F + 0x400000
WS_ST = WS_F + 0x100000
FS = 7
FW = 2
SLEEP = 0
APOLL = 1
NPOLL = 1
PGAP = 0
GAP = 28
S_SCR = 69
SPIN = 1 << 20
SRDT = 88

class Stream:
    def __init__(self, a, vm):
        self.a, self.vm = a, vm
        self.q = []
        self.busy = {}
        self.landed = set(); self.issued = {}; self.m0_dirty = False; self.pres = {}; self.gates = set(); self.lag = None; self.nl = 0
    def run_pre(self, tag):
        box = self.pres[tag]
        if box[0]: box[0](); box[0] = None
    def add(self, tag, slot, srdreg, soff, step, voff, rs, fl, N, single=False, pre=None, wrap=None, nxt=None):
        a = self.a
        fl = (" " + fl) if fl else ""
        sb, so_ = (S_SCR, 0) if slot == 4 else (S_RING, slot * 8192)
        box = [pre]
        def emit(k):
            if k == 0:
                if box[0]: box[0](); box[0] = None
                a(f"s_add_u32 m0, s{sb}, {so_}")
            if k == 4:
                a(f"s_add_u32 s{soff+1}, s{soff}, {16*rs}")
                a(f"s_add_u32 m0, s{sb}, {so_+4096}")
            if self.m0_dirty and k & 3: a(f"s_add_u32 m0, s{sb}, {so_+(k&4)*1024}")
            self.m0_dirty = False
            so = soff + 1 if k >= 4 else soff
            off = f" offset:{1024*(k&3)}" if k & 3 else ""
            a(f"buffer_load_dwordx4 v{voff+(0 if single else k&3)}, {sr(srdreg)}, s{so} offen{off}{fl} lds")
            if k == 7:
                if nxt is not None: nxt()
                elif wrap is None: a(f"s_add_u32 s{soff}, s{soff}, {step}")
                else:
                    a(f"s_add_u32 s{soff+2}, s{soff+2}, {step}\ns_and_b32 s{soff+2}, s{soff+2}, {wrap-1}\ns_add_u32 s{soff}, s{soff+3}, s{soff+2}")
        for k in range(8): self.q.append((tag, slot, k, emit, N))
        self.pres[tag] = box
    def can(self):
        if not self.q: return False
        tag, slot, k, _, _ = self.q[0]
        if (tag, k) in self.gates: return False
        return self.busy.get(slot) in (None, tag)
    def gate(self, tag, k=0): self.gates.add((tag, k))
    def open(self, tag, k=0): self.gates.discard((tag, k))
    def _sync(self):
        for tag, n in self.issued.items():
            if n == 8 and tag not in self.vm.q: self.landed.add(tag)
    def piece(self, throttle=True):
        tag, slot, k, emit, N = self.q.pop(0)
        if throttle and self.lag is not None and N < 8 and tag[0] == "k":
            if len(self.vm.q) >= N:
                self.nl += 1
                self.a(f"s_cmp_lg_u32 s{self.lag}, 0\ns_cbranch_scc1 L_lag{self.nl}\ns_waitcnt vmcnt({N-1})"); self.a.label(f"L_lag{self.nl}")
            N = 12
        if throttle and len(self.vm.q) >= N:
            self.a(f"s_waitcnt vmcnt({N-1})"); self.vm.q = self.vm.q[len(self.vm.q) - (N - 1):] if N > 1 else []
        assert len(self.vm.q) < 63
        self.busy[slot] = tag
        emit(k); self.vm.issue(tag); self.issued[tag] = self.issued.get(tag, 0) + 1
        self._sync()
    def pump(self, n=99, throttle=True):
        while n > 0 and self.can():
            self.piece(throttle); n -= 1
    def need(self, tag, fill=True):
        self._sync()
        while tag not in self.landed and self.can() and (fill or self.issued.get(tag, 0) < 8):
            self.piece()
        if tag not in self.landed:
            assert self.issued.get(tag) == 8, tag
            self.vm.wait(tag); self._sync()
    def release(self, tag):
        for s, t in list(self.busy.items()):
            if t == tag: self.busy[s] = None

class Ctx: pass

def cyc(c, n, start, mode=1):
    if c.stamps != mode: return
    c.a("s_memtime s[42:43]\ns_waitcnt lgkmcnt(0)")
    if start: c.a(f"s_mov_b32 s{70+n}, s42")
    else: c.a(f"s_sub_u32 s{70+n}, s42, s{70+n}\ns_add_u32 s{70+n}, s{70+n}, s70")

def stamp(c, n, mode=1):
    if c.stamps != mode and not (c.stamps and n in (1, 2, 19)) and not (c.stamps == 11 and mode == 1): return
    c.a(f"s_memrealtime s[42:43]\ns_waitcnt lgkmcnt(0)\ns_mov_b32 s{70+n}, s42")

def look(r, voff, so, nl):
    if not APOLL: return f"buffer_load_dword v{r}, v{voff}, {sr(SRDW)}, s{so} offen sc1"
    return (f"v_mov_b32 v{r}, 1\ns_mov_b64 exec, {(1<<nl)-1}\nv_mov_b32 v{r}, 0\n"
            f"buffer_atomic_or v{r}, v{voff}, {sr(SRDW)}, s{so} offen sc0 sc1\ns_mov_b64 exec, -1")

def poll(c, name, soff_expr_reg, nl, want, voff):
    a = c.a
    regs = [V_T0, 32, 33, 34][:NPOLL]
    ld = lambda r: look(r, voff, soff_expr_reg, nl)
    a(f"s_mov_b32 s68, {SPIN}")
    if NPOLL > 1:
        a(ld(regs[0]))
        for r in regs[1:-1]: a(f"v_mov_b32 v{r}, 0")
        a(f"s_waitcnt vmcnt(0)\nv_cmp_ne_u32 vcc, {want}, v{regs[0]}\ns_cbranch_vccz L_{name}_x")
    for r in regs[:-1]:
        a(ld(r))
        if PGAP: a(f"s_sleep {PGAP}")
    a.label(f"L_{name}")
    for n, r in enumerate(regs):
        a(ld(regs[n - 1]))
        a(f"s_waitcnt vmcnt({NPOLL-1})")
        a(f"v_cmp_ne_u32 vcc, {want}, v{r}")
        a(f"s_cbranch_vccz L_{name}_x")
    if SLEEP: a(f"s_sleep {SLEEP}")
    a(f"s_sub_u32 s68, s68, 1\ns_cbranch_scc0 L_{name}")
    a.label(f"L_{name}_x")
    c.vm.q = ["poll"] * (NPOLL - 1); c.st._sync()

V_CK, V_CA = 34, 35
def ck_issue(c, kind, arg):
    a = c.a
    if kind == "dbg":
        a(f"v_and_b32 v{V_CA}, 7, v{V_LANE}\nv_lshlrev_b32 v{V_CA}, 5, v{V_CA}")
        ld = f"global_load_dword v{V_CK}, v{V_CA}, s[{P_DBG}:{P_DBG+1}] sc1"
        cmp_ = f"v_cmp_gt_u32 vcc, 32, v{V_CK}"
    else:
        so, nl, sh = arg
        a(f"v_and_b32 v{V_CA}, {nl-1}, v{V_LANE}\nv_lshlrev_b32 v{V_CA}, {sh}, v{V_CA}")
        ld = f"buffer_load_dword v{V_CK}, v{V_CA}, {sr(SRDW)}, s{so} offen sc1"
        cmp_ = f"v_cmp_ne_u32 vcc, 1, v{V_CK}"
    a(ld); c.vm.issue("ck"); c.ck = (ld, cmp_)
def ck_verify(c, name):
    a = c.a; ld, cmp_ = c.ck
    if "ck" in c.vm.q: c.vm.wait("ck")
    c.st._sync()
    a(f"s_mov_b32 s68, {SPIN}")
    a.label(f"L_{name}")
    a(f"{cmp_}\ns_cbranch_vccz L_{name}_x")
    if SLEEP: a(f"s_sleep {SLEEP}")
    a(f"{ld}\ns_sub_u32 s68, s68, 1\ns_waitcnt vmcnt(0)\ns_cbranch_scc0 L_{name}")
    a.label(f"L_{name}_x")

def park2(c, tags, hook=None):
    a, st = c.a, c.st
    for t in range(8):
        st.need(tags[t])
        slot = [s for s, g in st.busy.items() if g == tags[t]][0]
        for s in range(8):
            a(f"ds_read_b128 {ar(32*t+4*s)}, v{V_KR+s} offset:{slot*8192}")
        a("s_waitcnt lgkmcnt(0)")
        st.release(tags[t])
        stamp(c, 3 + t, 8)
        if hook: hook(t)

V_SH = 104
V_SH0, V_SH1 = 10, 14
def finish_max(a, M, T, sh):
    a(f"""v_mov_b32 v{T}, v{M}
    v_permlane32_swap_b32 v{M}, v{T}
    v_max_f32 v{M}, v{M}, v{T}
    v_mul_f32 v{M}, -0.5, v{M}
    v_cvt_pk_bf16_f32 v{T}, v{M}, v{M}
    v_lshlrev_b32 v{T}, 16, v{T}
    v_sub_f32 v{M}, v{M}, v{T}
    v_cvt_pk_bf16_f32 v{sh}, v{T}, v{M}
    v_and_b32 v{M}, 0xffff0000, v{sh}
    v_add_f32 v{M}, v{M}, v{T}
    v_mul_f32 v{M}, -2.0, v{M}
    v_mov_b32 v{sh+1}, 0
    v_mov_b32 v{sh+2}, 0
    v_mov_b32 v{sh+3}, 0""")
V_SEL = 26
def set_ones(a):
    for k in range(4): a(f"v_mov_b32 v{V_ONE+k}, 0x3f803f80")
    a(f"""v_lshrrev_b32 v{V_SEL}, 4, v{V_LANE}
    v_xor_b32 v{V_SEL}, v{V_SEL}, v{V_LANE}
    v_and_b32 v{V_SEL}, 1, v{V_SEL}
    v_add_u32 v{V_SEL}, -1, v{V_SEL}
    v_and_b32 v{V_SEL}, 0x3f803f80, v{V_SEL}
    v_mov_b32 v{V_SEL+1}, v{V_SEL}
    v_mov_b32 v{V_SEL+2}, v{V_SEL}
    v_mov_b32 v{V_SEL+3}, v{V_SEL}""")
def rowsum(L, P, first):
    return f"v_mfma_f32_16x16x32_bf16 {ar(L)}, {vr(V_SEL)}, {vr(P)}, {'0' if first else ar(L)}"
def shift(S, sh): return f"v_mfma_f32_32x32x16_bf16 {S}, {vr(V_ONE)}, {vr(sh)}, {S}"

def scores2(c, npump=1):
    a, st = c.a, c.st
    pend = []
    for t in range(8):
        for s in range(8):
            cc = "0" if s == 0 else vr(V_S + 16 * t, 16)
            a(f"v_mfma_f32_32x32x16_bf16 {vr(V_S+16*t,16)}, {ar(32*t+4*s)}, {vr(V_Q+4*s)}, {cc}")
            if s >= 4:
                for _ in range(2):
                    if pend: a(pend.pop(0))
            if s == 0 or (s == 2 and npump > 1): st.pump(1)
        b = V_S + 16 * t
        if t == 0:
            pend = [f"v_max3_f32 v{V_M}, v{b}, v{b+1}, v{b+2}"]
            pend += [f"v_max3_f32 v{V_M}, v{V_M}, v{b+i}, v{b+i+1}" for i in range(3, 15, 2)]
            pend += [f"v_max_f32 v{V_M}, v{V_M}, v{b+15}"]
        else:
            pend = [f"v_max3_f32 v{V_M}, v{V_M}, v{b+i}, v{b+i+1}" for i in range(0, 16, 2)]
    while pend: a(pend.pop(0))
    finish_max(a, V_M, V_MC, V_SH)

class LagScores:
    def __init__(self, c): self.c = c; self.pend = []
    def tile(self, t):
        a, st, pend = self.c.a, self.c.st, self.pend
        for s in range(8):
            cc = "0" if s == 0 else vr(V_S + 16 * t, 16)
            a(f"v_mfma_f32_32x32x16_bf16 {vr(V_S+16*t,16)}, {ar(32*t+4*s)}, {vr(V_Q+4*s)}, {cc}")
            if s >= 4:
                for _ in range(2):
                    if pend: a(pend.pop(0))
            if s in (0, 2): st.pump(1)
        b = V_S + 16 * t
        if t == 0:
            pend += [f"v_max3_f32 v{V_M}, v{b}, v{b+1}, v{b+2}"]
            pend += [f"v_max3_f32 v{V_M}, v{V_M}, v{b+i}, v{b+i+1}" for i in range(3, 15, 2)]
            pend += [f"v_max_f32 v{V_M}, v{V_M}, v{b+15}"]
        else:
            pend += [f"v_max3_f32 v{V_M}, v{V_M}, v{b+i}, v{b+i+1}" for i in range(0, 16, 2)]
    def finish(self):
        for l in self.pend: self.c.a(l)
        finish_max(self.c.a, V_M, V_MC, V_SH)

def sm_lines(b):
    out = [f"v_exp_f32 v{b+i}, v{b+i}" for i in range(16)]
    out += [f"v_cvt_pk_bf16_f32 v{b+k}, v{b+2*k}, v{b+2*k+1}" for k in range(8)]
    return out

def pv2(c, tags, last_pump=False, hold_last=True, hook=None, last=None):
    a, st = c.a, c.st
    set_ones(a)
    a(shift(vr(V_S, 16), V_SH)); a(shift(vr(V_S + 16, 16), V_SH))
    for l in sm_lines(V_S): a(l)
    for t in range(8):
        if t < 6: a(shift(vr(V_S + 16 * (t + 2), 16), V_SH))
        st.need(tags[t], fill=False)
        if t == 7 and last: last()
        slot = [s for s, g in st.busy.items() if g == tags[t]][0]
        for B in range(4):
            for s in range(2):
                f = V_F + 8 * B + 4 * s
                o = slot * 8192 + 16 * s * 256
                a(f"ds_read_b64_tr_b16 {vr(f,2)}, v{V_TV+B} offset:{o}")
                a(f"ds_read_b64_tr_b16 {vr(f+2,2)}, v{V_TV+B} offset:{o+8*256}")
        nxt = sm_lines(V_S + 16 * (t + 1)) if t < 7 else []
        b = V_S + 16 * t
        for s in range(2):
            a(rowsum(A_L, b + 4 * s, t == 0 and s == 0))
            for _ in range(2):
                if nxt: a(nxt.pop(0))
        n = 0
        for B in range(4):
            for s in range(2):
                n += 1
                if s == 0: a(f"s_waitcnt lgkmcnt({12-4*B})")
                cc = "0" if (t == 0 and s == 0) else ar(A_O + 16 * B, 16)
                a(f"v_mfma_f32_32x32x16_bf16 {ar(A_O+16*B,16)}, {vr(V_F+8*B+4*s)}, {vr(b+4*s)}, {cc}")
                for _ in range(3):
                    if nxt: a(nxt.pop(0))
                if t < 7 or last_pump: st.pump(1)
        while nxt: a(nxt.pop(0))
        if not (hold_last and t == 7): st.release(tags[t])
        stamp(c, 3 + t, 4); stamp(c, 3 + t, 10)
        if hook: hook(t)

LQ_ORDER = list(range(8))
LQ_P, LQ_RAW, LQ_SH = 104, 112, V_Q
def lq_s(t):
    i = LQ_ORDER.index(t)
    return ("v", LQ_RAW) if i == 0 else ("a", 32 * LQ_ORDER[i - 1])
def lq_o(B): return ar((16, 48, 80, 144)[B], 16)
LQ_L = 176
def v_reads(dst, slot):
    out = []
    for B in range(4):
        for s in range(2):
            o = slot * 8192 + 16 * s * 256
            out.append(f"ds_read_b64_tr_b16 {vr(dst+8*B+4*s,2)}, v{V_TV+B} offset:{o}")
            out.append(f"ds_read_b64_tr_b16 {vr(dst+8*B+4*s+2,2)}, v{V_TV+B} offset:{o+8*256}")
    return out
def lq_park_v(c, tags, npark, hook=None):
    a, st = c.a, c.st
    for t in range(npark):
        st.need(tags[t])
        for l in v_reads(V_S + 32 * t, t): a(l)
        a("s_waitcnt lgkmcnt(0)")
        st.release(tags[t])
        stamp(c, 11 + t, 8)
        if hook: hook(t)
def lq_scores(c, npump):
    a, st = c.a, c.st
    pend = []; T = V_F
    for i, t in enumerate(LQ_ORDER):
        f, b = lq_s(t); S = f"{f}[{b}:{b+15}]"
        for s in range(8):
            a(f"v_mfma_f32_32x32x16_bf16 {S}, {ar(32*t+4*s)}, {vr(V_Q+4*s)}, {'0' if s == 0 else S}")
            if s >= 2:
                for _ in range(4):
                    if pend: a(pend.pop(0))
            if s == 0 or (s == 1 and npump > 1): st.pump(1)
        if i == 0:
            pend = [f"v_max3_f32 v{V_M}, v{b}, v{b+1}, v{b+2}"] + [f"v_max3_f32 v{V_M}, v{V_M}, v{b+k}, v{b+k+1}" for k in range(3, 15, 2)] + [f"v_max_f32 v{V_M}, v{V_M}, v{b+15}"]
        else:
            pend = [f"v_accvgpr_read_b32 v{T+k}, a{b+k}" for k in range(16)] + [f"v_max3_f32 v{V_M}, v{V_M}, v{T+k}, v{T+k+1}" for k in range(0, 16, 2)]
    while pend: a(pend.pop(0))
    finish_max(a, V_M, V_MC, LQ_SH)
def lq_pv(c, tags, npark, hook=None, last=None, at=7):
    a, st = c.a, c.st
    set_ones(a)
    def sh(i):
        f, b = lq_s(i); a(shift(f"{f}[{b}:{b+15}]", LQ_SH))
    def ex(i):
        f, b = lq_s(i)
        out = [] if f == "v" else [f"v_accvgpr_read_b32 v{LQ_RAW+k}, a{b+k}" for k in range(16)]
        return out + [f"v_exp_f32 v{LQ_RAW+k}, v{LQ_RAW+k}" for k in range(16)]
    pk = [f"v_cvt_pk_bf16_f32 v{LQ_P+k}, v{LQ_RAW+2*k}, v{LQ_RAW+2*k+1}" for k in range(8)]
    sh(0); sh(1)
    for l in ex(0) + pk: a(l)
    for t in range(8):
        if t < 6: sh(t + 2)
        ring = t >= npark
        if ring:
            st.need(tags[t], fill=False)
            if t >= at and last: last(t)
            for l in v_reads(V_F, t & 3): a(l)
        nxt = ex(t + 1) if t < 7 else []
        def fill(n):
            for _ in range(n):
                if nxt: a(nxt.pop(0))
        fr = V_F if ring else V_S + 32 * t
        for s in range(2):
            a(rowsum(LQ_L, LQ_P + 4 * s, t == 0 and s == 0)); fill(2)
        for B in range(4):
            if ring: a(f"s_waitcnt lgkmcnt({12-4*B})")
            for s in range(2):
                a(f"v_mfma_f32_32x32x16_bf16 {lq_o(B)}, {vr(fr+8*B+4*s)}, {vr(LQ_P+4*s)}, {'0' if t == 0 and s == 0 else lq_o(B)}")
                st.pump(1); fill(4)
        if ring and t != 7: st.release(tags[t])
        fill(99)
        if t < 7:
            for l in pk: a(l)
        stamp(c, 3 + t, 4)
        if hook: hook(t)

A_Q1, A_S1, A_L1 = 96, 128, 80
V_M1, V_MC1, V_P1 = 34, 35, 104
def o1(B): return vr(V_Q + 16 * B, 16) if B < 2 else ar(96 + 16 * (B - 2), 16)

def gqa_k(c, tags, hook=None):
    a, st = c.a, c.st
    pend = []
    def rd(t, s): return f"ds_read_b128 {vr(V_F+4*s)}, v{V_KR+s} offset:{(t&3)*8192}"
    st.need(tags[0], fill=False)
    for s in range(8): a(rd(0, s))
    for t in range(8):
        if t < 7: st.need(tags[t + 1], fill=False)
        for s in range(8):
            if t == 0: a(f"s_waitcnt lgkmcnt(7)")
            elif t == 7: a(f"s_waitcnt lgkmcnt({7-s})") if s in (0, 2, 4, 6, 7) else None
            elif s in (0, 2, 4, 6): a("s_waitcnt lgkmcnt(6)")
            if t == 7 and s in (0, 2, 4, 6): a.lines[-1] = f"s_waitcnt lgkmcnt({6-s})"
            if t == 7 and s == 7: a.lines.pop()
            if s == 7 and t: st.release(tags[t])
            if s == 7 and t == 0: st.release(tags[0])
            c0 = "0" if s == 0 else vr(V_S + 16 * t, 16)
            c1 = "0" if s == 0 else ar(A_S1 + 16 * t, 16)
            a(f"v_mfma_f32_32x32x16_bf16 {vr(V_S+16*t,16)}, {vr(V_F+4*s)}, {vr(V_Q+4*s)}, {c0}")
            for _ in range(3):
                if pend and s >= 2: a(pend.pop(0))
            a(f"v_mfma_f32_32x32x16_bf16 {ar(A_S1+16*t,16)}, {vr(V_F+4*s)}, {ar(A_Q1+4*s)}, {c1}")
            if t < 7: a(rd(t + 1, s))
            for _ in range(3):
                if pend and s >= 2: a(pend.pop(0))
            st.pump(2 if t < 3 else 1)
        while pend: a(pend.pop(0))
        if hook: hook(t)
        stamp(c, 3 + t, 5)
        if t == 1: stamp(c, 3, 7); cyc(c, 5, True, 7)
        if t == 4: stamp(c, 4, 7); cyc(c, 5, False, 7)
        b = V_S + 16 * t
        def mx(M, b):
            if t == 0:
                return ([f"v_max3_f32 v{M}, v{b}, v{b+1}, v{b+2}"] + [f"v_max3_f32 v{M}, v{M}, v{b+i}, v{b+i+1}" for i in range(3, 15, 2)]
                        + [f"v_max_f32 v{M}, v{M}, v{b+15}"])
            return [f"v_max3_f32 v{M}, v{M}, v{b+i}, v{b+i+1}" for i in range(0, 16, 2)]
        pend = mx(V_M, b) + [f"v_accvgpr_read_b32 v{V_P1+i}, a{A_S1+16*t+i}" for i in range(16)] + mx(V_M1, V_P1)
    while pend: a(pend.pop(0))
    finish_max(a, V_M, V_MC, V_SH0); finish_max(a, V_M1, V_MC1, V_SH1)

def gqa_v(c, tags, hold, last=None, hook=None):
    a, st = c.a, c.st
    PB = (V_P1, V_P1 + 8); C = V_P1 + 16
    def raw(t, i): return PB[t & 1] + i if i < 8 else C + i - 8
    def sm1(t):
        rd_ = [f"v_accvgpr_read_b32 v{raw(t,i)}, a{A_S1+16*t+i}" for i in range(16)]
        ex = [f"v_exp_f32 v{raw(t,i)}, v{raw(t,i)}" for i in range(16)]
        pk = [f"v_cvt_pk_bf16_f32 v{PB[t&1]+k}, v{raw(t,2*k)}, v{raw(t,2*k+1)}" for k in range(8)]
        return rd_, ex + pk
    def sh(t): return [shift(vr(V_S + 16 * t, 16), V_SH0), shift(ar(A_S1 + 16 * t, 16), V_SH1)]
    def rd(t, B): return v_reads(V_F, t & 3)[4 * B:4 * B + 4]
    for l in sh(0) + sh(1): a(l)
    st.need(tags[0], fill=False)
    for B in range(4):
        for l in rd(0, B): a(l)
    r0, e0 = sm1(0)
    for l in r0 + sm_lines(V_S) + e0: a(l)
    for t in range(8):
        if t < 7: st.need(tags[t + 1], fill=False)
        if t < 7:
            r1, e1 = sm1(t + 1); nxt = r1 + sm_lines(V_S + 16 * (t + 1)) + e1
        else: nxt = []
        b = V_S + 16 * t; P1 = PB[t & 1]
        def fill(budget):
            while nxt and budget >= (8 if nxt[0].startswith("v_exp") else 4) - 2:
                budget -= 8 if nxt[0].startswith("v_exp") else 4
                a(nxt.pop(0))
        extra = [rowsum(A_L, b, t == 0), rowsum(A_L1, P1, t == 0), rowsum(A_L, b + 4, False), rowsum(A_L1, P1 + 4, False)]
        shf = sh(t + 2)[::-1] if t < 6 else []
        order = (1, 2, 3, 0) if t == 7 else (0, 1, 2, 3)
        G = GAP
        for n, B in enumerate(order):
            if t < 7: a("s_waitcnt lgkmcnt(12)")
            elif n == 0: a("s_waitcnt lgkmcnt(0)")
            if (B == 3 or t == 7) and tags[t] not in hold: st.release(tags[t])
            for s in range(2):
                z = t == 0 and s == 0
                a(f"v_mfma_f32_32x32x16_bf16 {ar(A_O+16*B,16)}, {vr(V_F+8*B+4*s)}, {vr(b+4*s)}, {'0' if z else ar(A_O+16*B,16)}")
                n0 = len(a.lines); st.pump(2 if t < 5 else 1); fill(G - 5 * (len(a.lines) - n0))
                a(f"v_mfma_f32_32x32x16_bf16 {o1(B)}, {vr(V_F+8*B+4*s)}, {vr(P1+4*s)}, {'0' if z else o1(B)}")
                if s == 1 and t < 7:
                    for l in rd(t + 1, B): a(l)
                    fill(G - 16)
                else: fill(G)
            a(extra.pop(0)); fill(G - 20)
            if shf and B in (1, 3): a(shf.pop(0)); fill(G)
            if t == 7 and last: last(n, B)
        fill(9999)
        if hook: hook(t)
        stamp(c, 11 + t, 5); stamp(c, 3 + t, 6); stamp(c, 3 + t, 10)
        if t == 1: stamp(c, 6, 7); cyc(c, 8, True, 7)
        if t == 4: stamp(c, 7, 7); cyc(c, 8, False, 7)

def o_epi(c, heads, mid=None, idle=None, freed=None):
    a = c.a
    t = V_F + 24
    a(f"s_lshl_b32 s{S_TMP}, s{S_WAVE}, 13\ns_add_u32 s{S_TMP}, s{S_TMP}, {LDS_SCR}")
    a(f"v_add_u32 v{t}, s{S_RING}, v{V_L16}\nv_add_u32 v{t+1}, s{S_TMP}, v{V_L16}")
    def loc(spec, ring, scr):
        base, off = spec
        return (scr, off) if base == "scr" else (ring, base * 8192 + off)
    def sub(txt, g):
        f, lo = txt[0], int(txt[2:txt.index(":")])
        return f"{f}[{lo+4*g}:{lo+4*g+3}]"
    for n, h in enumerate(heads):
        a(f"v_mov_b32 v{V_F+8*n}, v{h['M']}\nv_accvgpr_read_b32 v{V_F+8*n+1}, a{h['L']}\nv_accvgpr_read_b32 v{V_F+8*n+2}, a{h['L']+1}")
        if n == 0: a("s_mov_b32 vcc_lo, 0xffff0000\ns_mov_b32 vcc_hi, 0xffff0000")
        a(f"v_cndmask_b32 v{V_F+8*n+1}, v{V_F+8*n+1}, v{V_F+8*n+2}, vcc")
        v, o = loc(h["st"], t, t + 1)
        a(f"ds_write_b64 v{v}, {vr(V_F+8*n,2)} offset:{o}")
        for B in (1, 2, 3):
            v, o = loc((h["slot"], 4096 * (B - 1)) if B < 3 else h["b3"], t, t + 1)
            for g in range(4): a(f"ds_write_b128 v{v}, {sub(h['acc'](B), g)} offset:{o+1024*g}")
    for n, h in enumerate(heads):
        own = h["acc"](0); lo = int(own[2:own.index(":")])
        for i in range(16):
            a(f"v_accvgpr_read_b32 v{V_S+64*n+i}, a{lo+i}" if own[0] == "a" else f"v_mov_b32 v{V_S+64*n+i}, v{lo+i}")
    for B in (1, 2, 3):
        a(f"s_sub_u32 s{S_TMP}, s{S_WAVE}, {B}\ns_and_b32 s{S_TMP}, s{S_TMP}, 3")
        a(f"s_lshl_b32 s7, s{S_TMP}, 13\ns_add_u32 s7, s7, {LDS_SCR}\ns_lshl_b32 s{S_TMP}, s{S_TMP}, 15")
        a(f"v_add_u32 v{t+2*B}, s{S_TMP}, v{V_L16}\nv_add_u32 v{t+2*B+1}, s7, v{V_L16}")
    md = 4 if len(heads) == 1 else 6
    if idle: idle()
    a("s_waitcnt lgkmcnt(0)"); stamp(c, 11, md); a("s_barrier"); stamp(c, 12, md)
    def reads(n):
        h = heads[n]; out = []
        for B in (1, 2, 3):
            v, o = loc((h["slot"], 4096 * (B - 1)) if B < 3 else h["b3"], t + 2 * B, t + 2 * B + 1)
            out.append([f"ds_read_b128 {vr(V_S+64*n+16*B+4*g)}, v{v} offset:{o+1024*g}" for g in range(4)])
        return out
    for n, h in enumerate(heads):
        for B in (1, 2, 3):
            v, o = loc(h["st"], t + 2 * B, t + 2 * B + 1)
            a(f"ds_read_b64 {vr(V_F+8*n+2*B,2)}, v{v} offset:{o}")
    two = len(heads) == 2
    r0 = reads(0); r1 = reads(1) if two else [[], [], []]
    for n, h in enumerate(heads):
        if n == 0:
            for l in r0[0] + r0[1]: a(l)
            if mid: mid()
            a("s_waitcnt lgkmcnt(8)")
            for l in r0[2]: a(l)
        m = [V_F + 8 * n + 2 * u for u in range(4)]; l = [x + 1 for x in m]
        M = V_F + 16; L = V_F + 17; f = [V_F + 18 + u for u in range(4)]
        a(f"v_max3_f32 v{M}, v{m[0]}, v{m[1]}, v{m[2]}\nv_max_f32 v{M}, v{M}, v{m[3]}")
        for u in range(4): a(f"v_sub_f32 v{f[u]}, v{m[u]}, v{M}")
        for u in range(4): a(f"v_exp_f32 v{f[u]}, v{f[u]}")
        a(f"v_mul_f32 v{L}, v{f[0]}, v{l[0]}")
        for u in range(1, 4): a(f"v_fmac_f32 v{L}, v{f[u]}, v{l[u]}")
        a(f"v_rcp_f32 v{L}, v{L}")
        for u in range(4): a(f"v_mul_f32 v{f[u]}, v{f[u]}, v{L}")
        S = V_S + 64 * n
        def sel(r): return ("op_sel_hi:[1,0", vr(r, 2)) if r % 2 == 0 else ("op_sel:[0,1", vr(r - 1, 2))
        md_, fr = sel(f[0])
        for i in range(0, 16, 2): a(f"v_pk_mul_f32 {vr(S+i,2)}, {vr(S+i,2)}, {fr} {md_}]")
        for B in (1, 2, 3):
            a(f"s_waitcnt lgkmcnt({8 if (two and n == 0) else 12-4*B})")
            if n == 0:
                for l in r1[B - 1]: a(l)
            md_, fr = sel(f[B])
            tail = ",1]" if md_.startswith("op_sel_hi") else ",0]"
            for i in range(0, 16, 2): a(f"v_pk_fma_f32 {vr(S+i,2)}, {vr(S+16*B+i,2)}, {fr}, {vr(S+i,2)} {md_}{tail}")
        if n == len(heads) - 1:
            stamp(c, 13, md); a("s_barrier"); stamp(c, 14, md)
            if freed: freed()
        for k in range(8): a(f"v_cvt_pk_bf16_f32 v{S+k}, v{S+2*k}, v{S+2*k+1}")
        a(f"s_lshl_b32 s{S_TMP}, s{S_WAVE}, 11\ns_add_u32 s{S_TMP}, s{S_TMP}, s{h['dst']}")
        a(f"buffer_store_dwordx4 {vr(S)}, v{V_L16}, {sr(SRDW)}, s{S_TMP} offen sc1")
        a(f"buffer_store_dwordx4 {vr(S+4)}, v{V_L16}, {sr(SRDW)}, s{S_TMP} offen offset:1024 sc1")
        c.vm.issue("ost", 2)
    stamp(c, 15, md)

def flag_store(c, soff, nl=1):
    a = c.a
    a(f"v_mov_b32 v{V_T0}, 1\nv_lshlrev_b32 v{V_F+31}, {FW}, v{V_LANE}")
    a(f"s_mov_b64 exec, {(1<<nl)-1}")
    a(f"buffer_store_dword v{V_T0}, v{V_F+31}, {sr(SRDW)}, s{soff} offen sc1")
    a("s_mov_b64 exec, -1")
    c.vm.issue("flag")

def q_dma(c, soff, lds_off, tag):
    a = c.a
    a(f"s_lshl_b32 s{S_TMP}, s{S_WAVE}, 13\ns_add_u32 m0, s{S_TMP}, {LDS_SCR+lds_off}")
    a(f"s_lshl_b32 s{S_TMP}, s{S_WAVE}, 11\ns_add_u32 s{S_TMP}, s{S_TMP}, s{soff}")
    for k in range(2):
        a(f"buffer_load_dwordx4 v{V_L16}, {sr(SRDW)}, s{S_TMP} offen offset:{1024*k} sc1 lds")
    c.vm.issue(tag, 2); c.st.m0_dirty = True
def q_read(c, lds_off, dst):
    a = c.a
    a(f"v_add_u32 v{V_CA}, {LDS_SCR}, v{V_L16}")
    for s in range(8): a(f"ds_read_b128 {dst(s)}, v{V_CA} offset:{(s>>1)*8192+lds_off+(s&1)*1024}")

S_J, S_CC, S_U = 50, 51, 52
S_A = 56
S_B = 60
S_QB, S_OB, S_FQB, S_FOB = 64, 65, 66, 67
S_X0 = 92

def code_touch(a, first, last, est, share, name):
    per = -(-est // (share * 8192)) * 8192
    a(f"s_cmp_lg_u32 s{S_WAVE}, 3\ns_cbranch_scc1 L_{name}_x")
    a(f"s_getpc_b64 s[48:49]")
    a.label(f"L_{name}")
    a(f"s_add_u32 s48, s48, {first}-L_{name}\ns_addc_u32 s49, s49, 0")
    a(f"s_and_b32 s7, s{S_CC}, {share-1}\ns_mul_i32 s7, s7, {per}")
    a(f"v_lshl_add_u32 v{V_F+30}, v{V_LANE}, 7, s7")
    for k in range(per // 8192):
        a(f"v_min_u32 v{V_F+29}, {last}-{first}-4, v{V_F+30}")
        a(f"global_load_dword v{V_T0}, v{V_F+29}, s[48:49]")
        a(f"v_add_u32 v{V_F+30}, 8192, v{V_F+30}")
    a.label(f"L_{name}_x")

class PerTile:
    def __init__(self, v): self.v = [int(x) for x in str(v).split(",")]
    def __getitem__(self, t): return self.v[min(t, len(self.v) - 1)]

def build(stamps=0, apoll=1, fack=0, pollfirst=0, tsplit='01,2,3', onepoll=1, prew=0, npoll=1, pgap=0, wo1mid=1, outfl='', n_w2=6, n_wpre=0, lag=1, gap=28, q0=3, hack='', rotkv=0, tlb=0, fs=8, fw=2, sleep=0, pf=5, n_early=0, kvpf=0, qpf='', qthr=0, rotq=2, rota=2, kag=7, nog1=0, perm=0, npark=4, g1wo=0, va1=5, n_qpre=0, n_spump=2, n_look=8, n_x=16, n_wq=16, n_kva=32, n_vva=32, n_g2k=16, n_g2v=16, n_g1k='5,5,5,16', n_g1v=16, n_wo=16, fl_x="", fl_wq="", fl_kva="", fl_wo="", fl_kv="nt", rot=1):
    global FW, APOLL; FW = int(fw); APOLL = int(apoll)
    global FS, SLEEP, GAP, NPOLL, PGAP; NPOLL = int(npoll); PGAP = int(pgap); GAP = int(gap); FS = int(fs); SLEEP = int(sleep)
    stamps = int(stamps); prew = int(prew); n_w2 = int(n_w2); q0 = int(q0); pf = int(pf); n_early = int(n_early); kvpf = int(kvpf); n_qpre = int(n_qpre); npark = int(npark); g1wo = int(g1wo); va1 = int(va1); n_spump = int(n_spump); n_look = int(n_look);  n_g2k, n_g2v, n_g1k, n_g1v, n_wo, n_x, n_wq, n_kva, n_vva = map(PerTile, (n_g2k, n_g2v, n_g1k, n_g1v, n_wo, n_x, n_wq, n_kva, n_vva)); rot = int(rot)
    a = Asm()
    prologue(a, 256, "L_end")
    if stamps: a("s_memrealtime s[70:71]")
    if int(perm): a(f"s_xor_b32 s2, s2, {int(perm)}")
    a(f"""s_and_b32 s{S_J}, s2, 7
    s_lshr_b32 s{S_CC}, s2, 3
    s_and_b32 s{S_U}, s{S_CC}, 15
    s_and_b32 s53, s{S_CC}, 3
    s_lshl_b32 s7, s{S_J}, 2
    s_add_u32 s53, s53, s7          ; head of the MHA task
    s_lshr_b32 s54, s{S_CC}, 2      ; batch of the MHA task
    s_lshl_b32 s55, s54, 5
    s_add_u32 s55, s55, s53         ; b*32+h
    s_cmp_lt_u32 s{S_CC}, 16
    s_cbranch_scc1 L_g1""")
    def common():
        if stamps:
            for n in range(1, 20): a(f"s_mov_b32 s{70+n}, s70")
        srd(a, SRDW, P_WS, WS_BYTES)
        a(f"""s_lshl_b32 s{S_QB}, s55, 13
        s_add_u32 s{S_QB}, s{S_QB}, {WS_Q + (2<<20)}
        s_add_u32 s{S_OB}, s{S_QB}, {WS_O - WS_Q}
        s_lshl_b32 s{S_FQB}, s55, 6
        s_add_u32 s{S_FQB}, s{S_FQB}, {WS_FQ + 256*64}
        s_lshl_b32 s{S_FOB}, s54, 3
        s_add_u32 s{S_FOB}, s{S_FOB}, s{S_J}
        s_lshl_b32 s{S_FOB}, s{S_FOB}, {FS}
        s_and_b32 s7, s{S_CC}, 3
        s_lshl_b32 s7, s7, {FW}
        s_add_u32 s{S_FOB}, s{S_FOB}, s7
        s_add_u32 s{S_FOB}, s{S_FOB}, {WS_FO + (64 << FS)}
        s_mov_b32 s{S_C}, {f32(C_SCALE)}""")

    def mk():
        c = Ctx(); c.a = a; c.vm = VM(a); c.st = Stream(a, c.vm); c.stamps = stamps
        return c
    def kv_offsets():
        a(f"s_lshl_b32 s{S_A}, s55, 18\ns_lshl_b32 s7, s{S_WAVE}, 13\ns_add_u32 s{S_A}, s{S_A}, s7")
    def clear_flags(c, words, name):
        a(f"s_cmp_lg_u32 s{S_WAVE}, 0\ns_cbranch_scc1 L_{name}")
        a(f"v_mov_b32 v{V_T0}, 0")
        for so, nl, sh in words:
            a(f"v_lshlrev_b32 v{V_F+31}, {sh}, v{V_LANE}\ns_mov_b64 exec, {(1<<nl)-1}")
            a(f"buffer_store_dword v{V_T0}, v{V_F+31}, {sr(SRDW)}, s{so} offen sc1\ns_mov_b64 exec, -1")
        a.label(f"L_{name}")
    def count_in(c, name):
        a(f"s_cmp_lg_u32 s{S_WAVE}, 0\ns_cbranch_scc1 L_{name}")
        a(f"s_lshl_b32 s7, s{S_J}, 5\nv_mov_b32 v{V_T0}, 1\nv_mov_b32 v{V_F+31}, s7\ns_mov_b64 exec, 1")
        a(f"global_atomic_add v{V_F+31}, v{V_T0}, s[{P_DBG}:{P_DBG+1}] sc1")
        a("s_mov_b64 exec, -1")
        a.label(f"L_{name}")
    def wait_cleared(c, name):
        a(f"s_mov_b32 s68, {SPIN}\nv_and_b32 v{V_F+31}, 7, v{V_LANE}\nv_lshlrev_b32 v{V_F+31}, 5, v{V_F+31}")
        a.label(f"L_{name}")
        a(f"global_load_dword v{V_T0}, v{V_F+31}, s[{P_DBG}:{P_DBG+1}] sc1")
        a(f"s_sub_u32 s68, s68, 1\ns_cbranch_scc1 L_{name}_x\ns_waitcnt vmcnt(0)")
        a(f"v_cmp_gt_u32 vcc, 32, v{V_T0}\ns_cbranch_vccnz L_{name}")
        a.label(f"L_{name}_x")
        c.vm.q = []; c.st._sync()
    def fp_word():
        a(f"s_xor_b32 s{S_X0}, s{S_CC}, 16          ; c_to")
        a(f"s_lshl_b32 s{S_X0+1}, s{S_X0}, 2\ns_add_u32 s{S_X0+1}, s{S_X0+1}, s{S_WAVE}\ns_lshl_b32 s{S_X0+1}, s{S_X0+1}, {FS}")
        a(f"s_lshl_b32 s7, s{S_J}, {FW}\ns_add_u32 s{S_X0+1}, s{S_X0+1}, s7\ns_add_u32 s{S_X0+1}, s{S_X0+1}, {WS_FP}")
    def add_wo(c, X):
        def pre():
            set_vd(a, 2048)
            srd(a, SRD1, P_BWO if X else P_AWO, 0x800000)
            a(f"s_add_u32 s7, s{S_WAVE}, s{S_U}\ns_and_b32 s7, s7, 3")
            a(f"s_lshl_b32 s{S_B+3}, s{S_J}, 2\ns_add_u32 s{S_B+3}, s{S_B+3}, s7\ns_lshl_b32 s{S_B+3}, s{S_B+3}, 18")
            a(f"s_and_b32 s7, s{S_U}, 7\ns_lshl_b32 s7, s7, 8\ns_add_u32 s{S_B+3}, s{S_B+3}, s7")
            a(f"s_lshr_b32 s{S_B+2}, s{S_U}, 3\ns_lshl_b32 s{S_B+2}, s{S_B+2}, 17")
            a(f"s_add_u32 s{S_B}, s{S_B+3}, s{S_B+2}")
        def nx(t):
            return lambda: a(f"s_xor_b32 s7, s{S_B+2}, {(t+1) << 16}\ns_add_u32 s{S_B}, s{S_B+3}, s7") if t < 3 else None
        for t in range(4):
            c.st.add(f"wo{t}", t, SRD1, S_B, 65536, V_VD, 2048, fl_wo, n_wo[t], pre=pre if t == 0 else None, nxt=nx(t))
    def add_kv(c, nk, nv, first):
        rk = int(rotkv)
        def offs(S):
            a(f"s_lshl_b32 s{S+3}, s55, 18\ns_lshl_b32 s7, s{S_WAVE}, 13\ns_add_u32 s{S+3}, s{S+3}, s7")
            if rk:
                a(f"s_lshr_b32 s7, s{S_J}, {rk-1}\ns_add_u32 s7, s7, s{S_CC}\ns_and_b32 s7, s7, 7\ns_lshl_b32 s{S+2}, s7, 15\ns_add_u32 s{S}, s{S+3}, s{S+2}")
            else: a(f"s_mov_b32 s{S}, s{S+3}")
        def prek():
            set_kd(a, 256); offs(S_A)
            if first: a("s_waitcnt lgkmcnt(0)")
            srd(a, SRD0, P_BK, 0x4000000)
        def prev():
            set_vd(a, 256); srd(a, SRD1, P_BV, 0x4000000); offs(S_B)
        wr = 262144 if rk else None
        for t in range(8): c.st.add(f"k{t}", t & 3, SRD0, S_A, 32768, V_KD, 256, fl_kv, nk[t], pre=prek if t == 0 else None, wrap=wr)
        for t in range(8): c.st.add(f"v{t}", t & 3, SRD1, S_B, 32768, V_VD, 256, fl_kv, nv[t], single=True, pre=prev if t == 0 else None, wrap=wr)
    def touch(c, ptr, size, base_asm, step, rs, fl):
        a(base_asm)
        a(f"s_add_u32 s49, s48, {step}")
        a(f"v_lshrrev_b32 v{V_CA}, 1, v{V_LANE}\nv_lshlrev_b32 v{V_CA}, {rs.bit_length()-1}, v{V_CA}")
        a(f"v_and_b32 v{V_T0}, 1, v{V_LANE}\nv_lshl_add_u32 v{V_CA}, v{V_T0}, 7, v{V_CA}")
        srd(a, SRDT, ptr, size)
        for so in (48, 49):
            a(f"buffer_load_dword v{V_T0}, v{V_CA}, {sr(SRDT)}, s{so} offen {fl}")
            c.vm.issue("pf")
    KVA_BASE = (f"s_lshl_b32 s48, s{S_J}, 2\ns_lshr_b32 s7, s{S_U}, 2\ns_add_u32 s48, s48, s7\ns_lshl_b32 s48, s48, 18\n"
                f"s_lshl_b32 s7, s{S_WAVE}, 13\ns_add_u32 s48, s48, s7\n"
                f"s_and_b32 s7, s{S_U}, 3\ns_lshl_b32 s7, s7, 16\ns_add_u32 s48, s48, s7")
    WO_BASE = (f"s_add_u32 s7, s{S_WAVE}, s{S_U}\ns_and_b32 s7, s7, 3\ns_lshl_b32 s48, s{S_J}, 2\ns_add_u32 s48, s48, s7\ns_lshl_b32 s48, s48, 18\n"
               f"s_and_b32 s7, s{S_U}, 7\ns_lshl_b32 s7, s7, 8\ns_add_u32 s48, s48, s7\n"
               f"s_lshr_b32 s7, s{S_U}, 3\ns_lshl_b32 s7, s7, 17\ns_add_u32 s48, s48, s7")
    def get_q(c):
        if "q" in c.vm.q: c.vm.wait("q")
        c.st._sync()
        a("s_barrier")
        q_read(c, 5120, lambda s: vr(V_Q + 4 * s))
        a("s_waitcnt lgkmcnt(0)")
    def mha1(c):
        st = c.st
        ls = LagScores(c)
        plan = {q0: [0, 1]}
        nxt = 2
        for t in range(q0 + 1, 8):
            plan[t] = [u for u in (nxt, nxt + 1) if u <= t] if t < 7 else list(range(nxt, 8))
            nxt += len(plan[t])
        def hook(t):
            if t == q0 - 3: ck_issue(c, "dbg", None)
            if t == q0 - 2: ck_verify(c, "g1clr"); ck_issue(c, "ws", (S_FQB, 1, 2))
            if t == q0 - 1: ck_verify(c, "g1q"); q_dma(c, S_QB, 5120, "q")
            if t == q0:
                get_q(c); stamp(c, 4)
            if t == 5 and pf & 1:
                code_touch(a, "L_g1tail", "L_g2", 16384, 2, "g1pf2")
            for u in plan.get(t, []): ls.tile(u)
        park2(c, [f"k{t}" for t in range(8)], hook)
        stamp(c, 3)
        ls.finish()
        stamp(c, 5)
        for g in range(g1wo, 3): st.gate(f"wo{g}")
        pv2(c, [f"v{t}" for t in range(8)], last_pump=True, last=lambda: (st.run_pre("wo0"), st.open(f"wo{g1wo}")))
        stamp(c, 6)
        a.label("L_g1tail")
        o_epi(c, [dict(acc=lambda B: ar(A_O + 16 * B, 16), L=A_L, M=V_M, slot=3, b3=("scr", 0), st=("scr", 4096), dst=S_OB)],
              idle=lambda: tail_setup(c, 1),
              mid=lambda: (early_poll(c), st.open(f"wo{g1wo+1}"), st.pump(8 if int(wo1mid) else 0, False)),
              freed=lambda: ([st.open(f"wo{g}") for g in range(3)], freed(c, ["v7"])))
    def mha2(c, pvhook):
        st = c.st
        end = 7 + npark
        def hook(p):
            if p == 1: count_in(c, "g2count")
            if prew:
                if p == 0: prew_setup(c); prew_o(c, S_OB)
                if p == 1:
                    a(f"s_add_u32 s49, s{S_X0+6}, {WS_O}"); prew_o(c, 49)
                    a(f"s_add_u32 s49, s49, 8192"); prew_o(c, 49)
                if 2 <= p < 6: prew_part(c, 2 * p - 4); prew_part(c, 2 * p - 3)
            if p == end - 3: ck_issue(c, "dbg", None)
            if p == end - 2: ck_verify(c, "g2clr")
            if p == end - 1 and not n_qpre: ck_issue(c, "ws", (S_FQB, 1, 2))
        park2(c, [f"k{t}" for t in range(8)], hook)
        stamp(c, 1)
        lq_park_v(c, [f"v{t}" for t in range(8)], npark, lambda t: hook(8 + t))
        stamp(c, 15, 8)
        if n_qpre:
            st.pump(n_qpre - 4); ck_issue(c, "ws", (S_FQB, 1, 2)); st.pump(4)
        ck_verify(c, "g2q")
        q_dma(c, S_QB, 5120, "q")
        st.pump(4)
        get_q(c)
        stamp(c, 2)
        lq_scores(c, n_spump)
        stamp(c, 3)
        for g in ("ka0", "ka1", "ka2"): st.gate(g)
        lq_pv(c, [f"v{t}" for t in range(8)], npark, pvhook, last=lambda t: (st.run_pre("ka0"), st.open(f"ka{t-int(kag)}")), at=int(kag))
        stamp(c, 4)
        o_epi(c, [dict(acc=lq_o, L=LQ_L, M=V_M, slot=3, b3=("scr", 0), st=("scr", 4096), dst=S_OB)],
              mid=lambda: (st.open("ka1"), st.open(f"ka{8-int(kag)}"), st.pump(8, False)))
        st.open("ka2")
    V_MK = 124
    def prew_setup(c):
        t = V_MK - 1
        for k in range(4): a(f"v_mov_b32 v{V_MK+k}, -1")
        a(f"""v_and_b32 v{t}, 15, v{V_LANE}
        v_lshlrev_b32 v{t}, 4, v{t}
        v_lshrrev_b32 v{t-1}, 5, v{V_LANE}
        v_lshl_add_u32 v{t}, v{t-1}, 8, v{t}
        v_bfe_u32 v{t-1}, v{V_LANE}, 4, 1
        v_lshl_add_u32 v{t}, v{t-1}, 15, v{t}
        s_lshl_b32 s48, s{S_X0}, 3
        s_lshl_b32 s7, s{S_WAVE}, 1
        s_add_u32 s48, s48, s7
        s_lshl_b32 s48, s48, 3
        s_add_u32 s48, s48, s{S_J}
        s_lshl_b32 s48, s48, 12
        s_add_u32 s48, s48, {WS_P}""")
    def prew_part(c, p):
        a(f"buffer_store_dwordx4 {vr(V_MK)}, v{V_MK-1}, {sr(SRDW)}, s48 offen offset:{512*p} sc1"); c.vm.issue("mk")
    def prew_o(c, so):
        a(f"s_lshl_b32 s7, s{S_WAVE}, 11\ns_add_u32 s7, s7, s{so}")
        for k in range(2): a(f"buffer_store_dwordx4 {vr(V_MK)}, v{V_L16}, {sr(SRDW)}, s7 offen offset:{1024*k} sc1")
        c.vm.issue("mk", 2)
    V_PA = 11
    def tail_setup(c, X):
        a(f"""s_lshr_b32 s{S_X0+2}, s{S_U}, 3
        s_lshl_b32 s{S_X0+2}, s{S_X0+2}, 2
        s_add_u32 s{S_X0+2}, s{S_X0+2}, s{S_WAVE}
        s_add_u32 s{S_X0+2}, s{S_X0+2}, {8*X}        ; X*8 + batch
        s_lshl_b32 s{S_X0+3}, s{S_X0+2}, 3
        s_add_u32 s{S_X0+3}, s{S_X0+3}, s{S_J}
        s_lshl_b32 s{S_X0+4}, s{S_X0+3}, 15
        s_add_u32 s{S_X0+4}, s{S_X0+4}, {WS_O}       ; O offset
        s_lshl_b32 s{S_X0+3}, s{S_X0+3}, {FS}
        s_add_u32 s{S_X0+3}, s{S_X0+3}, {WS_FO}""")
        for T in range(4): a(f"v_add_u32 v{V_TW+4+T}, 0x10000, v{V_TW+T}")
        t = 10
        a(f"""v_and_b32 v{t}, 15, v{V_LANE}
        v_lshlrev_b32 v{t}, 4, v{t}
        v_lshrrev_b32 v{t+1}, 5, v{V_LANE}
        v_lshl_add_u32 v{t}, v{t+1}, 8, v{t}
        v_bfe_u32 v{t+1}, v{V_LANE}, 4, 1
        v_lshl_add_u32 v{t}, v{t+1}, 15, v{t}
        v_and_b32 v{V_PA}, 3, v{V_LANE}
        v_lshlrev_b32 v{V_PA}, {FW}, v{V_PA}
        s_lshl_b32 s58, s{S_X0}, 3
        s_lshl_b32 s7, s{S_WAVE}, 1
        s_add_u32 s58, s58, s7
        s_lshl_b32 s58, s58, 3
        s_add_u32 s58, s58, s{S_J}
        s_lshl_b32 s58, s58, 12
        s_add_u32 s58, s58, {WS_P}""")
        a(f"s_lshr_b32 s59, s{S_U}, 3\ns_lshl_b32 s59, s59, 12")
        a(f"""s_lshl_b32 s64, s{S_X0}, 2
        s_lshr_b32 s7, s{S_J}, 1
        s_add_u32 s64, s64, s7
        s_lshl_b32 s64, s64, {FS}
        s_add_u32 s64, s64, {WS_FP}               ; flags of the eight producers
        v_and_b32 v15, 7, v{V_LANE}
        v_lshlrev_b32 v15, {FW}, v15
        s_lshl_b32 s53, s{S_X0}, 3
        s_add_u32 s53, s53, s{S_J}
        s_lshl_b32 s53, s53, 15
        s_add_u32 s53, s53, {WS_P}
        s_add_u32 s54, s53, 16384
        v_lshlrev_b32 v13, 4, v0
        s_bfe_u32 s66, s{S_X0}, 0x10003
        s_lshl_b32 s66, s66, 3
        s_add_u32 s66, s66, s{S_J}
        s_lshl_b32 s66, s66, 16
        s_lshr_b32 s7, s{S_X0}, 4
        s_lshl_b32 s7, s7, 11
        s_add_u32 s66, s66, s7
        s_and_b32 s7, s{S_X0}, 7
        s_lshl_b32 s7, s7, 8
        s_add_u32 s66, s66, s7
        v_and_b32 v14, 15, v0
        v_lshlrev_b32 v14, 12, v14
        v_lshrrev_b32 v16, 4, v0
        v_lshl_add_u32 v14, v16, 4, v14""")
        srd(a, SRD0, P_OUT, 0x100000)
    def reduce(c, tag):
        if int(pollfirst):
            a(look(12, 15, 64, 8))
            flag_store(c, S_X0 + 1)
            a(f"s_lshr_b32 s7, s{S_J}, 1\ns_cmp_eq_u32 s7, s{S_WAVE}\ns_cselect_b32 s7, s{S_J}, 8\ns_lshl_b32 s7, s7, {FW}")
            a(f"v_cmp_ne_u32 s[48:49], s7, v15\ns_waitcnt vmcnt(1)\nv_cmp_ne_u32 vcc, 1, v12\ns_and_b64 vcc, vcc, s[48:49]\ns_cbranch_vccz L_{tag}red_x")
        else:
            flag_store(c, S_X0 + 1)
            if int(fack): a("s_waitcnt vmcnt(0)"); stamp(c, 9)
            if int(onepoll): a(f"s_cmp_lg_u32 s{S_WAVE}, 0\ns_cbranch_scc1 L_{tag}red_x")
        poll(c, tag + "red", 64, 8, 1, 15)
        if stamps == 1: a(f"s_sub_u32 s78, {SPIN}, s68\ns_mul_i32 s78, s78, 100\ns_add_u32 s78, s78, s70")
        if int(onepoll): a("s_barrier")
        stamp(c, 16); stamp(c, 17, 10)
        for j in range(8):
            a(f"buffer_load_dwordx4 {vr(V_F+4*j)}, v13, {sr(SRDW)}, s{53+(j>>2)} offen sc1")
            if j & 3 < 3: a(f"s_add_u32 s{53+(j>>2)}, s{53+(j>>2)}, 4096")
        acc = V_S
        for j in range(8):
            a(f"s_waitcnt vmcnt({7-j})")
            d = acc if j == 0 else acc + 8
            for k in range(4):
                a(f"v_lshlrev_b32 v{d+2*k}, 16, v{V_F+4*j+k}\nv_and_b32 v{d+2*k+1}, 0xffff0000, v{V_F+4*j+k}")
            if j:
                for k in range(4): a(f"v_pk_add_f32 {vr(acc+2*k,2)}, {vr(acc+2*k,2)}, {vr(d+2*k,2)}")
        for k in range(4): a(f"v_cvt_pk_bf16_f32 v{acc+16+k}, v{acc+2*k}, v{acc+2*k+1}")
        a(f"buffer_store_dwordx4 {vr(acc+16)}, v14, {sr(SRD0)}, s66 offen {outfl}")
        a("s_branch L_red" if stamps else "s_endpgm")
    def early_poll(c):
        a(look(12, V_PA, S_X0 + 3, 4)); c.vm.issue("ep")
    def freed(c, held):
        for g in held: c.st.release(g)
        c.st.open("wo1", 7)
        while c.st.issued.get("wo1", 0) < 8: c.st.pump(1, False)
        c.st.pump(int(n_wpre), False)

    def oproj(c, X, tag, words, sbase):
        st = c.st
        stamp(c, 10); stamp(c, 11, 10)
        items = sorted([(w, i, s_) for w in range(4) for i in range(4) for s_ in range(2)], key=lambda it: it[1] >> 1)
        todo = list(items)
        def fetch():
            if not todo: return
            w, i, s_ = todo.pop(0)
            if i in (0, 2) and s_ == 0:
                a(f"s_add_u32 s7, s{S_U}, {w}\ns_and_b32 s7, s7, 3\ns_lshl_b32 s7, s7, 13\ns_add_u32 s7, s7, s{S_X0+4}")
                a(f"s_xor_b32 s56, s59, {2048*i}\ns_add_u32 s56, s56, s7")
            a(f"buffer_load_dwordx4 {ar(32*w+8*i+4*s_)}, v{V_L16}, {sr(SRDW)}, s56 offen offset:{1024*(2*(i&1)+s_)} sc1")
            c.vm.issue(f"of{w}_{i}_{s_}")
        def publish():
            a("s_barrier")
            a(f"s_cmp_lg_u32 s{S_WAVE}, 0\ns_cbranch_scc1 L_{tag}pub{len(a.lines)}")
            lab = a.lines[-1].split()[-1]
            q = list(c.vm.q)
            for so, nl in words: flag_store(c, so, nl)
            a.label(lab)
            c.vm.q = q
        ops = [it + (T,) for grp in tsplit.split(",") for it in items for T in map(int, grp)]
        cut = next(n for n, op in enumerate(ops) if op[1] >= 2) - 4
        done = {max(n for n, op in enumerate(ops) if op[3] == T): T for T in range(4)}
        out = []
        def emit_tile(T):
            return ([f"v_cvt_pk_bf16_f32 v{V_S+64+8*T+k}, v{V_S+16*T+2*k}, v{V_S+16*T+2*k+1}" for k in range(8)]
                    + [f"buffer_store_dwordx4 {vr(V_S+64+4*p)}, v10, {sr(SRDW)}, s58 offen offset:{512*p} sc1" for p in (2 * T, 2 * T + 1)])
        def fill(n):
            if n - 4 in done: out.extend(emit_tile(done.pop(n - 4)))
            for _ in range(2):
                if out: a(out.pop(0))
        seen = set()
        def bf(w, i, s_):
            if (w, i, s_) not in seen:
                seen.add((w, i, s_))
                if f"of{w}_{i}_{s_}" in c.vm.q: c.vm.wait(f"of{w}_{i}_{s_}")
                fetch(); st.pump(2 if len(seen) <= n_w2 else 1, False)
            return ar(32 * w + 8 * i + 4 * s_)
        if "ep" in c.vm.q: c.vm.wait("ep")
        a(f"v_cmp_ne_u32 vcc, 1, v12\ns_cbranch_vccnz L_{tag}late")
        import copy
        save = (list(c.vm.q), list(todo), list(st.q), dict(st.busy), set(st.landed), dict(st.issued), st.m0_dirty)
        for _ in range(n_look): fetch()
        c.vm.wait("ost"); st._sync(); assert "wo1" in st.landed
        stamp(c, 11); stamp(c, 12, 10)
        publish()
        stamp(c, 12)
        a.label(f"L_{tag}ready")
        qr = list(c.vm.q)
        stamp(c, sbase); stamp(c, 14, 10); cyc(c, 17, True)
        w_ops(a, ops, bf, hi=cut)
        st.pump(throttle=False); st.need("wo3", fill=False)
        qa, todoa = list(c.vm.q), list(todo)
        a(f"s_branch L_{tag}go")
        a.label(f"L_{tag}late")
        c.vm.q, todo[:], st.q, st.busy, st.landed, st.issued, st.m0_dirty = save
        seen.clear()
        early_poll(c)
        c.vm.wait("ep")
        stamp(c, 11); stamp(c, 12, 10)
        publish()
        stamp(c, 12)
        a(f"v_cmp_ne_u32 vcc, 1, v12\ns_cbranch_vccnz L_{tag}later")
        t0 = list(todo)
        for _ in range(n_look): fetch()
        assert c.vm.q == qr
        a(f"s_branch L_{tag}ready")
        a.label(f"L_{tag}later")
        c.vm.q = []; todo[:] = t0
        st.pump(throttle=False)
        poll(c, tag + "o", S_X0 + 3, 4, 1, V_PA)
        stamp(c, sbase); stamp(c, 14, 10); cyc(c, 17, True)
        for _ in range(n_look): fetch()
        w_ops(a, ops, bf, hi=cut)
        assert todo == todoa and c.vm.q[len(c.vm.q)-len(qa):] == qa, (c.vm.q, qa)
        a.label(f"L_{tag}go")
        a("s_barrier")
        w_ops(a, ops, bf, lo=cut, fill=fill)
        cyc(c, 17, False); stamp(c, 18); stamp(c, 15, 10)
        for n in sorted(done): out.extend(emit_tile(done[n]))
        for l in out: a(l)
        stamp(c, sbase + 1)
        c.vm.wait_all()
        stamp(c, sbase + 2); stamp(c, 16, 10)
        reduce(c, tag)

    c2 = mk()
    if qpf:
        a(f"""s_and_b32 s60, s{S_U}, 7
        s_lshl_b32 s60, s60, 2
        s_add_u32 s60, s60, s{S_WAVE}          ; 0..31
        s_lshr_b32 s61, s{S_U}, 3              ; h
        v_lshrrev_b32 v40, 3, v{V_LANE}
        v_and_b32 v41, 7, v{V_LANE}
        v_lshlrev_b32 v41, 7, v41
        v_lshl_add_u32 v40, v40, 13, v41
        v_lshrrev_b32 v41, 1, v{V_LANE}
        v_and_b32 v42, 1, v{V_LANE}
        v_lshlrev_b32 v42, 7, v42
        v_lshl_add_u32 v41, v41, 11, v42       ; 32 rows x 256 B
        s_and_b32 s62, s60, 15
        s_lshl_b32 s62, s62, 16
        s_lshl_b32 s7, s61, 20
        s_add_u32 s62, s62, s7
        s_lshl_b32 s7, s{S_J}, 10
        s_add_u32 s62, s62, s7                 ; Wq offset of k-tile h
        s_and_b32 s63, s60, 7
        s_lshl_b32 s63, s63, 16
        s_lshr_b32 s7, s60, 4
        s_lshl_b32 s7, s7, 8
        s_add_u32 s63, s63, s7
        s_lshl_b32 s7, s61, 9
        s_add_u32 s63, s63, s7                 ; x offset of k-tile 2h + (0|1)
        s_waitcnt lgkmcnt(0)
        s_bitcmp1_b32 s60, 4
        s_cselect_b32 s12, s{P_BWQ}, s{P_AWQ}
        s_cselect_b32 s13, s{P_BWQ+1}, s{P_AWQ+1}
        s_mov_b32 s14, 0x800000
        s_mov_b32 s15, 0x20000
        s_bitcmp1_b32 s60, 3
        s_cselect_b32 s{SRDT}, s{P_BX}, s{P_AX}
        s_cselect_b32 s{SRDT+1}, s{P_BX+1}, s{P_AX+1}
        s_mov_b32 s{SRDT+2}, 0x80000
        s_mov_b32 s{SRDT+3}, 0x20000""")
        for n, kind in enumerate("xWWxWW"):
            if qpf[n] == "1":
                if kind == "x": a(f"buffer_load_dword v43, v41, {sr(SRDT)}, s63 offen")
                else: a("buffer_load_dword v43, v40, s[12:15], s62 offen")
                c2.vm.issue("pf")
                if int(qthr): a(f"s_waitcnt vmcnt({int(qthr)-1})")
            a("s_add_u32 s63, s63, 1024" if kind == "x" else f"s_add_u32 s62, s62, {2<<20}")
    add_kv(c2, n_g2k, n_g2v, True)
    if stamps == 9: c2.st.run_pre("k0"); a("s_memrealtime s[62:63]")
    c2.st.pump(n_g2k[0])
    if stamps == 9:
        a(f"s_memrealtime s[64:65]\ns_waitcnt vmcnt({n_g2k[0]-1})\ns_memrealtime s[66:67]\ns_waitcnt vmcnt(0)\ns_memrealtime s[68:69]\ns_waitcnt lgkmcnt(0)")
        a("s_mov_b32 s92, s62\ns_mov_b32 s93, s64\ns_mov_b32 s94, s66\ns_mov_b32 s95, s68")
    a("s_branch L_g2")
    a.label("L_g1")
    c = mk(); st = c.st
    if int(nog1):
        global SPIN; SPIN = 4
        a("s_waitcnt lgkmcnt(0)"); common(); fp_word(); a("s_branch L_red")
    set_kd(a, 2048)
    a(f"""s_lshr_b32 s{S_X0+5}, s{S_U}, 3           ; X
    s_and_b32 s{S_X0+6}, s{S_U}, 3            ; hh
    s_bfe_u32 s{S_X0+7}, s{S_U}, 0x10002      ; r
    s_lshl_b32 s{S_X0+8}, s{S_X0+7}, 2
    s_add_u32 s{S_X0+8}, s{S_X0+8}, s{S_WAVE}   ; batch
    s_lshl_b32 s{S_A+3}, s{S_X0+8}, 16
    s_lshl_b32 s7, s{S_J}, 2
    s_add_u32 s{S_X0+9}, s{S_X0+6}, s7          ; head
    s_lshl_b32 s{S_X0+2}, s{S_X0+6}, 1
    s_lshl_b32 s7, s{S_X0+7}, 2
    s_add_u32 s{S_X0+2}, s{S_X0+2}, s7
    s_and_b32 s{S_X0+2}, s{S_X0+2}, {7 if int(rotq) else 0}   ; rotation of the k tiles
    s_lshl_b32 s{S_A+2}, s{S_X0+2}, 8
    s_add_u32 s{S_A}, s{S_A+3}, s{S_A+2}""")
    def sigma(i, S, sh):
        a(f"s_add_u32 s7, s{S_X0+6}, {i>>1}\ns_and_b32 s7, s7, 3\ns_lshl_b32 s7, s7, 1\ns_add_u32 s7, s7, s{S_X0+7}")
        if i & 1: a("s_xor_b32 s7, s7, 1")
        a(f"s_lshl_b32 s7, s7, {sh}\ns_add_u32 s{S}, s{S+3}, s7")
    if int(rotq) == 2: sigma(0, S_A, 8)
    a("s_waitcnt lgkmcnt(0)")
    srd_sel(a, SRD0, S_X0 + 5, P_AX, P_BX, 0x80000)
    a(f"s_lshl_b32 s{S_SCR}, s{S_WAVE}, 13\ns_add_u32 s{S_SCR}, s{S_SCR}, {LDS_SCR}")
    def prewq():
        set_vd(a, 8192)
        srd_sel(a, SRD1, S_X0 + 5, P_AWQ, P_BWQ, 0x800000)
        a(f"s_lshl_b32 s{S_B+3}, s{S_X0+9}, 8\ns_lshl_b32 s7, s{S_WAVE}, 18\ns_add_u32 s{S_B+3}, s{S_B+3}, s7")
        a(f"s_lshl_b32 s{S_B+2}, s{S_X0+2}, 20\ns_add_u32 s{S_B}, s{S_B+3}, s{S_B+2}")
        if int(rotq) == 2: sigma(0, S_B, 20)
    for g in ["x0", "w0", "w1"] + [g for t in range(1, 7) for g in (f"x{t}", f"w{t+1}")] + ["x7"]:
        t = int(g[1])
        nx = (lambda t, S, sh: (lambda: sigma(t + 1, S, sh) if t < 7 else None)) if int(rotq) == 2 else (lambda *_: None)
        if g[0] == "x": st.add(g, 4, SRD0, S_A, 256, V_KD, 2048, fl_x, n_x[t], wrap=2048, nxt=nx(t, S_A, 8))
        else: st.add(g, t & 3, SRD1, S_B, 1 << 20, V_VD, 8192, fl_wq, n_wq[t], pre=prewq if t == 0 else None, wrap=8 << 20, nxt=nx(t, S_B, 20))
    st.pump(8)
    common()
    a(f"""s_lshl_b32 s{S_X0+3}, s{S_X0+5}, 3
    s_add_u32 s{S_X0+3}, s{S_X0+3}, s{S_X0+8}
    s_lshl_b32 s{S_X0+3}, s{S_X0+3}, 5
    s_add_u32 s{S_X0+3}, s{S_X0+3}, s{S_X0+9}
    s_lshl_b32 s{S_X0+4}, s{S_X0+3}, 6
    s_add_u32 s{S_X0+4}, s{S_X0+4}, {WS_FQ}
    s_lshl_b32 s{S_X0+3}, s{S_X0+3}, 13""")
    fp_word()
    clear_flags(c, [(S_X0 + 4, 4, 11), (S_FOB, 1, 2), (S_X0 + 1, 4, FS)], "g1clear")
    add_kv(c, n_g1k, n_g1v, False)
    add_wo(c, 1)
    set_kr(a, S_SCR); set_tr(a)
    if pf & 2: code_touch(a, "L_g1pf_x", "L_g2", 32768, 4, "g1pf")
    early = [n_early]
    def gated_pump(throttle):
        if st.can() and st.q[0][0][0] == "k":
            if early[0] <= 0: return
            early[0] -= 1
        st.pump(1, throttle)
    def wpre(t):
        def f():
            st.need(f"x{t}", fill=(t < 6))
            for s in range(8): a(f"ds_read_b128 {ar(32*t+4*s)}, v{V_KR+s}")
            if t == 0: stamp(c, 1)
            st.need(f"w{t}", fill=(t < 6))
            if t == 0: count_in(c, "g1count")
            stamp(c, 3 + 2 * t, 3)
            a("s_barrier")
            stamp(c, 4 + 2 * t, 3)
            if t == 3: stamp(c, 3, 7); cyc(c, 5, True, 7)
            if t == 6: stamp(c, 4, 7); cyc(c, 5, False, 7)
            if prew:
                if t == 0: prew_setup(c); prew_o(c, S_OB)
                if t < 4: prew_part(c, 2 * t); prew_part(c, 2 * t + 1)
            if t: st.release(f"w{t-1}")
            if t == 7:
                assert st.issued["x7"] == 8
                st.run_pre("k0")
        return f
    w_steps(a, [(t & 3, (lambda t: lambda w, s: ar(32 * t + 4 * (2 * w + s)))(t), wpre(t)) for t in range(8)],
            between=lambda n: (gated_pump(True), gated_pump(True)), opened=lambda i: (st.release(f"x{i}"), set_kr(a) if i == 7 else None))
    a(f"s_add_u32 s{S_TMP}, s{S_X0+3}, 4096")
    for T in range(4):
        for i in range(0, 16, 2):
            a(f"v_pk_mul_f32 {vr(V_S+16*T+i,2)}, {vr(V_S+16*T+i,2)}, s[{S_C}:{S_C+1}] op_sel_hi:[1,0]")
        for k in range(8): a(f"v_cvt_pk_bf16_f32 v{V_S+64+8*T+k}, v{V_S+16*T+2*k}, v{V_S+16*T+2*k+1}")
        for s in (2 * T, 2 * T + 1):
            a(f"buffer_store_dwordx4 {vr(V_S+64+4*s)}, v{V_L16}, {sr(SRDW)}, s{S_TMP if s>=4 else S_X0+3} offen offset:{1024*(s&3)} sc1")
    c.vm.issue("qst", 8)
    st.pump(3, throttle=False)
    c.vm.wait("qst"); st._sync()
    flag_store(c, S_X0 + 4)
    a("s_barrier"); st.release("w7")
    stamp(c, 2)
    if int(lag):
        a(f"s_cmp_eq_u32 s{S_X0+6}, 1\ns_cselect_b32 s{S_X0+5}, 1, 0"); st.lag = S_X0 + 5
    mha1(c)
    oproj(c, 1, "g1", [(S_FOB, 1)], 13)

    a.label("L_g2")
    c = c2; st = c.st
    common()
    if stamps == 9: a("s_mov_b32 s73, s92\ns_mov_b32 s74, s93\ns_mov_b32 s75, s94\ns_mov_b32 s76, s95"); stamp(c, 7, 9)
    a(f"""s_lshl_b32 s{S_X0+5}, s{S_U}, 1
    s_lshl_b32 s{S_X0+6}, s{S_J}, 5
    s_add_u32 s{S_X0+6}, s{S_X0+6}, s{S_X0+5}   ; b*32+h
    s_lshl_b32 s{S_X0+7}, s{S_X0+6}, 6
    s_add_u32 s{S_X0+7}, s{S_X0+7}, {WS_FQ}     ; Q flag
    s_lshl_b32 s{S_X0+6}, s{S_X0+6}, 13         ; Q offset (O = +WS_O)
    s_lshl_b32 s{S_X0+8}, s{S_J}, 3
    s_lshr_b32 s7, s{S_U}, 1
    s_add_u32 s{S_X0+8}, s{S_X0+8}, s7
    s_lshl_b32 s{S_X0+8}, s{S_X0+8}, {FS}
    s_and_b32 s7, s{S_U}, 1
    s_lshl_b32 s7, s7, {FW+1}
    s_add_u32 s{S_X0+8}, s{S_X0+8}, s7
    s_add_u32 s{S_X0+8}, s{S_X0+8}, {WS_FO}
    s_add_u32 s{S_X0+9}, s{S_X0+8}, 4""")
    def kva_off(S):
        a(f"s_lshl_b32 s{S+3}, s{S_J}, 2\ns_lshr_b32 s7, s{S_U}, 2\ns_add_u32 s{S+3}, s{S+3}, s7\ns_lshl_b32 s{S+3}, s{S+3}, 18")
        a(f"s_lshl_b32 s7, s{S_WAVE}, 13\ns_add_u32 s{S+3}, s{S+3}, s7")
        a(f"s_and_b32 s{S+2}, s{S_U}, {3 if rot else 0}\ns_lshl_b32 s{S+2}, s{S+2}, {15 if int(rota) == 2 else 16}\ns_add_u32 s{S}, s{S+3}, s{S+2}")
    def half2(S): return lambda: a(f"s_add_u32 s{S+3}, s{S+3}, 131072\ns_add_u32 s{S}, s{S}, 131072")
    wra = 131072 if int(rota) == 2 else 262144
    def preka(): srd(a, SRD0, P_AK, 0x800000); kva_off(S_A)
    def preva(): srd(a, SRD1, P_AV, 0x800000); kva_off(S_B)
    fp_word()
    clear_flags(c, [(S_FOB, 1, 2), (S_X0 + 8, 2, FW), (S_X0 + 1, 4, FS)], "g2clear")
    for t in range(8): st.add(f"ka{t}", t & 3, SRD0, S_A, 32768, V_KD, 256, fl_kva, n_kva[t], pre=preka if t == 0 else half2(S_A) if t == 4 and int(rota) == 2 else None, wrap=wra)
    for t in range(8): st.add(f"va{t}", t & 3, SRD1, S_B, 32768, V_VD, 256, fl_kva, n_vva[t], single=True, pre=preva if t == 0 else half2(S_B) if t == 4 and int(rota) == 2 else None, wrap=wra)
    add_wo(c, 0)
    set_kr(a); set_tr(a)
    if pf & 4: code_touch(a, "L_g2pf_x", "L_end", 32768, 4, "g2pf")
    if int(tlb):
        a(f"s_cmp_lg_u32 s{S_WAVE}, 2\ns_cbranch_scc1 L_tlb_x")
        a(f"v_lshlrev_b32 v{V_F+29}, 20, v{V_LANE}")
        for p, n in ((P_AWO, 8), (P_BWO, 8), (P_AK, 8), (P_AV, 8), (P_OUT, 1), (P_WS, 24)):
            srd(a, SRDT, p, n << 20)
            a(f"buffer_load_dword v{V_T0}, v{V_F+29}, {sr(SRDT)}, 0 offen")
        a.label("L_tlb_x")
    def qa_hook(t):
        if t == 1: ck_issue(c, "ws", (S_X0 + 7, 2, 6))
        if t == 3:
            ck_verify(c, "g2qa")
            q_dma(c, S_X0 + 6, 0, "qa")
            a(f"s_add_u32 s{S_X0+7}, s{S_X0+6}, 8192")
            q_dma(c, S_X0 + 7, 2048, "qa")
        if t == 7:
            if "qa" in c.vm.q: c.vm.wait("qa")
            st._sync()
            a("s_barrier")
            q_read(c, 0, lambda s: vr(V_Q + 4 * s)); a("s_waitcnt lgkmcnt(4)")
            q_read(c, 2048, lambda s: ar(A_Q1 + 4 * s))
            a("s_waitcnt lgkmcnt(0)\ns_barrier")
    mha2(c, qa_hook)
    st.release("v7")
    if kvpf & 2: touch(c, P_AV, 0x800000, KVA_BASE, 32768, 256, fl_kva)
    stamp(c, 5)
    if pf & 1: code_touch(a, "L_g2tail2", "L_end", 16384, 2, "g2pf2")
    def wo_gap(t):
        if st.issued.get("wo1", 0) == 7 and not getattr(c, "gap_done", False):
            c.gap_done = True
            a(f"buffer_load_dword v{V_T0}, v{V_VD+3}, {sr(SRD1)}, s{S_B+1} offen offset:3072 {fl_wo}")
            c.vm.issue("pf")
    st.gate("va1"); st.gate("wo1", 7)
    gqa_k(c, [f"ka{t}" for t in range(8)], lambda t: st.open("va1") if t == va1 - 1 else None)
    st.open("va1"); st.pump(8 if va1 == 8 else 0, False)
    stamp(c, 6)
    a.label("L_gv")
    if kvpf & 4: touch(c, P_AWO, 0x800000, WO_BASE.replace(f"v{V_CA}", f"v{V_CA}"), 65536, 2048, fl_wo)
    gqa_v(c, [f"va{t}" for t in range(8)], hold=("va6", "va7"), hook=wo_gap)
    stamp(c, 7)
    a.label("L_g2tail2")
    a(f"s_add_u32 s{S_X0+6}, s{S_X0+6}, {WS_O}\ns_add_u32 s{S_X0+7}, s{S_X0+7}, {WS_O}")
    o_epi(c, [dict(acc=lambda B: ar(A_O + 16 * B, 16), L=A_L, M=V_M, slot=3, b3=("scr", 0), st=(1, 7168), dst=S_X0 + 6),
              dict(acc=o1, L=A_L1, M=V_M1, slot=2, b3=("scr", 4096), st=(1, 7168 + 8), dst=S_X0 + 7)],
          idle=lambda: tail_setup(c, 0), mid=lambda: early_poll(c), freed=lambda: freed(c, ["va6", "va7"]))
    oproj(c, 0, "g2", [(S_X0 + 8, 2), (S_FOB, 1)], 13)

    a.label("L_red")
    c = mk()
    if stamps:
        a("s_waitcnt vmcnt(0)"); stamp(c, 19)
        if stamps == 4: a("s_getreg_b32 s88, hwreg(HW_REG_HW_ID)\ns_bfe_u32 s88, s88, 0x80008\ns_mul_i32 s88, s88, 100\ns_add_u32 s88, s88, s70")
        a(f"s_lshl_b32 s7, s2, 2\ns_add_u32 s7, s7, s{S_WAVE}\ns_lshl_b32 s7, s7, 7\ns_add_u32 s7, s7, {WS_ST}")
        for n in range(20): a(f"v_mov_b32 v{V_S+n}, s{70+n}")
        a(f"v_mov_b32 v{V_T0}, 0\ns_mov_b64 exec, 1")
        for q in range(5): a(f"buffer_store_dwordx4 {vr(V_S+4*q)}, v{V_T0}, {sr(SRDW)}, s7 offen offset:{16*q}")
    a.label("L_end"); a("s_endpgm")
    if "L" in hack: a.lines = [l for l in a.lines if not (l.startswith("v_mfma") and f", {vr(V_ONE)}," in l)]
    if "E" in hack: a.lines = [l.replace("v_exp_f32", "v_mov_b32") for l in a.lines]
    def strip(l0, l1, pred):
        i0 = a.lines.index(l0); i1 = a.lines.index(l1)
        a.lines[i0:i1] = [l for l in a.lines[i0:i1] if not pred(l)]
    if "K" in hack: strip("L_g2pf2_x:", "L_gv:", lambda l: l.startswith("v_mfma"))
    if "V" in hack: strip("L_gv:", "L_g2tail2:", lambda l: l.startswith("v_mfma"))
    if "P" in hack: strip("L_g1pf3_x:", "L_g1tail:", lambda l: l.startswith("v_mfma"))
    if "R" in hack: strip("L_g2pf2_x:", "L_g2tail2:", lambda l: l.startswith("ds_read"))
    if "H" in hack: strip("L_gv:", "L_g2tail2:", lambda l: l.startswith("v_mfma_f32_32") and (l.split()[1].startswith("v[4") or l.split()[1].startswith("v[5") or l.split()[1].startswith("a[96") or l.split()[1].startswith("a[112")))
    if "M" in hack:
        i0 = a.lines.index("L_g2pf2_x:"); i1 = a.lines.index("L_g2tail2:")
        a.lines[i0:i1] = [l for n, l in enumerate(a.lines[i0:i1]) if not l.startswith("v_mfma")]
    s = header(["; @launch grid=(256,1,1) block=(256,1,1) lds=163840"])
    s += kernel_open(NAME + "_kernel") + a.finish() + "\n"
    s += '.section .rodata,"a"\n.p2align 6\n' + descriptor(NAME + "_kernel")
    return s

if __name__ == "__main__":
    out = sys.argv[1]
    kw = dict(x.split("=") for x in sys.argv[2:])
    open(out, "w").write(build(**kw))
```

```python
import sys
from engines import *

WS_FQ = WS_F
WS_FO = WS_F + 0x200000
WS_FP = WS_F + 0x400000
WS_ST = WS_F + 0x100000
FS = 7
FW = 2
SLEEP = 0
APOLL = 1
KP = 3
ACK = 1
NPOLL = 1
PGAP = 0
GAP = 28
S_SCR = 69
SPIN = 1 << 20
SRDT = 88

class Stream:
    def __init__(self, a, vm):
        self.a, self.vm = a, vm
        self.q = []
        self.busy = {}
        self.landed = set(); self.issued = {}; self.m0_dirty = False; self.pres = {}; self.gates = set(); self.lag = None; self.nl = 0
    def run_pre(self, tag):
        box = self.pres[tag]
        if box[0]: box[0](); box[0] = None
    def add(self, tag, slot, srdreg, soff, step, voff, rs, fl, N, single=False, pre=None, wrap=None, nxt=None):
        a = self.a
        fl = (" " + fl) if fl else ""
        sb, so_ = (S_SCR, 0) if slot == 4 else (S_RING, slot * 8192)
        box = [pre]
        def emit(k):
            if k == 0:
                if box[0]: box[0](); box[0] = None
                a(f"s_add_u32 m0, s{sb}, {so_}")
            if k == 4:
                a(f"s_add_u32 s{soff+1}, s{soff}, {16*rs}")
                a(f"s_add_u32 m0, s{sb}, {so_+4096}")
            if self.m0_dirty and k & 3: a(f"s_add_u32 m0, s{sb}, {so_+(k&4)*1024}")
            self.m0_dirty = False
            so = soff + 1 if k >= 4 else soff
            off = f" offset:{1024*(k&3)}" if k & 3 else ""
            a(f"buffer_load_dwordx4 v{voff+(0 if single else k&3)}, {sr(srdreg)}, s{so} offen{off}{fl} lds")
            if k == 7:
                if nxt is not None: nxt()
                elif wrap is None: a(f"s_add_u32 s{soff}, s{soff}, {step}")
                else:
                    a(f"s_add_u32 s{soff+2}, s{soff+2}, {step}\ns_and_b32 s{soff+2}, s{soff+2}, {wrap-1}\ns_add_u32 s{soff}, s{soff+3}, s{soff+2}")
        for k in range(8): self.q.append((tag, slot, k, emit, N))
        self.pres[tag] = box
    def can(self):
        if not self.q: return False
        tag, slot, k, _, _ = self.q[0]
        if (tag, k) in self.gates: return False
        return self.busy.get(slot) in (None, tag)
    def gate(self, tag, k=0): self.gates.add((tag, k))
    def open(self, tag, k=0): self.gates.discard((tag, k))
    def _sync(self):
        for tag, n in self.issued.items():
            if n == 8 and tag not in self.vm.q: self.landed.add(tag)
    def piece(self, throttle=True):
        tag, slot, k, emit, N = self.q.pop(0)
        if throttle and self.lag is not None and N < 8 and tag[0] == "k":
            if len(self.vm.q) >= N:
                self.nl += 1
                self.a(f"s_cmp_lg_u32 s{self.lag}, 0\ns_cbranch_scc1 L_lag{self.nl}\ns_waitcnt vmcnt({N-1})"); self.a.label(f"L_lag{self.nl}")
            N = 12
        if throttle and len(self.vm.q) >= N:
            self.a(f"s_waitcnt vmcnt({N-1})"); self.vm.q = self.vm.q[len(self.vm.q) - (N - 1):] if N > 1 else []
        assert len(self.vm.q) < 63
        self.busy[slot] = tag
        emit(k); self.vm.issue(tag); self.issued[tag] = self.issued.get(tag, 0) + 1
        self._sync()
    def pump(self, n=99, throttle=True):
        while n > 0 and self.can():
            self.piece(throttle); n -= 1
    def need(self, tag, fill=True):
        self._sync()
        while tag not in self.landed and self.can() and (fill or self.issued.get(tag, 0) < 8):
            self.piece()
        if tag not in self.landed:
            assert self.issued.get(tag) == 8, tag
            self.vm.wait(tag); self._sync()
    def release(self, tag):
        for s, t in list(self.busy.items()):
            if t == tag: self.busy[s] = None

class Ctx: pass

def cyc(c, n, start, mode=1):
    if c.stamps != mode: return
    c.a("s_memtime s[42:43]\ns_waitcnt lgkmcnt(0)")
    if start: c.a(f"s_mov_b32 s{70+n}, s42")
    else: c.a(f"s_sub_u32 s{70+n}, s42, s{70+n}\ns_add_u32 s{70+n}, s{70+n}, s70")

def stamp(c, n, mode=1):
    if c.stamps != mode and not (c.stamps and n in (1, 2, 19)) and not (c.stamps == 11 and mode == 1): return
    c.a(f"s_memrealtime s[42:43]\ns_waitcnt lgkmcnt(0)\ns_mov_b32 s{70+n}, s42")

def look(r, voff, so, nl):
    if not APOLL: return f"buffer_load_dword v{r}, v{voff}, {sr(SRDW)}, s{so} offen sc1"
    return (f"v_mov_b32 v{r}, 1\ns_mov_b64 exec, {(1<<nl)-1}\nv_mov_b32 v{r}, 0\n"
            f"buffer_atomic_or v{r}, v{voff}, {sr(SRDW)}, s{so} offen sc0 sc1\ns_mov_b64 exec, -1")

def poll(c, name, soff_expr_reg, nl, want, voff):
    a = c.a
    regs = [V_T0, 32, 33, 34][:NPOLL]
    ld = lambda r: look(r, voff, soff_expr_reg, nl)
    a(f"s_mov_b32 s68, {SPIN}")
    if NPOLL > 1:
        a(ld(regs[0]))
        for r in regs[1:-1]: a(f"v_mov_b32 v{r}, 0")
        a(f"s_waitcnt vmcnt(0)\nv_cmp_ne_u32 vcc, {want}, v{regs[0]}\ns_cbranch_vccz L_{name}_x")
    for r in regs[:-1]:
        a(ld(r))
        if PGAP: a(f"s_sleep {PGAP}")
    a.label(f"L_{name}")
    for n, r in enumerate(regs):
        a(ld(regs[n - 1]))
        a(f"s_waitcnt vmcnt({NPOLL-1})")
        a(f"v_cmp_ne_u32 vcc, {want}, v{r}")
        a(f"s_cbranch_vccz L_{name}_x")
    if SLEEP: a(f"s_sleep {SLEEP}")
    a(f"s_sub_u32 s68, s68, 1\ns_cbranch_scc0 L_{name}")
    a.label(f"L_{name}_x")
    c.vm.q = ["poll"] * (NPOLL - 1); c.st._sync()

V_CK, V_CA = 34, 35
def ck_issue(c, kind, arg):
    a = c.a
    if kind == "dbg":
        a(f"v_and_b32 v{V_CA}, 7, v{V_LANE}\nv_lshlrev_b32 v{V_CA}, 5, v{V_CA}")
        ld = f"global_load_dword v{V_CK}, v{V_CA}, s[{P_DBG}:{P_DBG+1}] sc1"
        cmp_ = f"v_cmp_gt_u32 vcc, 32, v{V_CK}"
    else:
        so, nl, sh = arg
        a(f"v_and_b32 v{V_CA}, {nl-1}, v{V_LANE}\nv_lshlrev_b32 v{V_CA}, {sh}, v{V_CA}")
        ld = look(V_CK, V_CA, so, nl) if ACK else f"buffer_load_dword v{V_CK}, v{V_CA}, {sr(SRDW)}, s{so} offen sc1"
        cmp_ = f"v_cmp_ne_u32 vcc, 1, v{V_CK}"
    a(ld); c.vm.issue("ck"); c.ck = (ld, cmp_)
def ck_verify(c, name):
    a = c.a; ld, cmp_ = c.ck
    if "ck" in c.vm.q: c.vm.wait("ck")
    c.st._sync()
    a(f"s_mov_b32 s68, {SPIN}")
    a.label(f"L_{name}")
    a(f"{cmp_}\ns_cbranch_vccz L_{name}_x")
    if SLEEP: a(f"s_sleep {SLEEP}")
    a(f"{ld}\ns_sub_u32 s68, s68, 1\ns_waitcnt vmcnt(0)\ns_cbranch_scc0 L_{name}")
    a.label(f"L_{name}_x")

def park2(c, tags, hook=None):
    a, st = c.a, c.st
    for t in range(8):
        st.need(tags[t])
        slot = [s for s, g in st.busy.items() if g == tags[t]][0]
        for s in range(8):
            a(f"ds_read_b128 {ar(32*t+4*s)}, v{V_KR+s} offset:{slot*8192}")
        a("s_waitcnt lgkmcnt(0)")
        st.release(tags[t])
        stamp(c, 3 + t, 8)
        if hook: hook(t)

V_SH = 104
V_SH0, V_SH1 = 10, 14
def finish_max(a, M, T, sh):
    a(f"""v_mov_b32 v{T}, v{M}
    v_permlane32_swap_b32 v{M}, v{T}
    v_max_f32 v{M}, v{M}, v{T}
    v_mul_f32 v{M}, -0.5, v{M}
    v_cvt_pk_bf16_f32 v{T}, v{M}, v{M}
    v_lshlrev_b32 v{T}, 16, v{T}
    v_sub_f32 v{M}, v{M}, v{T}
    v_cvt_pk_bf16_f32 v{sh}, v{T}, v{M}
    v_and_b32 v{M}, 0xffff0000, v{sh}
    v_add_f32 v{M}, v{M}, v{T}
    v_mul_f32 v{M}, -2.0, v{M}
    v_mov_b32 v{sh+1}, 0
    v_mov_b32 v{sh+2}, 0
    v_mov_b32 v{sh+3}, 0""")
V_SEL = 26
def set_ones(a):
    for k in range(4): a(f"v_mov_b32 v{V_ONE+k}, 0x3f803f80")
    a(f"""v_lshrrev_b32 v{V_SEL}, 4, v{V_LANE}
    v_xor_b32 v{V_SEL}, v{V_SEL}, v{V_LANE}
    v_and_b32 v{V_SEL}, 1, v{V_SEL}
    v_add_u32 v{V_SEL}, -1, v{V_SEL}
    v_and_b32 v{V_SEL}, 0x3f803f80, v{V_SEL}
    v_mov_b32 v{V_SEL+1}, v{V_SEL}
    v_mov_b32 v{V_SEL+2}, v{V_SEL}
    v_mov_b32 v{V_SEL+3}, v{V_SEL}""")
def rowsum(L, P, first):
    return f"v_mfma_f32_16x16x32_bf16 {ar(L)}, {vr(V_SEL)}, {vr(P)}, {'0' if first else ar(L)}"
def shift(S, sh): return f"v_mfma_f32_32x32x16_bf16 {S}, {vr(V_ONE)}, {vr(sh)}, {S}"

def scores2(c, npump=1):
    a, st = c.a, c.st
    pend = []
    for t in range(8):
        for s in range(8):
            cc = "0" if s == 0 else vr(V_S + 16 * t, 16)
            a(f"v_mfma_f32_32x32x16_bf16 {vr(V_S+16*t,16)}, {ar(32*t+4*s)}, {vr(V_Q+4*s)}, {cc}")
            if s >= 4:
                for _ in range(2):
                    if pend: a(pend.pop(0))
            if s == 0 or (s == 2 and npump > 1): st.pump(1)
        b = V_S + 16 * t
        if t == 0:
            pend = [f"v_max3_f32 v{V_M}, v{b}, v{b+1}, v{b+2}"]
            pend += [f"v_max3_f32 v{V_M}, v{V_M}, v{b+i}, v{b+i+1}" for i in range(3, 15, 2)]
            pend += [f"v_max_f32 v{V_M}, v{V_M}, v{b+15}"]
        else:
            pend = [f"v_max3_f32 v{V_M}, v{V_M}, v{b+i}, v{b+i+1}" for i in range(0, 16, 2)]
    while pend: a(pend.pop(0))
    finish_max(a, V_M, V_MC, V_SH)

class LagScores:
    def __init__(self, c): self.c = c; self.pend = []
    def tile(self, t):
        a, st, pend = self.c.a, self.c.st, self.pend
        for s in range(8):
            cc = "0" if s == 0 else vr(V_S + 16 * t, 16)
            a(f"v_mfma_f32_32x32x16_bf16 {vr(V_S+16*t,16)}, {ar(32*t+4*s)}, {vr(V_Q+4*s)}, {cc}")
            if s >= 4:
                for _ in range(2):
                    if pend: a(pend.pop(0))
            if s in (0, 2): st.pump(1)
        b = V_S + 16 * t
        if t == 0:
            pend += [f"v_max3_f32 v{V_M}, v{b}, v{b+1}, v{b+2}"]
            pend += [f"v_max3_f32 v{V_M}, v{V_M}, v{b+i}, v{b+i+1}" for i in range(3, 15, 2)]
            pend += [f"v_max_f32 v{V_M}, v{V_M}, v{b+15}"]
        else:
            pend += [f"v_max3_f32 v{V_M}, v{V_M}, v{b+i}, v{b+i+1}" for i in range(0, 16, 2)]
    def finish(self):
        for l in self.pend: self.c.a(l)
        finish_max(self.c.a, V_M, V_MC, V_SH)

def sm_lines(b):
    out = [f"v_exp_f32 v{b+i}, v{b+i}" for i in range(16)]
    out += [f"v_cvt_pk_bf16_f32 v{b+k}, v{b+2*k}, v{b+2*k+1}" for k in range(8)]
    return out

def pv2(c, tags, last_pump=False, hold_last=True, hook=None, last=None, epi=None):
    a, st = c.a, c.st
    set_ones(a)
    a(shift(vr(V_S, 16), V_SH)); a(shift(vr(V_S + 16, 16), V_SH))
    for l in sm_lines(V_S): a(l)
    for t in range(8):
        if t < 6: a(shift(vr(V_S + 16 * (t + 2), 16), V_SH))
        fin = t == 7 and epi
        b = V_S + 16 * t
        if fin:
            a(rowsum(A_L, b, False)); a(rowsum(A_L, b + 4, False)); epi.do("addr"); epi.do("stats")
        st.need(tags[t], fill=False)
        if t == 7 and last: last()
        slot = [s for s, g in st.busy.items() if g == tags[t]][0]
        for B in ((1, 2, 3, 0) if fin else range(4)):
            for l in v_reads(V_F, slot)[4 * B:4 * B + 4]: a(l)
        nxt = sm_lines(V_S + 16 * (t + 1)) if t < 7 else []
        for s in range(0 if fin else 2):
            a(rowsum(A_L, b + 4 * s, t == 0 and s == 0))
            for _ in range(2):
                if nxt: a(nxt.pop(0))
        for n, B in enumerate((1, 2, 3, 0) if fin else range(4)):
            for s in range(2):
                if s == 0: a(f"s_waitcnt lgkmcnt({(12, 8, 4, 4)[n] if fin else 12-4*B})")
                cc = "0" if (t == 0 and s == 0) else ar(A_O + 16 * B, 16)
                a(f"v_mfma_f32_32x32x16_bf16 {ar(A_O+16*B,16)}, {vr(V_F+8*B+4*s)}, {vr(b+4*s)}, {cc}")
                for _ in range(3):
                    if nxt: a(nxt.pop(0))
                if t < 7 or last_pump: st.pump(1)
            if fin and n >= 2: epi.do(n - 1)
        while nxt: a(nxt.pop(0))
        if not (hold_last and t == 7): st.release(tags[t])
        stamp(c, 3 + t, 4); stamp(c, 3 + t, 10)
        if hook: hook(t)

LQ_ORDER = list(range(8))
LQ_P, LQ_RAW, LQ_SH = 104, 112, V_Q
def lq_s(t):
    i = LQ_ORDER.index(t)
    return ("v", LQ_RAW) if i == 0 else ("a", 32 * LQ_ORDER[i - 1])
def lq_o(B): return ar((16, 48, 80, 144)[B], 16)
LQ_L = 176
def v_reads(dst, slot):
    out = []
    for B in range(4):
        for s in range(2):
            o = slot * 8192 + 16 * s * 256
            out.append(f"ds_read_b64_tr_b16 {vr(dst+8*B+4*s,2)}, v{V_TV+B} offset:{o}")
            out.append(f"ds_read_b64_tr_b16 {vr(dst+8*B+4*s+2,2)}, v{V_TV+B} offset:{o+8*256}")
    return out
def lq_park_v(c, tags, npark, hook=None):
    a, st = c.a, c.st
    for t in range(npark):
        st.need(tags[t])
        for l in v_reads(V_S + 32 * t, t): a(l)
        a("s_waitcnt lgkmcnt(0)")
        st.release(tags[t])
        stamp(c, 11 + t, 8)
        if hook: hook(t)
def lq_scores(c, npump):
    a, st = c.a, c.st
    pend = []; T = V_F
    for i, t in enumerate(LQ_ORDER):
        f, b = lq_s(t); S = f"{f}[{b}:{b+15}]"
        for s in range(8):
            a(f"v_mfma_f32_32x32x16_bf16 {S}, {ar(32*t+4*s)}, {vr(V_Q+4*s)}, {'0' if s == 0 else S}")
            if s >= 2:
                for _ in range(4):
                    if pend: a(pend.pop(0))
            if s == 0 or (s == 1 and npump > 1): st.pump(1)
        if i == 0:
            pend = [f"v_max3_f32 v{V_M}, v{b}, v{b+1}, v{b+2}"] + [f"v_max3_f32 v{V_M}, v{V_M}, v{b+k}, v{b+k+1}" for k in range(3, 15, 2)] + [f"v_max_f32 v{V_M}, v{V_M}, v{b+15}"]
        else:
            pend = [f"v_accvgpr_read_b32 v{T+k}, a{b+k}" for k in range(16)] + [f"v_max3_f32 v{V_M}, v{V_M}, v{T+k}, v{T+k+1}" for k in range(0, 16, 2)]
    while pend: a(pend.pop(0))
    finish_max(a, V_M, V_MC, LQ_SH)
def lq_pv(c, tags, npark, hook=None, last=None, at=7):
    a, st = c.a, c.st
    set_ones(a)
    def sh(i):
        f, b = lq_s(i); a(shift(f"{f}[{b}:{b+15}]", LQ_SH))
    def ex(i):
        f, b = lq_s(i)
        out = [] if f == "v" else [f"v_accvgpr_read_b32 v{LQ_RAW+k}, a{b+k}" for k in range(16)]
        return out + [f"v_exp_f32 v{LQ_RAW+k}, v{LQ_RAW+k}" for k in range(16)]
    pk = [f"v_cvt_pk_bf16_f32 v{LQ_P+k}, v{LQ_RAW+2*k}, v{LQ_RAW+2*k+1}" for k in range(8)]
    sh(0); sh(1)
    for l in ex(0) + pk: a(l)
    for t in range(8):
        if t < 6: sh(t + 2)
        ring = t >= npark
        if ring:
            st.need(tags[t], fill=False)
            if t >= at and last: last(t)
            for l in v_reads(V_F, t & 3): a(l)
        nxt = ex(t + 1) if t < 7 else []
        def fill(n):
            for _ in range(n):
                if nxt: a(nxt.pop(0))
        fr = V_F if ring else V_S + 32 * t
        for s in range(2):
            a(rowsum(LQ_L, LQ_P + 4 * s, t == 0 and s == 0)); fill(2)
        for B in range(4):
            if ring: a(f"s_waitcnt lgkmcnt({12-4*B})")
            for s in range(2):
                a(f"v_mfma_f32_32x32x16_bf16 {lq_o(B)}, {vr(fr+8*B+4*s)}, {vr(LQ_P+4*s)}, {'0' if t == 0 and s == 0 else lq_o(B)}")
                st.pump(1); fill(4)
        if ring and t != 7: st.release(tags[t])
        fill(99)
        if t < 7:
            for l in pk: a(l)
        stamp(c, 3 + t, 4)
        if hook: hook(t)

S_DLT = 49
class Aim:
    def __init__(self, a): self.a = a; self.scr = set()
    def __call__(self, reg, slot):
        if slot == 4 and reg not in self.scr:
            self.a(f"v_add_u32 v{reg}, s{S_DLT}, v{reg}"); self.scr.add(reg)
        if slot != 4 and reg in self.scr:
            self.a(f"v_subrev_u32 v{reg}, s{S_DLT}, v{reg}"); self.scr.discard(reg)
        return 0 if slot == 4 else slot * 8192

A_Q1, A_S1, A_L1 = 96, 128, 80
V_M1, V_MC1, V_P1 = 34, 35, 104
def o1(B): return vr(V_Q + 16 * B, 16) if B < 2 else ar(96 + 16 * (B - 2), 16)

def gqa_k(c, tags, slots, hook=None):
    a, st = c.a, c.st
    pend = []
    aim = Aim(a)
    def rd(t, s): return f"ds_read_b128 {vr(V_F+4*s)}, v{V_KR+s} offset:{aim(V_KR+s, slots[t])}"
    st.need(tags[0], fill=False)
    for s in range(8): a(rd(0, s))
    for t in range(8):
        if t < 7: st.need(tags[t + 1], fill=False)
        for s in range(8):
            if t == 0: a(f"s_waitcnt lgkmcnt(7)")
            elif t == 7: a(f"s_waitcnt lgkmcnt({7-s})") if s in (0, 2, 4, 6, 7) else None
            elif s in (0, 2, 4, 6): a("s_waitcnt lgkmcnt(6)")
            if t == 7 and s in (0, 2, 4, 6): a.lines[-1] = f"s_waitcnt lgkmcnt({6-s})"
            if t == 7 and s == 7: a.lines.pop()
            if s == 7 and t: st.release(tags[t])
            if s == 7 and t == 0: st.release(tags[0])
            c0 = "0" if s == 0 else vr(V_S + 16 * t, 16)
            c1 = "0" if s == 0 else ar(A_S1 + 16 * t, 16)
            a(f"v_mfma_f32_32x32x16_bf16 {vr(V_S+16*t,16)}, {vr(V_F+4*s)}, {vr(V_Q+4*s)}, {c0}")
            for _ in range(3):
                if pend and s >= 2: a(pend.pop(0))
            a(f"v_mfma_f32_32x32x16_bf16 {ar(A_S1+16*t,16)}, {vr(V_F+4*s)}, {ar(A_Q1+4*s)}, {c1}")
            if t < 7: a(rd(t + 1, s))
            for _ in range(3):
                if pend and s >= 2: a(pend.pop(0))
            st.pump(2 if t < KP else 1)
        while pend: a(pend.pop(0))
        if hook: hook(t)
        stamp(c, 3 + t, 5)
        if t == 1: stamp(c, 3, 7); cyc(c, 5, True, 7)
        if t == 4: stamp(c, 4, 7); cyc(c, 5, False, 7)
        b = V_S + 16 * t
        def mx(M, b):
            if t == 0:
                return ([f"v_max3_f32 v{M}, v{b}, v{b+1}, v{b+2}"] + [f"v_max3_f32 v{M}, v{M}, v{b+i}, v{b+i+1}" for i in range(3, 15, 2)]
                        + [f"v_max_f32 v{M}, v{M}, v{b+15}"])
            return [f"v_max3_f32 v{M}, v{M}, v{b+i}, v{b+i+1}" for i in range(0, 16, 2)]
        pend = mx(V_M, b) + [f"v_accvgpr_read_b32 v{V_P1+i}, a{A_S1+16*t+i}" for i in range(16)] + mx(V_M1, V_P1)
    while pend: a(pend.pop(0))
    finish_max(a, V_M, V_MC, V_SH0); finish_max(a, V_M1, V_MC1, V_SH1)

def gqa_v(c, tags, slots, hold, last=None, hook=None):
    a, st = c.a, c.st
    PB = (V_P1, V_P1 + 8); C = V_P1 + 16
    def raw(t, i): return PB[t & 1] + i if i < 8 else C + i - 8
    def sm1(t):
        rd_ = [f"v_accvgpr_read_b32 v{raw(t,i)}, a{A_S1+16*t+i}" for i in range(16)]
        ex = [f"v_exp_f32 v{raw(t,i)}, v{raw(t,i)}" for i in range(16)]
        pk = [f"v_cvt_pk_bf16_f32 v{PB[t&1]+k}, v{raw(t,2*k)}, v{raw(t,2*k+1)}" for k in range(8)]
        return rd_, ex + pk
    def sh(t): return [shift(vr(V_S + 16 * t, 16), V_SH0), shift(ar(A_S1 + 16 * t, 16), V_SH1)]
    aim = Aim(a)
    def rd(t, B): return v_reads(V_F, aim(V_TV + B, slots[t]) // 8192)[4 * B:4 * B + 4]
    for l in sh(0) + sh(1): a(l)
    st.need(tags[0], fill=False)
    for B in range(4):
        for l in rd(0, B): a(l)
    r0, e0 = sm1(0)
    for l in r0 + sm_lines(V_S) + e0: a(l)
    for t in range(8):
        if t < 7: st.need(tags[t + 1], fill=False)
        if t < 7:
            r1, e1 = sm1(t + 1); nxt = r1 + sm_lines(V_S + 16 * (t + 1)) + e1
        else: nxt = []
        b = V_S + 16 * t; P1 = PB[t & 1]
        def fill(budget):
            while nxt and budget >= (8 if nxt[0].startswith("v_exp") else 4) - 2:
                budget -= 8 if nxt[0].startswith("v_exp") else 4
                a(nxt.pop(0))
        extra = [rowsum(A_L, b, t == 0), rowsum(A_L1, P1, t == 0), rowsum(A_L, b + 4, False), rowsum(A_L1, P1 + 4, False)]
        shf = sh(t + 2)[::-1] if t < 6 else []
        order = (1, 2, 3, 0) if t == 7 else (0, 1, 2, 3)
        G = GAP
        if t == 7 and last:
            while extra: a(extra.pop(0))
            last(-1)
        for n, B in enumerate(order):
            if t < 7: a("s_waitcnt lgkmcnt(12)")
            elif n == 0: a("s_waitcnt lgkmcnt(0)")
            if (B == 3 or t == 7) and tags[t] not in hold: st.release(tags[t])
            for s in range(2):
                z = t == 0 and s == 0
                a(f"v_mfma_f32_32x32x16_bf16 {ar(A_O+16*B,16)}, {vr(V_F+8*B+4*s)}, {vr(b+4*s)}, {'0' if z else ar(A_O+16*B,16)}")
                n0 = len(a.lines); st.pump(2 if t < 5 else 1); fill(G - 5 * (len(a.lines) - n0))
                a(f"v_mfma_f32_32x32x16_bf16 {o1(B)}, {vr(V_F+8*B+4*s)}, {vr(P1+4*s)}, {'0' if z else o1(B)}")
                if s == 1 and t < 7:
                    for l in rd(t + 1, B): a(l)
                    fill(G - 16)
                else: fill(G)
            if extra: a(extra.pop(0)); fill(G - 20)
            if shf and B in (1, 3): a(shf.pop(0)); fill(G)
            if t == 7 and last: last(n)
        fill(9999)
        if hook: hook(t)
        stamp(c, 11 + t, 5); stamp(c, 3 + t, 6); stamp(c, 3 + t, 10)
        if t == 1: stamp(c, 6, 7); cyc(c, 8, True, 7)
        if t == 4: stamp(c, 7, 7); cyc(c, 8, False, 7)

class Epi:
    def __init__(self, c, heads, t=V_F + 24, sv=(V_F, V_F + 8)):
        self.c, self.heads, self.t, self.sv = c, heads, t, sv
        self.todo = {"addr", "stats", 1, 2, 3}
    @staticmethod
    def loc(spec, ring, scr):
        base, off = spec
        return (scr, off) if base == "scr" else (ring, base * 8192 + off)
    def do(self, what):
        if what not in self.todo: return
        self.todo.discard(what)
        a, t = self.c.a, self.t
        if what == "addr":
            a(f"s_lshl_b32 s{S_TMP}, s{S_WAVE}, 13\ns_add_u32 s{S_TMP}, s{S_TMP}, {LDS_SCR}")
            a(f"v_add_u32 v{t}, s{S_RING}, v{V_L16}\nv_add_u32 v{t+1}, s{S_TMP}, v{V_L16}")
            for B in (1, 2, 3):
                a(f"s_sub_u32 s{S_TMP}, s{S_WAVE}, {B}\ns_and_b32 s{S_TMP}, s{S_TMP}, 3")
                a(f"s_lshl_b32 s7, s{S_TMP}, 13\ns_add_u32 s7, s7, {LDS_SCR}\ns_lshl_b32 s{S_TMP}, s{S_TMP}, 15")
                a(f"v_add_u32 v{t+2*B}, s{S_TMP}, v{V_L16}\nv_add_u32 v{t+2*B+1}, s7, v{V_L16}")
        elif what == "stats":
            a("s_mov_b32 vcc_lo, 0xffff0000\ns_mov_b32 vcc_hi, 0xffff0000")
            for h, r in zip(self.heads, self.sv):
                a(f"v_accvgpr_read_b32 v{r}, a{h['L']}\nv_accvgpr_read_b32 v{r+1}, a{h['L']+1}")
                a(f"v_cndmask_b32 v{r+1}, v{r}, v{r+1}, vcc\nv_mov_b32 v{r}, v{h['M']}")
                v, o = self.loc(h["st"], t, t + 1)
                a(f"ds_write_b64 v{v}, {vr(r,2)} offset:{o}")
        else:
            B = what
            for h in self.heads:
                txt = h["acc"](B); f, lo = txt[0], int(txt[2:txt.index(":")])
                v, o = self.loc((h["slot"], 4096 * (B - 1)) if B < 3 else h["b3"], t, t + 1)
                for g in range(4): a(f"ds_write_b128 v{v}, {f}[{lo+4*g}:{lo+4*g+3}] offset:{o+1024*g}")

def o_epi(c, heads, mid=None, idle=None, freed=None, epi=None):
    a = c.a
    epi = epi or Epi(c, heads)
    t, loc = epi.t, epi.loc
    for x in ("addr", "stats", 1, 2, 3): epi.do(x)
    for n, h in enumerate(heads):
        own = h["acc"](0); lo = int(own[2:own.index(":")])
        for i in range(16):
            a(f"v_accvgpr_read_b32 v{V_S+64*n+i}, a{lo+i}" if own[0] == "a" else f"v_mov_b32 v{V_S+64*n+i}, v{lo+i}")
        if epi.sv[n] != V_F + 8 * n: a(f"v_mov_b32 v{V_F+8*n}, v{epi.sv[n]}\nv_mov_b32 v{V_F+8*n+1}, v{epi.sv[n]+1}")
    md = 4 if len(heads) == 1 else 6
    if idle: idle()
    a("s_waitcnt lgkmcnt(0)"); stamp(c, 11, md); a("s_barrier"); stamp(c, 12, md)
    def reads(n):
        h = heads[n]; out = []
        for B in (1, 2, 3):
            v, o = loc((h["slot"], 4096 * (B - 1)) if B < 3 else h["b3"], t + 2 * B, t + 2 * B + 1)
            out.append([f"ds_read_b128 {vr(V_S+64*n+16*B+4*g)}, v{v} offset:{o+1024*g}" for g in range(4)])
        return out
    for n, h in enumerate(heads):
        for B in (1, 2, 3):
            v, o = loc(h["st"], t + 2 * B, t + 2 * B + 1)
            a(f"ds_read_b64 {vr(V_F+8*n+2*B,2)}, v{v} offset:{o}")
    two = len(heads) == 2
    r0 = reads(0); r1 = reads(1) if two else [[], [], []]
    for n, h in enumerate(heads):
        if n == 0:
            for l in r0[0] + r0[1]: a(l)
            if mid: mid()
            a("s_waitcnt lgkmcnt(8)")
            for l in r0[2]: a(l)
        m = [V_F + 8 * n + 2 * u for u in range(4)]; l = [x + 1 for x in m]
        M = V_F + 16; L = V_F + 17; f = [V_F + 18 + u for u in range(4)]
        a(f"v_max3_f32 v{M}, v{m[0]}, v{m[1]}, v{m[2]}\nv_max_f32 v{M}, v{M}, v{m[3]}")
        for u in range(4): a(f"v_sub_f32 v{f[u]}, v{m[u]}, v{M}")
        for u in range(4): a(f"v_exp_f32 v{f[u]}, v{f[u]}")
        a(f"v_mul_f32 v{L}, v{f[0]}, v{l[0]}")
        for u in range(1, 4): a(f"v_fmac_f32 v{L}, v{f[u]}, v{l[u]}")
        a(f"v_rcp_f32 v{L}, v{L}")
        for u in range(4): a(f"v_mul_f32 v{f[u]}, v{f[u]}, v{L}")
        S = V_S + 64 * n
        def sel(r): return ("op_sel_hi:[1,0", vr(r, 2)) if r % 2 == 0 else ("op_sel:[0,1", vr(r - 1, 2))
        md_, fr = sel(f[0])
        for i in range(0, 16, 2): a(f"v_pk_mul_f32 {vr(S+i,2)}, {vr(S+i,2)}, {fr} {md_}]")
        for B in (1, 2, 3):
            a(f"s_waitcnt lgkmcnt({8 if (two and n == 0) else 12-4*B})")
            if n == 0:
                for l in r1[B - 1]: a(l)
            md_, fr = sel(f[B])
            tail = ",1]" if md_.startswith("op_sel_hi") else ",0]"
            for i in range(0, 16, 2): a(f"v_pk_fma_f32 {vr(S+i,2)}, {vr(S+16*B+i,2)}, {fr}, {vr(S+i,2)} {md_}{tail}")
        if n == len(heads) - 1:
            stamp(c, 13, md); a("s_barrier"); stamp(c, 14, md)
            if freed: freed()
        for k in range(8): a(f"v_cvt_pk_bf16_f32 v{S+k}, v{S+2*k}, v{S+2*k+1}")
        a(f"s_lshl_b32 s{S_TMP}, s{S_WAVE}, 11\ns_add_u32 s{S_TMP}, s{S_TMP}, s{h['dst']}")
        a(f"buffer_store_dwordx4 {vr(S)}, v{V_L16}, {sr(SRDW)}, s{S_TMP} offen sc1")
        a(f"buffer_store_dwordx4 {vr(S+4)}, v{V_L16}, {sr(SRDW)}, s{S_TMP} offen offset:1024 sc1")
        c.vm.issue("ost", 2)
    stamp(c, 15, md)

def flag_store(c, soff, nl=1):
    a = c.a
    a(f"v_mov_b32 v{V_T0}, 1\nv_lshlrev_b32 v{V_F+31}, {FW}, v{V_LANE}")
    a(f"s_mov_b64 exec, {(1<<nl)-1}")
    a(f"buffer_store_dword v{V_T0}, v{V_F+31}, {sr(SRDW)}, s{soff} offen sc1")
    a("s_mov_b64 exec, -1")
    c.vm.issue("flag")

def q_dma(c, soff, lds_off, tag):
    a = c.a
    a(f"s_lshl_b32 s{S_TMP}, s{S_WAVE}, 13\ns_add_u32 m0, s{S_TMP}, {LDS_SCR+lds_off}")
    a(f"s_lshl_b32 s{S_TMP}, s{S_WAVE}, 11\ns_add_u32 s{S_TMP}, s{S_TMP}, s{soff}")
    for k in range(2):
        a(f"buffer_load_dwordx4 v{V_L16}, {sr(SRDW)}, s{S_TMP} offen offset:{1024*k} sc1 lds")
    c.vm.issue(tag, 2); c.st.m0_dirty = True
def q_read(c, lds_off, dst):
    a = c.a
    a(f"v_add_u32 v{V_CA}, {LDS_SCR}, v{V_L16}")
    for s in range(8): a(f"ds_read_b128 {dst(s)}, v{V_CA} offset:{(s>>1)*8192+lds_off+(s&1)*1024}")

S_J, S_CC, S_U = 50, 51, 52
S_A = 56
S_B = 60
S_QB, S_OB, S_FQB, S_FOB = 64, 65, 66, 67
S_X0 = 92

def code_touch(a, first, last, est, share, name):
    per = -(-est // (share * 8192)) * 8192
    a(f"s_cmp_lg_u32 s{S_WAVE}, 3\ns_cbranch_scc1 L_{name}_x")
    a(f"s_getpc_b64 s[48:49]")
    a.label(f"L_{name}")
    a(f"s_add_u32 s48, s48, {first}-L_{name}\ns_addc_u32 s49, s49, 0")
    a(f"s_and_b32 s7, s{S_CC}, {share-1}\ns_mul_i32 s7, s7, {per}")
    a(f"v_lshl_add_u32 v{V_F+30}, v{V_LANE}, 7, s7")
    for k in range(per // 8192):
        a(f"v_min_u32 v{V_F+29}, {last}-{first}-4, v{V_F+30}")
        a(f"global_load_dword v{V_T0}, v{V_F+29}, s[48:49]")
        a(f"v_add_u32 v{V_F+30}, 8192, v{V_F+30}")
    a.label(f"L_{name}_x")

class PerTile:
    def __init__(self, v): self.v = [int(x) for x in str(v).split(",")]
    def __getitem__(self, t): return self.v[min(t, len(self.v) - 1)]

def build(stamps=0, five=0, kp=3, wog=0, ack=1, ovl=1, apoll=1, fack=0, pollfirst=0, tsplit='01,2,3', onepoll=1, prew=0, npoll=1, pgap=0, wo1mid=1, outfl='', n_w2=6, n_wpre=0, lag=1, gap=28, q0=3, hack='', rotkv=0, tlb=0, fs=8, fw=2, sleep=0, pf=7, n_early=0, kvpf=0, qpf='', qthr=0, rotq=2, rota=2, kag=6, nog1=0, perm=0, npark=4, g1wo=0, va1=5, n_qpre=0, n_spump=2, n_look=8, n_x=16, n_wq=16, n_kva=32, n_vva=32, n_g2k=16, n_g2v=16, n_g1k='6,6,6,16', n_g1v=16, n_wo=16, fl_x="", fl_wq="", fl_kva="", fl_wo="", fl_kv="nt", rot=1):
    global FW, APOLL, ACK, KP; KP = int(kp); ACK = int(ack); FW = int(fw); APOLL = int(apoll)
    global FS, SLEEP, GAP, NPOLL, PGAP; NPOLL = int(npoll); PGAP = int(pgap); GAP = int(gap); FS = int(fs); SLEEP = int(sleep)
    stamps = int(stamps); prew = int(prew); n_w2 = int(n_w2); q0 = int(q0); pf = int(pf); n_early = int(n_early); kvpf = int(kvpf); n_qpre = int(n_qpre); npark = int(npark); g1wo = int(g1wo); va1 = int(va1); n_spump = int(n_spump); n_look = int(n_look);  n_g2k, n_g2v, n_g1k, n_g1v, n_wo, n_x, n_wq, n_kva, n_vva = map(PerTile, (n_g2k, n_g2v, n_g1k, n_g1v, n_wo, n_x, n_wq, n_kva, n_vva)); rot = int(rot)
    a = Asm()
    prologue(a, 256, "L_end")
    if stamps: a("s_memrealtime s[70:71]")
    if int(perm): a(f"s_xor_b32 s2, s2, {int(perm)}")
    a(f"""s_and_b32 s{S_J}, s2, 7
    s_lshr_b32 s{S_CC}, s2, 3
    s_and_b32 s{S_U}, s{S_CC}, 15
    s_and_b32 s53, s{S_CC}, 3
    s_lshl_b32 s7, s{S_J}, 2
    s_add_u32 s53, s53, s7          ; head of the MHA task
    s_lshr_b32 s54, s{S_CC}, 2      ; batch of the MHA task
    s_lshl_b32 s55, s54, 5
    s_add_u32 s55, s55, s53         ; b*32+h
    s_cmp_lt_u32 s{S_CC}, 16
    s_cbranch_scc1 L_g1""")
    def common():
        if stamps:
            for n in range(1, 20): a(f"s_mov_b32 s{70+n}, s70")
        srd(a, SRDW, P_WS, WS_BYTES)
        a(f"""s_lshl_b32 s{S_QB}, s55, 13
        s_add_u32 s{S_QB}, s{S_QB}, {WS_Q + (2<<20)}
        s_add_u32 s{S_OB}, s{S_QB}, {WS_O - WS_Q}
        s_lshl_b32 s{S_FQB}, s55, 6
        s_add_u32 s{S_FQB}, s{S_FQB}, {WS_FQ + 256*64}
        s_lshl_b32 s{S_FOB}, s54, 3
        s_add_u32 s{S_FOB}, s{S_FOB}, s{S_J}
        s_lshl_b32 s{S_FOB}, s{S_FOB}, {FS}
        s_and_b32 s7, s{S_CC}, 3
        s_lshl_b32 s7, s7, {FW}
        s_add_u32 s{S_FOB}, s{S_FOB}, s7
        s_add_u32 s{S_FOB}, s{S_FOB}, {WS_FO + (64 << FS)}
        s_mov_b32 s{S_C}, {f32(C_SCALE)}""")

    def mk():
        c = Ctx(); c.a = a; c.vm = VM(a); c.st = Stream(a, c.vm); c.stamps = stamps
        return c
    def kv_offsets():
        a(f"s_lshl_b32 s{S_A}, s55, 18\ns_lshl_b32 s7, s{S_WAVE}, 13\ns_add_u32 s{S_A}, s{S_A}, s7")
    def clear_flags(c, words, name):
        a(f"s_cmp_lg_u32 s{S_WAVE}, 0\ns_cbranch_scc1 L_{name}")
        a(f"v_mov_b32 v{V_T0}, 0")
        for so, nl, sh in words:
            a(f"v_lshlrev_b32 v{V_F+31}, {sh}, v{V_LANE}\ns_mov_b64 exec, {(1<<nl)-1}")
            a(f"buffer_store_dword v{V_T0}, v{V_F+31}, {sr(SRDW)}, s{so} offen sc1\ns_mov_b64 exec, -1")
        a.label(f"L_{name}")
    def count_in(c, name):
        a(f"s_cmp_lg_u32 s{S_WAVE}, 0\ns_cbranch_scc1 L_{name}")
        a(f"s_lshl_b32 s7, s{S_J}, 5\nv_mov_b32 v{V_T0}, 1\nv_mov_b32 v{V_F+31}, s7\ns_mov_b64 exec, 1")
        a(f"global_atomic_add v{V_F+31}, v{V_T0}, s[{P_DBG}:{P_DBG+1}] sc1")
        a("s_mov_b64 exec, -1")
        a.label(f"L_{name}")
    def wait_cleared(c, name):
        a(f"s_mov_b32 s68, {SPIN}\nv_and_b32 v{V_F+31}, 7, v{V_LANE}\nv_lshlrev_b32 v{V_F+31}, 5, v{V_F+31}")
        a.label(f"L_{name}")
        a(f"global_load_dword v{V_T0}, v{V_F+31}, s[{P_DBG}:{P_DBG+1}] sc1")
        a(f"s_sub_u32 s68, s68, 1\ns_cbranch_scc1 L_{name}_x\ns_waitcnt vmcnt(0)")
        a(f"v_cmp_gt_u32 vcc, 32, v{V_T0}\ns_cbranch_vccnz L_{name}")
        a.label(f"L_{name}_x")
        c.vm.q = []; c.st._sync()
    def fp_word():
        a(f"s_xor_b32 s{S_X0}, s{S_CC}, 16          ; c_to")
        a(f"s_lshl_b32 s{S_X0+1}, s{S_X0}, 2\ns_add_u32 s{S_X0+1}, s{S_X0+1}, s{S_WAVE}\ns_lshl_b32 s{S_X0+1}, s{S_X0+1}, {FS}")
        a(f"s_lshl_b32 s7, s{S_J}, {FW}\ns_add_u32 s{S_X0+1}, s{S_X0+1}, s7\ns_add_u32 s{S_X0+1}, s{S_X0+1}, {WS_FP}")
    def add_wo(c, X, wsl=(0, 1, 2, 3)):
        def pre():
            set_vd(a, 2048)
            srd(a, SRD1, P_BWO if X else P_AWO, 0x800000)
            a(f"s_add_u32 s7, s{S_WAVE}, s{S_U}\ns_and_b32 s7, s7, 3")
            a(f"s_lshl_b32 s{S_B+3}, s{S_J}, 2\ns_add_u32 s{S_B+3}, s{S_B+3}, s7\ns_lshl_b32 s{S_B+3}, s{S_B+3}, 18")
            a(f"s_and_b32 s7, s{S_U}, 7\ns_lshl_b32 s7, s7, 8\ns_add_u32 s{S_B+3}, s{S_B+3}, s7")
            a(f"s_lshr_b32 s{S_B+2}, s{S_U}, 3\ns_lshl_b32 s{S_B+2}, s{S_B+2}, 17")
            a(f"s_add_u32 s{S_B}, s{S_B+3}, s{S_B+2}")
        def nx(t):
            return lambda: a(f"s_xor_b32 s7, s{S_B+2}, {(t+1) << 16}\ns_add_u32 s{S_B}, s{S_B+3}, s7") if t < 3 else None
        for t in range(4):
            c.st.add(f"wo{t}", wsl[t], SRD1, S_B, 65536, V_VD, 2048, fl_wo, n_wo[t], pre=pre if t == 0 else None, nxt=nx(t))
    def add_kv(c, nk, nv, first):
        rk = int(rotkv)
        def offs(S):
            a(f"s_lshl_b32 s{S+3}, s55, 18\ns_lshl_b32 s7, s{S_WAVE}, 13\ns_add_u32 s{S+3}, s{S+3}, s7")
            if rk:
                a(f"s_lshr_b32 s7, s{S_J}, {rk-1}\ns_add_u32 s7, s7, s{S_CC}\ns_and_b32 s7, s7, 7\ns_lshl_b32 s{S+2}, s7, 15\ns_add_u32 s{S}, s{S+3}, s{S+2}")
            else: a(f"s_mov_b32 s{S}, s{S+3}")
        def prek():
            set_kd(a, 256); offs(S_A)
            if first: a("s_waitcnt lgkmcnt(0)")
            srd(a, SRD0, P_BK, 0x4000000)
        def prev():
            set_vd(a, 256); srd(a, SRD1, P_BV, 0x4000000); offs(S_B)
        wr = 262144 if rk else None
        for t in range(8): c.st.add(f"k{t}", t & 3, SRD0, S_A, 32768, V_KD, 256, fl_kv, nk[t], pre=prek if t == 0 else None, wrap=wr)
        for t in range(8): c.st.add(f"v{t}", t & 3, SRD1, S_B, 32768, V_VD, 256, fl_kv, nv[t], single=True, pre=prev if t == 0 else None, wrap=wr)
    def touch(c, ptr, size, base_asm, step, rs, fl):
        a(base_asm)
        a(f"s_add_u32 s49, s48, {step}")
        a(f"v_lshrrev_b32 v{V_CA}, 1, v{V_LANE}\nv_lshlrev_b32 v{V_CA}, {rs.bit_length()-1}, v{V_CA}")
        a(f"v_and_b32 v{V_T0}, 1, v{V_LANE}\nv_lshl_add_u32 v{V_CA}, v{V_T0}, 7, v{V_CA}")
        srd(a, SRDT, ptr, size)
        for so in (48, 49):
            a(f"buffer_load_dword v{V_T0}, v{V_CA}, {sr(SRDT)}, s{so} offen {fl}")
            c.vm.issue("pf")
    KVA_BASE = (f"s_lshl_b32 s48, s{S_J}, 2\ns_lshr_b32 s7, s{S_U}, 2\ns_add_u32 s48, s48, s7\ns_lshl_b32 s48, s48, 18\n"
                f"s_lshl_b32 s7, s{S_WAVE}, 13\ns_add_u32 s48, s48, s7\n"
                f"s_and_b32 s7, s{S_U}, 3\ns_lshl_b32 s7, s7, 16\ns_add_u32 s48, s48, s7")
    WO_BASE = (f"s_add_u32 s7, s{S_WAVE}, s{S_U}\ns_and_b32 s7, s7, 3\ns_lshl_b32 s48, s{S_J}, 2\ns_add_u32 s48, s48, s7\ns_lshl_b32 s48, s48, 18\n"
               f"s_and_b32 s7, s{S_U}, 7\ns_lshl_b32 s7, s7, 8\ns_add_u32 s48, s48, s7\n"
               f"s_lshr_b32 s7, s{S_U}, 3\ns_lshl_b32 s7, s7, 17\ns_add_u32 s48, s48, s7")
    def get_q(c):
        if "q" in c.vm.q: c.vm.wait("q")
        c.st._sync()
        a("s_barrier")
        q_read(c, 5120, lambda s: vr(V_Q + 4 * s))
        a("s_waitcnt lgkmcnt(0)")
    def mha1(c):
        st = c.st
        ls = LagScores(c)
        plan = {q0: [0, 1]}
        nxt = 2
        for t in range(q0 + 1, 8):
            plan[t] = [u for u in (nxt, nxt + 1) if u <= t] if t < 7 else list(range(nxt, 8))
            nxt += len(plan[t])
        def hook(t):
            if t == q0 - 3: ck_issue(c, "dbg", None)
            if t == q0 - 2: ck_verify(c, "g1clr"); ck_issue(c, "ws", (S_FQB, 1, 2))
            if t == q0 - 1: ck_verify(c, "g1q"); q_dma(c, S_QB, 5120, "q")
            if t == q0:
                get_q(c); stamp(c, 4)
            if t == 5 and pf & 1:
                code_touch(a, "L_g1tail", "L_g2", 16384, 2, "g1pf2")
            for u in plan.get(t, []): ls.tile(u)
        park2(c, [f"k{t}" for t in range(8)], hook)
        stamp(c, 3)
        ls.finish()
        stamp(c, 5)
        for g in range(g1wo, 3): st.gate(f"wo{g}")
        heads = [dict(acc=lambda B: ar(A_O + 16 * B, 16), L=A_L, M=V_M, slot=3, b3=("scr", 0), st=("scr", 4096), dst=S_OB)]
        epi = Epi(c, heads, t=112, sv=(2,)) if int(ovl) else None
        pv2(c, [f"v{t}" for t in range(8)], last_pump=True, last=lambda: (st.run_pre("wo0"), st.open(f"wo{g1wo}")), epi=epi)
        stamp(c, 6)
        a.label("L_g1tail")
        o_epi(c, heads, epi=epi,
              idle=lambda: tail_setup(c, 1),
              mid=lambda: (early_poll(c), st.open(f"wo{g1wo+1}"), st.pump(8 if int(wo1mid) else 0, False)),
              freed=lambda: ([st.open(f"wo{g}") for g in range(3)], freed(c, ["v7"])))
    def mha2(c, pvhook):
        st = c.st
        end = 7 + npark
        def hook(p):
            if p == 1: count_in(c, "g2count")
            if prew:
                if p == 0: prew_setup(c); prew_o(c, S_OB)
                if p == 1:
                    a(f"s_add_u32 s49, s{S_X0+6}, {WS_O}"); prew_o(c, 49)
                    a(f"s_add_u32 s49, s49, 8192"); prew_o(c, 49)
                if 2 <= p < 6: prew_part(c, 2 * p - 4); prew_part(c, 2 * p - 3)
            if p == end - 3: ck_issue(c, "dbg", None)
            if p == end - 2: ck_verify(c, "g2clr")
            if p == end - 1 and not n_qpre: ck_issue(c, "ws", (S_FQB, 1, 2))
        park2(c, [f"k{t}" for t in range(8)], hook)
        stamp(c, 1)
        lq_park_v(c, [f"v{t}" for t in range(8)], npark, lambda t: hook(8 + t))
        stamp(c, 15, 8)
        if n_qpre:
            st.pump(n_qpre - 4); ck_issue(c, "ws", (S_FQB, 1, 2)); st.pump(4)
        ck_verify(c, "g2q")
        q_dma(c, S_QB, 5120, "q")
        st.pump(4)
        get_q(c)
        stamp(c, 2)
        lq_scores(c, n_spump)
        stamp(c, 3)
        for g in ("ka0", "ka1", "ka2"): st.gate(g)
        st.busy[4] = "v7"
        lq_pv(c, [f"v{t}" for t in range(8)], npark, pvhook, last=lambda t: (st.run_pre("ka0"), st.open(f"ka{t-int(kag)}")), at=int(kag))
        stamp(c, 4)
        o_epi(c, [dict(acc=lq_o, L=LQ_L, M=V_M, slot=3, b3=("scr", 0), st=("scr", 4096), dst=S_OB)],
              mid=lambda: (st.open("ka1"), st.open(f"ka{8-int(kag)}"), st.pump(8, False)))
        st.open("ka2")
    V_MK = 124
    def prew_setup(c):
        t = V_MK - 1
        for k in range(4): a(f"v_mov_b32 v{V_MK+k}, -1")
        a(f"""v_and_b32 v{t}, 15, v{V_LANE}
        v_lshlrev_b32 v{t}, 4, v{t}
        v_lshrrev_b32 v{t-1}, 5, v{V_LANE}
        v_lshl_add_u32 v{t}, v{t-1}, 8, v{t}
        v_bfe_u32 v{t-1}, v{V_LANE}, 4, 1
        v_lshl_add_u32 v{t}, v{t-1}, 15, v{t}
        s_lshl_b32 s48, s{S_X0}, 3
        s_lshl_b32 s7, s{S_WAVE}, 1
        s_add_u32 s48, s48, s7
        s_lshl_b32 s48, s48, 3
        s_add_u32 s48, s48, s{S_J}
        s_lshl_b32 s48, s48, 12
        s_add_u32 s48, s48, {WS_P}""")
    def prew_part(c, p):
        a(f"buffer_store_dwordx4 {vr(V_MK)}, v{V_MK-1}, {sr(SRDW)}, s48 offen offset:{512*p} sc1"); c.vm.issue("mk")
    def prew_o(c, so):
        a(f"s_lshl_b32 s7, s{S_WAVE}, 11\ns_add_u32 s7, s7, s{so}")
        for k in range(2): a(f"buffer_store_dwordx4 {vr(V_MK)}, v{V_L16}, {sr(SRDW)}, s7 offen offset:{1024*k} sc1")
        c.vm.issue("mk", 2)
    V_PA = 11
    def tail_setup(c, X):
        a(f"""s_lshr_b32 s{S_X0+2}, s{S_U}, 3
        s_lshl_b32 s{S_X0+2}, s{S_X0+2}, 2
        s_add_u32 s{S_X0+2}, s{S_X0+2}, s{S_WAVE}
        s_add_u32 s{S_X0+2}, s{S_X0+2}, {8*X}        ; X*8 + batch
        s_lshl_b32 s{S_X0+3}, s{S_X0+2}, 3
        s_add_u32 s{S_X0+3}, s{S_X0+3}, s{S_J}
        s_lshl_b32 s{S_X0+4}, s{S_X0+3}, 15
        s_add_u32 s{S_X0+4}, s{S_X0+4}, {WS_O}       ; O offset
        s_lshl_b32 s{S_X0+3}, s{S_X0+3}, {FS}
        s_add_u32 s{S_X0+3}, s{S_X0+3}, {WS_FO}""")
        for T in range(4): a(f"v_add_u32 v{V_TW+4+T}, 0x10000, v{V_TW+T}")
        t = 10
        a(f"""v_and_b32 v{t}, 15, v{V_LANE}
        v_lshlrev_b32 v{t}, 4, v{t}
        v_lshrrev_b32 v{t+1}, 5, v{V_LANE}
        v_lshl_add_u32 v{t}, v{t+1}, 8, v{t}
        v_bfe_u32 v{t+1}, v{V_LANE}, 4, 1
        v_lshl_add_u32 v{t}, v{t+1}, 15, v{t}
        v_and_b32 v{V_PA}, 3, v{V_LANE}
        v_lshlrev_b32 v{V_PA}, {FW}, v{V_PA}
        s_lshl_b32 s58, s{S_X0}, 3
        s_lshl_b32 s7, s{S_WAVE}, 1
        s_add_u32 s58, s58, s7
        s_lshl_b32 s58, s58, 3
        s_add_u32 s58, s58, s{S_J}
        s_lshl_b32 s58, s58, 12
        s_add_u32 s58, s58, {WS_P}""")
        a(f"s_lshr_b32 s59, s{S_U}, 3\ns_lshl_b32 s59, s59, 12")
        a(f"""s_lshl_b32 s64, s{S_X0}, 2
        s_lshr_b32 s7, s{S_J}, 1
        s_add_u32 s64, s64, s7
        s_lshl_b32 s64, s64, {FS}
        s_add_u32 s64, s64, {WS_FP}               ; flags of the eight producers
        v_and_b32 v15, 7, v{V_LANE}
        v_lshlrev_b32 v15, {FW}, v15
        s_lshl_b32 s53, s{S_X0}, 3
        s_add_u32 s53, s53, s{S_J}
        s_lshl_b32 s53, s53, 15
        s_add_u32 s53, s53, {WS_P}
        s_add_u32 s54, s53, 16384
        v_lshlrev_b32 v13, 4, v0
        s_bfe_u32 s66, s{S_X0}, 0x10003
        s_lshl_b32 s66, s66, 3
        s_add_u32 s66, s66, s{S_J}
        s_lshl_b32 s66, s66, 16
        s_lshr_b32 s7, s{S_X0}, 4
        s_lshl_b32 s7, s7, 11
        s_add_u32 s66, s66, s7
        s_and_b32 s7, s{S_X0}, 7
        s_lshl_b32 s7, s7, 8
        s_add_u32 s66, s66, s7
        v_and_b32 v14, 15, v0
        v_lshlrev_b32 v14, 12, v14
        v_lshrrev_b32 v16, 4, v0
        v_lshl_add_u32 v14, v16, 4, v14""")
        srd(a, SRD0, P_OUT, 0x100000)
    def reduce(c, tag):
        if int(pollfirst):
            a(look(12, 15, 64, 8))
            flag_store(c, S_X0 + 1)
            a(f"s_lshr_b32 s7, s{S_J}, 1\ns_cmp_eq_u32 s7, s{S_WAVE}\ns_cselect_b32 s7, s{S_J}, 8\ns_lshl_b32 s7, s7, {FW}")
            a(f"v_cmp_ne_u32 s[48:49], s7, v15\ns_waitcnt vmcnt(1)\nv_cmp_ne_u32 vcc, 1, v12\ns_and_b64 vcc, vcc, s[48:49]\ns_cbranch_vccz L_{tag}red_x")
        else:
            flag_store(c, S_X0 + 1)
            if int(fack): a("s_waitcnt vmcnt(0)"); stamp(c, 9)
            if int(onepoll): a(f"s_cmp_lg_u32 s{S_WAVE}, 0\ns_cbranch_scc1 L_{tag}red_x")
        poll(c, tag + "red", 64, 8, 1, 15)
        if stamps == 1: a(f"s_sub_u32 s78, {SPIN}, s68\ns_mul_i32 s78, s78, 100\ns_add_u32 s78, s78, s70")
        if int(onepoll): a("s_barrier")
        stamp(c, 16); stamp(c, 17, 10)
        for j in range(8):
            a(f"buffer_load_dwordx4 {vr(V_F+4*j)}, v13, {sr(SRDW)}, s{53+(j>>2)} offen sc1")
            if j & 3 < 3: a(f"s_add_u32 s{53+(j>>2)}, s{53+(j>>2)}, 4096")
        acc = V_S
        for j in range(8):
            a(f"s_waitcnt vmcnt({7-j})")
            d = acc if j == 0 else acc + 8
            for k in range(4):
                a(f"v_lshlrev_b32 v{d+2*k}, 16, v{V_F+4*j+k}\nv_and_b32 v{d+2*k+1}, 0xffff0000, v{V_F+4*j+k}")
            if j:
                for k in range(4): a(f"v_pk_add_f32 {vr(acc+2*k,2)}, {vr(acc+2*k,2)}, {vr(d+2*k,2)}")
        for k in range(4): a(f"v_cvt_pk_bf16_f32 v{acc+16+k}, v{acc+2*k}, v{acc+2*k+1}")
        a(f"buffer_store_dwordx4 {vr(acc+16)}, v14, {sr(SRD0)}, s66 offen {outfl}")
        a("s_branch L_red" if stamps else "s_endpgm")
    def early_poll(c):
        a(look(12, V_PA, S_X0 + 3, 4)); c.vm.issue("ep")
    def freed(c, held):
        for g in held: c.st.release(g)
        c.st.open("wo1", 7)
        while c.st.issued.get("wo1", 0) < 8: c.st.pump(1, False)
        c.st.pump(int(n_wpre), False)

    def oproj(c, X, tag, words, sbase, wsl=(0, 1, 2, 3)):
        st = c.st
        stamp(c, 10); stamp(c, 11, 10)
        items = sorted([(w, i, s_) for w in range(4) for i in range(4) for s_ in range(2)], key=lambda it: it[1] >> 1)
        todo = list(items)
        def fetch():
            if not todo: return
            w, i, s_ = todo.pop(0)
            if i in (0, 2) and s_ == 0:
                a(f"s_add_u32 s7, s{S_U}, {w}\ns_and_b32 s7, s7, 3\ns_lshl_b32 s7, s7, 13\ns_add_u32 s7, s7, s{S_X0+4}")
                a(f"s_xor_b32 s56, s59, {2048*i}\ns_add_u32 s56, s56, s7")
            a(f"buffer_load_dwordx4 {ar(32*w+8*i+4*s_)}, v{V_L16}, {sr(SRDW)}, s56 offen offset:{1024*(2*(i&1)+s_)} sc1")
            c.vm.issue(f"of{w}_{i}_{s_}")
        def publish():
            a("s_barrier")
            a(f"s_cmp_lg_u32 s{S_WAVE}, 0\ns_cbranch_scc1 L_{tag}pub{len(a.lines)}")
            lab = a.lines[-1].split()[-1]
            q = list(c.vm.q)
            for so, nl in words: flag_store(c, so, nl)
            a.label(lab)
            c.vm.q = q
        ops = [it + (T,) for grp in tsplit.split(",") for it in items for T in map(int, grp)]
        cut = next(n for n, op in enumerate(ops) if op[1] >= 2) - 4
        done = {max(n for n, op in enumerate(ops) if op[3] == T): T for T in range(4)}
        out = []
        def emit_tile(T):
            return ([f"v_cvt_pk_bf16_f32 v{V_S+64+8*T+k}, v{V_S+16*T+2*k}, v{V_S+16*T+2*k+1}" for k in range(8)]
                    + [f"buffer_store_dwordx4 {vr(V_S+64+4*p)}, v10, {sr(SRDW)}, s58 offen offset:{512*p} sc1" for p in (2 * T, 2 * T + 1)])
        def fill(n):
            if n - 4 in done: out.extend(emit_tile(done.pop(n - 4)))
            for _ in range(2):
                if out: a(out.pop(0))
        seen = set()
        def bf(w, i, s_):
            if (w, i, s_) not in seen:
                seen.add((w, i, s_))
                if f"of{w}_{i}_{s_}" in c.vm.q: c.vm.wait(f"of{w}_{i}_{s_}")
                fetch(); st.pump(2 if len(seen) <= n_w2 else 1, False)
            return ar(32 * w + 8 * i + 4 * s_)
        if "ep" in c.vm.q: c.vm.wait("ep")
        a(f"v_cmp_ne_u32 vcc, 1, v12\ns_cbranch_vccnz L_{tag}late")
        import copy
        save = (list(c.vm.q), list(todo), list(st.q), dict(st.busy), set(st.landed), dict(st.issued), st.m0_dirty)
        for _ in range(n_look): fetch()
        c.vm.wait("ost"); st._sync(); assert "wo1" in st.landed
        stamp(c, 11); stamp(c, 12, 10)
        publish()
        stamp(c, 12)
        a.label(f"L_{tag}ready")
        qr = list(c.vm.q)
        stamp(c, sbase); stamp(c, 14, 10); cyc(c, 17, True)
        w_ops(a, ops, bf, hi=cut, smap=wsl)
        st.pump(throttle=False); st.need("wo3", fill=False)
        qa, todoa = list(c.vm.q), list(todo)
        a(f"s_branch L_{tag}go")
        a.label(f"L_{tag}late")
        c.vm.q, todo[:], st.q, st.busy, st.landed, st.issued, st.m0_dirty = save
        seen.clear()
        early_poll(c)
        c.vm.wait("ep")
        stamp(c, 11); stamp(c, 12, 10)
        publish()
        stamp(c, 12)
        a(f"v_cmp_ne_u32 vcc, 1, v12\ns_cbranch_vccnz L_{tag}later")
        t0 = list(todo)
        for _ in range(n_look): fetch()
        assert c.vm.q == qr
        a(f"s_branch L_{tag}ready")
        a.label(f"L_{tag}later")
        c.vm.q = []; todo[:] = t0
        st.pump(throttle=False)
        poll(c, tag + "o", S_X0 + 3, 4, 1, V_PA)
        stamp(c, sbase); stamp(c, 14, 10); cyc(c, 17, True)
        for _ in range(n_look): fetch()
        w_ops(a, ops, bf, hi=cut, smap=wsl)
        assert todo == todoa and c.vm.q[len(c.vm.q)-len(qa):] == qa, (c.vm.q, qa)
        a.label(f"L_{tag}go")
        a("s_barrier")
        w_ops(a, ops, bf, lo=cut, fill=fill, smap=wsl)
        cyc(c, 17, False); stamp(c, 18); stamp(c, 15, 10)
        for n in sorted(done): out.extend(emit_tile(done[n]))
        for l in out: a(l)
        stamp(c, sbase + 1)
        c.vm.wait_all()
        stamp(c, sbase + 2); stamp(c, 16, 10)
        reduce(c, tag)

    c2 = mk()
    if qpf:
        a(f"""s_and_b32 s60, s{S_U}, 7
        s_lshl_b32 s60, s60, 2
        s_add_u32 s60, s60, s{S_WAVE}          ; 0..31
        s_lshr_b32 s61, s{S_U}, 3              ; h
        v_lshrrev_b32 v40, 3, v{V_LANE}
        v_and_b32 v41, 7, v{V_LANE}
        v_lshlrev_b32 v41, 7, v41
        v_lshl_add_u32 v40, v40, 13, v41
        v_lshrrev_b32 v41, 1, v{V_LANE}
        v_and_b32 v42, 1, v{V_LANE}
        v_lshlrev_b32 v42, 7, v42
        v_lshl_add_u32 v41, v41, 11, v42       ; 32 rows x 256 B
        s_and_b32 s62, s60, 15
        s_lshl_b32 s62, s62, 16
        s_lshl_b32 s7, s61, 20
        s_add_u32 s62, s62, s7
        s_lshl_b32 s7, s{S_J}, 10
        s_add_u32 s62, s62, s7                 ; Wq offset of k-tile h
        s_and_b32 s63, s60, 7
        s_lshl_b32 s63, s63, 16
        s_lshr_b32 s7, s60, 4
        s_lshl_b32 s7, s7, 8
        s_add_u32 s63, s63, s7
        s_lshl_b32 s7, s61, 9
        s_add_u32 s63, s63, s7                 ; x offset of k-tile 2h + (0|1)
        s_waitcnt lgkmcnt(0)
        s_bitcmp1_b32 s60, 4
        s_cselect_b32 s12, s{P_BWQ}, s{P_AWQ}
        s_cselect_b32 s13, s{P_BWQ+1}, s{P_AWQ+1}
        s_mov_b32 s14, 0x800000
        s_mov_b32 s15, 0x20000
        s_bitcmp1_b32 s60, 3
        s_cselect_b32 s{SRDT}, s{P_BX}, s{P_AX}
        s_cselect_b32 s{SRDT+1}, s{P_BX+1}, s{P_AX+1}
        s_mov_b32 s{SRDT+2}, 0x80000
        s_mov_b32 s{SRDT+3}, 0x20000""")
        for n, kind in enumerate("xWWxWW"):
            if qpf[n] == "1":
                if kind == "x": a(f"buffer_load_dword v43, v41, {sr(SRDT)}, s63 offen")
                else: a("buffer_load_dword v43, v40, s[12:15], s62 offen")
                c2.vm.issue("pf")
                if int(qthr): a(f"s_waitcnt vmcnt({int(qthr)-1})")
            a("s_add_u32 s63, s63, 1024" if kind == "x" else f"s_add_u32 s62, s62, {2<<20}")
    add_kv(c2, n_g2k, n_g2v, True)
    if stamps == 9: c2.st.run_pre("k0"); a("s_memrealtime s[62:63]")
    c2.st.pump(n_g2k[0])
    if stamps == 9:
        a(f"s_memrealtime s[64:65]\ns_waitcnt vmcnt({n_g2k[0]-1})\ns_memrealtime s[66:67]\ns_waitcnt vmcnt(0)\ns_memrealtime s[68:69]\ns_waitcnt lgkmcnt(0)")
        a("s_mov_b32 s92, s62\ns_mov_b32 s93, s64\ns_mov_b32 s94, s66\ns_mov_b32 s95, s68")
    a("s_branch L_g2")
    a.label("L_g1")
    c = mk(); st = c.st
    if int(nog1):
        global SPIN; SPIN = 4
        a("s_waitcnt lgkmcnt(0)"); common(); fp_word(); a("s_branch L_red")
    set_kd(a, 2048)
    a(f"""s_lshr_b32 s{S_X0+5}, s{S_U}, 3           ; X
    s_and_b32 s{S_X0+6}, s{S_U}, 3            ; hh
    s_bfe_u32 s{S_X0+7}, s{S_U}, 0x10002      ; r
    s_lshl_b32 s{S_X0+8}, s{S_X0+7}, 2
    s_add_u32 s{S_X0+8}, s{S_X0+8}, s{S_WAVE}   ; batch
    s_lshl_b32 s{S_A+3}, s{S_X0+8}, 16
    s_lshl_b32 s7, s{S_J}, 2
    s_add_u32 s{S_X0+9}, s{S_X0+6}, s7          ; head
    s_lshl_b32 s{S_X0+2}, s{S_X0+6}, 1
    s_lshl_b32 s7, s{S_X0+7}, 2
    s_add_u32 s{S_X0+2}, s{S_X0+2}, s7
    s_and_b32 s{S_X0+2}, s{S_X0+2}, {7 if int(rotq) else 0}   ; rotation of the k tiles
    s_lshl_b32 s{S_A+2}, s{S_X0+2}, 8
    s_add_u32 s{S_A}, s{S_A+3}, s{S_A+2}""")
    def sigma(i, S, sh):
        a(f"s_add_u32 s7, s{S_X0+6}, {i>>1}\ns_and_b32 s7, s7, 3\ns_lshl_b32 s7, s7, 1\ns_add_u32 s7, s7, s{S_X0+7}")
        if i & 1: a("s_xor_b32 s7, s7, 1")
        a(f"s_lshl_b32 s7, s7, {sh}\ns_add_u32 s{S}, s{S+3}, s7")
    if int(rotq) == 2: sigma(0, S_A, 8)
    a("s_waitcnt lgkmcnt(0)")
    srd_sel(a, SRD0, S_X0 + 5, P_AX, P_BX, 0x80000)
    a(f"s_lshl_b32 s{S_SCR}, s{S_WAVE}, 13\ns_add_u32 s{S_SCR}, s{S_SCR}, {LDS_SCR}")
    def prewq():
        set_vd(a, 8192)
        srd_sel(a, SRD1, S_X0 + 5, P_AWQ, P_BWQ, 0x800000)
        a(f"s_lshl_b32 s{S_B+3}, s{S_X0+9}, 8\ns_lshl_b32 s7, s{S_WAVE}, 18\ns_add_u32 s{S_B+3}, s{S_B+3}, s7")
        a(f"s_lshl_b32 s{S_B+2}, s{S_X0+2}, 20\ns_add_u32 s{S_B}, s{S_B+3}, s{S_B+2}")
        if int(rotq) == 2: sigma(0, S_B, 20)
    for g in ["x0", "w0", "w1"] + [g for t in range(1, 7) for g in (f"x{t}", f"w{t+1}")] + ["x7"]:
        t = int(g[1])
        nx = (lambda t, S, sh: (lambda: sigma(t + 1, S, sh) if t < 7 else None)) if int(rotq) == 2 else (lambda *_: None)
        if g[0] == "x": st.add(g, 4, SRD0, S_A, 256, V_KD, 2048, fl_x, n_x[t], wrap=2048, nxt=nx(t, S_A, 8))
        else: st.add(g, t & 3, SRD1, S_B, 1 << 20, V_VD, 8192, fl_wq, n_wq[t], pre=prewq if t == 0 else None, wrap=8 << 20, nxt=nx(t, S_B, 20))
    st.pump(8)
    common()
    a(f"""s_lshl_b32 s{S_X0+3}, s{S_X0+5}, 3
    s_add_u32 s{S_X0+3}, s{S_X0+3}, s{S_X0+8}
    s_lshl_b32 s{S_X0+3}, s{S_X0+3}, 5
    s_add_u32 s{S_X0+3}, s{S_X0+3}, s{S_X0+9}
    s_lshl_b32 s{S_X0+4}, s{S_X0+3}, 6
    s_add_u32 s{S_X0+4}, s{S_X0+4}, {WS_FQ}
    s_lshl_b32 s{S_X0+3}, s{S_X0+3}, 13""")
    fp_word()
    clear_flags(c, [(S_X0 + 4, 4, 11), (S_FOB, 1, 2), (S_X0 + 1, 4, FS)], "g1clear")
    add_kv(c, n_g1k, n_g1v, False)
    add_wo(c, 1)
    set_kr(a, S_SCR); set_tr(a)
    if pf & 2: code_touch(a, "L_g1pf_x", "L_g2", 32768, 4, "g1pf")
    early = [n_early]
    def gated_pump(throttle):
        if st.can() and st.q[0][0][0] == "k":
            if early[0] <= 0: return
            early[0] -= 1
        st.pump(1, throttle)
    def wpre(t):
        def f():
            st.need(f"x{t}", fill=(t < 6))
            for s in range(8): a(f"ds_read_b128 {ar(32*t+4*s)}, v{V_KR+s}")
            if t == 0: stamp(c, 1)
            st.need(f"w{t}", fill=(t < 6))
            if t == 0: count_in(c, "g1count")
            stamp(c, 3 + 2 * t, 3)
            a("s_barrier")
            stamp(c, 4 + 2 * t, 3)
            if t == 3: stamp(c, 3, 7); cyc(c, 5, True, 7)
            if t == 6: stamp(c, 4, 7); cyc(c, 5, False, 7)
            if prew:
                if t == 0: prew_setup(c); prew_o(c, S_OB)
                if t < 4: prew_part(c, 2 * t); prew_part(c, 2 * t + 1)
            if t: st.release(f"w{t-1}")
            if t == 7:
                assert st.issued["x7"] == 8
                st.run_pre("k0")
        return f
    w_steps(a, [(t & 3, (lambda t: lambda w, s: ar(32 * t + 4 * (2 * w + s)))(t), wpre(t)) for t in range(8)],
            between=lambda n: (gated_pump(True), gated_pump(True)), opened=lambda i: (st.release(f"x{i}"), set_kr(a) if i == 7 else None))
    a(f"s_add_u32 s{S_TMP}, s{S_X0+3}, 4096")
    for T in range(4):
        for i in range(0, 16, 2):
            a(f"v_pk_mul_f32 {vr(V_S+16*T+i,2)}, {vr(V_S+16*T+i,2)}, s[{S_C}:{S_C+1}] op_sel_hi:[1,0]")
        for k in range(8): a(f"v_cvt_pk_bf16_f32 v{V_S+64+8*T+k}, v{V_S+16*T+2*k}, v{V_S+16*T+2*k+1}")
        for s in (2 * T, 2 * T + 1):
            a(f"buffer_store_dwordx4 {vr(V_S+64+4*s)}, v{V_L16}, {sr(SRDW)}, s{S_TMP if s>=4 else S_X0+3} offen offset:{1024*(s&3)} sc1")
    c.vm.issue("qst", 8)
    st.pump(3, throttle=False)
    c.vm.wait("qst"); st._sync()
    flag_store(c, S_X0 + 4)
    a("s_barrier"); st.release("w7")
    stamp(c, 2)
    if int(lag):
        a(f"s_cmp_eq_u32 s{S_X0+6}, 1\ns_cselect_b32 s{S_X0+5}, 1, 0"); st.lag = S_X0 + 5
    mha1(c)
    oproj(c, 1, "g1", [(S_FOB, 1)], 13)

    a.label("L_g2")
    c = c2; st = c.st
    common()
    if stamps == 9: a("s_mov_b32 s73, s92\ns_mov_b32 s74, s93\ns_mov_b32 s75, s94\ns_mov_b32 s76, s95"); stamp(c, 7, 9)
    a(f"""s_lshl_b32 s{S_X0+5}, s{S_U}, 1
    s_lshl_b32 s{S_X0+6}, s{S_J}, 5
    s_add_u32 s{S_X0+6}, s{S_X0+6}, s{S_X0+5}   ; b*32+h
    s_lshl_b32 s{S_X0+7}, s{S_X0+6}, 6
    s_add_u32 s{S_X0+7}, s{S_X0+7}, {WS_FQ}     ; Q flag
    s_lshl_b32 s{S_X0+6}, s{S_X0+6}, 13         ; Q offset (O = +WS_O)
    s_lshl_b32 s{S_X0+8}, s{S_J}, 3
    s_lshr_b32 s7, s{S_U}, 1
    s_add_u32 s{S_X0+8}, s{S_X0+8}, s7
    s_lshl_b32 s{S_X0+8}, s{S_X0+8}, {FS}
    s_and_b32 s7, s{S_U}, 1
    s_lshl_b32 s7, s7, {FW+1}
    s_add_u32 s{S_X0+8}, s{S_X0+8}, s7
    s_add_u32 s{S_X0+8}, s{S_X0+8}, {WS_FO}
    s_add_u32 s{S_X0+9}, s{S_X0+8}, 4""")
    def kva_off(S):
        a(f"s_lshl_b32 s{S+3}, s{S_J}, 2\ns_lshr_b32 s7, s{S_U}, 2\ns_add_u32 s{S+3}, s{S+3}, s7\ns_lshl_b32 s{S+3}, s{S+3}, 18")
        a(f"s_lshl_b32 s7, s{S_WAVE}, 13\ns_add_u32 s{S+3}, s{S+3}, s7")
        a(f"s_and_b32 s{S+2}, s{S_U}, {3 if rot else 0}\ns_lshl_b32 s{S+2}, s{S+2}, {15 if int(rota) == 2 else 16}\ns_add_u32 s{S}, s{S+3}, s{S+2}")
    def half2(S): return lambda: a(f"s_add_u32 s{S+3}, s{S+3}, 131072\ns_add_u32 s{S}, s{S}, 131072")
    wra = 131072 if int(rota) == 2 else 262144
    five = int(five)
    ASL = [n % 5 if five else n & 3 for n in range(16)]
    WSL2 = [1, 2, 3, 0] if five else [0, 1, 2, 3]
    a(f"s_lshl_b32 s{S_SCR}, s{S_WAVE}, 13\ns_add_u32 s{S_SCR}, s{S_SCR}, {LDS_SCR}")
    def preka(): srd(a, SRD0, P_AK, 0x800000); kva_off(S_A)
    def preva(): srd(a, SRD1, P_AV, 0x800000); kva_off(S_B)
    fp_word()
    clear_flags(c, [(S_FOB, 1, 2), (S_X0 + 8, 2, FW), (S_X0 + 1, 4, FS)], "g2clear")
    for t in range(8): st.add(f"ka{t}", ASL[t], SRD0, S_A, 32768, V_KD, 256, fl_kva, n_kva[t], pre=preka if t == 0 else half2(S_A) if t == 4 and int(rota) == 2 else None, wrap=wra)
    for t in range(8): st.add(f"va{t}", ASL[8 + t], SRD1, S_B, 32768, V_VD, 256, fl_kva, n_vva[t], single=True, pre=preva if t == 0 else half2(S_B) if t == 4 and int(rota) == 2 else None, wrap=wra)
    add_wo(c, 0, WSL2)
    set_kr(a); set_tr(a)
    if pf & 4: code_touch(a, "L_g2pf_x", "L_end", 32768, 4, "g2pf")
    if int(tlb):
        a(f"s_cmp_lg_u32 s{S_WAVE}, 2\ns_cbranch_scc1 L_tlb_x")
        a(f"v_lshlrev_b32 v{V_F+29}, 20, v{V_LANE}")
        for p, n in ((P_AWO, 8), (P_BWO, 8), (P_AK, 8), (P_AV, 8), (P_OUT, 1), (P_WS, 24)):
            srd(a, SRDT, p, n << 20)
            a(f"buffer_load_dword v{V_T0}, v{V_F+29}, {sr(SRDT)}, 0 offen")
        a.label("L_tlb_x")
    def qa_hook(t):
        if t == 1: ck_issue(c, "ws", (S_X0 + 7, 2, 6))
        if t == 3:
            ck_verify(c, "g2qa")
            q_dma(c, S_X0 + 6, 0, "qa")
            a(f"s_add_u32 s{S_X0+7}, s{S_X0+6}, 8192")
            q_dma(c, S_X0 + 7, 2048, "qa")
        if t == 7:
            if "qa" in c.vm.q: c.vm.wait("qa")
            st._sync()
            a("s_barrier")
            q_read(c, 0, lambda s: vr(V_Q + 4 * s)); a("s_waitcnt lgkmcnt(4)")
            q_read(c, 2048, lambda s: ar(A_Q1 + 4 * s))
            a("s_waitcnt lgkmcnt(0)\ns_barrier")
    mha2(c, qa_hook)
    st.release("v7")
    if kvpf & 2: touch(c, P_AV, 0x800000, KVA_BASE, 32768, 256, fl_kva)
    stamp(c, 5)
    if pf & 1: code_touch(a, "L_g2tail2", "L_end", 16384, 2, "g2pf2")
    def wo_gap(t):
        if st.issued.get("wo1", 0) == 7 and not getattr(c, "gap_done", False):
            c.gap_done = True
            a(f"buffer_load_dword v{V_T0}, v{V_VD+3}, {sr(SRD1)}, s{S_B+1} offen offset:3072 {fl_wo}")
            c.vm.issue("pf")
    st.gate("va1"); st.gate("wo1", 7)
    a(f"s_sub_u32 s{S_DLT}, s{S_SCR}, s{S_RING}")
    gqa_k(c, [f"ka{t}" for t in range(8)], ASL[:8], lambda t: st.open("va1") if t == va1 - 1 else None)
    st.open("va1"); st.pump(8 if va1 == 8 else 0, False)
    stamp(c, 6)
    a.label("L_gv")
    if kvpf & 4: touch(c, P_AWO, 0x800000, WO_BASE.replace(f"v{V_CA}", f"v{V_CA}"), 65536, 2048, fl_wo)
    heads = [dict(acc=lambda B: ar(A_O + 16 * B, 16), L=A_L, M=V_M, slot=WSL2[3], b3=("scr", 0), st=(WSL2[1], 7168), dst=S_X0 + 6),
             dict(acc=o1, L=A_L1, M=V_M1, slot=WSL2[2], b3=("scr", 4096), st=(WSL2[1], 7168 + 8), dst=S_X0 + 7)]
    held = ("va5", "va6", "va7") if five else ("va6", "va7")
    epi = Epi(c, heads, t=V_P1, sv=(2, 4)) if int(ovl) else None
    gqa_v(c, [f"va{t}" for t in range(8)], ASL[8:], hold=held, hook=wo_gap,
          last=(lambda n: [epi.do(x) for x in {-1: ["addr"], 0: ["stats"], 1: [1], 2: [2], 3: [3]}[n]]) if epi else None)
    stamp(c, 7)
    a.label("L_g2tail2")
    a(f"s_add_u32 s{S_X0+6}, s{S_X0+6}, {WS_O}\ns_add_u32 s{S_X0+7}, s{S_X0+7}, {WS_O}")
    o_epi(c, heads, epi=epi,
          idle=lambda: tail_setup(c, 0), mid=lambda: early_poll(c), freed=lambda: freed(c, held))
    oproj(c, 0, "g2", [(S_X0 + 8, 2), (S_FOB, 1)], 13, WSL2)

    a.label("L_red")
    c = mk()
    if stamps:
        a("s_waitcnt vmcnt(0)"); stamp(c, 19)
        if stamps == 4: a("s_getreg_b32 s88, hwreg(HW_REG_HW_ID)\ns_bfe_u32 s88, s88, 0x80008\ns_mul_i32 s88, s88, 100\ns_add_u32 s88, s88, s70")
        a(f"s_lshl_b32 s7, s2, 2\ns_add_u32 s7, s7, s{S_WAVE}\ns_lshl_b32 s7, s7, 7\ns_add_u32 s7, s7, {WS_ST}")
        for n in range(20): a(f"v_mov_b32 v{V_S+n}, s{70+n}")
        a(f"v_mov_b32 v{V_T0}, 0\ns_mov_b64 exec, 1")
        for q in range(5): a(f"buffer_store_dwordx4 {vr(V_S+4*q)}, v{V_T0}, {sr(SRDW)}, s7 offen offset:{16*q}")
    a.label("L_end"); a("s_endpgm")
    if "L" in hack: a.lines = [l for l in a.lines if not (l.startswith("v_mfma") and f", {vr(V_ONE)}," in l)]
    if "E" in hack: a.lines = [l.replace("v_exp_f32", "v_mov_b32") for l in a.lines]
    def strip(l0, l1, pred):
        i0 = a.lines.index(l0); i1 = a.lines.index(l1)
        a.lines[i0:i1] = [l for l in a.lines[i0:i1] if not pred(l)]
    if "K" in hack: strip("L_g2pf2_x:", "L_gv:", lambda l: l.startswith("v_mfma"))
    if "V" in hack: strip("L_gv:", "L_g2tail2:", lambda l: l.startswith("v_mfma"))
    if "P" in hack: strip("L_g1pf3_x:", "L_g1tail:", lambda l: l.startswith("v_mfma"))
    if "R" in hack: strip("L_g2pf2_x:", "L_g2tail2:", lambda l: l.startswith("ds_read"))
    if "H" in hack: strip("L_gv:", "L_g2tail2:", lambda l: l.startswith("v_mfma_f32_32") and (l.split()[1].startswith("v[4") or l.split()[1].startswith("v[5") or l.split()[1].startswith("a[96") or l.split()[1].startswith("a[112")))
    if "M" in hack:
        i0 = a.lines.index("L_g2pf2_x:"); i1 = a.lines.index("L_g2tail2:")
        a.lines[i0:i1] = [l for n, l in enumerate(a.lines[i0:i1]) if not l.startswith("v_mfma")]
    s = header(["; @launch grid=(256,1,1) block=(256,1,1) lds=163840"])
    s += kernel_open(NAME + "_kernel") + a.finish() + "\n"
    s += '.section .rodata,"a"\n.p2align 6\n' + descriptor(NAME + "_kernel")
    return s

if __name__ == "__main__":
    out = sys.argv[1]
    kw = dict(x.split("=") for x in sys.argv[2:])
    open(out, "w").write(build(**kw))
```

```python
from asmlib import Asm
NAME = "concat_heads__gqa_block_cached__mha_block_cached__near_ridge"

P_AX, P_AK, P_AV, P_AWQ, P_AWO, P_BX, P_BK, P_BV = 16, 18, 20, 22, 24, 26, 28, 30
P_BWQ, P_BWO, P_OUT, P_DBG, P_WS = 32, 34, 36, 38, 40
S_WAVE, S_RING, S_TMP = 3, 4, 5
SRD0, SRD1, SRDW = 8, 12, 44
WS_Q, WS_O, WS_P, WS_F = 0, 4 << 20, 8 << 20, 16 << 20
WS_BYTES = 268435456
V_LANE = 1
V_KD = 2
V_VD = 6
V_KR = 10
V_TV = 18
V_TW = 22
V_L16 = 30
V_T0 = 31
V_Q = 40
V_F = 72
V_S = 128
LDS_SCR = 131072
C_SCALE = 0.08838834764831845 * 1.4426950408889634

import struct
def f32(x): return "0x%08x" % struct.unpack("<I", struct.pack("<f", x))[0]
def vr(b, n=4): return f"v[{b}:{b+n-1}]"
def ar(b, n=4): return f"a[{b}:{b+n-1}]"
def sr(b, n=4): return f"s[{b}:{b+n-1}]"

class VM:
    def __init__(self, a): self.a = a; self.q = []
    def issue(self, tag, n=1): self.q += [tag] * n
    def wait(self, tag):
        idx = max(i for i, t in enumerate(self.q) if t == tag)
        n = len(self.q) - 1 - idx
        assert n <= 63
        self.a(f"s_waitcnt vmcnt({n})"); self.q = self.q[idx + 1:]
    def wait_all(self):
        self.a("s_waitcnt vmcnt(0)"); self.q = []

def header(launches):
    s = open("cdna_kernels/" + NAME + ".s.ref").read().split("; Override launch")[0]
    s += "".join(l + "\n" for l in launches)
    s += '.amdgcn_target "amdgcn-amd-amdhsa--gfx950"\n.text\n'
    return s

def kernel_open(name):
    return f".globl {name}\n.p2align 8\n.type {name},@function\n{name}:\n"

def descriptor(name, vgpr=512, accum=256, sgpr=102):
    return f""".amdhsa_kernel {name}
  .amdhsa_next_free_vgpr {vgpr}
  .amdhsa_next_free_sgpr {sgpr}
  .amdhsa_accum_offset {accum}
  .amdhsa_group_segment_fixed_size 0
  .amdhsa_kernarg_size 104
  .amdhsa_user_sgpr_count 2
  .amdhsa_user_sgpr_kernarg_segment_ptr 1
  .amdhsa_system_sgpr_workgroup_id_x 1
.end_amdhsa_kernel
"""

def prologue(a, nwg, end):
    a(f"""s_cmp_ge_u32 s2, {nwg}
    s_cbranch_scc1 {end}
    s_load_dwordx16 s[16:31], s[0:1], 0
    s_load_dwordx8 s[32:39], s[0:1], 64
    s_load_dwordx2 s[40:41], s[0:1], 96
    v_lshrrev_b32 v{V_T0}, 6, v0
    v_and_b32 v{V_LANE}, 63, v0
    v_readfirstlane_b32 s{S_WAVE}, v{V_T0}
    v_lshlrev_b32 v{V_L16}, 4, v{V_LANE}
    s_lshl_b32 s{S_RING}, s{S_WAVE}, 15""")

def srd(a, d, ptr, size):
    a(f"s_mov_b32 s{d}, s{ptr}\ns_mov_b32 s{d+1}, s{ptr+1}\ns_mov_b32 s{d+2}, {size}\ns_mov_b32 s{d+3}, 0x20000")

def srd_sel(a, d, cond, p0, p1, size0, size1=None):
    a(f"s_cmp_eq_u32 s{cond}, 0\ns_cselect_b32 s{d}, s{p0}, s{p1}\ns_cselect_b32 s{d+1}, s{p0+1}, s{p1+1}")
    if size1 is None or size1 == size0: a(f"s_mov_b32 s{d+2}, {size0}")
    else: a(f"s_mov_b32 s{d+2}, {size1}\ns_cmov_b32 s{d+2}, {size0}")
    a(f"s_mov_b32 s{d+3}, 0x20000")

def set_kd(a, rs, dst=V_KD, ps=None):
    t = V_T0
    sh = rs.bit_length() - 1
    a(f"""v_lshrrev_b32 v{t}, 4, v{V_LANE}
    v_and_b32 v{dst}, 15, v{V_LANE}
    v_xor_b32 v{dst}, v{dst}, v{t}
    v_lshlrev_b32 v{dst}, 4, v{dst}
    v_lshlrev_b32 v{t}, {sh}, v{t}""")
    for k in (1, 2, 3):
        a(f"v_xor_b32 v{dst+k}, {64*k}, v{dst}")
        a(f"v_add_u32 v{dst+k}, v{dst+k}, v{t}")
        if (ps or 4 * rs) != 1024: a(f"v_add_u32 v{dst+k}, {k*((ps or 4*rs)-1024)}, v{dst+k}")
    a(f"v_add_u32 v{dst}, v{dst}, v{t}")

def set_vd(a, rs, dst=V_VD, ps=None):
    sh = rs.bit_length() - 1
    a(f"""v_lshrrev_b32 v{dst+1}, 4, v{V_LANE}
    v_and_b32 v{dst+2}, 15, v{V_LANE}
    v_lshlrev_b32 v{dst+3}, 2, v{dst+1}
    v_xor_b32 v{dst+2}, v{dst+2}, v{dst+3}
    v_lshlrev_b32 v{dst+2}, 4, v{dst+2}
    v_lshl_add_u32 v{dst}, v{dst+1}, {sh}, v{dst+2}""")
    if (ps or 4 * rs) != 1024:
        for k in range(1, 4):
            a(f"v_add_u32 v{dst+k}, {k*((ps or 4*rs)-1024)}, v{dst}")

def set_kr(a, base=S_RING):
    t = V_T0
    a(f"""v_and_b32 v{t}, 31, v{V_LANE}
    v_lshrrev_b32 v{t+1}, 5, v{V_LANE}
    v_and_b32 v{t+2}, 15, v{V_LANE}
    v_xor_b32 v{t+1}, v{t+1}, v{t+2}
    v_lshlrev_b32 v{t+1}, 4, v{t+1}
    v_lshlrev_b32 v{t}, 8, v{t}
    v_add_u32 v{t}, s{base}, v{t}""")
    for s in range(8):
        a(f"v_xor_b32 v{V_KR+s}, {32*s}, v{t+1}")
        a(f"v_add_u32 v{V_KR+s}, v{V_KR+s}, v{t}")

def set_tr(a, want_v=True, want_w=True):
    t = V_T0
    a(f"""v_bfe_u32 v{t}, v{V_LANE}, 2, 2
    v_bfe_u32 v{t+1}, v{V_LANE}, 4, 1
    v_lshlrev_b32 v{t+1}, 5, v{t+1}
    v_and_b32 v{t+2}, 1, v{V_LANE}
    v_lshl_add_u32 v{t+1}, v{t+2}, 4, v{t+1}
    v_bfe_u32 v{t+2}, v{V_LANE}, 1, 1
    v_lshl_add_u32 v{t+1}, v{t+2}, 3, v{t+1}
    v_lshl_add_u32 v{t+1}, v{t}, 8, v{t+1}
    v_lshrrev_b32 v{t+2}, 5, v{V_LANE}
    v_lshlrev_b32 v{t}, 6, v{t}""")
    for T in range(4):
        a(f"v_xor_b32 v{t+3}, {64*T}, v{t}")
        a(f"v_add_u32 v{t+3}, v{t+3}, v{t+1}")
        if want_w:
            a(f"v_lshl_add_u32 v{V_TW+T}, v{t+2}, 11, v{t+3}")
            a(f"v_add_u32 v{V_TW+4+T}, 0x10000, v{V_TW+T}")
    if want_v:
        for B in range(4):
            a(f"s_add_u32 s{S_TMP}, s{S_WAVE}, {B}\ns_and_b32 s{S_TMP}, s{S_TMP}, 3\ns_lshl_b32 s{S_TMP}, s{S_TMP}, 6")
            a(f"v_xor_b32 v{t+3}, s{S_TMP}, v{t}")
            a(f"v_add3_u32 v{t+3}, v{t+3}, v{t+1}, s{S_RING}")
            a(f"v_lshl_add_u32 v{V_TV+B}, v{t+2}, 10, v{t+3}")

def dma_tile(a, vm, tag, srdreg, soff, voff, rs, slot, fl, single=False):
    fl = (" " + fl) if fl else ""
    a(f"s_add_u32 m0, s{S_RING}, {slot*8192}")
    a(f"s_add_u32 s{S_TMP}, s{soff}, {16*rs}")
    for half in range(2):
        if half: a(f"s_add_u32 m0, s{S_RING}, {slot*8192+4096}")
        so = S_TMP if half else soff
        for k in range(4):
            off = f" offset:{1024*k}" if k else ""
            a(f"buffer_load_dwordx4 v{voff+(0 if single else k)}, {sr(srdreg)}, s{so} offen{off}{fl} lds")
    vm.issue(tag, 8)

def park(a, vm, tags, slots, after):
    for t in range(8):
        vm.wait(tags[t])
        for s in range(8):
            a(f"ds_read_b128 {ar(32*t+4*s)}, v{V_KR+s} offset:{slots[t]*8192}")
        a("s_waitcnt lgkmcnt(0)")
        after(t)

V_M, V_MC, V_ONE = 32, 33, 36
S_C = 6

def scores(a):
    def mx(t):
        b = V_S + 16 * t
        if t == 0:
            a(f"v_max3_f32 v{V_M}, v{b}, v{b+1}, v{b+2}")
            rest = list(range(3, 16))
        else:
            rest = list(range(16))
        out = []
        while rest:
            if len(rest) >= 2:
                out.append(f"v_max3_f32 v{V_M}, v{V_M}, v{b+rest[0]}, v{b+rest[1]}"); rest = rest[2:]
            else:
                out.append(f"v_max_f32 v{V_M}, v{V_M}, v{b+rest[0]}"); rest = rest[1:]
        return out
    pend = []
    for t in range(8):
        for s in range(8):
            c = "0" if s == 0 else vr(V_S + 16 * t, 16)
            a(f"v_mfma_f32_32x32x16_bf16 {vr(V_S+16*t,16)}, {ar(32*t+4*s)}, {vr(V_Q+4*s)}, {c}")
            if s >= 3:
                for _ in range(2):
                    if pend: a(pend.pop(0))
        while pend: a(pend.pop(0))
        if t == 0:
            pend = [f"v_max3_f32 v{V_M}, v{V_S}, v{V_S+1}, v{V_S+2}"]
            rest = list(range(3, 16))
            pend += [f"v_max3_f32 v{V_M}, v{V_M}, v{V_S+rest[i]}, v{V_S+rest[i+1]}" for i in range(0, 12, 2)]
            pend += [f"v_max_f32 v{V_M}, v{V_M}, v{V_S+15}"]
        else:
            b = V_S + 16 * t
            pend = [f"v_max3_f32 v{V_M}, v{V_M}, v{b+i}, v{b+i+1}" for i in range(0, 16, 2)]
    while pend: a(pend.pop(0))
    a(f"""v_mov_b32 v{V_MC}, v{V_M}
    v_permlane32_swap_b32 v{V_M}, v{V_MC}
    v_max_f32 v{V_M}, v{V_M}, v{V_MC}
    v_mul_f32 v{V_MC}, s{S_C}, v{V_M}""")

A_O, A_L = 0, 64

def softmax_tile(a, t):
    b = V_S + 16 * t
    out = []
    for i in range(16):
        out.append(f"v_fma_f32 v{b+i}, v{b+i}, s{S_C}, -v{V_MC}")
    ex = [f"v_exp_f32 v{b+i}, v{b+i}" for i in range(16)]
    cv = [f"v_cvt_pk_bf16_f32 v{b+k}, v{b+2*k}, v{b+2*k+1}" for k in range(8)]
    return out + ex + cv

def pv(a, vm, tags, slots, after):
    for k in range(4): a(f"v_mov_b32 v{V_ONE+k}, 0x3f803f80")
    for l in softmax_tile(a, 0): a(l)
    for t in range(8):
        vm.wait(tags[t])
        for T in range(4):
            for s in range(2):
                f = V_F + 8 * T + 4 * s
                o = slots[t] * 8192 + 16 * s * 256
                a(f"ds_read_b64_tr_b16 {vr(f,2)}, v{V_TV+T} offset:{o}")
                a(f"ds_read_b64_tr_b16 {vr(f+2,2)}, v{V_TV+T} offset:{o+8*256}")
        nxt = softmax_tile(a, t + 1) if t < 7 else []
        b = V_S + 16 * t
        for s in range(2):
            c = "0" if (t == 0 and s == 0) else ar(A_L, 16)
            a(f"v_mfma_f32_32x32x16_bf16 {ar(A_L,16)}, {vr(V_ONE)}, {vr(b+4*s)}, {c}")
            for _ in range(4):
                if nxt: a(nxt.pop(0))
        n = 0
        for T in range(4):
            for s in range(2):
                n += 1
                a(f"s_waitcnt lgkmcnt({16-2*n})" if 16 - 2 * n <= 15 else "")
                c = "0" if (t == 0 and s == 0) else ar(A_O + 16 * T, 16)
                a(f"v_mfma_f32_32x32x16_bf16 {ar(A_O+16*T,16)}, {vr(V_F+8*T+4*s)}, {vr(b+4*s)}, {c}")
                for _ in range(4):
                    if nxt: a(nxt.pop(0))
        while nxt: a(nxt.pop(0))
        after(t)

def o_epilogue(a, slot, s_dst, vm, fl="sc1", accO=A_O, accL=A_L, vm_reg=V_M):
    t = V_T0 + 3
    a(f"s_lshl_b32 s{S_TMP}, s{S_WAVE}, 13")
    a(f"s_add_u32 s{S_TMP}, s{S_TMP}, {LDS_SCR}")
    a(f"v_add_u32 v{t}, s{S_RING}, v{V_L16}")
    a(f"v_add_u32 v{t+1}, s{S_TMP}, v{V_L16}")
    a(f"v_mov_b32 v{V_F}, v{vm_reg}")
    a(f"v_accvgpr_read_b32 v{V_F+1}, a{accL}")
    a(f"ds_write_b64 v{t+1}, {vr(V_F,2)} offset:4096")
    for B in (1, 2, 3):
        for g in range(4):
            if B < 3: a(f"ds_write_b128 v{t}, {ar(accO+16*B+4*g)} offset:{slot*8192+4096*(B-1)+1024*g}")
            else:     a(f"ds_write_b128 v{t+1}, {ar(accO+16*B+4*g)} offset:{1024*g}")
    for i in range(16): a(f"v_accvgpr_read_b32 v{V_S+i}, a{accO+i}")
    for B in (1, 2, 3):
        a(f"s_sub_u32 s{S_TMP}, s{S_WAVE}, {B}\ns_and_b32 s{S_TMP}, s{S_TMP}, 3")
        a(f"s_lshl_b32 s7, s{S_TMP}, 13\ns_add_u32 s7, s7, {LDS_SCR}")
        a(f"v_add_u32 v{V_F+20+B}, s7, v{V_L16}")
        if B < 3:
            a(f"s_lshl_b32 s{S_TMP}, s{S_TMP}, 15")
            a(f"v_add_u32 v{V_F+24+B}, s{S_TMP}, v{V_L16}")
    a("s_waitcnt lgkmcnt(0)\ns_barrier")
    for B in (1, 2, 3): a(f"ds_read_b64 {vr(V_F+2*B,2)}, v{V_F+20+B} offset:4096")
    for B in (1, 2, 3):
        for g in range(4):
            if B < 3: a(f"ds_read_b128 {vr(V_S+16*B+4*g)}, v{V_F+24+B} offset:{slot*8192+4096*(B-1)+1024*g}")
            else:     a(f"ds_read_b128 {vr(V_S+16*B+4*g)}, v{V_F+20+B} offset:{1024*g}")
    a("s_waitcnt lgkmcnt(12)")
    m = [V_F + 2 * u for u in range(4)]; l = [x + 1 for x in m]
    M = V_F + 8; L = V_F + 9; f = [V_F + 10 + u for u in range(4)]
    a(f"v_max3_f32 v{M}, v{m[0]}, v{m[1]}, v{m[2]}\nv_max_f32 v{M}, v{M}, v{m[3]}")
    for u in range(4): a(f"v_sub_f32 v{f[u]}, v{m[u]}, v{M}")
    for u in range(4): a(f"v_mul_f32 v{f[u]}, s{S_C}, v{f[u]}")
    for u in range(4): a(f"v_exp_f32 v{f[u]}, v{f[u]}")
    a(f"v_mul_f32 v{L}, v{f[0]}, v{l[0]}")
    for u in range(1, 4): a(f"v_fmac_f32 v{L}, v{f[u]}, v{l[u]}")
    a(f"v_rcp_f32 v{L}, v{L}")
    for u in range(4): a(f"v_mul_f32 v{f[u]}, v{f[u]}, v{L}")
    for i in range(16): a(f"v_mul_f32 v{V_S+i}, v{V_S+i}, v{f[0]}")
    for B in (1, 2, 3):
        a(f"s_waitcnt lgkmcnt({12-4*B})")
        for i in range(16): a(f"v_fmac_f32 v{V_S+i}, v{V_S+16*B+i}, v{f[B]}")
    for k in range(8): a(f"v_cvt_pk_bf16_f32 v{V_S+k}, v{V_S+2*k}, v{V_S+2*k+1}")
    a(f"s_lshl_b32 s{S_TMP}, s{S_WAVE}, 11\ns_add_u32 s{S_TMP}, s{S_TMP}, s{s_dst}")
    a(f"buffer_store_dwordx4 {vr(V_S)}, v{V_L16}, {sr(SRDW)}, s{S_TMP} offen {fl}")
    a(f"buffer_store_dwordx4 {vr(V_S+4)}, v{V_L16}, {sr(SRDW)}, s{S_TMP} offen offset:1024 {fl}")
    vm.issue("ost", 2)

def w_steps(a, steps, first=True, between=None, opened=None):
    items = [(i, w, s) for i in range(len(steps)) for w in range(4) for s in range(2)]
    def reads(n):
        i, w, s = items[n]
        slot = steps[i][0]
        buf = V_F + 16 * (n % 2)
        out = []
        for T in range(4):
            va = V_TW + T + (4 if w >= 2 else 0)
            o = (w & 1) * 32768 + slot * 8192 + 16 * s * 256
            out.append(f"ds_read_b64_tr_b16 {vr(buf+4*T,2)}, v{va} offset:{o}")
            out.append(f"ds_read_b64_tr_b16 {vr(buf+4*T+2,2)}, v{va} offset:{o+4*256}")
        return out
    if steps[0][2]: steps[0][2]()
    for l in reads(0): a(l)
    for n, (i, w, s) in enumerate(items):
        last = n + 1 == len(items)
        cross = (not last) and items[n + 1][0] != i and steps[i + 1][2] is not None
        if cross:
            a("s_waitcnt lgkmcnt(0)")
            steps[i + 1][2]()
        nxt = [] if last else reads(n + 1)
        buf = V_F + 16 * (n % 2)
        for T in range(4):
            if not cross: a(f"s_waitcnt lgkmcnt({6 - 2*T if last else 6})")
            if opened and T == 0 and w == 0 and s == 0: opened(i)
            c = "0" if (first and n == 0) else vr(V_S + 16 * T, 16)
            b = steps[i][1](w, s)
            a(f"v_mfma_f32_32x32x16_bf16 {vr(V_S+16*T,16)}, {vr(buf+4*T)}, {b}, {c}")
            if T == 0 and between: between(n)
            if nxt: a(nxt.pop(0)); a(nxt.pop(0))

def w_items(a, items, bfrag, before={}, lo=0, hi=None):
    def reads(n):
        w, slot, s = items[n]
        buf = V_F + 16 * (n % 2)
        out = []
        for T in range(4):
            va = V_TW + T + (4 if w >= 2 else 0)
            o = (w & 1) * 32768 + slot * 8192 + 16 * s * 256
            out.append(f"ds_read_b64_tr_b16 {vr(buf+4*T,2)}, v{va} offset:{o}")
            out.append(f"ds_read_b64_tr_b16 {vr(buf+4*T+2,2)}, v{va} offset:{o+4*256}")
        return out
    if lo == 0:
        for l in reads(0): a(l)
    for n, it in list(enumerate(items))[lo:hi]:
        last = n + 1 == len(items)
        if n + 1 in before: before[n + 1]()
        nxt = [] if last else reads(n + 1)
        buf = V_F + 16 * (n % 2)
        for T in range(4):
            a(f"s_waitcnt lgkmcnt({6 - 2*T if last else 6})")
            c = "0" if n == 0 else vr(V_S + 16 * T, 16)
            b = bfrag(*it)
            a(f"v_mfma_f32_32x32x16_bf16 {vr(V_S+16*T,16)}, {vr(buf+4*T)}, {b}, {c}")
            if nxt: a(nxt.pop(0)); a(nxt.pop(0))

def w_ops(a, ops, bfrag, lo=0, hi=None, fill=None, smap=(0, 1, 2, 3), before={}, waited={}, behind=None, at={}, sets=None):
    def reads(n):
        w, slot, s, T = ops[n][:4]
        buf = V_F + 4 * (n % 8)
        va = V_TW + T + (4 if w >= 2 else 0)
        o = (w & 1) * 32768 + smap[slot] * 8192 + 16 * s * 256
        if sets: va, o = sets[w & 1] + T, smap[slot] * 8192 + 16 * s * 256
        return [f"ds_read_b64_tr_b16 {vr(buf,2)}, v{va} offset:{o}", f"ds_read_b64_tr_b16 {vr(buf+2,2)}, v{va} offset:{o+4*256}"]
    if lo == 0:
        for n in range(4):
            for l in reads(n): a(l)
    started = {op[3] for op in ops[:lo]}
    for n in range(lo, len(ops) if hi is None else hi):
        w, slot, s, T = ops[n][:4]
        if n in at: at[n]()
        if n in before: before[n]()
        if not any(n - k in before for k in range(4)): a(f"s_waitcnt lgkmcnt({min(6, 2 * (len(ops) - 1 - n))})")
        if n in waited: waited[n]()
        c = vr(V_S + 16 * T, 16) if T in started else "0"
        started.add(T)
        b = bfrag(w, slot, s, *ops[n][4:])
        a(f"v_mfma_f32_32x32x16_bf16 {vr(V_S+16*T,16)}, {vr(V_F+4*(n%8))}, {b}, {c}")
        if behind: behind(n)
        if n + 4 < len(ops):
            for l in reads(n + 4): a(l)
        if fill: fill(n)

def cvt_acc(a):
    for T in range(4):
        for k in range(8):
            a(f"v_cvt_pk_bf16_f32 v{V_S+64+8*T+k}, v{V_S+16*T+2*k}, v{V_S+16*T+2*k+1}")
```

```python
import sys
from engines import *

WS_FQ = WS_F
WS_FO = WS_F + 0x200000
WS_FP = WS_F + 0x400000
WS_ST = WS_F + 0x100000
FS = 7
FW = 2
SLEEP = 0
APOLL = 1
KP = 3
ACK = 1
NPOLL = 1
PGAP = 0
GAP = 28
S_SCR = 69
SPIN = 1 << 18
SRDT = 88

class Stream:
    def __init__(self, a, vm):
        self.a, self.vm = a, vm
        self.q = []
        self.busy = {}
        self.landed = set(); self.issued = {}; self.m0_dirty = False; self.pres = {}; self.gates = set(); self.lag = None; self.nl = 0
    def run_pre(self, tag):
        box = self.pres[tag]
        if box[0]: box[0](); box[0] = None
    def add(self, tag, slot, srdreg, soff, step, voff, rs, fl, N, single=False, pre=None, wrap=None, nxt=None, ps=None):
        a = self.a
        fl = (" " + fl) if fl else ""
        sb, so_ = (S_SCR, 0) if slot == 4 else (S_RING, slot * 8192)
        box = [pre]
        def emit(k):
            if k == 0:
                if box[0]: box[0](); box[0] = None
                a(f"s_add_u32 m0, s{sb}, {so_}")
            if k == 4:
                a(f"s_add_u32 s{soff+1}, s{soff}, {4*(ps or 4*rs)}")
                a(f"s_add_u32 m0, s{sb}, {so_+4096}")
            if self.m0_dirty and k & 3: a(f"s_add_u32 m0, s{sb}, {so_+(k&4)*1024}")
            self.m0_dirty = False
            so = soff + 1 if k >= 4 else soff
            off = f" offset:{1024*(k&3)}" if k & 3 else ""
            a(f"buffer_load_dwordx4 v{voff+(0 if single else k&3)}, {sr(srdreg)}, s{so} offen{off}{fl} lds")
            if k == 7:
                if nxt is not None: nxt()
                elif wrap is None: a(f"s_add_u32 s{soff}, s{soff}, {step}")
                else:
                    a(f"s_add_u32 s{soff+2}, s{soff+2}, {step}\ns_and_b32 s{soff+2}, s{soff+2}, {wrap-1}\ns_add_u32 s{soff}, s{soff+3}, s{soff+2}")
        for k in range(8): self.q.append((tag, slot, k, emit, N))
        self.pres[tag] = box
    def can(self):
        if not self.q: return False
        tag, slot, k, _, _ = self.q[0]
        if (tag, k) in self.gates: return False
        return self.busy.get(slot) in (None, tag)
    def gate(self, tag, k=0): self.gates.add((tag, k))
    def open(self, tag, k=0): self.gates.discard((tag, k))
    def _sync(self):
        for tag, n in self.issued.items():
            if n == 8 and tag not in self.vm.q: self.landed.add(tag)
    def piece(self, throttle=True):
        tag, slot, k, emit, N = self.q.pop(0)
        if throttle and self.lag is not None and N < 8 and tag[0] == "k":
            if len(self.vm.q) >= N:
                self.nl += 1
                self.a(f"s_cmp_lg_u32 s{self.lag}, 0\ns_cbranch_scc1 L_lag{self.nl}\ns_waitcnt vmcnt({N-1})"); self.a.label(f"L_lag{self.nl}")
            N = 12
        if throttle and len(self.vm.q) >= N:
            self.a(f"s_waitcnt vmcnt({N-1})"); self.vm.q = self.vm.q[len(self.vm.q) - (N - 1):] if N > 1 else []
        assert len(self.vm.q) < 63
        self.busy[slot] = tag
        emit(k); self.vm.issue(tag); self.issued[tag] = self.issued.get(tag, 0) + 1
        self._sync()
    def pump(self, n=99, throttle=True):
        while n > 0 and self.can():
            self.piece(throttle); n -= 1
    def need(self, tag, fill=True):
        self._sync()
        while tag not in self.landed and self.can() and (fill or self.issued.get(tag, 0) < 8):
            self.piece()
        if tag not in self.landed:
            assert self.issued.get(tag) == 8, tag
            self.vm.wait(tag); self._sync()
    def release(self, tag):
        for s, t in list(self.busy.items()):
            if t == tag: self.busy[s] = None

import itertools
uid = itertools.count()
class Ctx: pass

def cyc(c, n, start, mode=1):
    if c.stamps != mode: return
    c.a("s_memtime s[42:43]\ns_waitcnt lgkmcnt(0)")
    if start: c.a(f"s_mov_b32 s{70+n}, s42")
    else: c.a(f"s_sub_u32 s{70+n}, s42, s{70+n}\ns_add_u32 s{70+n}, s{70+n}, s70")

def stamp(c, n, mode=1):
    if c.stamps != mode and not (c.stamps and n in (1, 2, 19)) and not (c.stamps == 11 and mode == 1): return
    c.a(f"s_memrealtime s[42:43]\ns_waitcnt lgkmcnt(0)\ns_mov_b32 s{70+n}, s42")

def look(r, voff, so, nl):
    if not APOLL: return f"buffer_load_dword v{r}, v{voff}, {sr(SRDW)}, s{so} offen sc1"
    return (f"v_mov_b32 v{r}, 1\ns_mov_b64 exec, {(1<<nl)-1}\nv_mov_b32 v{r}, 0\n"
            f"buffer_atomic_or v{r}, v{voff}, {sr(SRDW)}, s{so} offen sc0 sc1\ns_mov_b64 exec, -1")

def poll(c, name, soff_expr_reg, nl, want, voff):
    a = c.a
    regs = [V_T0, 32, 33, 34][:NPOLL]
    ld = lambda r: look(r, voff, soff_expr_reg, nl)
    a(f"s_mov_b32 s68, {SPIN}")
    if NPOLL > 1:
        a(ld(regs[0]))
        for r in regs[1:-1]: a(f"v_mov_b32 v{r}, 0")
        a(f"s_waitcnt vmcnt(0)\nv_cmp_ne_u32 vcc, {want}, v{regs[0]}\ns_cbranch_vccz L_{name}_x")
    for r in regs[:-1]:
        a(ld(r))
        if PGAP: a(f"s_sleep {PGAP}")
    a.label(f"L_{name}")
    for n, r in enumerate(regs):
        a(ld(regs[n - 1]))
        a(f"s_waitcnt vmcnt({NPOLL-1})")
        a(f"v_cmp_ne_u32 vcc, {want}, v{r}")
        a(f"s_cbranch_vccz L_{name}_x")
    if SLEEP: a(f"s_sleep {SLEEP}")
    a(f"s_sub_u32 s68, s68, 1\ns_cbranch_scc0 L_{name}")
    a.label(f"L_{name}_x")
    c.vm.q = ["poll"] * (NPOLL - 1); c.st._sync()

V_CK, V_CA = 34, 35
def ck_issue(c, kind, arg):
    a = c.a
    if kind == "dbg":
        a(f"v_and_b32 v{V_CA}, 7, v{V_LANE}\nv_lshlrev_b32 v{V_CA}, 5, v{V_CA}")
        ld = f"global_load_dword v{V_CK}, v{V_CA}, s[{P_DBG}:{P_DBG+1}] sc1"
        cmp_ = f"v_cmp_gt_u32 vcc, 32, v{V_CK}"
    else:
        so, nl, sh = arg
        a(f"v_and_b32 v{V_CA}, {nl-1}, v{V_LANE}\nv_lshlrev_b32 v{V_CA}, {sh}, v{V_CA}")
        ld = look(V_CK, V_CA, so, nl) if ACK else f"buffer_load_dword v{V_CK}, v{V_CA}, {sr(SRDW)}, s{so} offen sc1"
        cmp_ = f"v_cmp_ne_u32 vcc, 1, v{V_CK}"
    a(ld); c.vm.issue("ck"); c.ck = (ld, cmp_)
def ck_verify(c, name, idle=()):
    a = c.a; ld, cmp_ = c.ck
    if "ck" in c.vm.q: c.vm.wait("ck")
    c.st._sync()
    if idle:
        a(f"{cmp_}\ns_cbranch_vccz L_{name}_x\n{ld}\ns_waitcnt vmcnt(0)")
        for hint in idle:
            a(f"{cmp_}\ns_cbranch_vccz L_{name}_x\n{ld}\n{hint}\ns_waitcnt vmcnt(1)")
    a(f"s_mov_b32 s68, {SPIN}")
    a.label(f"L_{name}")
    a(f"{cmp_}\ns_cbranch_vccz L_{name}_x")
    if SLEEP: a(f"s_sleep {SLEEP}")
    a(f"{ld}\ns_sub_u32 s68, s68, 1\ns_waitcnt vmcnt(0)\ns_cbranch_scc0 L_{name}")
    a.label(f"L_{name}_x")

def park2(c, tags, hook=None):
    a, st = c.a, c.st
    for t in range(8):
        st.need(tags[t])
        slot = [s for s, g in st.busy.items() if g == tags[t]][0]
        for s in range(8):
            a(f"ds_read_b128 {ar(32*t+4*s)}, v{V_KR+s} offset:{slot*8192}")
        a("s_waitcnt lgkmcnt(0)")
        st.release(tags[t])
        stamp(c, 3 + t, 8)
        if hook: hook(t)

V_SH = 104
V_SH0, V_SH1 = 10, 14
def finish_max(a, M, T, sh):
    a(f"""v_mov_b32 v{T}, v{M}
    v_permlane32_swap_b32 v{M}, v{T}
    v_max_f32 v{M}, v{M}, v{T}
    v_mul_f32 v{M}, -0.5, v{M}
    v_cvt_pk_bf16_f32 v{T}, v{M}, v{M}
    v_lshlrev_b32 v{T}, 16, v{T}
    v_sub_f32 v{M}, v{M}, v{T}
    v_cvt_pk_bf16_f32 v{sh}, v{T}, v{M}
    v_and_b32 v{M}, 0xffff0000, v{sh}
    v_add_f32 v{M}, v{M}, v{T}
    v_mul_f32 v{M}, -2.0, v{M}
    v_mov_b32 v{sh+1}, 0
    v_mov_b32 v{sh+2}, 0
    v_mov_b32 v{sh+3}, 0""")
V_SEL = 26
def set_ones(a):
    for k in range(4): a(f"v_mov_b32 v{V_ONE+k}, 0x3f803f80")
    a(f"""v_lshrrev_b32 v{V_SEL}, 4, v{V_LANE}
    v_xor_b32 v{V_SEL}, v{V_SEL}, v{V_LANE}
    v_and_b32 v{V_SEL}, 1, v{V_SEL}
    v_add_u32 v{V_SEL}, -1, v{V_SEL}
    v_and_b32 v{V_SEL}, 0x3f803f80, v{V_SEL}
    v_mov_b32 v{V_SEL+1}, v{V_SEL}
    v_mov_b32 v{V_SEL+2}, v{V_SEL}
    v_mov_b32 v{V_SEL+3}, v{V_SEL}""")
def rowsum(L, P, first):
    return f"v_mfma_f32_16x16x32_bf16 {ar(L)}, {vr(V_SEL)}, {vr(P)}, {'0' if first else ar(L)}"
def shift(S, sh): return f"v_mfma_f32_32x32x16_bf16 {S}, {vr(V_ONE)}, {vr(sh)}, {S}"

def scores2(c, npump=1):
    a, st = c.a, c.st
    pend = []
    for t in range(8):
        for s in range(8):
            cc = "0" if s == 0 else vr(V_S + 16 * t, 16)
            a(f"v_mfma_f32_32x32x16_bf16 {vr(V_S+16*t,16)}, {ar(32*t+4*s)}, {vr(V_Q+4*s)}, {cc}")
            if s >= 4:
                for _ in range(2):
                    if pend: a(pend.pop(0))
            if s == 0 or (s == 2 and npump > 1): st.pump(1)
        b = V_S + 16 * t
        if t == 0:
            pend = [f"v_max3_f32 v{V_M}, v{b}, v{b+1}, v{b+2}"]
            pend += [f"v_max3_f32 v{V_M}, v{V_M}, v{b+i}, v{b+i+1}" for i in range(3, 15, 2)]
            pend += [f"v_max_f32 v{V_M}, v{V_M}, v{b+15}"]
        else:
            pend = [f"v_max3_f32 v{V_M}, v{V_M}, v{b+i}, v{b+i+1}" for i in range(0, 16, 2)]
    while pend: a(pend.pop(0))
    finish_max(a, V_M, V_MC, V_SH)

class LagScores:
    def __init__(self, c): self.c = c; self.pend = []
    def tile(self, t):
        a, st, pend = self.c.a, self.c.st, self.pend
        for s in range(8):
            cc = "0" if s == 0 else vr(V_S + 16 * t, 16)
            a(f"v_mfma_f32_32x32x16_bf16 {vr(V_S+16*t,16)}, {ar(32*t+4*s)}, {vr(V_Q+4*s)}, {cc}")
            if s >= 4:
                for _ in range(2):
                    if pend: a(pend.pop(0))
            if s in (0, 2): st.pump(1)
        b = V_S + 16 * t
        if t == 0:
            pend += [f"v_max3_f32 v{V_M}, v{b}, v{b+1}, v{b+2}"]
            pend += [f"v_max3_f32 v{V_M}, v{V_M}, v{b+i}, v{b+i+1}" for i in range(3, 15, 2)]
            pend += [f"v_max_f32 v{V_M}, v{V_M}, v{b+15}"]
        else:
            pend += [f"v_max3_f32 v{V_M}, v{V_M}, v{b+i}, v{b+i+1}" for i in range(0, 16, 2)]
    def finish(self):
        for l in self.pend: self.c.a(l)
        finish_max(self.c.a, V_M, V_MC, V_SH)

def sm_lines(b):
    out = [f"v_exp_f32 v{b+i}, v{b+i}" for i in range(16)]
    out += [f"v_cvt_pk_bf16_f32 v{b+k}, v{b+2*k}, v{b+2*k+1}" for k in range(8)]
    return out

def pv2(c, tags, last_pump=False, hold_last=True, hook=None, last=None, epi=None):
    a, st = c.a, c.st
    set_ones(a)
    a(shift(vr(V_S, 16), V_SH)); a(shift(vr(V_S + 16, 16), V_SH))
    for l in sm_lines(V_S): a(l)
    for t in range(8):
        if t < 6: a(shift(vr(V_S + 16 * (t + 2), 16), V_SH))
        fin = t == 7 and epi
        b = V_S + 16 * t
        if fin:
            a(rowsum(A_L, b, False)); a(rowsum(A_L, b + 4, False)); epi.do("addr"); epi.do("stats")
        st.need(tags[t], fill=False)
        if t == 7 and last: last()
        slot = [s for s, g in st.busy.items() if g == tags[t]][0]
        for B in ((1, 2, 3, 0) if fin else range(4)):
            for l in v_reads(V_F, slot)[4 * B:4 * B + 4]: a(l)
        nxt = sm_lines(V_S + 16 * (t + 1)) if t < 7 else []
        for s in range(0 if fin else 2):
            a(rowsum(A_L, b + 4 * s, t == 0 and s == 0))
            for _ in range(2):
                if nxt: a(nxt.pop(0))
        for n, B in enumerate((1, 2, 3, 0) if fin else range(4)):
            for s in range(2):
                if s == 0: a(f"s_waitcnt lgkmcnt({(12, 8, 4, 4)[n] if fin else 12-4*B})")
                cc = "0" if (t == 0 and s == 0) else ar(A_O + 16 * B, 16)
                a(f"v_mfma_f32_32x32x16_bf16 {ar(A_O+16*B,16)}, {vr(V_F+8*B+4*s)}, {vr(b+4*s)}, {cc}")
                for _ in range(3):
                    if nxt: a(nxt.pop(0))
                if t < 7 or last_pump: st.pump(1)
            if fin and n >= 2: epi.do(n - 1)
        while nxt: a(nxt.pop(0))
        if not (hold_last and t == 7): st.release(tags[t])
        stamp(c, 3 + t, 4); stamp(c, 3 + t, 10)
        if hook: hook(t)

LQ_ORDER = list(range(8))
LQ_P, LQ_RAW, LQ_SH = 104, 112, V_Q
def lq_s(t):
    i = LQ_ORDER.index(t)
    return ("v", LQ_RAW) if i == 0 else ("a", 32 * LQ_ORDER[i - 1])
def lq_o(B): return ar((16, 48, 80, 144)[B], 16)
LQ_L = 176
def v_reads(dst, slot):
    out = []
    for B in range(4):
        for s in range(2):
            o = slot * 8192 + 16 * s * 256
            out.append(f"ds_read_b64_tr_b16 {vr(dst+8*B+4*s,2)}, v{V_TV+B} offset:{o}")
            out.append(f"ds_read_b64_tr_b16 {vr(dst+8*B+4*s+2,2)}, v{V_TV+B} offset:{o+8*256}")
    return out
def lq_park_v(c, tags, npark, hook=None):
    a, st = c.a, c.st
    for t in range(npark):
        st.need(tags[t])
        for l in v_reads(V_S + 32 * t, t): a(l)
        a("s_waitcnt lgkmcnt(0)")
        st.release(tags[t])
        stamp(c, 11 + t, 8)
        if hook: hook(t)
def lq_scores(c, npump):
    a, st = c.a, c.st
    pend = []; T = V_F
    for i, t in enumerate(LQ_ORDER):
        f, b = lq_s(t); S = f"{f}[{b}:{b+15}]"
        for s in range(8):
            a(f"v_mfma_f32_32x32x16_bf16 {S}, {ar(32*t+4*s)}, {vr(V_Q+4*s)}, {'0' if s == 0 else S}")
            if s >= 2:
                for _ in range(4):
                    if pend: a(pend.pop(0))
            if s == 0 or (s == 1 and npump > 1): st.pump(1)
        if i == 0:
            pend = [f"v_max3_f32 v{V_M}, v{b}, v{b+1}, v{b+2}"] + [f"v_max3_f32 v{V_M}, v{V_M}, v{b+k}, v{b+k+1}" for k in range(3, 15, 2)] + [f"v_max_f32 v{V_M}, v{V_M}, v{b+15}"]
        else:
            pend = [f"v_accvgpr_read_b32 v{T+k}, a{b+k}" for k in range(16)] + [f"v_max3_f32 v{V_M}, v{V_M}, v{T+k}, v{T+k+1}" for k in range(0, 16, 2)]
    while pend: a(pend.pop(0))
    finish_max(a, V_M, V_MC, LQ_SH)
def lq_pv(c, tags, npark, hook=None, last=None, at=7):
    a, st = c.a, c.st
    set_ones(a)
    def sh(i):
        f, b = lq_s(i); a(shift(f"{f}[{b}:{b+15}]", LQ_SH))
    def ex(i):
        f, b = lq_s(i)
        out = [] if f == "v" else [f"v_accvgpr_read_b32 v{LQ_RAW+k}, a{b+k}" for k in range(16)]
        return out + [f"v_exp_f32 v{LQ_RAW+k}, v{LQ_RAW+k}" for k in range(16)]
    pk = [f"v_cvt_pk_bf16_f32 v{LQ_P+k}, v{LQ_RAW+2*k}, v{LQ_RAW+2*k+1}" for k in range(8)]
    sh(0); sh(1)
    for l in ex(0) + pk: a(l)
    for t in range(8):
        if t < 6: sh(t + 2)
        ring = t >= npark
        if ring:
            st.need(tags[t], fill=False)
            if t >= at and last: last(t)
            for l in v_reads(V_F, t & 3): a(l)
        nxt = ex(t + 1) if t < 7 else []
        def fill(n):
            for _ in range(n):
                if nxt: a(nxt.pop(0))
        fr = V_F if ring else V_S + 32 * t
        for s in range(2):
            a(rowsum(LQ_L, LQ_P + 4 * s, t == 0 and s == 0)); fill(2)
        for B in range(4):
            if ring: a(f"s_waitcnt lgkmcnt({12-4*B})")
            for s in range(2):
                a(f"v_mfma_f32_32x32x16_bf16 {lq_o(B)}, {vr(fr+8*B+4*s)}, {vr(LQ_P+4*s)}, {'0' if t == 0 and s == 0 else lq_o(B)}")
                st.pump(1); fill(4)
        if ring and t != 7: st.release(tags[t])
        fill(99)
        if t < 7:
            for l in pk: a(l)
        stamp(c, 3 + t, 4)
        if hook: hook(t)

S_DLT = 49
class Aim:
    def __init__(self, a): self.a = a; self.scr = set()
    def __call__(self, reg, slot):
        if slot == 4 and reg not in self.scr:
            self.a(f"v_add_u32 v{reg}, s{S_DLT}, v{reg}"); self.scr.add(reg)
        if slot != 4 and reg in self.scr:
            self.a(f"v_subrev_u32 v{reg}, s{S_DLT}, v{reg}"); self.scr.discard(reg)
        return 0 if slot == 4 else slot * 8192

A_Q1, A_S1, A_L1 = 96, 128, 80
V_M1, V_MC1, V_P1 = 34, 35, 104
def o1(B): return vr(V_Q + 16 * B, 16) if B < 2 else ar(96 + 16 * (B - 2), 16)

def gqa_k(c, tags, slots, hook=None):
    a, st = c.a, c.st
    pend = []
    aim = Aim(a)
    def rd(t, s): return f"ds_read_b128 {vr(V_F+4*s)}, v{V_KR+s} offset:{aim(V_KR+s, slots[t])}"
    st.need(tags[0], fill=False)
    for s in range(8): a(rd(0, s))
    for t in range(8):
        if t < 7: st.need(tags[t + 1], fill=False)
        for s in range(8):
            if t == 0: a(f"s_waitcnt lgkmcnt(7)")
            elif t == 7: a(f"s_waitcnt lgkmcnt({7-s})") if s in (0, 2, 4, 6, 7) else None
            elif s in (0, 2, 4, 6): a("s_waitcnt lgkmcnt(6)")
            if t == 7 and s in (0, 2, 4, 6): a.lines[-1] = f"s_waitcnt lgkmcnt({6-s})"
            if t == 7 and s == 7: a.lines.pop()
            if s == 7 and t: st.release(tags[t])
            if s == 7 and t == 0: st.release(tags[0])
            c0 = "0" if s == 0 else vr(V_S + 16 * t, 16)
            c1 = "0" if s == 0 else ar(A_S1 + 16 * t, 16)
            a(f"v_mfma_f32_32x32x16_bf16 {vr(V_S+16*t,16)}, {vr(V_F+4*s)}, {vr(V_Q+4*s)}, {c0}")
            for _ in range(3):
                if pend and s >= 2: a(pend.pop(0))
            a(f"v_mfma_f32_32x32x16_bf16 {ar(A_S1+16*t,16)}, {vr(V_F+4*s)}, {ar(A_Q1+4*s)}, {c1}")
            if t < 7: a(rd(t + 1, s))
            for _ in range(3):
                if pend and s >= 2: a(pend.pop(0))
            st.pump(2 if t < KP else 1)
        while pend: a(pend.pop(0))
        if hook: hook(t)
        stamp(c, 3 + t, 5)
        if t == 1: stamp(c, 3, 7); cyc(c, 5, True, 7)
        if t == 4: stamp(c, 4, 7); cyc(c, 5, False, 7)
        b = V_S + 16 * t
        def mx(M, b):
            if t == 0:
                return ([f"v_max3_f32 v{M}, v{b}, v{b+1}, v{b+2}"] + [f"v_max3_f32 v{M}, v{M}, v{b+i}, v{b+i+1}" for i in range(3, 15, 2)]
                        + [f"v_max_f32 v{M}, v{M}, v{b+15}"])
            return [f"v_max3_f32 v{M}, v{M}, v{b+i}, v{b+i+1}" for i in range(0, 16, 2)]
        pend = mx(V_M, b) + [f"v_accvgpr_read_b32 v{V_P1+i}, a{A_S1+16*t+i}" for i in range(16)] + mx(V_M1, V_P1)
    while pend: a(pend.pop(0))
    finish_max(a, V_M, V_MC, V_SH0); finish_max(a, V_M1, V_MC1, V_SH1)

def gqa_v(c, tags, slots, hold, last=None, hook=None):
    a, st = c.a, c.st
    PB = (V_P1, V_P1 + 8); C = V_P1 + 16
    def raw(t, i): return PB[t & 1] + i if i < 8 else C + i - 8
    def sm1(t):
        rd_ = [f"v_accvgpr_read_b32 v{raw(t,i)}, a{A_S1+16*t+i}" for i in range(16)]
        ex = [f"v_exp_f32 v{raw(t,i)}, v{raw(t,i)}" for i in range(16)]
        pk = [f"v_cvt_pk_bf16_f32 v{PB[t&1]+k}, v{raw(t,2*k)}, v{raw(t,2*k+1)}" for k in range(8)]
        return rd_, ex + pk
    def sh(t): return [shift(vr(V_S + 16 * t, 16), V_SH0), shift(ar(A_S1 + 16 * t, 16), V_SH1)]
    aim = Aim(a)
    def rd(t, B): return v_reads(V_F, aim(V_TV + B, slots[t]) // 8192)[4 * B:4 * B + 4]
    for l in sh(0) + sh(1): a(l)
    st.need(tags[0], fill=False)
    for B in range(4):
        for l in rd(0, B): a(l)
    r0, e0 = sm1(0)
    for l in r0 + sm_lines(V_S) + e0: a(l)
    for t in range(8):
        if t < 7: st.need(tags[t + 1], fill=False)
        if t < 7:
            r1, e1 = sm1(t + 1); nxt = r1 + sm_lines(V_S + 16 * (t + 1)) + e1
        else: nxt = []
        b = V_S + 16 * t; P1 = PB[t & 1]
        def fill(budget):
            while nxt and budget >= (8 if nxt[0].startswith("v_exp") else 4) - 2:
                budget -= 8 if nxt[0].startswith("v_exp") else 4
                a(nxt.pop(0))
        extra = [rowsum(A_L, b, t == 0), rowsum(A_L1, P1, t == 0), rowsum(A_L, b + 4, False), rowsum(A_L1, P1 + 4, False)]
        shf = sh(t + 2)[::-1] if t < 6 else []
        order = (1, 2, 3, 0) if t == 7 else (0, 1, 2, 3)
        G = GAP
        if t == 7 and last:
            while extra: a(extra.pop(0))
            last(-1)
        for n, B in enumerate(order):
            if t < 7: a("s_waitcnt lgkmcnt(12)")
            elif n == 0: a("s_waitcnt lgkmcnt(0)")
            if (B == 3 or t == 7) and tags[t] not in hold: st.release(tags[t])
            for s in range(2):
                z = t == 0 and s == 0
                a(f"v_mfma_f32_32x32x16_bf16 {ar(A_O+16*B,16)}, {vr(V_F+8*B+4*s)}, {vr(b+4*s)}, {'0' if z else ar(A_O+16*B,16)}")
                n0 = len(a.lines); st.pump(2 if t < 5 else 1); fill(G - 5 * (len(a.lines) - n0))
                a(f"v_mfma_f32_32x32x16_bf16 {o1(B)}, {vr(V_F+8*B+4*s)}, {vr(P1+4*s)}, {'0' if z else o1(B)}")
                if s == 1 and t < 7:
                    for l in rd(t + 1, B): a(l)
                    fill(G - 16)
                else: fill(G)
            if extra: a(extra.pop(0)); fill(G - 20)
            if shf and B in (1, 3): a(shf.pop(0)); fill(G)
            if t == 7 and last: last(n)
        fill(9999)
        if hook: hook(t)
        stamp(c, 11 + t, 5); stamp(c, 3 + t, 6); stamp(c, 3 + t, 10)
        if t == 1: stamp(c, 6, 7); cyc(c, 8, True, 7)
        if t == 4: stamp(c, 7, 7); cyc(c, 8, False, 7)

class Epi:
    def __init__(self, c, heads, t=V_F + 24, sv=(V_F, V_F + 8)):
        self.c, self.heads, self.t, self.sv = c, heads, t, sv
        self.todo = {"addr", "stats", 1, 2, 3}
    @staticmethod
    def loc(spec, ring, scr):
        base, off = spec
        return (scr, off) if base == "scr" else (ring, base * 8192 + off)
    def do(self, what):
        if what not in self.todo: return
        self.todo.discard(what)
        a, t = self.c.a, self.t
        if what == "addr":
            a(f"s_lshl_b32 s{S_TMP}, s{S_WAVE}, 13\ns_add_u32 s{S_TMP}, s{S_TMP}, {LDS_SCR}")
            a(f"v_add_u32 v{t}, s{S_RING}, v{V_L16}\nv_add_u32 v{t+1}, s{S_TMP}, v{V_L16}")
            for B in (1, 2, 3):
                a(f"s_sub_u32 s{S_TMP}, s{S_WAVE}, {B}\ns_and_b32 s{S_TMP}, s{S_TMP}, 3")
                a(f"s_lshl_b32 s7, s{S_TMP}, 13\ns_add_u32 s7, s7, {LDS_SCR}\ns_lshl_b32 s{S_TMP}, s{S_TMP}, 15")
                a(f"v_add_u32 v{t+2*B}, s{S_TMP}, v{V_L16}\nv_add_u32 v{t+2*B+1}, s7, v{V_L16}")
        elif what == "stats":
            a("s_mov_b32 vcc_lo, 0xffff0000\ns_mov_b32 vcc_hi, 0xffff0000")
            for h, r in zip(self.heads, self.sv):
                a(f"v_accvgpr_read_b32 v{r}, a{h['L']}\nv_accvgpr_read_b32 v{r+1}, a{h['L']+1}")
                a(f"v_cndmask_b32 v{r+1}, v{r}, v{r+1}, vcc\nv_mov_b32 v{r}, v{h['M']}")
                v, o = self.loc(h["st"], t, t + 1)
                a(f"ds_write_b64 v{v}, {vr(r,2)} offset:{o}")
        else:
            B = what
            for h in self.heads:
                txt = h["acc"](B); f, lo = txt[0], int(txt[2:txt.index(":")])
                v, o = self.loc((h["slot"], 4096 * (B - 1)) if B < 3 else h["b3"], t, t + 1)
                for g in range(4): a(f"ds_write_b128 v{v}, {f}[{lo+4*g}:{lo+4*g+3}] offset:{o+1024*g}")

def o_epi(c, heads, mid=None, idle=None, freed=None, epi=None):
    a = c.a
    epi = epi or Epi(c, heads)
    t, loc = epi.t, epi.loc
    for x in ("addr", "stats", 1, 2, 3): epi.do(x)
    for n, h in enumerate(heads):
        own = h["acc"](0); lo = int(own[2:own.index(":")])
        for i in range(16):
            a(f"v_accvgpr_read_b32 v{V_S+64*n+i}, a{lo+i}" if own[0] == "a" else f"v_mov_b32 v{V_S+64*n+i}, v{lo+i}")
        if epi.sv[n] != V_F + 8 * n: a(f"v_mov_b32 v{V_F+8*n}, v{epi.sv[n]}\nv_mov_b32 v{V_F+8*n+1}, v{epi.sv[n]+1}")
    md = 4 if len(heads) == 1 else 6
    if idle: idle()
    a("s_waitcnt lgkmcnt(0)"); stamp(c, 11, md); a("s_barrier"); stamp(c, 12, md)
    def reads(n):
        h = heads[n]; out = []
        for B in (1, 2, 3):
            v, o = loc((h["slot"], 4096 * (B - 1)) if B < 3 else h["b3"], t + 2 * B, t + 2 * B + 1)
            out.append([f"ds_read_b128 {vr(V_S+64*n+16*B+4*g)}, v{v} offset:{o+1024*g}" for g in range(4)])
        return out
    for n, h in enumerate(heads):
        for B in (1, 2, 3):
            v, o = loc(h["st"], t + 2 * B, t + 2 * B + 1)
            a(f"ds_read_b64 {vr(V_F+8*n+2*B,2)}, v{v} offset:{o}")
    two = len(heads) == 2
    r0 = reads(0); r1 = reads(1) if two else [[], [], []]
    for n, h in enumerate(heads):
        if n == 0:
            for l in r0[0] + r0[1]: a(l)
            if mid: mid()
            a("s_waitcnt lgkmcnt(8)")
            for l in r0[2]: a(l)
        m = [V_F + 8 * n + 2 * u for u in range(4)]; l = [x + 1 for x in m]
        M = V_F + 16; L = V_F + 17; f = [V_F + 18 + u for u in range(4)]
        a(f"v_max3_f32 v{M}, v{m[0]}, v{m[1]}, v{m[2]}\nv_max_f32 v{M}, v{M}, v{m[3]}")
        for u in range(4): a(f"v_sub_f32 v{f[u]}, v{m[u]}, v{M}")
        for u in range(4): a(f"v_exp_f32 v{f[u]}, v{f[u]}")
        a(f"v_mul_f32 v{L}, v{f[0]}, v{l[0]}")
        for u in range(1, 4): a(f"v_fmac_f32 v{L}, v{f[u]}, v{l[u]}")
        a(f"v_rcp_f32 v{L}, v{L}")
        for u in range(4): a(f"v_mul_f32 v{f[u]}, v{f[u]}, v{L}")
        S = V_S + 64 * n
        def sel(r): return ("op_sel_hi:[1,0", vr(r, 2)) if r % 2 == 0 else ("op_sel:[0,1", vr(r - 1, 2))
        md_, fr = sel(f[0])
        for i in range(0, 16, 2): a(f"v_pk_mul_f32 {vr(S+i,2)}, {vr(S+i,2)}, {fr} {md_}]")
        for B in (1, 2, 3):
            a(f"s_waitcnt lgkmcnt({8 if (two and n == 0) else 12-4*B})")
            if n == 0:
                for l in r1[B - 1]: a(l)
            md_, fr = sel(f[B])
            tail = ",1]" if md_.startswith("op_sel_hi") else ",0]"
            for i in range(0, 16, 2): a(f"v_pk_fma_f32 {vr(S+i,2)}, {vr(S+16*B+i,2)}, {fr}, {vr(S+i,2)} {md_}{tail}")
        if n == len(heads) - 1:
            stamp(c, 13, md); a("s_barrier"); stamp(c, 14, md)
            if freed: freed()
        for k in range(8): a(f"v_cvt_pk_bf16_f32 v{S+k}, v{S+2*k}, v{S+2*k+1}")
        a(f"s_lshl_b32 s{S_TMP}, s{S_WAVE}, 11\ns_add_u32 s{S_TMP}, s{S_TMP}, s{h['dst']}")
        a(f"buffer_store_dwordx4 {vr(S)}, v{V_L16}, {sr(SRDW)}, s{S_TMP} offen sc1")
        a(f"buffer_store_dwordx4 {vr(S+4)}, v{V_L16}, {sr(SRDW)}, s{S_TMP} offen offset:1024 sc1")
        c.vm.issue("ost", 2)
    stamp(c, 15, md)

def flag_store(c, soff, nl=1):
    a = c.a
    a(f"v_mov_b32 v{V_T0}, 1\nv_lshlrev_b32 v{V_F+31}, {FW}, v{V_LANE}")
    a(f"s_mov_b64 exec, {(1<<nl)-1}")
    a(f"buffer_store_dword v{V_T0}, v{V_F+31}, {sr(SRDW)}, s{soff} offen sc1")
    a("s_mov_b64 exec, -1")
    c.vm.issue("flag")

def q_dma(c, soff, lds_off, tag):
    a = c.a
    a(f"s_lshl_b32 s{S_TMP}, s{S_WAVE}, 13\ns_add_u32 m0, s{S_TMP}, {LDS_SCR+lds_off}")
    a(f"s_lshl_b32 s{S_TMP}, s{S_WAVE}, 11\ns_add_u32 s{S_TMP}, s{S_TMP}, s{soff}")
    for k in range(2):
        a(f"buffer_load_dwordx4 v{V_L16}, {sr(SRDW)}, s{S_TMP} offen offset:{1024*k} sc1 lds")
    c.vm.issue(tag, 2); c.st.m0_dirty = True
def q_read(c, lds_off, dst):
    a = c.a
    a(f"v_add_u32 v{V_CA}, {LDS_SCR}, v{V_L16}")
    for s in range(8): a(f"ds_read_b128 {dst(s)}, v{V_CA} offset:{(s>>1)*8192+lds_off+(s&1)*1024}")

S_J, S_CC, S_U = 50, 51, 52
S_A = 56
S_B = 60
S_QB, S_OB, S_FQB, S_FOB = 64, 65, 66, 67
S_X0 = 92

def code_touch(a, first, last, est, share, name):
    k = -(-est // (128 * 64))
    a(f"s_getpc_b64 s[48:49]")
    a.label(f"L_{name}")
    a(f"s_add_u32 s48, s48, {first}-L_{name}\ns_addc_u32 s49, s49, 0")
    a(f"s_lshl_b32 s7, s{S_U}, 2\ns_add_u32 s7, s7, s{S_WAVE}\ns_mul_i32 s7, s7, {128*k}")
    a(f"v_lshl_add_u32 v{V_F+29}, v{V_LANE}, 7, s7")
    a(f"v_min_u32 v{V_F+29}, {last}-{first}-4, v{V_F+29}")
    a(f"s_mov_b64 exec, {(1<<k)-1}\nglobal_load_dword v{V_T0}, v{V_F+29}, s[48:49]\ns_mov_b64 exec, -1")
    a.label(f"L_{name}_x")

class PerTile:
    def __init__(self, v): self.v = [int(x) for x in str(v).split(",")]
    def __getitem__(self, t): return self.v[min(t, len(self.v) - 1)]

def build(stamps=0, g1first=1, g2first=2, hints='', qsplit='0123', qpos=1, qseq='1,8,4', ilv=1, g2wo='5,6', xmap=1, five=0, kp=3, wog=0, ack=1, ovl=1, apoll=1, fack=0, pollfirst=0, tsplit='01,2,3', onepoll=1, prew=0, npoll=1, pgap=0, wo1mid=1, outfl='', n_w2=6, n_wpre=0, lag=1, gap=28, q0=3, hack='', rotkv=0, tlb=0, fs=8, fw=2, sleep=0, pf=7, n_early=8, kvpf=0, qpf='', qthr=0, rotq=2, rota=2, kag=6, nog1=0, perm=0, npark=4, g1wo=0, va1=5, n_qpre=0, n_spump=2, n_look=8, n_x=16, n_wq=16, n_kva=32, n_vva=32, n_g2k=16, n_g2v=16, n_g1k='16,4,4,4,16', n_g1v=16, n_wo=16, fl_x="", fl_wq="", fl_kva="", fl_wo="", fl_kv="nt", rot=1):
    global FW, APOLL, ACK, KP; KP = int(kp); ACK = int(ack); FW = int(fw); APOLL = int(apoll)
    global FS, SLEEP, GAP, NPOLL, PGAP; NPOLL = int(npoll); PGAP = int(pgap); GAP = int(gap); FS = int(fs); SLEEP = int(sleep)
    stamps = int(stamps); prew = int(prew); n_w2 = int(n_w2); q0 = int(q0); pf = int(pf); n_early = int(n_early); kvpf = int(kvpf); n_qpre = int(n_qpre); npark = int(npark); g1wo = int(g1wo); va1 = int(va1); n_spump = int(n_spump); n_look = int(n_look);  n_g2k, n_g2v, n_g1k, n_g1v, n_wo, n_x, n_wq, n_kva, n_vva = map(PerTile, (n_g2k, n_g2v, n_g1k, n_g1v, n_wo, n_x, n_wq, n_kva, n_vva)); rot = int(rot)
    a = Asm()
    prologue(a, 256, "L_end")
    if stamps: a("s_memrealtime s[70:71]")
    if int(perm): a(f"s_xor_b32 s2, s2, {int(perm)}")
    a(f"""s_and_b32 s{S_J}, s2, 7
    s_lshr_b32 s{S_CC}, s2, 3
    s_and_b32 s{S_U}, s{S_CC}, 15
    s_and_b32 s53, s{S_CC}, 3
    s_lshl_b32 s7, s{S_J}, 2
    s_add_u32 s53, s53, s7          ; head of the MHA task
    s_lshr_b32 s54, s{S_CC}, 2      ; batch of the MHA task
    s_lshl_b32 s55, s54, 5
    s_add_u32 s55, s55, s53         ; b*32+h
    s_cmp_lt_u32 s{S_CC}, 16
    s_cbranch_scc1 L_g1""")
    def common():
        if stamps:
            for n in range(1, 20): a(f"s_mov_b32 s{70+n}, s70")
        srd(a, SRDW, P_WS, WS_BYTES)
        a(f"""s_lshl_b32 s{S_QB}, s55, 13
        s_add_u32 s{S_QB}, s{S_QB}, {WS_Q + (2<<20)}
        s_add_u32 s{S_OB}, s{S_QB}, {WS_O - WS_Q}
        s_lshl_b32 s{S_FQB}, s55, 6
        s_add_u32 s{S_FQB}, s{S_FQB}, {WS_FQ + 256*64}
        s_lshl_b32 s{S_FOB}, s54, 3
        s_add_u32 s{S_FOB}, s{S_FOB}, s{S_J}
        s_lshl_b32 s{S_FOB}, s{S_FOB}, {FS}
        s_and_b32 s7, s{S_CC}, 3
        s_lshl_b32 s7, s7, {FW}
        s_add_u32 s{S_FOB}, s{S_FOB}, s7
        s_add_u32 s{S_FOB}, s{S_FOB}, {WS_FO + (64 << FS)}
        s_mov_b32 s{S_C}, {f32(C_SCALE)}""")

    PS = 4096 if int(ilv) else None
    WSH = 10 if int(ilv) else 13
    def mk():
        c = Ctx(); c.a = a; c.vm = VM(a); c.st = Stream(a, c.vm); c.stamps = stamps
        return c
    def kv_offsets():
        a(f"s_lshl_b32 s{S_A}, s55, 18\ns_lshl_b32 s7, s{S_WAVE}, 13\ns_add_u32 s{S_A}, s{S_A}, s7")
    def clear_flags(c, words, name):
        a(f"s_cmp_lg_u32 s{S_WAVE}, 0\ns_cbranch_scc1 L_{name}")
        a(f"v_mov_b32 v{V_T0}, 0")
        for so, nl, sh in words:
            a(f"v_lshlrev_b32 v{V_F+31}, {sh}, v{V_LANE}\ns_mov_b64 exec, {(1<<nl)-1}")
            a(f"buffer_store_dword v{V_T0}, v{V_F+31}, {sr(SRDW)}, s{so} offen sc1\ns_mov_b64 exec, -1")
        a.label(f"L_{name}")
    def count_in(c, name):
        a(f"s_cmp_lg_u32 s{S_WAVE}, 0\ns_cbranch_scc1 L_{name}")
        a(f"s_lshl_b32 s7, s{S_J}, 5\nv_mov_b32 v{V_T0}, 1\nv_mov_b32 v{V_F+31}, s7\ns_mov_b64 exec, 1")
        a(f"global_atomic_add v{V_F+31}, v{V_T0}, s[{P_DBG}:{P_DBG+1}] sc1")
        a("s_mov_b64 exec, -1")
        a.label(f"L_{name}")
    def wait_cleared(c, name):
        a(f"s_mov_b32 s68, {SPIN}\nv_and_b32 v{V_F+31}, 7, v{V_LANE}\nv_lshlrev_b32 v{V_F+31}, 5, v{V_F+31}")
        a.label(f"L_{name}")
        a(f"global_load_dword v{V_T0}, v{V_F+31}, s[{P_DBG}:{P_DBG+1}] sc1")
        a(f"s_sub_u32 s68, s68, 1\ns_cbranch_scc1 L_{name}_x\ns_waitcnt vmcnt(0)")
        a(f"v_cmp_gt_u32 vcc, 32, v{V_T0}\ns_cbranch_vccnz L_{name}")
        a.label(f"L_{name}_x")
        c.vm.q = []; c.st._sync()
    def fp_word():
        a(f"s_xor_b32 s{S_X0}, s{S_CC}, 16          ; c_to")
        a(f"s_lshl_b32 s{S_X0+1}, s{S_X0}, 2\ns_add_u32 s{S_X0+1}, s{S_X0+1}, s{S_WAVE}\ns_lshl_b32 s{S_X0+1}, s{S_X0+1}, {FS}")
        a(f"s_lshl_b32 s7, s{S_J}, {FW}\ns_add_u32 s{S_X0+1}, s{S_X0+1}, s7\ns_add_u32 s{S_X0+1}, s{S_X0+1}, {WS_FP}")
    def add_wo(c, X, wsl=(0, 1, 2, 3)):
        def pre():
            set_vd(a, 2048)
            srd(a, SRD1, P_BWO if X else P_AWO, 0x800000)
            a(f"s_add_u32 s7, s{S_WAVE}, s{S_U}\ns_and_b32 s7, s7, 3")
            a(f"s_lshl_b32 s{S_B+3}, s{S_J}, 2\ns_add_u32 s{S_B+3}, s{S_B+3}, s7\ns_lshl_b32 s{S_B+3}, s{S_B+3}, 18")
            a(f"s_and_b32 s7, s{S_U}, 7\ns_lshl_b32 s7, s7, 8\ns_add_u32 s{S_B+3}, s{S_B+3}, s7")
            a(f"s_lshr_b32 s{S_B+2}, s{S_U}, 3\ns_lshl_b32 s{S_B+2}, s{S_B+2}, 17")
            a(f"s_add_u32 s{S_B}, s{S_B+3}, s{S_B+2}")
        def nx(t):
            return lambda: a(f"s_xor_b32 s7, s{S_B+2}, {(t+1) << 16}\ns_add_u32 s{S_B}, s{S_B+3}, s7") if t < 3 else None
        for t in range(4):
            c.st.add(f"wo{t}", wsl[t], SRD1, S_B, 65536, V_VD, 2048, fl_wo, n_wo[t], pre=pre if t == 0 else None, nxt=nx(t))
    def add_kv(c, nk, nv, first):
        rk = int(rotkv)
        def offs(S):
            a(f"s_lshl_b32 s{S+3}, s55, 18\ns_lshl_b32 s7, s{S_WAVE}, {WSH}\ns_add_u32 s{S+3}, s{S+3}, s7")
            if rk:
                a(f"s_lshr_b32 s7, s{S_J}, {rk-1}\ns_add_u32 s7, s7, s{S_CC}\ns_and_b32 s7, s7, 7\ns_lshl_b32 s{S+2}, s7, 15\ns_add_u32 s{S}, s{S+3}, s{S+2}")
            else: a(f"s_mov_b32 s{S}, s{S+3}")
        def prek():
            set_kd(a, 256, ps=PS); offs(S_A)
            if first: a("s_waitcnt lgkmcnt(0)")
            srd(a, SRD0, P_BK, 0x4000000)
        def prev():
            set_vd(a, 256, ps=PS); srd(a, SRD1, P_BV, 0x4000000); offs(S_B)
        wr = 262144 if rk else None
        for t in range(8): c.st.add(f"k{t}", t & 3, SRD0, S_A, 32768, V_KD, 256, fl_kv, nk[t], pre=prek if t == 0 else None, wrap=wr, ps=PS)
        for t in range(8): c.st.add(f"v{t}", t & 3, SRD1, S_B, 32768, V_VD, 256, fl_kv, nv[t], single=not PS, pre=prev if t == 0 else None, wrap=wr, ps=PS)
    def touch(c, ptr, size, base_asm, step, rs, fl):
        a(base_asm)
        a(f"s_add_u32 s49, s48, {step}")
        a(f"v_lshrrev_b32 v{V_CA}, 1, v{V_LANE}\nv_lshlrev_b32 v{V_CA}, {rs.bit_length()-1}, v{V_CA}")
        a(f"v_and_b32 v{V_T0}, 1, v{V_LANE}\nv_lshl_add_u32 v{V_CA}, v{V_T0}, 7, v{V_CA}")
        srd(a, SRDT, ptr, size)
        for so in (48, 49):
            a(f"buffer_load_dword v{V_T0}, v{V_CA}, {sr(SRDT)}, s{so} offen {fl}")
            c.vm.issue("pf")
    KVA_BASE = (f"s_lshl_b32 s48, s{S_J}, 2\ns_lshr_b32 s7, s{S_U}, 2\ns_add_u32 s48, s48, s7\ns_lshl_b32 s48, s48, 18\n"
                f"s_lshl_b32 s7, s{S_WAVE}, 13\ns_add_u32 s48, s48, s7\n"
                f"s_and_b32 s7, s{S_U}, 3\ns_lshl_b32 s7, s7, 16\ns_add_u32 s48, s48, s7")
    WO_BASE = (f"s_add_u32 s7, s{S_WAVE}, s{S_U}\ns_and_b32 s7, s7, 3\ns_lshl_b32 s48, s{S_J}, 2\ns_add_u32 s48, s48, s7\ns_lshl_b32 s48, s48, 18\n"
               f"s_and_b32 s7, s{S_U}, 7\ns_lshl_b32 s7, s7, 8\ns_add_u32 s48, s48, s7\n"
               f"s_lshr_b32 s7, s{S_U}, 3\ns_lshl_b32 s7, s7, 17\ns_add_u32 s48, s48, s7")
    def get_q(c):
        if "q" in c.vm.q: c.vm.wait("q")
        c.st._sync()
        a("s_barrier")
        q_read(c, 5120, lambda s: vr(V_Q + 4 * s))
        a("s_waitcnt lgkmcnt(0)")
    def mha1(c):
        st = c.st
        ls = LagScores(c)
        plan = {q0: [0, 1]}
        nxt = 2
        for t in range(q0 + 1, 8):
            plan[t] = [u for u in (nxt, nxt + 1) if u <= t] if t < 7 else list(range(nxt, 8))
            nxt += len(plan[t])
        def hook(t):
            if t == q0 - 3: ck_issue(c, "dbg", None)
            if t == q0 - 2: ck_verify(c, "g1clr"); ck_issue(c, "ws", (S_FQB, 1, 2))
            if t == q0 - 1: ck_verify(c, "g1q"); q_dma(c, S_QB, 5120, "q")
            if t == q0:
                get_q(c); stamp(c, 4)
            if t == 5 and pf & 1:
                code_touch(a, "L_g1tail", "L_g2", 16384, 2, "g1pf2")
            for u in plan.get(t, []): ls.tile(u)
        park2(c, [f"k{t}" for t in range(8)], hook)
        stamp(c, 3)
        ls.finish()
        stamp(c, 5)
        for g in range(g1wo, 3): st.gate(f"wo{g}")
        heads = [dict(acc=lambda B: ar(A_O + 16 * B, 16), L=A_L, M=V_M, slot=3, b3=("scr", 0), st=("scr", 4096), dst=S_OB)]
        epi = Epi(c, heads, t=112, sv=(2,)) if int(ovl) else None
        pv2(c, [f"v{t}" for t in range(8)], last_pump=True, last=lambda: (st.run_pre("wo0"), st.open(f"wo{g1wo}")), epi=epi)
        stamp(c, 6)
        a.label("L_g1tail")
        o_epi(c, heads, epi=epi,
              idle=lambda: tail_setup(c, 1),
              mid=lambda: (early_poll(c), st.open(f"wo{g1wo+1}"), st.pump(8 if int(wo1mid) and int(g1first) == 2 else 0, False)),
              freed=lambda: ([st.open(f"wo{g}") for g in range(3)], freed(c, ["v7"], int(g1first))))
    def mha2(c, pvhook):
        st = c.st
        end = 7 + npark
        def hook(p):
            if p == 1: count_in(c, "g2count")
            if prew:
                if p == 0: prew_setup(c); prew_o(c, S_OB)
                if p == 1:
                    a(f"s_add_u32 s49, s{S_X0+6}, {WS_O}"); prew_o(c, 49)
                    a(f"s_add_u32 s49, s49, 8192"); prew_o(c, 49)
                if 2 <= p < 6: prew_part(c, 2 * p - 4); prew_part(c, 2 * p - 3)
            e = end - int(qpos)
            if p == e - 3: ck_issue(c, "dbg", None)
            if p == e - 2: ck_verify(c, "g2clr")
            if p == e - 1 and not n_qpre: ck_issue(c, "ws", (S_FQB, 1, 2))
            if p == e - 1 and hints:
                a(f"s_lshl_b32 s48, s{S_J}, 2\ns_lshr_b32 s7, s{S_U}, 2\ns_add_u32 s48, s48, s7\ns_lshl_b32 s48, s48, 3")
                a(f"s_and_b32 s7, s{S_U}, 3\ns_add_u32 s48, s48, s7\ns_lshl_b32 s48, s48, 2\ns_add_u32 s48, s48, s{S_WAVE}\ns_lshl_b32 s48, s48, 13")
                a(f"s_add_u32 s49, s48, 131072\nv_lshlrev_b32 v{V_F+30}, 7, v{V_LANE}\ns_mov_b32 s{SRDT+2}, 0x800000\ns_mov_b32 s{SRDT+3}, 0x20000")
            if p == e and int(qpos):
                H = {"k": P_AK, "v": P_AV}
                ck_verify(c, "g2q", [f"s_mov_b32 s{SRDT}, s{H[h[0]]}\ns_mov_b32 s{SRDT+1}, s{H[h[0]]+1}\n"
                                     f"buffer_load_dword v{V_T0}, v{V_F+30}, {sr(SRDT)}, s{48+int(h[1])} offen" for h in hints.split(",") if h])
                q_dma(c, S_QB, 5120, "q")
        park2(c, [f"k{t}" for t in range(8)], hook)
        stamp(c, 1)
        lq_park_v(c, [f"v{t}" for t in range(8)], npark, lambda t: hook(8 + t))
        stamp(c, 15, 8)
        qa, qb, qc = (int(x) for x in str(qseq).split(","))
        if n_qpre:
            st.pump(qa, False); ck_issue(c, "ws", (S_FQB, 1, 2)); st.pump(qb, False)
        if not int(qpos):
            ck_verify(c, "g2q")
            q_dma(c, S_QB, 5120, "q")
            st.pump(qc, False)
        get_q(c)
        stamp(c, 2)
        lq_scores(c, n_spump)
        stamp(c, 3)
        for g in ("ka0", "ka1", "ka2"): st.gate(g)
        st.busy[4] = "v7"
        lq_pv(c, [f"v{t}" for t in range(8)], npark, pvhook, last=lambda t: (st.run_pre("ka0"), st.open(f"ka{t-int(kag)}")), at=int(kag))
        stamp(c, 4)
        o_epi(c, [dict(acc=lq_o, L=LQ_L, M=V_M, slot=3, b3=("scr", 0), st=("scr", 4096), dst=S_OB)],
              mid=lambda: (st.open("ka1"), st.open(f"ka{8-int(kag)}"), st.pump(8, False)))
        st.open("ka2")
    V_MK = 124
    def prew_setup(c):
        t = V_MK - 1
        for k in range(4): a(f"v_mov_b32 v{V_MK+k}, -1")
        a(f"""v_and_b32 v{t}, 15, v{V_LANE}
        v_lshlrev_b32 v{t}, 4, v{t}
        v_lshrrev_b32 v{t-1}, 5, v{V_LANE}
        v_lshl_add_u32 v{t}, v{t-1}, 8, v{t}
        v_bfe_u32 v{t-1}, v{V_LANE}, 4, 1
        v_lshl_add_u32 v{t}, v{t-1}, 15, v{t}
        s_lshl_b32 s48, s{S_X0}, 3
        s_lshl_b32 s7, s{S_WAVE}, 1
        s_add_u32 s48, s48, s7
        s_lshl_b32 s48, s48, 3
        s_add_u32 s48, s48, s{S_J}
        s_lshl_b32 s48, s48, 12
        s_add_u32 s48, s48, {WS_P}""")
    def prew_part(c, p):
        a(f"buffer_store_dwordx4 {vr(V_MK)}, v{V_MK-1}, {sr(SRDW)}, s48 offen offset:{512*p} sc1"); c.vm.issue("mk")
    def prew_o(c, so):
        a(f"s_lshl_b32 s7, s{S_WAVE}, 11\ns_add_u32 s7, s7, s{so}")
        for k in range(2): a(f"buffer_store_dwordx4 {vr(V_MK)}, v{V_L16}, {sr(SRDW)}, s7 offen offset:{1024*k} sc1")
        c.vm.issue("mk", 2)
    V_PA = 11
    def tail_setup(c, X):
        a(f"""s_lshr_b32 s{S_X0+2}, s{S_U}, 3
        s_lshl_b32 s{S_X0+2}, s{S_X0+2}, 2
        s_add_u32 s{S_X0+2}, s{S_X0+2}, s{S_WAVE}
        s_add_u32 s{S_X0+2}, s{S_X0+2}, {8*X}        ; X*8 + batch
        s_lshl_b32 s{S_X0+3}, s{S_X0+2}, 3
        s_add_u32 s{S_X0+3}, s{S_X0+3}, s{S_J}
        s_lshl_b32 s{S_X0+4}, s{S_X0+3}, 15
        s_add_u32 s{S_X0+4}, s{S_X0+4}, {WS_O}       ; O offset
        s_lshl_b32 s{S_X0+3}, s{S_X0+3}, {FS}
        s_add_u32 s{S_X0+3}, s{S_X0+3}, {WS_FO}""")
        for T in range(4): a(f"v_add_u32 v{V_TW+4+T}, 0x10000, v{V_TW+T}")
        t = 10
        a(f"""v_and_b32 v{t}, 15, v{V_LANE}
        v_lshlrev_b32 v{t}, 4, v{t}
        v_lshrrev_b32 v{t+1}, 5, v{V_LANE}
        v_lshl_add_u32 v{t}, v{t+1}, 8, v{t}
        v_bfe_u32 v{t+1}, v{V_LANE}, 4, 1
        v_lshl_add_u32 v{t}, v{t+1}, 15, v{t}
        v_and_b32 v{V_PA}, 3, v{V_LANE}
        v_lshlrev_b32 v{V_PA}, {FW}, v{V_PA}
        s_lshl_b32 s58, s{S_X0}, 3
        s_lshl_b32 s7, s{S_WAVE}, 1
        s_add_u32 s58, s58, s7
        s_lshl_b32 s58, s58, 3
        s_add_u32 s58, s58, s{S_J}
        s_lshl_b32 s58, s58, 12
        s_add_u32 s58, s58, {WS_P}""")
        a(f"s_lshr_b32 s59, s{S_U}, 3\ns_lshl_b32 s59, s59, 12")
        a(f"""s_lshl_b32 s64, s{S_X0}, 2
        s_lshr_b32 s7, s{S_J}, 1
        s_add_u32 s64, s64, s7
        s_lshl_b32 s64, s64, {FS}
        s_add_u32 s64, s64, {WS_FP}               ; flags of the eight producers
        v_and_b32 v15, 7, v{V_LANE}
        v_lshlrev_b32 v15, {FW}, v15
        s_lshl_b32 s53, s{S_X0}, 3
        s_add_u32 s53, s53, s{S_J}
        s_lshl_b32 s53, s53, 15
        s_add_u32 s53, s53, {WS_P}
        s_add_u32 s54, s53, 16384
        v_lshlrev_b32 v13, 4, v0
        s_bfe_u32 s66, s{S_X0}, 0x10003
        s_lshl_b32 s66, s66, 3
        s_add_u32 s66, s66, s{S_J}
        s_lshl_b32 s66, s66, 16
        s_lshr_b32 s7, s{S_X0}, 4
        s_lshl_b32 s7, s7, 11
        s_add_u32 s66, s66, s7
        s_and_b32 s7, s{S_X0}, 7
        s_lshl_b32 s7, s7, 8
        s_add_u32 s66, s66, s7
        v_and_b32 v14, 15, v0
        v_lshlrev_b32 v14, 12, v14
        v_lshrrev_b32 v16, 4, v0
        v_lshl_add_u32 v14, v16, 4, v14""")
        srd(a, SRD0, P_OUT, 0x100000)
    def reduce(c, tag):
        if int(pollfirst):
            a(look(12, 15, 64, 8))
            flag_store(c, S_X0 + 1)
            a(f"s_lshr_b32 s7, s{S_J}, 1\ns_cmp_eq_u32 s7, s{S_WAVE}\ns_cselect_b32 s7, s{S_J}, 8\ns_lshl_b32 s7, s7, {FW}")
            a(f"v_cmp_ne_u32 s[48:49], s7, v15\ns_waitcnt vmcnt(1)\nv_cmp_ne_u32 vcc, 1, v12\ns_and_b64 vcc, vcc, s[48:49]\ns_cbranch_vccz L_{tag}red_x")
        else:
            flag_store(c, S_X0 + 1)
            if int(fack): a("s_waitcnt vmcnt(0)"); stamp(c, 9)
            if int(onepoll): a(f"s_cmp_lg_u32 s{S_WAVE}, 0\ns_cbranch_scc1 L_{tag}red_x")
        poll(c, tag + "red", 64, 8, 1, 15)
        if stamps == 1: a(f"s_sub_u32 s78, {SPIN}, s68\ns_mul_i32 s78, s78, 100\ns_add_u32 s78, s78, s70")
        if int(onepoll): a("s_barrier")
        stamp(c, 16); stamp(c, 17, 10)
        for j in range(8):
            a(f"buffer_load_dwordx4 {vr(V_F+4*j)}, v13, {sr(SRDW)}, s{53+(j>>2)} offen sc1")
            if j & 3 < 3: a(f"s_add_u32 s{53+(j>>2)}, s{53+(j>>2)}, 4096")
        acc = V_S
        for j in range(8):
            a(f"s_waitcnt vmcnt({7-j})")
            d = acc if j == 0 else acc + 8
            for k in range(4):
                a(f"v_lshlrev_b32 v{d+2*k}, 16, v{V_F+4*j+k}\nv_and_b32 v{d+2*k+1}, 0xffff0000, v{V_F+4*j+k}")
            if j:
                for k in range(4): a(f"v_pk_add_f32 {vr(acc+2*k,2)}, {vr(acc+2*k,2)}, {vr(d+2*k,2)}")
        for k in range(4): a(f"v_cvt_pk_bf16_f32 v{acc+16+k}, v{acc+2*k}, v{acc+2*k+1}")
        a(f"buffer_store_dwordx4 {vr(acc+16)}, v14, {sr(SRD0)}, s66 offen {outfl}")
        a("s_branch L_red" if stamps else "s_endpgm")
    def early_poll(c):
        a(look(12, V_PA, S_X0 + 3, 4)); c.vm.issue("ep")
    def freed(c, held, first=2):
        for g in held: c.st.release(g)
        c.st.open("wo1", 7); c.st.open("wo1")
        while c.st.issued.get(f"wo{first-1}", 0) < 8: c.st.pump(1, False)
        c.st.pump(int(n_wpre), False)

    def oproj(c, X, tag, words, sbase, wsl=(0, 1, 2, 3), first=2):
        st = c.st
        stamp(c, 10); stamp(c, 11, 10)
        items = sorted([(w, i, s_) for w in range(4) for i in range(4) for s_ in range(2)], key=lambda it: it[1] >= first)
        todo = list(items)
        def fetch():
            if not todo: return
            w, i, s_ = todo.pop(0)
            if i in (0, first) and s_ == 0:
                a(f"s_add_u32 s7, s{S_U}, {w}\ns_and_b32 s7, s7, 3\ns_lshl_b32 s7, s7, 13\ns_add_u32 s7, s7, s{S_X0+4}")
                a(f"s_add_u32 s56, s59, s7\ns_xor_b32 s57, s59, 4096\ns_add_u32 s57, s57, s7")
            a(f"buffer_load_dwordx4 {ar(32*w+8*i+4*s_)}, v{V_L16}, {sr(SRDW)}, s{56+(i>>1)} offen offset:{1024*(2*(i&1)+s_)} sc1")
            c.vm.issue(f"of{w}_{i}_{s_}")
        def publish():
            a("s_barrier")
            a(f"s_cmp_lg_u32 s{S_WAVE}, 0\ns_cbranch_scc1 L_{tag}pub{next(uid)}")
            lab = a.lines[-1].split()[-1]
            q = list(c.vm.q)
            for so, nl in words: flag_store(c, so, nl)
            a.label(lab)
            c.vm.q = q
        ops = [it + (T,) for grp in tsplit.split(",") for it in items for T in map(int, grp)]
        cut = next(n for n, op in enumerate(ops) if op[1] >= first) - 4
        done = {max(n for n, op in enumerate(ops) if op[3] == T): T for T in range(4)}
        out = []
        def emit_tile(T):
            return ([f"v_cvt_pk_bf16_f32 v{V_S+64+8*T+k}, v{V_S+16*T+2*k}, v{V_S+16*T+2*k+1}" for k in range(8)]
                    + [f"buffer_store_dwordx4 {vr(V_S+64+4*p)}, v10, {sr(SRDW)}, s58 offen offset:{512*p} sc1" for p in (2 * T, 2 * T + 1)])
        def fill(n):
            if n - 4 in done: out.extend(emit_tile(done.pop(n - 4)))
            for _ in range(2):
                if out: a(out.pop(0))
        seen = set()
        def bf(w, i, s_):
            if (w, i, s_) not in seen:
                seen.add((w, i, s_))
                if f"of{w}_{i}_{s_}" in c.vm.q: c.vm.wait(f"of{w}_{i}_{s_}")
                fetch(); st.pump(2 if len(seen) <= n_w2 else (2 if first == 1 else 1), False)
            return ar(32 * w + 8 * i + 4 * s_)
        if "ep" in c.vm.q: c.vm.wait("ep")
        a(f"v_cmp_ne_u32 vcc, 1, v12\ns_cbranch_vccz L_{tag}early")
        main = a.lines; a.lines = []
        a.label(f"L_{tag}early")
        save = (list(c.vm.q), list(todo), list(st.q), dict(st.busy), set(st.landed), dict(st.issued), st.m0_dirty)
        for _ in range(n_look): fetch()
        c.vm.wait("ost"); st._sync(); assert f"wo{first-1}" in st.landed
        stamp(c, 11); stamp(c, 12, 10)
        publish()
        stamp(c, 12)
        a.label(f"L_{tag}ready")
        qr = list(c.vm.q)
        stamp(c, sbase); stamp(c, 14, 10); cyc(c, 17, True)
        w_ops(a, ops, bf, hi=cut, smap=wsl)
        st.pump(throttle=False); st.need("wo3", fill=False)
        qa, todoa = list(c.vm.q), list(todo)
        a(f"s_branch L_{tag}go")
        side = a.lines; a.lines = main
        c.vm.q, todo[:], st.q, st.busy, st.landed, st.issued, st.m0_dirty = save
        seen.clear()
        early_poll(c)
        c.vm.wait("ep")
        stamp(c, 11); stamp(c, 12, 10)
        publish()
        stamp(c, 12)
        a(f"v_cmp_ne_u32 vcc, 1, v12\ns_cbranch_vccz L_{tag}second")
        t0 = list(todo)
        a.lines = side
        a.label(f"L_{tag}second")
        for _ in range(n_look): fetch()
        assert c.vm.q == qr
        a(f"s_branch L_{tag}ready")
        a.lines = main
        c.vm.q = []; todo[:] = t0
        st.pump(throttle=False)
        poll(c, tag + "o", S_X0 + 3, 4, 1, V_PA)
        stamp(c, sbase); stamp(c, 14, 10); cyc(c, 17, True)
        for _ in range(n_look): fetch()
        w_ops(a, ops, bf, hi=cut, smap=wsl)
        assert todo == todoa and c.vm.q[len(c.vm.q)-len(qa):] == qa, (c.vm.q, qa)
        a.label(f"L_{tag}go")
        a("s_barrier")
        w_ops(a, ops, bf, lo=cut, fill=fill, smap=wsl)
        cyc(c, 17, False); stamp(c, 18); stamp(c, 15, 10)
        for n in sorted(done): out.extend(emit_tile(done[n]))
        for l in out: a(l)
        stamp(c, sbase + 1)
        c.vm.wait_all()
        stamp(c, sbase + 2); stamp(c, 16, 10)
        reduce(c, tag)
        a.lines += side

    c2 = mk()
    if qpf:
        a(f"""s_and_b32 s60, s{S_U}, 7
        s_lshl_b32 s60, s60, 2
        s_add_u32 s60, s60, s{S_WAVE}          ; 0..31
        s_lshr_b32 s61, s{S_U}, 3              ; h
        v_lshrrev_b32 v40, 3, v{V_LANE}
        v_and_b32 v41, 7, v{V_LANE}
        v_lshlrev_b32 v41, 7, v41
        v_lshl_add_u32 v40, v40, 13, v41
        v_lshrrev_b32 v41, 1, v{V_LANE}
        v_and_b32 v42, 1, v{V_LANE}
        v_lshlrev_b32 v42, 7, v42
        v_lshl_add_u32 v41, v41, 11, v42       ; 32 rows x 256 B
        s_and_b32 s62, s60, 15
        s_lshl_b32 s62, s62, 16
        s_lshl_b32 s7, s61, 20
        s_add_u32 s62, s62, s7
        s_lshl_b32 s7, s{S_J}, 10
        s_add_u32 s62, s62, s7                 ; Wq offset of k-tile h
        s_and_b32 s63, s60, 7
        s_lshl_b32 s63, s63, 16
        s_lshr_b32 s7, s60, 4
        s_lshl_b32 s7, s7, 8
        s_add_u32 s63, s63, s7
        s_lshl_b32 s7, s61, 9
        s_add_u32 s63, s63, s7                 ; x offset of k-tile 2h + (0|1)
        s_waitcnt lgkmcnt(0)
        s_bitcmp1_b32 s60, 4
        s_cselect_b32 s12, s{P_BWQ}, s{P_AWQ}
        s_cselect_b32 s13, s{P_BWQ+1}, s{P_AWQ+1}
        s_mov_b32 s14, 0x800000
        s_mov_b32 s15, 0x20000
        s_bitcmp1_b32 s60, 3
        s_cselect_b32 s{SRDT}, s{P_BX}, s{P_AX}
        s_cselect_b32 s{SRDT+1}, s{P_BX+1}, s{P_AX+1}
        s_mov_b32 s{SRDT+2}, 0x80000
        s_mov_b32 s{SRDT+3}, 0x20000""")
        for n, kind in enumerate("xWWxWW"):
            if qpf[n] == "1":
                if kind == "x": a(f"buffer_load_dword v43, v41, {sr(SRDT)}, s63 offen")
                else: a("buffer_load_dword v43, v40, s[12:15], s62 offen")
                c2.vm.issue("pf")
                if int(qthr): a(f"s_waitcnt vmcnt({int(qthr)-1})")
            a("s_add_u32 s63, s63, 1024" if kind == "x" else f"s_add_u32 s62, s62, {2<<20}")
    add_kv(c2, n_g2k, n_g2v, True)
    if stamps == 9: c2.st.run_pre("k0"); a("s_memrealtime s[62:63]")
    c2.st.pump(n_g2k[0])
    if stamps == 9:
        a(f"s_memrealtime s[64:65]\ns_waitcnt vmcnt({n_g2k[0]-1})\ns_memrealtime s[66:67]\ns_waitcnt vmcnt(0)\ns_memrealtime s[68:69]\ns_waitcnt lgkmcnt(0)")
        a("s_mov_b32 s92, s62\ns_mov_b32 s93, s64\ns_mov_b32 s94, s66\ns_mov_b32 s95, s68")
    a("s_branch L_g2")
    a.label("L_g1")
    c = mk(); st = c.st
    if int(nog1):
        global SPIN; SPIN = 4
        a("s_waitcnt lgkmcnt(0)"); common(); fp_word(); a("s_branch L_red")
    set_kd(a, 2048)
    if int(xmap):
        a(f"""s_and_b32 s{S_X0+5}, s{S_J}, 1            ; X
        s_bfe_u32 s{S_X0+6}, s{S_U}, 0x20001      ; p
        s_lshr_b32 s{S_X0+7}, s{S_U}, 3           ; r
        s_lshl_b32 s{S_X0+8}, s{S_X0+7}, 2
        s_add_u32 s{S_X0+8}, s{S_X0+8}, s{S_WAVE}   ; batch
        s_lshl_b32 s{S_A+3}, s{S_X0+8}, 16
        s_lshr_b32 s7, s{S_J}, 1
        s_lshl_b32 s7, s7, 3
        s_and_b32 s{S_X0+9}, s{S_U}, 7
        s_add_u32 s{S_X0+9}, s{S_X0+9}, s7          ; head
        s_xor_b32 s{S_X0+7}, s{S_X0+7}, s{S_U}
        s_and_b32 s{S_X0+7}, s{S_X0+7}, 1           ; r ^ (u & 1)""")
    else:
        a(f"""s_lshr_b32 s{S_X0+5}, s{S_U}, 3           ; X
        s_and_b32 s{S_X0+6}, s{S_U}, 3            ; hh
        s_bfe_u32 s{S_X0+7}, s{S_U}, 0x10002      ; r
        s_lshl_b32 s{S_X0+8}, s{S_X0+7}, 2
        s_add_u32 s{S_X0+8}, s{S_X0+8}, s{S_WAVE}   ; batch
        s_lshl_b32 s{S_A+3}, s{S_X0+8}, 16
        s_lshl_b32 s7, s{S_J}, 2
        s_add_u32 s{S_X0+9}, s{S_X0+6}, s7          ; head""")
    def sigma(i, S, sh):
        a(f"s_add_u32 s7, s{S_X0+6}, {i>>1}\ns_and_b32 s7, s7, 3\ns_lshl_b32 s7, s7, 1\ns_add_u32 s7, s7, s{S_X0+7}")
        if i & 1: a("s_xor_b32 s7, s7, 1")
        a(f"s_lshl_b32 s7, s7, {sh}\ns_add_u32 s{S}, s{S+3}, s7")
    assert int(rotq) == 2
    if int(rotq) == 2: sigma(0, S_A, 8)
    a("s_waitcnt lgkmcnt(0)")
    srd_sel(a, SRD0, S_X0 + 5, P_AX, P_BX, 0x80000)
    a(f"s_lshl_b32 s{S_SCR}, s{S_WAVE}, 13\ns_add_u32 s{S_SCR}, s{S_SCR}, {LDS_SCR}")
    def prewq():
        set_vd(a, 8192)
        srd_sel(a, SRD1, S_X0 + 5, P_AWQ, P_BWQ, 0x800000)
        a(f"s_lshl_b32 s{S_B+3}, s{S_X0+9}, 8\ns_lshl_b32 s7, s{S_WAVE}, 18\ns_add_u32 s{S_B+3}, s{S_B+3}, s7")
        sigma(0, S_B, 20)
    for g in ["x0", "w0", "w1"] + [g for t in range(1, 7) for g in (f"x{t}", f"w{t+1}")] + ["x7"]:
        t = int(g[1])
        nx = (lambda t, S, sh: (lambda: sigma(t + 1, S, sh) if t < 7 else None)) if int(rotq) == 2 else (lambda *_: None)
        if g[0] == "x": st.add(g, 4, SRD0, S_A, 256, V_KD, 2048, fl_x, n_x[t], wrap=2048, nxt=nx(t, S_A, 8))
        else: st.add(g, t & 3, SRD1, S_B, 1 << 20, V_VD, 8192, fl_wq, n_wq[t], pre=prewq if t == 0 else None, wrap=8 << 20, nxt=nx(t, S_B, 20))
    st.pump(8)
    common()
    a(f"""s_lshl_b32 s{S_X0+3}, s{S_X0+5}, 3
    s_add_u32 s{S_X0+3}, s{S_X0+3}, s{S_X0+8}
    s_lshl_b32 s{S_X0+3}, s{S_X0+3}, 5
    s_add_u32 s{S_X0+3}, s{S_X0+3}, s{S_X0+9}
    s_lshl_b32 s{S_X0+4}, s{S_X0+3}, 6
    s_add_u32 s{S_X0+4}, s{S_X0+4}, {WS_FQ}
    s_lshl_b32 s{S_X0+3}, s{S_X0+3}, 13""")
    fp_word()
    clear_flags(c, [(S_X0 + 4, 4, 11), (S_FOB, 1, 2), (S_X0 + 1, 4, FS)], "g1clear")
    add_kv(c, n_g1k, n_g1v, False)
    add_wo(c, 1)
    set_kr(a, S_SCR); set_tr(a)
    if pf & 2: code_touch(a, "L_g1pf_x", "L_g2", 32768, 4, "g1pf")
    early = [n_early]
    def gated_pump(throttle):
        if st.can() and st.q[0][0][0] == "k":
            if early[0] <= 0: return
            early[0] -= 1
        st.pump(1, throttle)
    def wpre(t):
        def f():
            st.need(f"x{t}", fill=(t < 6))
            for s in range(8): a(f"ds_read_b128 {ar(32*t+4*s)}, v{V_KR+s}")
            if t == 0: stamp(c, 1)
            st.need(f"w{t}", fill=(t < 6))
            if t == 0: count_in(c, "g1count")
            stamp(c, 3 + 2 * t, 3)
            a("s_barrier")
            stamp(c, 4 + 2 * t, 3)
            if t == 3: stamp(c, 3, 7); cyc(c, 5, True, 7)
            if t == 6: stamp(c, 4, 7); cyc(c, 5, False, 7)
            if prew:
                if t == 0: prew_setup(c); prew_o(c, S_OB)
                if t < 4: prew_part(c, 2 * t); prew_part(c, 2 * t + 1)
            if t: st.release(f"w{t-1}")
            if t == 7:
                assert st.issued["x7"] == 8
                st.run_pre("k0")
        return f
    ops = [(w, t & 3, s, T, t) for t in range(7) for w in range(4) for s in range(2) for T in range(4)]
    ops += [(w, 3, s, T, 7) for grp in qsplit.split(",") for w in range(4) for s in range(2) for T in map(int, grp)]
    done = {max(n for n, op in enumerate(ops) if op[3] == T): T for T in range(4)}
    out = []
    def q_tile(T):
        return ([f"v_pk_mul_f32 {vr(V_S+16*T+i,2)}, {vr(V_S+16*T+i,2)}, s[{S_C}:{S_C+1}] op_sel_hi:[1,0]" for i in range(0, 16, 2)]
                + [f"v_cvt_pk_bf16_f32 v{V_S+64+8*T+k}, v{V_S+16*T+2*k}, v{V_S+16*T+2*k+1}" for k in range(8)]
                + [f"buffer_store_dwordx4 {vr(V_S+64+4*s)}, v{V_L16}, {sr(SRDW)}, s{S_X0+2 if s>=4 else S_X0+3} offen offset:{1024*(s&3)} sc1" for s in (2 * T, 2 * T + 1)])
    def q_fill(n):
        if n - 4 in done: out.extend(q_tile(done.pop(n - 4)))
        for _ in range(3):
            if out: a(out.pop(0))
    a(f"s_add_u32 s{S_X0+2}, s{S_X0+3}, 4096")
    wpre(0)()
    w_ops(a, ops, lambda w, slot, s, t: ar(32 * t + 4 * (2 * w + s)), fill=q_fill,
          before={32 * t - 4: (lambda t: lambda: (a("s_waitcnt lgkmcnt(0)"), wpre(t)()))(t) for t in range(1, 8)},
          waited={32 * i: (lambda i: lambda: (st.release(f"x{i}"), set_kr(a) if i == 7 else None))(i) for i in range(8)},
          behind=lambda n: (gated_pump(True), gated_pump(True)) if n % 4 == 0 and n < 32 * 7 + 16 else None)
    for n in sorted(done): out.extend(q_tile(done[n]))
    for l in out: a(l)
    c.vm.issue("qst", 8)
    st.pump(3, throttle=False)
    c.vm.wait("qst"); st._sync()
    flag_store(c, S_X0 + 4)
    a("s_barrier"); st.release("w7")
    stamp(c, 2)
    if int(lag):
        a(f"s_and_b32 s7, s{S_U}, 3\ns_cmp_eq_u32 s7, 1\ns_cselect_b32 s{S_X0+5}, 1, 0"); st.lag = S_X0 + 5
    mha1(c)
    oproj(c, 1, "g1", [(S_FOB, 1)], 13, first=int(g1first))

    a.label("L_g2")
    c = c2; st = c.st
    common()
    if stamps == 9: a("s_mov_b32 s73, s92\ns_mov_b32 s74, s93\ns_mov_b32 s75, s94\ns_mov_b32 s76, s95"); stamp(c, 7, 9)
    a(f"""s_lshl_b32 s{S_X0+5}, s{S_U}, 1
    s_lshl_b32 s{S_X0+6}, s{S_J}, 5
    s_add_u32 s{S_X0+6}, s{S_X0+6}, s{S_X0+5}   ; b*32+h
    s_lshl_b32 s{S_X0+7}, s{S_X0+6}, 6
    s_add_u32 s{S_X0+7}, s{S_X0+7}, {WS_FQ}     ; Q flag
    s_lshl_b32 s{S_X0+6}, s{S_X0+6}, 13         ; Q offset (O = +WS_O)
    s_lshl_b32 s{S_X0+8}, s{S_J}, 3
    s_lshr_b32 s7, s{S_U}, 1
    s_add_u32 s{S_X0+8}, s{S_X0+8}, s7
    s_lshl_b32 s{S_X0+8}, s{S_X0+8}, {FS}
    s_and_b32 s7, s{S_U}, 1
    s_lshl_b32 s7, s7, {FW+1}
    s_add_u32 s{S_X0+8}, s{S_X0+8}, s7
    s_add_u32 s{S_X0+8}, s{S_X0+8}, {WS_FO}     ; O flags (two words)
    s_add_u32 s{S_X0+9}, s{S_X0+8}, 4""")
    def kva_off(S):
        a(f"s_lshl_b32 s{S+3}, s{S_J}, 2\ns_lshr_b32 s7, s{S_U}, 2\ns_add_u32 s{S+3}, s{S+3}, s7\ns_lshl_b32 s{S+3}, s{S+3}, 18")
        a(f"s_lshl_b32 s7, s{S_WAVE}, {WSH}\ns_add_u32 s{S+3}, s{S+3}, s7")
        a(f"s_and_b32 s{S+2}, s{S_U}, {3 if rot else 0}\ns_lshl_b32 s{S+2}, s{S+2}, {15 if int(rota) == 2 else 16}\ns_add_u32 s{S}, s{S+3}, s{S+2}")
    def half2(S): return lambda: a(f"s_add_u32 s{S+3}, s{S+3}, 131072\ns_add_u32 s{S}, s{S}, 131072")
    wra = 131072 if int(rota) == 2 else 262144
    five = int(five)
    ASL = [n % 5 if five else n & 3 for n in range(16)]
    WSL2 = [1, 2, 3, 0] if five else [0, 1, 2, 3]
    a(f"s_lshl_b32 s{S_SCR}, s{S_WAVE}, 13\ns_add_u32 s{S_SCR}, s{S_SCR}, {LDS_SCR}")
    def preka(): srd(a, SRD0, P_AK, 0x800000); kva_off(S_A)
    def preva(): srd(a, SRD1, P_AV, 0x800000); kva_off(S_B)
    fp_word()
    clear_flags(c, [(S_FOB, 1, 2), (S_X0 + 8, 2, FW), (S_X0 + 1, 4, FS)], "g2clear")
    for t in range(8): st.add(f"ka{t}", ASL[t], SRD0, S_A, 32768, V_KD, 256, fl_kva, n_kva[t], pre=preka if t == 0 else half2(S_A) if t == 4 and int(rota) == 2 else None, wrap=wra, ps=PS)
    for t in range(8): st.add(f"va{t}", ASL[8 + t], SRD1, S_B, 32768, V_VD, 256, fl_kva, n_vva[t], single=not PS, pre=preva if t == 0 else half2(S_B) if t == 4 and int(rota) == 2 else None, wrap=wra, ps=PS)
    add_wo(c, 0, WSL2)
    set_kr(a); set_tr(a)
    if pf & 4: code_touch(a, "L_g2pf_x", "L_end", 32768, 4, "g2pf")
    if int(tlb):
        a(f"s_cmp_lg_u32 s{S_WAVE}, 2\ns_cbranch_scc1 L_tlb_x")
        a(f"v_lshlrev_b32 v{V_F+29}, 20, v{V_LANE}")
        for p, n in ((P_AWO, 8), (P_BWO, 8), (P_AK, 8), (P_AV, 8), (P_OUT, 1), (P_WS, 24)):
            srd(a, SRDT, p, n << 20)
            a(f"buffer_load_dword v{V_T0}, v{V_F+29}, {sr(SRDT)}, 0 offen")
        a.label("L_tlb_x")
    def qa_hook(t):
        if t == 1: ck_issue(c, "ws", (S_X0 + 7, 2, 6))
        if t == 3:
            ck_verify(c, "g2qa")
            q_dma(c, S_X0 + 6, 0, "qa")
            a(f"s_add_u32 s{S_X0+7}, s{S_X0+6}, 8192")
            q_dma(c, S_X0 + 7, 2048, "qa")
        if t == 7:
            if "qa" in c.vm.q: c.vm.wait("qa")
            st._sync()
            a("s_barrier")
            q_read(c, 0, lambda s: vr(V_Q + 4 * s)); a("s_waitcnt lgkmcnt(4)")
            q_read(c, 2048, lambda s: ar(A_Q1 + 4 * s))
            a("s_waitcnt lgkmcnt(0)\ns_barrier")
    mha2(c, qa_hook)
    st.release("v7")
    if kvpf & 2: touch(c, P_AV, 0x800000, KVA_BASE, 32768, 256, fl_kva)
    stamp(c, 5)
    if pf & 1: code_touch(a, "L_g2tail2", "L_end", 16384, 2, "g2pf2")
    def wo_gap(t):
        if t >= g2w[0]: st.open("wo0")
        if t >= g2w[1]: st.open("wo1")
        if st.issued.get("wo1", 0) == 7 and not getattr(c, "gap_done", False):
            c.gap_done = True
            a(f"buffer_load_dword v{V_T0}, v{V_VD+3}, {sr(SRD1)}, s{S_B+1} offen offset:3072 {fl_wo}")
            c.vm.issue("pf")
    st.gate("va1"); st.gate("wo1", 7)
    g2w = [int(x) for x in str(g2wo).split(",")]
    st.gate("wo0"); st.gate("wo1")
    a(f"s_sub_u32 s{S_DLT}, s{S_SCR}, s{S_RING}")
    gqa_k(c, [f"ka{t}" for t in range(8)], ASL[:8], lambda t: st.open("va1") if t == va1 - 1 else None)
    st.open("va1"); st.pump(8 if va1 == 8 else 0, False)
    stamp(c, 6)
    a.label("L_gv")
    if kvpf & 4: touch(c, P_AWO, 0x800000, WO_BASE.replace(f"v{V_CA}", f"v{V_CA}"), 65536, 2048, fl_wo)
    heads = [dict(acc=lambda B: ar(A_O + 16 * B, 16), L=A_L, M=V_M, slot=WSL2[3], b3=("scr", 0), st=(WSL2[1], 7168), dst=S_X0 + 6),
             dict(acc=o1, L=A_L1, M=V_M1, slot=WSL2[2], b3=("scr", 4096), st=(WSL2[1], 7168 + 8), dst=S_X0 + 7)]
    held = ("va5", "va6", "va7") if five else ("va6", "va7")
    epi = Epi(c, heads, t=V_P1, sv=(2, 4)) if int(ovl) else None
    gqa_v(c, [f"va{t}" for t in range(8)], ASL[8:], hold=held, hook=wo_gap,
          last=(lambda n: [epi.do(x) for x in {-1: ["addr"], 0: ["stats"], 1: [1], 2: [2], 3: [3]}[n]]) if epi else None)
    stamp(c, 7)
    a.label("L_g2tail2")
    a(f"s_add_u32 s{S_X0+6}, s{S_X0+6}, {WS_O}\ns_add_u32 s{S_X0+7}, s{S_X0+7}, {WS_O}")
    o_epi(c, heads, epi=epi,
          idle=lambda: tail_setup(c, 0), mid=lambda: (early_poll(c), st.pump(8, False), wo_gap(9)), freed=lambda: freed(c, held, int(g2first)))
    oproj(c, 0, "g2", [(S_X0 + 8, 2), (S_FOB, 1)], 13, WSL2, first=int(g2first))

    a.label("L_red")
    c = mk()
    if stamps:
        a("s_waitcnt vmcnt(0)"); stamp(c, 19)
        if stamps == 4: a("s_getreg_b32 s88, hwreg(HW_REG_HW_ID)\ns_bfe_u32 s88, s88, 0x80008\ns_mul_i32 s88, s88, 100\ns_add_u32 s88, s88, s70")
        a(f"s_lshl_b32 s7, s2, 2\ns_add_u32 s7, s7, s{S_WAVE}\ns_lshl_b32 s7, s7, 7\ns_add_u32 s7, s7, {WS_ST}")
        for n in range(20): a(f"v_mov_b32 v{V_S+n}, s{70+n}")
        a(f"v_mov_b32 v{V_T0}, 0\ns_mov_b64 exec, 1")
        for q in range(5): a(f"buffer_store_dwordx4 {vr(V_S+4*q)}, v{V_T0}, {sr(SRDW)}, s7 offen offset:{16*q}")
    a.label("L_end"); a("s_endpgm")
    if "L" in hack: a.lines = [l for l in a.lines if not (l.startswith("v_mfma") and f", {vr(V_ONE)}," in l)]
    if "E" in hack: a.lines = [l.replace("v_exp_f32", "v_mov_b32") for l in a.lines]
    def strip(l0, l1, pred):
        i0 = a.lines.index(l0); i1 = a.lines.index(l1)
        a.lines[i0:i1] = [l for l in a.lines[i0:i1] if not pred(l)]
    if "K" in hack: strip("L_g2pf2_x:", "L_gv:", lambda l: l.startswith("v_mfma"))
    if "V" in hack: strip("L_gv:", "L_g2tail2:", lambda l: l.startswith("v_mfma"))
    if "P" in hack: strip("L_g1pf3_x:", "L_g1tail:", lambda l: l.startswith("v_mfma"))
    if "R" in hack: strip("L_g2pf2_x:", "L_g2tail2:", lambda l: l.startswith("ds_read"))
    if "H" in hack: strip("L_gv:", "L_g2tail2:", lambda l: l.startswith("v_mfma_f32_32") and (l.split()[1].startswith("v[4") or l.split()[1].startswith("v[5") or l.split()[1].startswith("a[96") or l.split()[1].startswith("a[112")))
    if "M" in hack:
        i0 = a.lines.index("L_g2pf2_x:"); i1 = a.lines.index("L_g2tail2:")
        a.lines[i0:i1] = [l for n, l in enumerate(a.lines[i0:i1]) if not l.startswith("v_mfma")]
    s = header(["; @launch grid=(256,1,1) block=(256,1,1) lds=163840"])
    s += kernel_open(NAME + "_kernel") + a.finish() + "\n"
    s += '.section .rodata,"a"\n.p2align 6\n' + descriptor(NAME + "_kernel")
    return s

if __name__ == "__main__":
    out = sys.argv[1]
    kw = dict(x.split("=") for x in sys.argv[2:])
    open(out, "w").write(build(**kw))
```

```python
import sys
from engines import *

WS_FQ = WS_F
WS_FO = WS_F + 0x200000
WS_FP = WS_F + 0x400000
WS_ST = WS_F + 0x100000
FS = 7
FW = 2
SLEEP = 0
APOLL = 1
KP = 3
ACK = 1
NPOLL = 1
PGAP = 0
GAP = 28
S_SCR = 69
SPIN = 1 << 18
SRDT = 88

class Stream:
    def __init__(self, a, vm):
        self.a, self.vm = a, vm
        self.q = []
        self.busy = {}
        self.landed = set(); self.issued = {}; self.m0_dirty = False; self.pres = {}; self.gates = set(); self.lag = None; self.nl = 0
    def run_pre(self, tag):
        box = self.pres[tag]
        if box[0]: box[0](); box[0] = None
    def add(self, tag, slot, srdreg, soff, step, voff, rs, fl, N, single=False, pre=None, wrap=None, nxt=None, ps=None):
        a = self.a
        fl = (" " + fl) if fl else ""
        sb, so_ = (S_SCR, 0) if slot == 4 else (S_RING, slot * 8192)
        box = [pre]
        def emit(k):
            if k == 0:
                if box[0]: box[0](); box[0] = None
                a(f"s_add_u32 m0, s{sb}, {so_}")
            if k == 4:
                a(f"s_add_u32 s{soff+1}, s{soff}, {4*(ps or 4*rs)}")
                a(f"s_add_u32 m0, s{sb}, {so_+4096}")
            if self.m0_dirty and k & 3: a(f"s_add_u32 m0, s{sb}, {so_+(k&4)*1024}")
            self.m0_dirty = False
            so = soff + 1 if k >= 4 else soff
            off = f" offset:{1024*(k&3)}" if k & 3 else ""
            a(f"buffer_load_dwordx4 v{voff+(0 if single else k&3)}, {sr(srdreg)}, s{so} offen{off}{fl} lds")
            if k == 7:
                if nxt is not None: nxt()
                elif wrap is None: a(f"s_add_u32 s{soff}, s{soff}, {step}")
                else:
                    a(f"s_add_u32 s{soff+2}, s{soff+2}, {step}\ns_and_b32 s{soff+2}, s{soff+2}, {wrap-1}\ns_add_u32 s{soff}, s{soff+3}, s{soff+2}")
        for k in range(8): self.q.append((tag, slot, k, emit, N))
        self.pres[tag] = box
    def can(self):
        if not self.q: return False
        tag, slot, k, _, _ = self.q[0]
        if (tag, k) in self.gates: return False
        return self.busy.get(slot) in (None, tag)
    def gate(self, tag, k=0): self.gates.add((tag, k))
    def open(self, tag, k=0): self.gates.discard((tag, k))
    def _sync(self):
        for tag, n in self.issued.items():
            if n == 8 and tag not in self.vm.q: self.landed.add(tag)
    def piece(self, throttle=True):
        tag, slot, k, emit, N = self.q.pop(0)
        if throttle and self.lag is not None and N < 8 and tag[0] in "kv":
            if len(self.vm.q) >= N:
                self.nl += 1
                self.a(f"s_cmp_lg_u32 s{self.lag}, 0\ns_cbranch_scc1 L_lag{self.nl}\ns_waitcnt vmcnt({N-1})"); self.a.label(f"L_lag{self.nl}")
            N = 12
        if throttle and len(self.vm.q) >= N:
            self.a(f"s_waitcnt vmcnt({N-1})"); self.vm.q = self.vm.q[len(self.vm.q) - (N - 1):] if N > 1 else []
        assert len(self.vm.q) < 63
        self.busy[slot] = tag
        emit(k); self.vm.issue(tag); self.issued[tag] = self.issued.get(tag, 0) + 1
        self._sync()
    def pump(self, n=99, throttle=True):
        while n > 0 and self.can():
            self.piece(throttle); n -= 1
    def need(self, tag, fill=True):
        self._sync()
        while tag not in self.landed and self.can() and (fill or self.issued.get(tag, 0) < 8):
            self.piece()
        if tag not in self.landed:
            assert self.issued.get(tag) == 8, tag
            self.vm.wait(tag); self._sync()
    def release(self, tag):
        for s, t in list(self.busy.items()):
            if t == tag: self.busy[s] = None

import itertools
uid = itertools.count()
class Ctx: pass

def cyc(c, n, start, mode=1):
    if c.stamps != mode: return
    c.a("s_memtime s[42:43]\ns_waitcnt lgkmcnt(0)")
    if start: c.a(f"s_mov_b32 s{70+n}, s42")
    else: c.a(f"s_sub_u32 s{70+n}, s42, s{70+n}\ns_add_u32 s{70+n}, s{70+n}, s70")

def stamp(c, n, mode=1):
    if c.stamps != mode and not (c.stamps and n in (1, 2, 19)) and not (c.stamps == 11 and mode == 1): return
    c.a(f"s_memrealtime s[42:43]\ns_waitcnt lgkmcnt(0)\ns_mov_b32 s{70+n}, s42")

def look(r, voff, so, nl):
    if not APOLL: return f"buffer_load_dword v{r}, v{voff}, {sr(SRDW)}, s{so} offen sc1"
    return (f"v_mov_b32 v{r}, 1\ns_mov_b64 exec, {(1<<nl)-1}\nv_mov_b32 v{r}, 0\n"
            f"buffer_atomic_or v{r}, v{voff}, {sr(SRDW)}, s{so} offen sc0 sc1\ns_mov_b64 exec, -1")

def poll(c, name, soff_expr_reg, nl, want, voff):
    a = c.a
    regs = [V_T0, 32, 33, 34][:NPOLL]
    ld = lambda r: look(r, voff, soff_expr_reg, nl)
    a(f"s_mov_b32 s68, {SPIN}")
    if NPOLL > 1:
        a(ld(regs[0]))
        for r in regs[1:-1]: a(f"v_mov_b32 v{r}, 0")
        a(f"s_waitcnt vmcnt(0)\nv_cmp_ne_u32 vcc, {want}, v{regs[0]}\ns_cbranch_vccz L_{name}_x")
    for r in regs[:-1]:
        a(ld(r))
        if PGAP: a(f"s_sleep {PGAP}")
    a.label(f"L_{name}")
    for n, r in enumerate(regs):
        a(ld(regs[n - 1]))
        a(f"s_waitcnt vmcnt({NPOLL-1})")
        a(f"v_cmp_ne_u32 vcc, {want}, v{r}")
        a(f"s_cbranch_vccz L_{name}_x")
    if SLEEP: a(f"s_sleep {SLEEP}")
    a(f"s_sub_u32 s68, s68, 1\ns_cbranch_scc0 L_{name}")
    a.label(f"L_{name}_x")
    c.vm.q = ["poll"] * (NPOLL - 1); c.st._sync()

V_CK, V_CA = 34, 35
def ck_issue(c, kind, arg):
    a = c.a
    if kind == "dbg":
        a(f"v_and_b32 v{V_CA}, 7, v{V_LANE}\nv_lshlrev_b32 v{V_CA}, 5, v{V_CA}")
        ld = f"global_load_dword v{V_CK}, v{V_CA}, s[{P_DBG}:{P_DBG+1}] sc1"
        cmp_ = f"v_cmp_gt_u32 vcc, 32, v{V_CK}"
    else:
        so, nl, sh = arg
        a(f"v_and_b32 v{V_CA}, {nl-1}, v{V_LANE}\nv_lshlrev_b32 v{V_CA}, {sh}, v{V_CA}")
        ld = look(V_CK, V_CA, so, nl) if ACK else f"buffer_load_dword v{V_CK}, v{V_CA}, {sr(SRDW)}, s{so} offen sc1"
        cmp_ = f"v_cmp_ne_u32 vcc, 1, v{V_CK}"
    a(ld); c.vm.issue("ck"); c.ck = (ld, cmp_)
def ck_verify(c, name, idle=()):
    a = c.a; ld, cmp_ = c.ck
    if "ck" in c.vm.q: c.vm.wait("ck")
    c.st._sync()
    if idle:
        a(f"{cmp_}\ns_cbranch_vccz L_{name}_x\n{ld}\ns_waitcnt vmcnt(0)")
        for hint in idle:
            a(f"{cmp_}\ns_cbranch_vccz L_{name}_x\n{ld}\n{hint}\ns_waitcnt vmcnt(1)")
    a(f"s_mov_b32 s68, {SPIN}")
    a.label(f"L_{name}")
    a(f"{cmp_}\ns_cbranch_vccz L_{name}_x")
    if SLEEP: a(f"s_sleep {SLEEP}")
    a(f"{ld}\ns_sub_u32 s68, s68, 1\ns_waitcnt vmcnt(0)\ns_cbranch_scc0 L_{name}")
    a.label(f"L_{name}_x")

def park2(c, tags, hook=None):
    a, st = c.a, c.st
    for t in range(8):
        st.need(tags[t])
        slot = [s for s, g in st.busy.items() if g == tags[t]][0]
        for s in range(8):
            a(f"ds_read_b128 {ar(32*t+4*s)}, v{V_KR+s} offset:{slot*8192}")
        a("s_waitcnt lgkmcnt(0)")
        st.release(tags[t])
        stamp(c, 3 + t, 8)
        if hook: hook(t)

V_SH = 104
V_SH0, V_SH1 = 10, 14
def finish_max(a, M, T, sh):
    a(f"""v_mov_b32 v{T}, v{M}
    v_permlane32_swap_b32 v{M}, v{T}
    v_max_f32 v{M}, v{M}, v{T}
    v_mul_f32 v{M}, -0.5, v{M}
    v_cvt_pk_bf16_f32 v{T}, v{M}, v{M}
    v_lshlrev_b32 v{T}, 16, v{T}
    v_sub_f32 v{M}, v{M}, v{T}
    v_cvt_pk_bf16_f32 v{sh}, v{T}, v{M}
    v_and_b32 v{M}, 0xffff0000, v{sh}
    v_add_f32 v{M}, v{M}, v{T}
    v_mul_f32 v{M}, -2.0, v{M}
    v_mov_b32 v{sh+1}, 0
    v_mov_b32 v{sh+2}, 0
    v_mov_b32 v{sh+3}, 0""")
V_SEL = 26
def set_ones(a):
    for k in range(4): a(f"v_mov_b32 v{V_ONE+k}, 0x3f803f80")
    a(f"""v_lshrrev_b32 v{V_SEL}, 4, v{V_LANE}
    v_xor_b32 v{V_SEL}, v{V_SEL}, v{V_LANE}
    v_and_b32 v{V_SEL}, 1, v{V_SEL}
    v_add_u32 v{V_SEL}, -1, v{V_SEL}
    v_and_b32 v{V_SEL}, 0x3f803f80, v{V_SEL}
    v_mov_b32 v{V_SEL+1}, v{V_SEL}
    v_mov_b32 v{V_SEL+2}, v{V_SEL}
    v_mov_b32 v{V_SEL+3}, v{V_SEL}""")
def rowsum(L, P, first):
    return f"v_mfma_f32_16x16x32_bf16 {ar(L)}, {vr(V_SEL)}, {vr(P)}, {'0' if first else ar(L)}"
def shift(S, sh): return f"v_mfma_f32_32x32x16_bf16 {S}, {vr(V_ONE)}, {vr(sh)}, {S}"

def scores2(c, npump=1):
    a, st = c.a, c.st
    pend = []
    for t in range(8):
        for s in range(8):
            cc = "0" if s == 0 else vr(V_S + 16 * t, 16)
            a(f"v_mfma_f32_32x32x16_bf16 {vr(V_S+16*t,16)}, {ar(32*t+4*s)}, {vr(V_Q+4*s)}, {cc}")
            if s >= 4:
                for _ in range(2):
                    if pend: a(pend.pop(0))
            if s == 0 or (s == 2 and npump > 1): st.pump(1)
        b = V_S + 16 * t
        if t == 0:
            pend = [f"v_max3_f32 v{V_M}, v{b}, v{b+1}, v{b+2}"]
            pend += [f"v_max3_f32 v{V_M}, v{V_M}, v{b+i}, v{b+i+1}" for i in range(3, 15, 2)]
            pend += [f"v_max_f32 v{V_M}, v{V_M}, v{b+15}"]
        else:
            pend = [f"v_max3_f32 v{V_M}, v{V_M}, v{b+i}, v{b+i+1}" for i in range(0, 16, 2)]
    while pend: a(pend.pop(0))
    finish_max(a, V_M, V_MC, V_SH)

class LagScores:
    def __init__(self, c): self.c = c; self.pend = []
    def tile(self, t):
        a, st, pend = self.c.a, self.c.st, self.pend
        for s in range(8):
            cc = "0" if s == 0 else vr(V_S + 16 * t, 16)
            a(f"v_mfma_f32_32x32x16_bf16 {vr(V_S+16*t,16)}, {ar(32*t+4*s)}, {vr(V_Q+4*s)}, {cc}")
            if s >= 4:
                for _ in range(2):
                    if pend: a(pend.pop(0))
            if s in (0, 2): st.pump(1)
        b = V_S + 16 * t
        if t == 0:
            pend += [f"v_max3_f32 v{V_M}, v{b}, v{b+1}, v{b+2}"]
            pend += [f"v_max3_f32 v{V_M}, v{V_M}, v{b+i}, v{b+i+1}" for i in range(3, 15, 2)]
            pend += [f"v_max_f32 v{V_M}, v{V_M}, v{b+15}"]
        else:
            pend += [f"v_max3_f32 v{V_M}, v{V_M}, v{b+i}, v{b+i+1}" for i in range(0, 16, 2)]
    def finish(self):
        for l in self.pend: self.c.a(l)
        finish_max(self.c.a, V_M, V_MC, V_SH)

def sm_lines(b):
    out = [f"v_exp_f32 v{b+i}, v{b+i}" for i in range(16)]
    out += [f"v_cvt_pk_bf16_f32 v{b+k}, v{b+2*k}, v{b+2*k+1}" for k in range(8)]
    return out

def pv2(c, tags, last_pump=False, hold_last=True, hook=None, last=None, epi=None):
    a, st = c.a, c.st
    set_ones(a)
    a(shift(vr(V_S, 16), V_SH)); a(shift(vr(V_S + 16, 16), V_SH))
    for l in sm_lines(V_S): a(l)
    for t in range(8):
        if t < 6: a(shift(vr(V_S + 16 * (t + 2), 16), V_SH))
        fin = t == 7 and epi
        b = V_S + 16 * t
        if fin:
            a(rowsum(A_L, b, False)); a(rowsum(A_L, b + 4, False)); epi.do("addr"); epi.do("stats")
        st.need(tags[t], fill=False)
        if t == 7 and last: last()
        slot = [s for s, g in st.busy.items() if g == tags[t]][0]
        for B in ((1, 2, 3, 0) if fin else range(4)):
            for l in v_reads(V_F, slot)[4 * B:4 * B + 4]: a(l)
        nxt = sm_lines(V_S + 16 * (t + 1)) if t < 7 else []
        for s in range(0 if fin else 2):
            a(rowsum(A_L, b + 4 * s, t == 0 and s == 0))
            for _ in range(2):
                if nxt: a(nxt.pop(0))
        for n, B in enumerate((1, 2, 3, 0) if fin else range(4)):
            for s in range(2):
                if s == 0: a(f"s_waitcnt lgkmcnt({(12, 8, 4, 4)[n] if fin else 12-4*B})")
                cc = "0" if (t == 0 and s == 0) else ar(A_O + 16 * B, 16)
                a(f"v_mfma_f32_32x32x16_bf16 {ar(A_O+16*B,16)}, {vr(V_F+8*B+4*s)}, {vr(b+4*s)}, {cc}")
                for _ in range(3):
                    if nxt: a(nxt.pop(0))
                if t < 7 or last_pump: st.pump(1)
            if fin and n >= 2: epi.do(n - 1)
        while nxt: a(nxt.pop(0))
        if not (hold_last and t == 7): st.release(tags[t])
        stamp(c, 3 + t, 4); stamp(c, 3 + t, 10)
        if hook: hook(t)

LQ_ORDER = list(range(8))
LQ_P, LQ_RAW, LQ_SH = 104, 112, V_Q
def lq_s(t):
    i = LQ_ORDER.index(t)
    return ("v", LQ_RAW) if i == 0 else ("a", 32 * LQ_ORDER[i - 1])
def lq_o(B): return ar((16, 48, 80, 144)[B], 16)
LQ_L = 176
def v_reads(dst, slot):
    out = []
    for B in range(4):
        for s in range(2):
            o = slot * 8192 + 16 * s * 256
            out.append(f"ds_read_b64_tr_b16 {vr(dst+8*B+4*s,2)}, v{V_TV+B} offset:{o}")
            out.append(f"ds_read_b64_tr_b16 {vr(dst+8*B+4*s+2,2)}, v{V_TV+B} offset:{o+8*256}")
    return out
def lq_park_v(c, tags, npark, hook=None):
    a, st = c.a, c.st
    for t in range(npark):
        st.need(tags[t])
        for l in v_reads(V_S + 32 * t, t): a(l)
        a("s_waitcnt lgkmcnt(0)")
        st.release(tags[t])
        stamp(c, 11 + t, 8)
        if hook: hook(t)
def lq_scores(c, npump):
    a, st = c.a, c.st
    pend = []; T = V_F
    for i, t in enumerate(LQ_ORDER):
        f, b = lq_s(t); S = f"{f}[{b}:{b+15}]"
        for s in range(8):
            a(f"v_mfma_f32_32x32x16_bf16 {S}, {ar(32*t+4*s)}, {vr(V_Q+4*s)}, {'0' if s == 0 else S}")
            if s >= 2:
                for _ in range(4):
                    if pend: a(pend.pop(0))
            if s == 0 or (s == 1 and npump > 1): st.pump(1)
        if i == 0:
            pend = [f"v_max3_f32 v{V_M}, v{b}, v{b+1}, v{b+2}"] + [f"v_max3_f32 v{V_M}, v{V_M}, v{b+k}, v{b+k+1}" for k in range(3, 15, 2)] + [f"v_max_f32 v{V_M}, v{V_M}, v{b+15}"]
        else:
            pend = [f"v_accvgpr_read_b32 v{T+k}, a{b+k}" for k in range(16)] + [f"v_max3_f32 v{V_M}, v{V_M}, v{T+k}, v{T+k+1}" for k in range(0, 16, 2)]
    while pend: a(pend.pop(0))
    finish_max(a, V_M, V_MC, LQ_SH)
def lq_pv(c, tags, npark, hook=None, last=None, at=7):
    a, st = c.a, c.st
    set_ones(a)
    def sh(i):
        f, b = lq_s(i); a(shift(f"{f}[{b}:{b+15}]", LQ_SH))
    def ex(i):
        f, b = lq_s(i)
        out = [] if f == "v" else [f"v_accvgpr_read_b32 v{LQ_RAW+k}, a{b+k}" for k in range(16)]
        return out + [f"v_exp_f32 v{LQ_RAW+k}, v{LQ_RAW+k}" for k in range(16)]
    pk = [f"v_cvt_pk_bf16_f32 v{LQ_P+k}, v{LQ_RAW+2*k}, v{LQ_RAW+2*k+1}" for k in range(8)]
    sh(0); sh(1)
    for l in ex(0) + pk: a(l)
    for t in range(8):
        if t < 6: sh(t + 2)
        ring = t >= npark
        if ring:
            st.need(tags[t], fill=False)
            if t >= at and last: last(t)
            for l in v_reads(V_F, t & 3): a(l)
        nxt = ex(t + 1) if t < 7 else []
        def fill(n):
            for _ in range(n):
                if nxt: a(nxt.pop(0))
        fr = V_F if ring else V_S + 32 * t
        for s in range(2):
            a(rowsum(LQ_L, LQ_P + 4 * s, t == 0 and s == 0)); fill(2)
        for B in range(4):
            if ring: a(f"s_waitcnt lgkmcnt({12-4*B})")
            for s in range(2):
                a(f"v_mfma_f32_32x32x16_bf16 {lq_o(B)}, {vr(fr+8*B+4*s)}, {vr(LQ_P+4*s)}, {'0' if t == 0 and s == 0 else lq_o(B)}")
                st.pump(1); fill(4)
        if ring and t != 7: st.release(tags[t])
        fill(99)
        if t < 7:
            for l in pk: a(l)
        stamp(c, 3 + t, 4)
        if hook: hook(t)

S_DLT = 49
class Aim:
    def __init__(self, a): self.a = a; self.scr = set()
    def __call__(self, reg, slot):
        if slot == 4 and reg not in self.scr:
            self.a(f"v_add_u32 v{reg}, s{S_DLT}, v{reg}"); self.scr.add(reg)
        if slot != 4 and reg in self.scr:
            self.a(f"v_subrev_u32 v{reg}, s{S_DLT}, v{reg}"); self.scr.discard(reg)
        return 0 if slot == 4 else slot * 8192

A_Q1, A_S1, A_L1 = 96, 128, 80
V_M1, V_MC1, V_P1 = 34, 35, 104
def o1(B): return vr(V_Q + 16 * B, 16) if B < 2 else ar(96 + 16 * (B - 2), 16)

def gqa_k(c, tags, slots, hook=None):
    a, st = c.a, c.st
    pend = []
    aim = Aim(a)
    def rd(t, s): return f"ds_read_b128 {vr(V_F+4*s)}, v{V_KR+s} offset:{aim(V_KR+s, slots[t])}"
    st.need(tags[0], fill=False)
    for s in range(8): a(rd(0, s))
    for t in range(8):
        if t < 7: st.need(tags[t + 1], fill=False)
        for s in range(8):
            if t == 0: a(f"s_waitcnt lgkmcnt(7)")
            elif t == 7: a(f"s_waitcnt lgkmcnt({7-s})") if s in (0, 2, 4, 6, 7) else None
            elif s in (0, 2, 4, 6): a("s_waitcnt lgkmcnt(6)")
            if t == 7 and s in (0, 2, 4, 6): a.lines[-1] = f"s_waitcnt lgkmcnt({6-s})"
            if t == 7 and s == 7: a.lines.pop()
            if s == 7 and t: st.release(tags[t])
            if s == 7 and t == 0: st.release(tags[0])
            c0 = "0" if s == 0 else vr(V_S + 16 * t, 16)
            c1 = "0" if s == 0 else ar(A_S1 + 16 * t, 16)
            a(f"v_mfma_f32_32x32x16_bf16 {vr(V_S+16*t,16)}, {vr(V_F+4*s)}, {vr(V_Q+4*s)}, {c0}")
            for _ in range(3):
                if pend and s >= 2: a(pend.pop(0))
            a(f"v_mfma_f32_32x32x16_bf16 {ar(A_S1+16*t,16)}, {vr(V_F+4*s)}, {ar(A_Q1+4*s)}, {c1}")
            if t < 7: a(rd(t + 1, s))
            for _ in range(3):
                if pend and s >= 2: a(pend.pop(0))
            st.pump(2 if t < KP else 1)
        while pend: a(pend.pop(0))
        if hook: hook(t)
        stamp(c, 3 + t, 5)
        if t == 1: stamp(c, 3, 7); cyc(c, 5, True, 7)
        if t == 4: stamp(c, 4, 7); cyc(c, 5, False, 7)
        b = V_S + 16 * t
        def mx(M, b):
            if t == 0:
                return ([f"v_max3_f32 v{M}, v{b}, v{b+1}, v{b+2}"] + [f"v_max3_f32 v{M}, v{M}, v{b+i}, v{b+i+1}" for i in range(3, 15, 2)]
                        + [f"v_max_f32 v{M}, v{M}, v{b+15}"])
            return [f"v_max3_f32 v{M}, v{M}, v{b+i}, v{b+i+1}" for i in range(0, 16, 2)]
        pend = mx(V_M, b) + [f"v_accvgpr_read_b32 v{V_P1+i}, a{A_S1+16*t+i}" for i in range(16)] + mx(V_M1, V_P1)
    while pend: a(pend.pop(0))
    finish_max(a, V_M, V_MC, V_SH0); finish_max(a, V_M1, V_MC1, V_SH1)

def gqa_v(c, tags, slots, hold, last=None, hook=None):
    a, st = c.a, c.st
    PB = (V_P1, V_P1 + 8); C = V_P1 + 16
    def raw(t, i): return PB[t & 1] + i if i < 8 else C + i - 8
    def sm1(t):
        rd_ = [f"v_accvgpr_read_b32 v{raw(t,i)}, a{A_S1+16*t+i}" for i in range(16)]
        ex = [f"v_exp_f32 v{raw(t,i)}, v{raw(t,i)}" for i in range(16)]
        pk = [f"v_cvt_pk_bf16_f32 v{PB[t&1]+k}, v{raw(t,2*k)}, v{raw(t,2*k+1)}" for k in range(8)]
        return rd_, ex + pk
    def sh(t): return [shift(vr(V_S + 16 * t, 16), V_SH0), shift(ar(A_S1 + 16 * t, 16), V_SH1)]
    aim = Aim(a)
    def rd(t, B): return v_reads(V_F, aim(V_TV + B, slots[t]) // 8192)[4 * B:4 * B + 4]
    for l in sh(0) + sh(1): a(l)
    st.need(tags[0], fill=False)
    for B in range(4):
        for l in rd(0, B): a(l)
    r0, e0 = sm1(0)
    for l in r0 + sm_lines(V_S) + e0: a(l)
    for t in range(8):
        if t < 7: st.need(tags[t + 1], fill=False)
        if t < 7:
            r1, e1 = sm1(t + 1); nxt = r1 + sm_lines(V_S + 16 * (t + 1)) + e1
        else: nxt = []
        b = V_S + 16 * t; P1 = PB[t & 1]
        def fill(budget):
            while nxt and budget >= (8 if nxt[0].startswith("v_exp") else 4) - 2:
                budget -= 8 if nxt[0].startswith("v_exp") else 4
                a(nxt.pop(0))
        extra = [rowsum(A_L, b, t == 0), rowsum(A_L1, P1, t == 0), rowsum(A_L, b + 4, False), rowsum(A_L1, P1 + 4, False)]
        shf = sh(t + 2)[::-1] if t < 6 else []
        order = (1, 2, 3, 0) if t == 7 else (0, 1, 2, 3)
        G = GAP
        if t == 7 and last:
            while extra: a(extra.pop(0))
            last(-1)
        for n, B in enumerate(order):
            if t < 7: a("s_waitcnt lgkmcnt(12)")
            elif n == 0: a("s_waitcnt lgkmcnt(0)")
            if (B == 3 or t == 7) and tags[t] not in hold: st.release(tags[t])
            for s in range(2):
                z = t == 0 and s == 0
                a(f"v_mfma_f32_32x32x16_bf16 {ar(A_O+16*B,16)}, {vr(V_F+8*B+4*s)}, {vr(b+4*s)}, {'0' if z else ar(A_O+16*B,16)}")
                n0 = len(a.lines); st.pump(2 if t < 5 else 1); fill(G - 5 * (len(a.lines) - n0))
                a(f"v_mfma_f32_32x32x16_bf16 {o1(B)}, {vr(V_F+8*B+4*s)}, {vr(P1+4*s)}, {'0' if z else o1(B)}")
                if s == 1 and t < 7:
                    for l in rd(t + 1, B): a(l)
                    fill(G - 16)
                else: fill(G)
            if extra: a(extra.pop(0)); fill(G - 20)
            if shf and B in (1, 3): a(shf.pop(0)); fill(G)
            if t == 7 and last: last(n)
        fill(9999)
        if hook: hook(t)
        stamp(c, 11 + t, 5); stamp(c, 3 + t, 6); stamp(c, 3 + t, 10)
        if t == 1: stamp(c, 6, 7); cyc(c, 8, True, 7)
        if t == 4: stamp(c, 7, 7); cyc(c, 8, False, 7)

class Epi:
    def __init__(self, c, heads, t=V_F + 24, sv=(V_F, V_F + 8)):
        self.c, self.heads, self.t, self.sv = c, heads, t, sv
        self.todo = {"addr", "stats", 1, 2, 3}
    @staticmethod
    def loc(spec, ring, scr):
        base, off = spec
        return (scr, off) if base == "scr" else (ring, base * 8192 + off)
    def do(self, what):
        if what not in self.todo: return
        self.todo.discard(what)
        a, t = self.c.a, self.t
        if what == "addr":
            a(f"s_lshl_b32 s{S_TMP}, s{S_WAVE}, 13\ns_add_u32 s{S_TMP}, s{S_TMP}, {LDS_SCR}")
            a(f"v_add_u32 v{t}, s{S_RING}, v{V_L16}\nv_add_u32 v{t+1}, s{S_TMP}, v{V_L16}")
            for B in (1, 2, 3):
                a(f"s_sub_u32 s{S_TMP}, s{S_WAVE}, {B}\ns_and_b32 s{S_TMP}, s{S_TMP}, 3")
                a(f"s_lshl_b32 s7, s{S_TMP}, 13\ns_add_u32 s7, s7, {LDS_SCR}\ns_lshl_b32 s{S_TMP}, s{S_TMP}, 15")
                a(f"v_add_u32 v{t+2*B}, s{S_TMP}, v{V_L16}\nv_add_u32 v{t+2*B+1}, s7, v{V_L16}")
        elif what == "stats":
            a("s_mov_b32 vcc_lo, 0xffff0000\ns_mov_b32 vcc_hi, 0xffff0000")
            for h, r in zip(self.heads, self.sv):
                a(f"v_accvgpr_read_b32 v{r}, a{h['L']}\nv_accvgpr_read_b32 v{r+1}, a{h['L']+1}")
                a(f"v_cndmask_b32 v{r+1}, v{r}, v{r+1}, vcc\nv_mov_b32 v{r}, v{h['M']}")
                v, o = self.loc(h["st"], t, t + 1)
                a(f"ds_write_b64 v{v}, {vr(r,2)} offset:{o}")
        else:
            B = what
            for h in self.heads:
                txt = h["acc"](B); f, lo = txt[0], int(txt[2:txt.index(":")])
                v, o = self.loc((h["slot"], 4096 * (B - 1)) if B < 3 else h["b3"], t, t + 1)
                for g in range(4): a(f"ds_write_b128 v{v}, {f}[{lo+4*g}:{lo+4*g+3}] offset:{o+1024*g}")

def o_epi(c, heads, mid=None, idle=None, freed=None, epi=None):
    a = c.a
    epi = epi or Epi(c, heads)
    t, loc = epi.t, epi.loc
    for x in ("addr", "stats", 1, 2, 3): epi.do(x)
    for n, h in enumerate(heads):
        own = h["acc"](0); lo = int(own[2:own.index(":")])
        for i in range(16):
            a(f"v_accvgpr_read_b32 v{V_S+64*n+i}, a{lo+i}" if own[0] == "a" else f"v_mov_b32 v{V_S+64*n+i}, v{lo+i}")
        if epi.sv[n] != V_F + 8 * n: a(f"v_mov_b32 v{V_F+8*n}, v{epi.sv[n]}\nv_mov_b32 v{V_F+8*n+1}, v{epi.sv[n]+1}")
    md = 4 if len(heads) == 1 else 6
    if idle: idle()
    a("s_waitcnt lgkmcnt(0)"); stamp(c, 11, md); a("s_barrier"); stamp(c, 12, md)
    def reads(n):
        h = heads[n]; out = []
        for B in (1, 2, 3):
            v, o = loc((h["slot"], 4096 * (B - 1)) if B < 3 else h["b3"], t + 2 * B, t + 2 * B + 1)
            out.append([f"ds_read_b128 {vr(V_S+64*n+16*B+4*g)}, v{v} offset:{o+1024*g}" for g in range(4)])
        return out
    for n, h in enumerate(heads):
        for B in (1, 2, 3):
            v, o = loc(h["st"], t + 2 * B, t + 2 * B + 1)
            a(f"ds_read_b64 {vr(V_F+8*n+2*B,2)}, v{v} offset:{o}")
    two = len(heads) == 2
    r0 = reads(0); r1 = reads(1) if two else [[], [], []]
    for n, h in enumerate(heads):
        if n == 0:
            for l in r0[0] + r0[1]: a(l)
            if mid: mid()
            a("s_waitcnt lgkmcnt(8)")
            for l in r0[2]: a(l)
        m = [V_F + 8 * n + 2 * u for u in range(4)]; l = [x + 1 for x in m]
        M = V_F + 16; L = V_F + 17; f = [V_F + 18 + u for u in range(4)]
        a(f"v_max3_f32 v{M}, v{m[0]}, v{m[1]}, v{m[2]}\nv_max_f32 v{M}, v{M}, v{m[3]}")
        for u in range(4): a(f"v_sub_f32 v{f[u]}, v{m[u]}, v{M}")
        for u in range(4): a(f"v_exp_f32 v{f[u]}, v{f[u]}")
        a(f"v_mul_f32 v{L}, v{f[0]}, v{l[0]}")
        for u in range(1, 4): a(f"v_fmac_f32 v{L}, v{f[u]}, v{l[u]}")
        a(f"v_rcp_f32 v{L}, v{L}")
        for u in range(4): a(f"v_mul_f32 v{f[u]}, v{f[u]}, v{L}")
        S = V_S + 64 * n
        def sel(r): return ("op_sel_hi:[1,0", vr(r, 2)) if r % 2 == 0 else ("op_sel:[0,1", vr(r - 1, 2))
        md_, fr = sel(f[0])
        for i in range(0, 16, 2): a(f"v_pk_mul_f32 {vr(S+i,2)}, {vr(S+i,2)}, {fr} {md_}]")
        for B in (1, 2, 3):
            a(f"s_waitcnt lgkmcnt({8 if (two and n == 0) else 12-4*B})")
            if n == 0:
                for l in r1[B - 1]: a(l)
            md_, fr = sel(f[B])
            tail = ",1]" if md_.startswith("op_sel_hi") else ",0]"
            for i in range(0, 16, 2): a(f"v_pk_fma_f32 {vr(S+i,2)}, {vr(S+16*B+i,2)}, {fr}, {vr(S+i,2)} {md_}{tail}")
        if n == len(heads) - 1:
            stamp(c, 13, md); a("s_barrier"); stamp(c, 14, md)
            if freed: freed()
        for k in range(8): a(f"v_cvt_pk_bf16_f32 v{S+k}, v{S+2*k}, v{S+2*k+1}")
        a(f"s_lshl_b32 s{S_TMP}, s{S_WAVE}, 11\ns_add_u32 s{S_TMP}, s{S_TMP}, s{h['dst']}")
        a(f"buffer_store_dwordx4 {vr(S)}, v{V_L16}, {sr(SRDW)}, s{S_TMP} offen sc1")
        a(f"buffer_store_dwordx4 {vr(S+4)}, v{V_L16}, {sr(SRDW)}, s{S_TMP} offen offset:1024 sc1")
        c.vm.issue("ost", 2)
    stamp(c, 15, md)

def flag_store(c, soff, nl=1):
    a = c.a
    a(f"v_mov_b32 v{V_T0}, 1\nv_lshlrev_b32 v{V_F+31}, {FW}, v{V_LANE}")
    a(f"s_mov_b64 exec, {(1<<nl)-1}")
    a(f"buffer_store_dword v{V_T0}, v{V_F+31}, {sr(SRDW)}, s{soff} offen sc1")
    a("s_mov_b64 exec, -1")
    c.vm.issue("flag")

def q_dma(c, soff, lds_off, tag):
    a = c.a
    a(f"s_lshl_b32 s{S_TMP}, s{S_WAVE}, 13\ns_add_u32 m0, s{S_TMP}, {LDS_SCR+lds_off}")
    a(f"s_lshl_b32 s{S_TMP}, s{S_WAVE}, 11\ns_add_u32 s{S_TMP}, s{S_TMP}, s{soff}")
    for k in range(2):
        a(f"buffer_load_dwordx4 v{V_L16}, {sr(SRDW)}, s{S_TMP} offen offset:{1024*k} sc1 lds")
    c.vm.issue(tag, 2); c.st.m0_dirty = True
def q_read(c, lds_off, dst):
    a = c.a
    a(f"v_add_u32 v{V_CA}, {LDS_SCR}, v{V_L16}")
    for s in range(8): a(f"ds_read_b128 {dst(s)}, v{V_CA} offset:{(s>>1)*8192+lds_off+(s&1)*1024}")

S_J, S_CC, S_U = 50, 51, 52
S_A = 56
S_B = 60
S_QB, S_OB, S_FQB, S_FOB = 64, 65, 66, 67
S_X0 = 92

def code_touch(a, first, last, est, share, name):
    k = -(-est // (128 * 64))
    a(f"s_getpc_b64 s[48:49]")
    a.label(f"L_{name}")
    a(f"s_add_u32 s48, s48, {first}-L_{name}\ns_addc_u32 s49, s49, 0")
    a(f"s_lshl_b32 s7, s{S_U}, 2\ns_add_u32 s7, s7, s{S_WAVE}\ns_mul_i32 s7, s7, {128*k}")
    a(f"v_lshl_add_u32 v{V_F+29}, v{V_LANE}, 7, s7")
    a(f"v_min_u32 v{V_F+29}, {last}-{first}-4, v{V_F+29}")
    a(f"s_mov_b64 exec, {(1<<k)-1}\nglobal_load_dword v{V_T0}, v{V_F+29}, s[48:49]\ns_mov_b64 exec, -1")
    a.label(f"L_{name}_x")

DOC = """; One persistent workgroup per CU (256 x 4 waves, 512 registers per wave, 160 KB LDS); generated by gen/gen_v2.py.
; j = id & 7, c = id >> 3.  Every workgroup owns one MHA task (batch c>>2, head 4j + (c&3)) plus a role:
;   role 1 (c < 16): a 128 x 128 tile of the Q projection first, then its MHA task, then a tile of out_B
;   role 2 (c >= 16): parks K / V of its MHA task until Q arrives, then two GQA heads sharing one K/V, then a tile of out_A
; All operands stream HBM -> LDS by LDS-DMA through wave-private rings of 8-KB tiles (swizzled for conflict-free
; ds_read_b128 / ds_read_b64_tr_b16).  S^T = K Q^T keeps one query per lane; each wave takes the true max over its
; tiles are summed in fp32 by the workgroups of the same column block.
; Hand-offs (Q, O, partial tiles) go through d_ws: write-through stores, wait, flag word.  Flag words are cleared by
; their writers at entry; d_debug counts the workgroups that have done so and is checked before any flag is read.
"""

class PerTile:
    def __init__(self, v): self.v = [int(x) for x in str(v).split(",")]
    def __getitem__(self, t): return self.v[min(t, len(self.v) - 1)]

def build(stamps=0, rbit=4, shints='', rk=0, rkt=0, ofl='sc1', pfl='sc1', g1first=1, g2first=2, hints='', qsplit='0123', qpos=1, qseq='1,8,4', ilv=1, g2wo='5,6', xmap=1, five=0, kp=3, wog=0, ack=1, ovl=1, apoll=1, fack=0, pollfirst=0, tsplit='01,2,3', onepoll=1, prew=0, npoll=1, pgap=0, wo1mid=1, outfl='', n_w2=6, n_wpre=0, lag=1, gap=28, q0=3, hack='', rotkv=0, tlb=0, fs=8, fw=2, sleep=0, pf=7, n_early=8, kvpf=0, qpf='', qthr=0, rotq=2, rota=2, kag=6, nog1=0, perm=0, npark=4, g1wo=0, va1=5, n_qpre=0, n_spump=2, n_look=8, n_x=16, n_wq=16, n_kva=32, n_vva=32, n_g2k=16, n_g2v=16, n_g1k='16,4,4,4,16', n_g1v=16, n_wo=16, fl_x="", fl_wq="", fl_kva="", fl_wo="", fl_kv="nt", rot=1):
    global FW, APOLL, ACK, KP; KP = int(kp); ACK = int(ack); FW = int(fw); APOLL = int(apoll)
    global FS, SLEEP, GAP, NPOLL, PGAP; NPOLL = int(npoll); PGAP = int(pgap); GAP = int(gap); FS = int(fs); SLEEP = int(sleep)
    stamps = int(stamps); prew = int(prew); n_w2 = int(n_w2); q0 = int(q0); pf = int(pf); n_early = int(n_early); kvpf = int(kvpf); n_qpre = int(n_qpre); npark = int(npark); g1wo = int(g1wo); va1 = int(va1); n_spump = int(n_spump); n_look = int(n_look);  n_g2k, n_g2v, n_g1k, n_g1v, n_wo, n_x, n_wq, n_kva, n_vva = map(PerTile, (n_g2k, n_g2v, n_g1k, n_g1v, n_wo, n_x, n_wq, n_kva, n_vva)); rot = int(rot)
    a = Asm()
    prologue(a, 256, "L_end")
    if stamps: a("s_memrealtime s[70:71]")
    if int(perm): a(f"s_xor_b32 s2, s2, {int(perm)}")
    if int(rbit) != 4:
        rb = int(rbit) + 3
        a(f"s_bfe_u32 s7, s2, {(1 << 16) | rb}\ns_lshl_b32 s7, s7, 7\ns_lshr_b32 s5, s2, {rb+1}\ns_lshl_b32 s5, s5, {rb}")
        a(f"s_and_b32 s2, s2, {(1 << rb) - 1}\ns_or_b32 s2, s2, s5\ns_or_b32 s2, s2, s7")
    a(f"""s_and_b32 s{S_J}, s2, 7
    s_lshr_b32 s{S_CC}, s2, 3
    s_and_b32 s{S_U}, s{S_CC}, 15
    s_and_b32 s53, s{S_CC}, 3
    s_lshl_b32 s7, s{S_J}, 2
    s_add_u32 s53, s53, s7          ; head of the MHA task
    s_lshr_b32 s54, s{S_CC}, 2      ; batch of the MHA task
    s_lshl_b32 s55, s54, 5
    s_add_u32 s55, s55, s53         ; b*32+h
    s_cmp_lt_u32 s{S_CC}, 16
    s_cbranch_scc1 L_g1""")
    def common():
        if stamps:
            for n in range(1, 20): a(f"s_mov_b32 s{70+n}, s70")
        srd(a, SRDW, P_WS, WS_BYTES)
        a(f"""s_lshl_b32 s{S_QB}, s55, 13
        s_add_u32 s{S_QB}, s{S_QB}, {WS_Q + (2<<20)}
        s_add_u32 s{S_OB}, s{S_QB}, {WS_O - WS_Q}
        s_lshl_b32 s{S_FQB}, s55, 6
        s_add_u32 s{S_FQB}, s{S_FQB}, {WS_FQ + 256*64}
        s_lshl_b32 s{S_FOB}, s54, 3
        s_add_u32 s{S_FOB}, s{S_FOB}, s{S_J}
        s_lshl_b32 s{S_FOB}, s{S_FOB}, {FS}
        s_and_b32 s7, s{S_CC}, 3
        s_lshl_b32 s7, s7, {FW}
        s_add_u32 s{S_FOB}, s{S_FOB}, s7
        s_add_u32 s{S_FOB}, s{S_FOB}, {WS_FO + (64 << FS)}
        s_mov_b32 s{S_C}, {f32(C_SCALE)}""")

    PS = 4096 if int(ilv) else None
    WSH = 10 if int(ilv) else 13
    def mk():
        c = Ctx(); c.a = a; c.vm = VM(a); c.st = Stream(a, c.vm); c.stamps = stamps
        return c
    def kv_offsets():
        a(f"s_lshl_b32 s{S_A}, s55, 18\ns_lshl_b32 s7, s{S_WAVE}, 13\ns_add_u32 s{S_A}, s{S_A}, s7")
    def clear_flags(c, words, name):
        a(f"s_cmp_lg_u32 s{S_WAVE}, 0\ns_cbranch_scc1 L_{name}")
        a(f"v_mov_b32 v{V_T0}, 0")
        for so, nl, sh in words:
            a(f"v_lshlrev_b32 v{V_F+31}, {sh}, v{V_LANE}\ns_mov_b64 exec, {(1<<nl)-1}")
            a(f"buffer_store_dword v{V_T0}, v{V_F+31}, {sr(SRDW)}, s{so} offen sc1\ns_mov_b64 exec, -1")
        a.label(f"L_{name}")
    def count_in(c, name):
        a(f"s_cmp_lg_u32 s{S_WAVE}, 0\ns_cbranch_scc1 L_{name}")
        a(f"s_lshl_b32 s7, s{S_J}, 5\nv_mov_b32 v{V_T0}, 1\nv_mov_b32 v{V_F+31}, s7\ns_mov_b64 exec, 1")
        a(f"global_atomic_add v{V_F+31}, v{V_T0}, s[{P_DBG}:{P_DBG+1}] sc1")
        a("s_mov_b64 exec, -1")
        a.label(f"L_{name}")
    def wait_cleared(c, name):
        a(f"s_mov_b32 s68, {SPIN}\nv_and_b32 v{V_F+31}, 7, v{V_LANE}\nv_lshlrev_b32 v{V_F+31}, 5, v{V_F+31}")
        a.label(f"L_{name}")
        a(f"global_load_dword v{V_T0}, v{V_F+31}, s[{P_DBG}:{P_DBG+1}] sc1")
        a(f"s_sub_u32 s68, s68, 1\ns_cbranch_scc1 L_{name}_x\ns_waitcnt vmcnt(0)")
        a(f"v_cmp_gt_u32 vcc, 32, v{V_T0}\ns_cbranch_vccnz L_{name}")
        a.label(f"L_{name}_x")
        c.vm.q = []; c.st._sync()
    def fp_word():
        a(f"s_xor_b32 s{S_X0}, s{S_CC}, 16          ; c_to")
        a(f"s_lshl_b32 s{S_X0+1}, s{S_X0}, 2\ns_add_u32 s{S_X0+1}, s{S_X0+1}, s{S_WAVE}\ns_lshl_b32 s{S_X0+1}, s{S_X0+1}, {FS}")
        a(f"s_lshl_b32 s7, s{S_J}, {FW}\ns_add_u32 s{S_X0+1}, s{S_X0+1}, s7\ns_add_u32 s{S_X0+1}, s{S_X0+1}, {WS_FP}")
    def add_wo(c, X, wsl=(0, 1, 2, 3)):
        def pre():
            set_vd(a, 2048)
            srd(a, SRD1, P_BWO if X else P_AWO, 0x800000)
            a(f"s_add_u32 s7, s{S_WAVE}, s{S_U}\ns_and_b32 s7, s7, 3")
            a(f"s_lshl_b32 s{S_B+3}, s{S_J}, 2\ns_add_u32 s{S_B+3}, s{S_B+3}, s7\ns_lshl_b32 s{S_B+3}, s{S_B+3}, 18")
            a(f"s_and_b32 s7, s{S_U}, 7\ns_lshl_b32 s7, s7, 8\ns_add_u32 s{S_B+3}, s{S_B+3}, s7")
            a(f"s_lshr_b32 s{S_B+2}, s{S_U}, 3\ns_lshl_b32 s{S_B+2}, s{S_B+2}, 17")
            a(f"s_add_u32 s{S_B}, s{S_B+3}, s{S_B+2}")
        def nx(t):
            return lambda: a(f"s_xor_b32 s7, s{S_B+2}, {(t+1) << 16}\ns_add_u32 s{S_B}, s{S_B+3}, s7") if t < 3 else None
        for t in range(4):
            c.st.add(f"wo{t}", wsl[t], SRD1, S_B, 65536, V_VD, 2048, fl_wo, n_wo[t], pre=pre if t == 0 else None, nxt=nx(t))
    def add_kv(c, nk, nv, first):
        rk = int(rotkv)
        def offs(S):
            a(f"s_lshl_b32 s{S+3}, s55, 18\ns_lshl_b32 s7, s{S_WAVE}, {WSH}\ns_add_u32 s{S+3}, s{S+3}, s7")
            if rk:
                a(f"s_lshr_b32 s7, s{S_J}, {rk-1}\ns_add_u32 s7, s7, s{S_CC}\ns_and_b32 s7, s7, 7\ns_lshl_b32 s{S+2}, s7, 15\ns_add_u32 s{S}, s{S+3}, s{S+2}")
            else: a(f"s_mov_b32 s{S}, s{S+3}")
        def prek():
            set_kd(a, 256, ps=PS); offs(S_A)
            if first: a("s_waitcnt lgkmcnt(0)")
            srd(a, SRD0, P_BK, 0x4000000)
        def prev():
            set_vd(a, 256, ps=PS); srd(a, SRD1, P_BV, 0x4000000); offs(S_B)
        wr = 262144 if rk else None
        for t in range(8): c.st.add(f"k{t}", t & 3, SRD0, S_A, 32768, V_KD, 256, fl_kv, nk[t], pre=prek if t == 0 else None, wrap=wr, ps=PS)
        for t in range(8): c.st.add(f"v{t}", t & 3, SRD1, S_B, 32768, V_VD, 256, fl_kv, nv[t], single=not PS, pre=prev if t == 0 else None, wrap=wr, ps=PS)
    def touch(c, ptr, size, base_asm, step, rs, fl):
        a(base_asm)
        a(f"s_add_u32 s49, s48, {step}")
        a(f"v_lshrrev_b32 v{V_CA}, 1, v{V_LANE}\nv_lshlrev_b32 v{V_CA}, {rs.bit_length()-1}, v{V_CA}")
        a(f"v_and_b32 v{V_T0}, 1, v{V_LANE}\nv_lshl_add_u32 v{V_CA}, v{V_T0}, 7, v{V_CA}")
        srd(a, SRDT, ptr, size)
        for so in (48, 49):
            a(f"buffer_load_dword v{V_T0}, v{V_CA}, {sr(SRDT)}, s{so} offen {fl}")
            c.vm.issue("pf")
    KVA_BASE = (f"s_lshl_b32 s48, s{S_J}, 2\ns_lshr_b32 s7, s{S_U}, 2\ns_add_u32 s48, s48, s7\ns_lshl_b32 s48, s48, 18\n"
                f"s_lshl_b32 s7, s{S_WAVE}, 13\ns_add_u32 s48, s48, s7\n"
                f"s_and_b32 s7, s{S_U}, 3\ns_lshl_b32 s7, s7, 16\ns_add_u32 s48, s48, s7")
    WO_BASE = (f"s_add_u32 s7, s{S_WAVE}, s{S_U}\ns_and_b32 s7, s7, 3\ns_lshl_b32 s48, s{S_J}, 2\ns_add_u32 s48, s48, s7\ns_lshl_b32 s48, s48, 18\n"
               f"s_and_b32 s7, s{S_U}, 7\ns_lshl_b32 s7, s7, 8\ns_add_u32 s48, s48, s7\n"
               f"s_lshr_b32 s7, s{S_U}, 3\ns_lshl_b32 s7, s7, 17\ns_add_u32 s48, s48, s7")
    def get_q(c):
        if "q" in c.vm.q: c.vm.wait("q")
        c.st._sync()
        a("s_barrier")
        q_read(c, 5120, lambda s: vr(V_Q + 4 * s))
        a("s_waitcnt lgkmcnt(0)")
    def mha1(c):
        st = c.st
        ls = LagScores(c)
        plan = {q0: [0, 1]}
        nxt = 2
        for t in range(q0 + 1, 8):
            plan[t] = [u for u in (nxt, nxt + 1) if u <= t] if t < 7 else list(range(nxt, 8))
            nxt += len(plan[t])
        def hook(t):
            if t == q0 - 3: ck_issue(c, "dbg", None)
            if t == q0 - 2: ck_verify(c, "g1clr"); ck_issue(c, "ws", (S_FQB, 1, 2))
            if t == q0 - 1: ck_verify(c, "g1q"); q_dma(c, S_QB, 5120, "q")
            if t == q0:
                get_q(c); stamp(c, 4)
            if t == 5 and pf & 1:
                code_touch(a, "L_g1tail", "L_g2", 16384, 2, "g1pf2")
            for u in plan.get(t, []): ls.tile(u)
        park2(c, [f"k{t}" for t in range(8)], hook)
        stamp(c, 3)
        ls.finish()
        stamp(c, 5)
        for g in range(g1wo, 3): st.gate(f"wo{g}")
        heads = [dict(acc=lambda B: ar(A_O + 16 * B, 16), L=A_L, M=V_M, slot=3, b3=("scr", 0), st=("scr", 4096), dst=S_OB)]
        epi = Epi(c, heads, t=112, sv=(2,)) if int(ovl) else None
        st.lag = None
        def rank(t):
            if not int(rk): return
            if t == int(rkt):
                a(f"s_lshl_b32 s7, s{S_J}, 5\ns_add_u32 s7, s7, 4\nv_mov_b32 v{V_CA}, s7\nv_mov_b32 v{V_CK}, 1\ns_mov_b64 exec, 1")
                a(f"global_atomic_add v{V_CK}, v{V_CA}, v{V_CK}, s[{P_DBG}:{P_DBG+1}] sc0 sc1\ns_mov_b64 exec, -1"); c.vm.issue("rk")
            if t == int(rkt) + 1:
                if "rk" in c.vm.q: c.vm.wait("rk")
                st._sync()
                a(f"v_readfirstlane_b32 s7, v{V_CK}\ns_cmp_ge_u32 s7, {int(rk)}\ns_cselect_b32 s{S_X0+5}, 1, 0"); st.lag = S_X0 + 5
        pv2(c, [f"v{t}" for t in range(8)], last_pump=True, last=lambda: (st.run_pre("wo0"), st.open(f"wo{g1wo}")), epi=epi, hook=rank)
        stamp(c, 6)
        a.label("L_g1tail")
        o_epi(c, heads, epi=epi,
              idle=lambda: tail_setup(c, 1),
              mid=lambda: (early_poll(c), st.open(f"wo{g1wo+1}"), st.pump(8 if int(wo1mid) and int(g1first) == 2 else 0, False)),
              freed=lambda: ([st.open(f"wo{g}") for g in range(3)], freed(c, ["v7"], int(g1first))))
    def mha2(c, pvhook):
        st = c.st
        end = 7 + npark
        def hook(p):
            if p == 1: count_in(c, "g2count")
            if prew:
                if p == 0: prew_setup(c); prew_o(c, S_OB)
                if p == 1:
                    a(f"s_add_u32 s49, s{S_X0+6}, {WS_O}"); prew_o(c, 49)
                    a(f"s_add_u32 s49, s49, 8192"); prew_o(c, 49)
                if 2 <= p < 6: prew_part(c, 2 * p - 4); prew_part(c, 2 * p - 3)
            e = end - int(qpos)
            if p == e - 3: ck_issue(c, "dbg", None)
            if p == e - 2: ck_verify(c, "g2clr")
            if p == e - 1 and not n_qpre: ck_issue(c, "ws", (S_FQB, 1, 2))
            sh_ = dict((int(x.split(":")[0]), x.split(":")[1]) for x in shints.split(",") if x)
            if (p == e - 1 and hints) or (sh_ and p == min(sh_) - 1):
                a(f"s_lshl_b32 s48, s{S_J}, 2\ns_lshr_b32 s7, s{S_U}, 2\ns_add_u32 s48, s48, s7\ns_lshl_b32 s48, s48, 3")
                a(f"s_and_b32 s7, s{S_U}, 3\ns_add_u32 s48, s48, s7\ns_lshl_b32 s48, s48, 2\ns_add_u32 s48, s48, s{S_WAVE}\ns_lshl_b32 s48, s48, 13")
                a(f"s_add_u32 s49, s48, 131072\nv_lshlrev_b32 v{V_F+30}, 7, v{V_LANE}\ns_mov_b32 s{SRDT+2}, 0x800000\ns_mov_b32 s{SRDT+3}, 0x20000")
            H = {"k": P_AK, "v": P_AV}
            if p in sh_:
                h = sh_[p]
                a(f"s_mov_b32 s{SRDT}, s{H[h[0]]}\ns_mov_b32 s{SRDT+1}, s{H[h[0]]+1}")
                a(f"buffer_load_dword v{V_T0}, v{V_F+30}, {sr(SRDT)}, s{48+int(h[1])} offen"); c.vm.issue("pf")
            if p == e and int(qpos):
                ck_verify(c, "g2q", [f"s_mov_b32 s{SRDT}, s{H[h[0]]}\ns_mov_b32 s{SRDT+1}, s{H[h[0]]+1}\n"
                                     f"buffer_load_dword v{V_T0}, v{V_F+30}, {sr(SRDT)}, s{48+int(h[1])} offen" for h in hints.split(",") if h])
                q_dma(c, S_QB, 5120, "q")
        park2(c, [f"k{t}" for t in range(8)], hook)
        stamp(c, 1)
        lq_park_v(c, [f"v{t}" for t in range(8)], npark, lambda t: hook(8 + t))
        stamp(c, 15, 8)
        qa, qb, qc = (int(x) for x in str(qseq).split(","))
        if n_qpre:
            st.pump(qa, False); ck_issue(c, "ws", (S_FQB, 1, 2)); st.pump(qb, False)
        if not int(qpos):
            ck_verify(c, "g2q")
            q_dma(c, S_QB, 5120, "q")
            st.pump(qc, False)
        get_q(c)
        stamp(c, 2)
        lq_scores(c, n_spump)
        stamp(c, 3)
        for g in ("ka0", "ka1", "ka2"): st.gate(g)
        st.busy[4] = "v7"
        lq_pv(c, [f"v{t}" for t in range(8)], npark, pvhook, last=lambda t: (st.run_pre("ka0"), st.open(f"ka{t-int(kag)}")), at=int(kag))
        stamp(c, 4)
        o_epi(c, [dict(acc=lq_o, L=LQ_L, M=V_M, slot=3, b3=("scr", 0), st=("scr", 4096), dst=S_OB)],
              mid=lambda: (st.open("ka1"), st.open(f"ka{8-int(kag)}"), st.pump(8, False)))
        st.open("ka2")
    V_MK = 124
    def prew_setup(c):
        t = V_MK - 1
        for k in range(4): a(f"v_mov_b32 v{V_MK+k}, -1")
        a(f"""v_and_b32 v{t}, 15, v{V_LANE}
        v_lshlrev_b32 v{t}, 4, v{t}
        v_lshrrev_b32 v{t-1}, 5, v{V_LANE}
        v_lshl_add_u32 v{t}, v{t-1}, 8, v{t}
        v_bfe_u32 v{t-1}, v{V_LANE}, 4, 1
        v_lshl_add_u32 v{t}, v{t-1}, 15, v{t}
        s_lshl_b32 s48, s{S_X0}, 3
        s_lshl_b32 s7, s{S_WAVE}, 1
        s_add_u32 s48, s48, s7
        s_lshl_b32 s48, s48, 3
        s_add_u32 s48, s48, s{S_J}
        s_lshl_b32 s48, s48, 12
        s_add_u32 s48, s48, {WS_P}""")
    def prew_part(c, p):
        a(f"buffer_store_dwordx4 {vr(V_MK)}, v{V_MK-1}, {sr(SRDW)}, s48 offen offset:{512*p} sc1"); c.vm.issue("mk")
    def prew_o(c, so):
        a(f"s_lshl_b32 s7, s{S_WAVE}, 11\ns_add_u32 s7, s7, s{so}")
        for k in range(2): a(f"buffer_store_dwordx4 {vr(V_MK)}, v{V_L16}, {sr(SRDW)}, s7 offen offset:{1024*k} sc1")
        c.vm.issue("mk", 2)
    V_PA = 11
    def tail_setup(c, X):
        a(f"""s_lshr_b32 s{S_X0+2}, s{S_U}, 3
        s_lshl_b32 s{S_X0+2}, s{S_X0+2}, 2
        s_add_u32 s{S_X0+2}, s{S_X0+2}, s{S_WAVE}
        s_add_u32 s{S_X0+2}, s{S_X0+2}, {8*X}        ; X*8 + batch
        s_lshl_b32 s{S_X0+3}, s{S_X0+2}, 3
        s_add_u32 s{S_X0+3}, s{S_X0+3}, s{S_J}
        s_lshl_b32 s{S_X0+4}, s{S_X0+3}, 15
        s_add_u32 s{S_X0+4}, s{S_X0+4}, {WS_O}       ; O offset
        s_lshl_b32 s{S_X0+3}, s{S_X0+3}, {FS}
        s_add_u32 s{S_X0+3}, s{S_X0+3}, {WS_FO}""")
        for T in range(4): a(f"v_add_u32 v{V_TW+4+T}, 0x10000, v{V_TW+T}")
        t = 10
        a(f"""v_and_b32 v{t}, 15, v{V_LANE}
        v_lshlrev_b32 v{t}, 4, v{t}
        v_lshrrev_b32 v{t+1}, 5, v{V_LANE}
        v_lshl_add_u32 v{t}, v{t+1}, 8, v{t}
        v_bfe_u32 v{t+1}, v{V_LANE}, 4, 1
        v_lshl_add_u32 v{t}, v{t+1}, 15, v{t}
        v_and_b32 v{V_PA}, 3, v{V_LANE}
        v_lshlrev_b32 v{V_PA}, {FW}, v{V_PA}
        s_lshl_b32 s58, s{S_X0}, 3
        s_lshl_b32 s7, s{S_WAVE}, 1
        s_add_u32 s58, s58, s7
        s_lshl_b32 s58, s58, 3
        s_add_u32 s58, s58, s{S_J}
        s_lshl_b32 s58, s58, 12
        s_add_u32 s58, s58, {WS_P}""")
        a(f"s_lshr_b32 s59, s{S_U}, 3\ns_lshl_b32 s59, s59, 12")
        a(f"""s_lshl_b32 s64, s{S_X0}, 2
        s_lshr_b32 s7, s{S_J}, 1
        s_add_u32 s64, s64, s7
        s_lshl_b32 s64, s64, {FS}
        s_add_u32 s64, s64, {WS_FP}               ; flags of the eight producers
        v_and_b32 v15, 7, v{V_LANE}
        v_lshlrev_b32 v15, {FW}, v15
        s_lshl_b32 s53, s{S_X0}, 3
        s_add_u32 s53, s53, s{S_J}
        s_lshl_b32 s53, s53, 15
        s_add_u32 s53, s53, {WS_P}
        s_add_u32 s54, s53, 16384
        v_lshlrev_b32 v13, 4, v0
        s_bfe_u32 s66, s{S_X0}, 0x10003
        s_lshl_b32 s66, s66, 3
        s_add_u32 s66, s66, s{S_J}
        s_lshl_b32 s66, s66, 16
        s_lshr_b32 s7, s{S_X0}, 4
        s_lshl_b32 s7, s7, 11
        s_add_u32 s66, s66, s7
        s_and_b32 s7, s{S_X0}, 7
        s_lshl_b32 s7, s7, 8
        s_add_u32 s66, s66, s7
        v_and_b32 v14, 15, v0
        v_lshlrev_b32 v14, 12, v14
        v_lshrrev_b32 v16, 4, v0
        v_lshl_add_u32 v14, v16, 4, v14""")
        srd(a, SRD0, P_OUT, 0x100000)
    def reduce(c, tag):
        if int(pollfirst):
            a(f"s_cmp_eq_u32 s{S_WAVE}, 0\ns_cbranch_scc1 L_{tag}red_0")
            flag_store(c, S_X0 + 1)
            a(f"s_branch L_{tag}red_x")
            a.label(f"L_{tag}red_0")
            a(look(12, 15, 64, 8))
            flag_store(c, S_X0 + 1)
            a(f"s_lshr_b32 s7, s{S_J}, 1\ns_cmp_eq_u32 s7, 0\ns_cselect_b32 s7, s{S_J}, 8\ns_lshl_b32 s7, s7, {FW}")
            a(f"v_cmp_ne_u32 s[48:49], s7, v15\ns_waitcnt vmcnt(1)\nv_cmp_ne_u32 vcc, 1, v12\ns_and_b64 vcc, vcc, s[48:49]\ns_cbranch_vccz L_{tag}red_x")
        else:
            flag_store(c, S_X0 + 1)
            if int(fack): a("s_waitcnt vmcnt(0)"); stamp(c, 9)
            if int(onepoll): a(f"s_cmp_lg_u32 s{S_WAVE}, 0\ns_cbranch_scc1 L_{tag}red_x")
        poll(c, tag + "red", 64, 8, 1, 15)
        if stamps == 1: a(f"s_sub_u32 s78, {SPIN}, s68\ns_mul_i32 s78, s78, 100\ns_add_u32 s78, s78, s70")
        if int(onepoll): a("s_barrier")
        stamp(c, 16); stamp(c, 17, 10)
        for j in range(8):
            a(f"buffer_load_dwordx4 {vr(V_F+4*j)}, v13, {sr(SRDW)}, s{53+(j>>2)} offen {pfl}")
            if j & 3 < 3: a(f"s_add_u32 s{53+(j>>2)}, s{53+(j>>2)}, 4096")
        acc = V_S
        for j in range(8):
            a(f"s_waitcnt vmcnt({7-j})")
            d = acc if j == 0 else acc + 8
            for k in range(4):
                a(f"v_lshlrev_b32 v{d+2*k}, 16, v{V_F+4*j+k}\nv_and_b32 v{d+2*k+1}, 0xffff0000, v{V_F+4*j+k}")
            if j:
                for k in range(4): a(f"v_pk_add_f32 {vr(acc+2*k,2)}, {vr(acc+2*k,2)}, {vr(d+2*k,2)}")
        for k in range(4): a(f"v_cvt_pk_bf16_f32 v{acc+16+k}, v{acc+2*k}, v{acc+2*k+1}")
        a(f"buffer_store_dwordx4 {vr(acc+16)}, v14, {sr(SRD0)}, s66 offen {outfl}")
        a("s_branch L_red" if stamps else "s_endpgm")
    def early_poll(c):
        a(look(12, V_PA, S_X0 + 3, 4)); c.vm.issue("ep")
    def freed(c, held, first=2):
        for g in held: c.st.release(g)
        c.st.open("wo1", 7); c.st.open("wo1")
        while c.st.issued.get(f"wo{first-1}", 0) < 8: c.st.pump(1, False)
        c.st.pump(int(n_wpre), False)

    def oproj(c, X, tag, words, sbase, wsl=(0, 1, 2, 3), first=2):
        st = c.st
        stamp(c, 10); stamp(c, 11, 10)
        items = sorted([(w, i, s_) for w in range(4) for i in range(4) for s_ in range(2)], key=lambda it: it[1] >= first)
        todo = list(items)
        def fetch():
            if not todo: return
            w, i, s_ = todo.pop(0)
            if i in (0, first) and s_ == 0:
                a(f"s_add_u32 s7, s{S_U}, {w}\ns_and_b32 s7, s7, 3\ns_lshl_b32 s7, s7, 13\ns_add_u32 s7, s7, s{S_X0+4}")
                a(f"s_add_u32 s56, s59, s7\ns_xor_b32 s57, s59, 4096\ns_add_u32 s57, s57, s7")
            a(f"buffer_load_dwordx4 {ar(32*w+8*i+4*s_)}, v{V_L16}, {sr(SRDW)}, s{56+(i>>1)} offen offset:{1024*(2*(i&1)+s_)} {ofl}")
            c.vm.issue(f"of{w}_{i}_{s_}")
        def publish(drain=False):
            a("s_barrier")
            lab = f"L_{tag}pub{next(uid)}"
            a(f"s_cmp_lg_u32 s{S_WAVE}, 0\ns_cbranch_scc1 {lab}")
            q = list(c.vm.q)
            for so, nl in words: flag_store(c, so, nl)
            if drain: a(f"s_waitcnt vmcnt({len(words)})\ns_branch {lab}_j")
            a.label(lab)
            if drain:
                a("s_waitcnt vmcnt(0)"); a.label(lab + "_j"); q = []
            c.vm.q = q
        ops = [it + (T,) for grp in tsplit.split(",") for it in items for T in map(int, grp)]
        cut = next(n for n, op in enumerate(ops) if op[1] >= first) - 4
        done = {max(n for n, op in enumerate(ops) if op[3] == T): T for T in range(4)}
        out = []
        def emit_tile(T):
            return ([f"v_cvt_pk_bf16_f32 v{V_S+64+8*T+k}, v{V_S+16*T+2*k}, v{V_S+16*T+2*k+1}" for k in range(8)]
                    + [f"buffer_store_dwordx4 {vr(V_S+64+4*p)}, v10, {sr(SRDW)}, s58 offen offset:{512*p} sc1" for p in (2 * T, 2 * T + 1)])
        def fill(n):
            if n - 4 in done: out.extend(emit_tile(done.pop(n - 4)))
            for _ in range(2):
                if out: a(out.pop(0))
        seen = set()
        def bf(w, i, s_):
            if (w, i, s_) not in seen:
                seen.add((w, i, s_))
                if f"of{w}_{i}_{s_}" in c.vm.q: c.vm.wait(f"of{w}_{i}_{s_}")
                fetch(); st.pump(2 if len(seen) <= n_w2 else (2 if first == 1 else 1), False)
            return ar(32 * w + 8 * i + 4 * s_)
        if "ep" in c.vm.q: c.vm.wait("ep")
        a(f"v_cmp_ne_u32 vcc, 1, v12\ns_cbranch_vccz L_{tag}early")
        main = a.lines; a.lines = []
        a.label(f"L_{tag}early")
        save = (list(c.vm.q), list(todo), list(st.q), dict(st.busy), set(st.landed), dict(st.issued), st.m0_dirty)
        for _ in range(n_look): fetch()
        c.vm.wait("ost"); st._sync(); assert f"wo{first-1}" in st.landed
        stamp(c, 11); stamp(c, 12, 10)
        publish()
        stamp(c, 12)
        a.label(f"L_{tag}ready")
        qr = list(c.vm.q)
        stamp(c, sbase); stamp(c, 14, 10); cyc(c, 17, True)
        w_ops(a, ops, bf, hi=cut, smap=wsl)
        st.pump(throttle=False); st.need("wo3", fill=False)
        qa, todoa = list(c.vm.q), list(todo)
        a(f"s_branch L_{tag}go")
        side = a.lines; a.lines = main
        c.vm.q, todo[:], st.q, st.busy, st.landed, st.issued, st.m0_dirty = save
        seen.clear()
        early_poll(c)
        c.vm.wait("ost")
        stamp(c, 11); stamp(c, 12, 10)
        publish(drain=True)
        stamp(c, 12)
        a(f"v_cmp_ne_u32 vcc, 1, v12\ns_cbranch_vccz L_{tag}second")
        t0 = list(todo)
        a.lines = side
        a.label(f"L_{tag}second")
        for _ in range(n_look): fetch()
        assert c.vm.q == qr
        a(f"s_branch L_{tag}ready")
        a.lines = main
        c.vm.q = []; todo[:] = t0
        st.pump(throttle=False)
        poll(c, tag + "o", S_X0 + 3, 4, 1, V_PA)
        stamp(c, sbase); stamp(c, 14, 10); cyc(c, 17, True)
        for _ in range(n_look): fetch()
        w_ops(a, ops, bf, hi=cut, smap=wsl)
        assert todo == todoa and c.vm.q[len(c.vm.q)-len(qa):] == qa, (c.vm.q, qa)
        a.label(f"L_{tag}go")
        a("s_barrier")
        w_ops(a, ops, bf, lo=cut, fill=fill, smap=wsl)
        cyc(c, 17, False); stamp(c, 18); stamp(c, 15, 10)
        for n in sorted(done): out.extend(emit_tile(done[n]))
        for l in out: a(l)
        stamp(c, sbase + 1)
        c.vm.wait_all()
        stamp(c, sbase + 2); stamp(c, 16, 10)
        reduce(c, tag)
        a.lines += side

    c2 = mk()
    if qpf:
        a(f"""s_and_b32 s60, s{S_U}, 7
        s_lshl_b32 s60, s60, 2
        s_add_u32 s60, s60, s{S_WAVE}          ; 0..31
        s_lshr_b32 s61, s{S_U}, 3              ; h
        v_lshrrev_b32 v40, 3, v{V_LANE}
        v_and_b32 v41, 7, v{V_LANE}
        v_lshlrev_b32 v41, 7, v41
        v_lshl_add_u32 v40, v40, 13, v41
        v_lshrrev_b32 v41, 1, v{V_LANE}
        v_and_b32 v42, 1, v{V_LANE}
        v_lshlrev_b32 v42, 7, v42
        v_lshl_add_u32 v41, v41, 11, v42       ; 32 rows x 256 B
        s_and_b32 s62, s60, 15
        s_lshl_b32 s62, s62, 16
        s_lshl_b32 s7, s61, 20
        s_add_u32 s62, s62, s7
        s_lshl_b32 s7, s{S_J}, 10
        s_add_u32 s62, s62, s7                 ; Wq offset of k-tile h
        s_and_b32 s63, s60, 7
        s_lshl_b32 s63, s63, 16
        s_lshr_b32 s7, s60, 4
        s_lshl_b32 s7, s7, 8
        s_add_u32 s63, s63, s7
        s_lshl_b32 s7, s61, 9
        s_add_u32 s63, s63, s7                 ; x offset of k-tile 2h + (0|1)
        s_waitcnt lgkmcnt(0)
        s_bitcmp1_b32 s60, 4
        s_cselect_b32 s12, s{P_BWQ}, s{P_AWQ}
        s_cselect_b32 s13, s{P_BWQ+1}, s{P_AWQ+1}
        s_mov_b32 s14, 0x800000
        s_mov_b32 s15, 0x20000
        s_bitcmp1_b32 s60, 3
        s_cselect_b32 s{SRDT}, s{P_BX}, s{P_AX}
        s_cselect_b32 s{SRDT+1}, s{P_BX+1}, s{P_AX+1}
        s_mov_b32 s{SRDT+2}, 0x80000
        s_mov_b32 s{SRDT+3}, 0x20000""")
        for n, kind in enumerate("xWWxWW"):
            if qpf[n] == "1":
                if kind == "x": a(f"buffer_load_dword v43, v41, {sr(SRDT)}, s63 offen")
                else: a("buffer_load_dword v43, v40, s[12:15], s62 offen")
                c2.vm.issue("pf")
                if int(qthr): a(f"s_waitcnt vmcnt({int(qthr)-1})")
            a("s_add_u32 s63, s63, 1024" if kind == "x" else f"s_add_u32 s62, s62, {2<<20}")
    add_kv(c2, n_g2k, n_g2v, True)
    if stamps == 9: c2.st.run_pre("k0"); a("s_memrealtime s[62:63]")
    c2.st.pump(n_g2k[0])
    if stamps == 9:
        a(f"s_memrealtime s[64:65]\ns_waitcnt vmcnt({n_g2k[0]-1})\ns_memrealtime s[66:67]\ns_waitcnt vmcnt(0)\ns_memrealtime s[68:69]\ns_waitcnt lgkmcnt(0)")
        a("s_mov_b32 s92, s62\ns_mov_b32 s93, s64\ns_mov_b32 s94, s66\ns_mov_b32 s95, s68")
    a("s_branch L_g2")
    a.label("L_g1")
    c = mk(); st = c.st
    if int(nog1):
        global SPIN; SPIN = 4
        a("s_waitcnt lgkmcnt(0)"); common(); fp_word(); a("s_branch L_red")
    set_kd(a, 2048)
    if int(xmap):
        a(f"""s_and_b32 s{S_X0+5}, s{S_J}, 1            ; X
        s_bfe_u32 s{S_X0+6}, s{S_U}, 0x20001      ; p
        s_lshr_b32 s{S_X0+7}, s{S_U}, 3           ; r
        s_lshl_b32 s{S_X0+8}, s{S_X0+7}, 2
        s_add_u32 s{S_X0+8}, s{S_X0+8}, s{S_WAVE}   ; batch
        s_lshl_b32 s{S_A+3}, s{S_X0+8}, 16
        s_lshr_b32 s7, s{S_J}, 1
        s_lshl_b32 s7, s7, 3
        s_and_b32 s{S_X0+9}, s{S_U}, 7
        s_add_u32 s{S_X0+9}, s{S_X0+9}, s7          ; head
        s_xor_b32 s{S_X0+7}, s{S_X0+7}, s{S_U}
        s_and_b32 s{S_X0+7}, s{S_X0+7}, 1           ; r ^ (u & 1)""")
    else:
        a(f"""s_lshr_b32 s{S_X0+5}, s{S_U}, 3           ; X
        s_and_b32 s{S_X0+6}, s{S_U}, 3            ; hh
        s_bfe_u32 s{S_X0+7}, s{S_U}, 0x10002      ; r
        s_lshl_b32 s{S_X0+8}, s{S_X0+7}, 2
        s_add_u32 s{S_X0+8}, s{S_X0+8}, s{S_WAVE}   ; batch
        s_lshl_b32 s{S_A+3}, s{S_X0+8}, 16
        s_lshl_b32 s7, s{S_J}, 2
        s_add_u32 s{S_X0+9}, s{S_X0+6}, s7          ; head""")
    def sigma(i, S, sh):
        a(f"s_add_u32 s7, s{S_X0+6}, {i>>1}\ns_and_b32 s7, s7, 3\ns_lshl_b32 s7, s7, 1\ns_add_u32 s7, s7, s{S_X0+7}")
        if i & 1: a("s_xor_b32 s7, s7, 1")
        a(f"s_lshl_b32 s7, s7, {sh}\ns_add_u32 s{S}, s{S+3}, s7")
    assert int(rotq) == 2
    if int(rotq) == 2: sigma(0, S_A, 8)
    a("s_waitcnt lgkmcnt(0)")
    srd_sel(a, SRD0, S_X0 + 5, P_AX, P_BX, 0x80000)
    a(f"s_lshl_b32 s{S_SCR}, s{S_WAVE}, 13\ns_add_u32 s{S_SCR}, s{S_SCR}, {LDS_SCR}")
    def prewq():
        set_vd(a, 8192)
        srd_sel(a, SRD1, S_X0 + 5, P_AWQ, P_BWQ, 0x800000)
        a(f"s_lshl_b32 s{S_B+3}, s{S_X0+9}, 8\ns_lshl_b32 s7, s{S_WAVE}, 18\ns_add_u32 s{S_B+3}, s{S_B+3}, s7")
        sigma(0, S_B, 20)
    for g in ["x0", "w0", "w1"] + [g for t in range(1, 7) for g in (f"x{t}", f"w{t+1}")] + ["x7"]:
        t = int(g[1])
        nx = (lambda t, S, sh: (lambda: sigma(t + 1, S, sh) if t < 7 else None)) if int(rotq) == 2 else (lambda *_: None)
        if g[0] == "x": st.add(g, 4, SRD0, S_A, 256, V_KD, 2048, fl_x, n_x[t], wrap=2048, nxt=nx(t, S_A, 8))
        else: st.add(g, t & 3, SRD1, S_B, 1 << 20, V_VD, 8192, fl_wq, n_wq[t], pre=prewq if t == 0 else None, wrap=8 << 20, nxt=nx(t, S_B, 20))
    st.pump(8)
    common()
    a(f"""s_lshl_b32 s{S_X0+3}, s{S_X0+5}, 3
    s_add_u32 s{S_X0+3}, s{S_X0+3}, s{S_X0+8}
    s_lshl_b32 s{S_X0+3}, s{S_X0+3}, 5
    s_add_u32 s{S_X0+3}, s{S_X0+3}, s{S_X0+9}
    s_lshl_b32 s{S_X0+4}, s{S_X0+3}, 6
    s_add_u32 s{S_X0+4}, s{S_X0+4}, {WS_FQ}
    s_lshl_b32 s{S_X0+3}, s{S_X0+3}, 13""")
    fp_word()
    clear_flags(c, [(S_X0 + 4, 4, 11), (S_FOB, 1, 2), (S_X0 + 1, 4, FS)], "g1clear")
    add_kv(c, n_g1k, n_g1v, False)
    add_wo(c, 1)
    set_kr(a, S_SCR); set_tr(a)
    if pf & 2: code_touch(a, "L_g1pf_x", "L_g2", 32768, 4, "g1pf")
    early = [n_early]
    def gated_pump(throttle):
        if st.can() and st.q[0][0][0] == "k":
            if early[0] <= 0: return
            early[0] -= 1
        st.pump(1, throttle)
    def wpre(t):
        def f():
            st.need(f"x{t}", fill=(t < 6))
            for s in range(8): a(f"ds_read_b128 {ar(32*t+4*s)}, v{V_KR+s}")
            if t == 0: stamp(c, 1)
            st.need(f"w{t}", fill=(t < 6))
            if t == 0: count_in(c, "g1count")
            stamp(c, 3 + 2 * t, 3)
            a("s_barrier")
            stamp(c, 4 + 2 * t, 3)
            if t == 3: stamp(c, 3, 7); cyc(c, 5, True, 7)
            if t == 6: stamp(c, 4, 7); cyc(c, 5, False, 7)
            if prew:
                if t == 0: prew_setup(c); prew_o(c, S_OB)
                if t < 4: prew_part(c, 2 * t); prew_part(c, 2 * t + 1)
            if t: st.release(f"w{t-1}")
            if t == 7:
                assert st.issued["x7"] == 8
                st.run_pre("k0")
        return f
    ops = [(w, t & 3, s, T, t) for t in range(7) for w in range(4) for s in range(2) for T in range(4)]
    ops += [(w, 3, s, T, 7) for grp in qsplit.split(",") for w in range(4) for s in range(2) for T in map(int, grp)]
    done = {max(n for n, op in enumerate(ops) if op[3] == T): T for T in range(4)}
    out = []
    def q_tile(T):
        return ([f"v_pk_mul_f32 {vr(V_S+16*T+i,2)}, {vr(V_S+16*T+i,2)}, s[{S_C}:{S_C+1}] op_sel_hi:[1,0]" for i in range(0, 16, 2)]
                + [f"v_cvt_pk_bf16_f32 v{V_S+64+8*T+k}, v{V_S+16*T+2*k}, v{V_S+16*T+2*k+1}" for k in range(8)]
                + [f"buffer_store_dwordx4 {vr(V_S+64+4*s)}, v{V_L16}, {sr(SRDW)}, s{S_X0+2 if s>=4 else S_X0+3} offen offset:{1024*(s&3)} sc1" for s in (2 * T, 2 * T + 1)])
    def q_fill(n):
        if n - 4 in done: out.extend(q_tile(done.pop(n - 4)))
        for _ in range(3):
            if out: a(out.pop(0))
    a(f"s_add_u32 s{S_X0+2}, s{S_X0+3}, 4096")
    wpre(0)()
    w_ops(a, ops, lambda w, slot, s, t: ar(32 * t + 4 * (2 * w + s)), fill=q_fill,
          before={32 * t - 4: (lambda t: lambda: (a("s_waitcnt lgkmcnt(0)"), wpre(t)()))(t) for t in range(1, 8)},
          waited={32 * i: (lambda i: lambda: (st.release(f"x{i}"), set_kr(a) if i == 7 else None))(i) for i in range(8)},
          behind=lambda n: (gated_pump(True), gated_pump(True)) if n % 4 == 0 and n < 32 * 7 + 16 else None)
    for n in sorted(done): out.extend(q_tile(done[n]))
    for l in out: a(l)
    c.vm.issue("qst", 8)
    st.pump(3, throttle=False)
    c.vm.wait("qst"); st._sync()
    flag_store(c, S_X0 + 4)
    a("s_barrier"); st.release("w7")
    stamp(c, 2)
    if int(lag):
        a(f"s_and_b32 s7, s{S_U}, 3\ns_cmp_eq_u32 s7, 1\ns_cselect_b32 s{S_X0+5}, 1, 0"); st.lag = S_X0 + 5
    mha1(c)
    oproj(c, 1, "g1", [(S_FOB, 1)], 13, first=int(g1first))

    a.label("L_g2")
    c = c2; st = c.st
    common()
    if stamps == 9: a("s_mov_b32 s73, s92\ns_mov_b32 s74, s93\ns_mov_b32 s75, s94\ns_mov_b32 s76, s95"); stamp(c, 7, 9)
    a(f"""s_lshl_b32 s{S_X0+5}, s{S_U}, 1
    s_lshl_b32 s{S_X0+6}, s{S_J}, 5
    s_add_u32 s{S_X0+6}, s{S_X0+6}, s{S_X0+5}   ; b*32+h
    s_lshl_b32 s{S_X0+7}, s{S_X0+6}, 6
    s_add_u32 s{S_X0+7}, s{S_X0+7}, {WS_FQ}     ; Q flag
    s_lshl_b32 s{S_X0+6}, s{S_X0+6}, 13         ; Q offset (O = +WS_O)
    s_lshl_b32 s{S_X0+8}, s{S_J}, 3
    s_lshr_b32 s7, s{S_U}, 1
    s_add_u32 s{S_X0+8}, s{S_X0+8}, s7
    s_lshl_b32 s{S_X0+8}, s{S_X0+8}, {FS}
    s_and_b32 s7, s{S_U}, 1
    s_lshl_b32 s7, s7, {FW+1}
    s_add_u32 s{S_X0+8}, s{S_X0+8}, s7
    s_add_u32 s{S_X0+8}, s{S_X0+8}, {WS_FO}     ; O flags (two words)
    s_add_u32 s{S_X0+9}, s{S_X0+8}, 4""")
    def kva_off(S):
        a(f"s_lshl_b32 s{S+3}, s{S_J}, 2\ns_lshr_b32 s7, s{S_U}, 2\ns_add_u32 s{S+3}, s{S+3}, s7\ns_lshl_b32 s{S+3}, s{S+3}, 18")
        a(f"s_lshl_b32 s7, s{S_WAVE}, {WSH}\ns_add_u32 s{S+3}, s{S+3}, s7")
        a(f"s_and_b32 s{S+2}, s{S_U}, {3 if rot else 0}\ns_lshl_b32 s{S+2}, s{S+2}, {15 if int(rota) == 2 else 16}\ns_add_u32 s{S}, s{S+3}, s{S+2}")
    def half2(S): return lambda: a(f"s_add_u32 s{S+3}, s{S+3}, 131072\ns_add_u32 s{S}, s{S}, 131072")
    wra = 131072 if int(rota) == 2 else 262144
    five = int(five)
    ASL = [n % 5 if five else n & 3 for n in range(16)]
    WSL2 = [1, 2, 3, 0] if five else [0, 1, 2, 3]
    a(f"s_lshl_b32 s{S_SCR}, s{S_WAVE}, 13\ns_add_u32 s{S_SCR}, s{S_SCR}, {LDS_SCR}")
    def preka(): srd(a, SRD0, P_AK, 0x800000); kva_off(S_A)
    def preva(): srd(a, SRD1, P_AV, 0x800000); kva_off(S_B)
    fp_word()
    clear_flags(c, [(S_FOB, 1, 2), (S_X0 + 8, 2, FW), (S_X0 + 1, 4, FS)], "g2clear")
    for t in range(8): st.add(f"ka{t}", ASL[t], SRD0, S_A, 32768, V_KD, 256, fl_kva, n_kva[t], pre=preka if t == 0 else half2(S_A) if t == 4 and int(rota) == 2 else None, wrap=wra, ps=PS)
    for t in range(8): st.add(f"va{t}", ASL[8 + t], SRD1, S_B, 32768, V_VD, 256, fl_kva, n_vva[t], single=not PS, pre=preva if t == 0 else half2(S_B) if t == 4 and int(rota) == 2 else None, wrap=wra, ps=PS)
    add_wo(c, 0, WSL2)
    set_kr(a); set_tr(a)
    if pf & 4: code_touch(a, "L_g2pf_x", "L_end", 32768, 4, "g2pf")
    if int(tlb):
        a(f"s_cmp_lg_u32 s{S_WAVE}, 2\ns_cbranch_scc1 L_tlb_x")
        a(f"v_lshlrev_b32 v{V_F+29}, 20, v{V_LANE}")
        for p, n in ((P_AWO, 8), (P_BWO, 8), (P_AK, 8), (P_AV, 8), (P_OUT, 1), (P_WS, 24)):
            srd(a, SRDT, p, n << 20)
            a(f"buffer_load_dword v{V_T0}, v{V_F+29}, {sr(SRDT)}, 0 offen")
        a.label("L_tlb_x")
    def qa_hook(t):
        if t == 1: ck_issue(c, "ws", (S_X0 + 7, 2, 6))
        if t == 3:
            ck_verify(c, "g2qa")
            q_dma(c, S_X0 + 6, 0, "qa")
            a(f"s_add_u32 s{S_X0+7}, s{S_X0+6}, 8192")
            q_dma(c, S_X0 + 7, 2048, "qa")
        if t == 7:
            if "qa" in c.vm.q: c.vm.wait("qa")
            st._sync()
            a("s_barrier")
            q_read(c, 0, lambda s: vr(V_Q + 4 * s)); a("s_waitcnt lgkmcnt(4)")
            q_read(c, 2048, lambda s: ar(A_Q1 + 4 * s))
            a("s_waitcnt lgkmcnt(0)\ns_barrier")
    mha2(c, qa_hook)
    st.release("v7")
    if kvpf & 2: touch(c, P_AV, 0x800000, KVA_BASE, 32768, 256, fl_kva)
    stamp(c, 5)
    if pf & 1: code_touch(a, "L_g2tail2", "L_end", 16384, 2, "g2pf2")
    def wo_gap(t):
        if t >= g2w[0]: st.open("wo0")
        if t >= g2w[1]: st.open("wo1")
        if st.issued.get("wo1", 0) == 7 and not getattr(c, "gap_done", False):
            c.gap_done = True
            a(f"buffer_load_dword v{V_T0}, v{V_VD+3}, {sr(SRD1)}, s{S_B+1} offen offset:3072 {fl_wo}")
            c.vm.issue("pf")
    st.gate("va1"); st.gate("wo1", 7)
    g2w = [int(x) for x in str(g2wo).split(",")]
    st.gate("wo0"); st.gate("wo1")
    a(f"s_sub_u32 s{S_DLT}, s{S_SCR}, s{S_RING}")
    gqa_k(c, [f"ka{t}" for t in range(8)], ASL[:8], lambda t: st.open("va1") if t == va1 - 1 else None)
    st.open("va1"); st.pump(8 if va1 == 8 else 0, False)
    stamp(c, 6)
    a.label("L_gv")
    if kvpf & 4: touch(c, P_AWO, 0x800000, WO_BASE.replace(f"v{V_CA}", f"v{V_CA}"), 65536, 2048, fl_wo)
    heads = [dict(acc=lambda B: ar(A_O + 16 * B, 16), L=A_L, M=V_M, slot=WSL2[3], b3=("scr", 0), st=(WSL2[1], 7168), dst=S_X0 + 6),
             dict(acc=o1, L=A_L1, M=V_M1, slot=WSL2[2], b3=("scr", 4096), st=(WSL2[1], 7168 + 8), dst=S_X0 + 7)]
    held = ("va5", "va6", "va7") if five else ("va6", "va7")
    epi = Epi(c, heads, t=V_P1, sv=(2, 4)) if int(ovl) else None
    gqa_v(c, [f"va{t}" for t in range(8)], ASL[8:], hold=held, hook=wo_gap,
          last=(lambda n: [epi.do(x) for x in {-1: ["addr"], 0: ["stats"], 1: [1], 2: [2], 3: [3]}[n]]) if epi else None)
    stamp(c, 7)
    a.label("L_g2tail2")
    a(f"s_add_u32 s{S_X0+6}, s{S_X0+6}, {WS_O}\ns_add_u32 s{S_X0+7}, s{S_X0+7}, {WS_O}")
    o_epi(c, heads, epi=epi,
          idle=lambda: tail_setup(c, 0), mid=lambda: (early_poll(c), st.pump(8, False), wo_gap(9)), freed=lambda: freed(c, held, int(g2first)))
    oproj(c, 0, "g2", [(S_X0 + 8, 2), (S_FOB, 1)], 13, WSL2, first=int(g2first))

    a.label("L_red")
    c = mk()
    if stamps:
        a("s_waitcnt vmcnt(0)"); stamp(c, 19)
        if stamps == 4: a("s_getreg_b32 s88, hwreg(HW_REG_HW_ID)\ns_bfe_u32 s88, s88, 0x80008\ns_mul_i32 s88, s88, 100\ns_add_u32 s88, s88, s70")
        a(f"s_lshl_b32 s7, s2, 2\ns_add_u32 s7, s7, s{S_WAVE}\ns_lshl_b32 s7, s7, 7\ns_add_u32 s7, s7, {WS_ST}")
        for n in range(20): a(f"v_mov_b32 v{V_S+n}, s{70+n}")
        a(f"v_mov_b32 v{V_T0}, 0\ns_mov_b64 exec, 1")
        for q in range(5): a(f"buffer_store_dwordx4 {vr(V_S+4*q)}, v{V_T0}, {sr(SRDW)}, s7 offen offset:{16*q}")
    a.label("L_end"); a("s_endpgm")
    if "L" in hack: a.lines = [l for l in a.lines if not (l.startswith("v_mfma") and f", {vr(V_ONE)}," in l)]
    if "E" in hack: a.lines = [l.replace("v_exp_f32", "v_mov_b32") for l in a.lines]
    def strip(l0, l1, pred):
        i0 = a.lines.index(l0); i1 = a.lines.index(l1)
        a.lines[i0:i1] = [l for l in a.lines[i0:i1] if not pred(l)]
    if "K" in hack: strip("L_g2pf2_x:", "L_gv:", lambda l: l.startswith("v_mfma"))
    if "V" in hack: strip("L_gv:", "L_g2tail2:", lambda l: l.startswith("v_mfma"))
    if "P" in hack: strip("L_g1pf3_x:", "L_g1tail:", lambda l: l.startswith("v_mfma"))
    if "R" in hack: strip("L_g2pf2_x:", "L_g2tail2:", lambda l: l.startswith("ds_read"))
    if "H" in hack: strip("L_gv:", "L_g2tail2:", lambda l: l.startswith("v_mfma_f32_32") and (l.split()[1].startswith("v[4") or l.split()[1].startswith("v[5") or l.split()[1].startswith("a[96") or l.split()[1].startswith("a[112")))
    if "M" in hack:
        i0 = a.lines.index("L_g2pf2_x:"); i1 = a.lines.index("L_g2tail2:")
        a.lines[i0:i1] = [l for n, l in enumerate(a.lines[i0:i1]) if not l.startswith("v_mfma")]
    s = header(["; @launch grid=(256,1,1) block=(256,1,1) lds=163840"])
    s += DOC + kernel_open(NAME + "_kernel") + a.finish() + "\n"
    s += '.section .rodata,"a"\n.p2align 6\n' + descriptor(NAME + "_kernel")
    return s

if __name__ == "__main__":
    out = sys.argv[1]
    kw = dict(x.split("=") for x in sys.argv[2:])
    open(out, "w").write(build(**kw))
```

```python
import re

TRANS = ("v_exp_f32", "v_log_f32", "v_rcp_f32", "v_rsq_f32", "v_sqrt_f32", "v_sin_f32", "v_cos_f32")

def _regs(tok):
    tok = tok.strip()
    tok = tok.lstrip("-")
    if tok.startswith("abs(") or tok.startswith("|"):
        tok = tok.strip("|").replace("abs(", "").rstrip(")")
    m = re.fullmatch(r"([vas])\[(\d+):(\d+)\]", tok)
    if m:
        return [(m.group(1), i) for i in range(int(m.group(2)), int(m.group(3)) + 1)]
    m = re.fullmatch(r"([vas])(\d+)", tok)
    if m:
        return [(m.group(1), int(m.group(2)))]
    if tok in ("vcc", "vcc_lo", "vcc_hi"):
        return [("s", "vcc")]
    if tok == "m0":
        return [("s", "m0")]
    if tok == "exec":
        return [("s", "exec")]
    return []

class Ins:
    __slots__ = ("text", "op", "ops", "w", "r", "kind", "states")
    def __init__(self, text):
        self.text = text
        t = text.split(";")[0].strip()
        self.op = t.split()[0] if t else ""
        rest = t[len(self.op):].strip()
        ops = [x.strip() for x in re.split(r",(?![^\[]*\])", rest)] if rest else []
        if ops:
            last = ops[-1].split()
            ops[-1] = last[0] if last else ""
            mods = last[1:]
        else:
            mods = []
        self.ops = ops
        op = self.op
        self.states = 1
        w, r = [], []
        if op.endswith(":") or op.startswith(".") or not op:
            self.kind = "meta"; self.states = 0
        elif op == "s_nop":
            self.kind = "nop"; self.states = int(ops[0], 0) + 1
        elif op.startswith("v_mfma"):
            self.kind = "mfma"
            w = _regs(ops[0]); r = _regs(ops[1]) + _regs(ops[2]) + _regs(ops[3])
        elif op.startswith("v_"):
            self.kind = "valu"
            if op.startswith("v_permlane") and "swap" in op:
                w = _regs(ops[0]) + _regs(ops[1]); r = list(w)
            elif op.startswith("v_cmp"):
                w = _regs(ops[0]); r = sum((_regs(o) for o in ops[1:]), [])
            elif "_co_" in op:
                w = _regs(ops[0]) + _regs(ops[1]); r = sum((_regs(o) for o in ops[2:]), [])
            else:
                w = _regs(ops[0]); r = sum((_regs(o) for o in ops[1:]), [])
                if op.startswith("v_fmac") or op.startswith("v_pk_fmac") or op.startswith("v_writelane"):
                    r += w
                if op.startswith("v_cndmask") and len(ops) == 3:
                    r += [("s", "vcc")]
        elif op.startswith("ds_"):
            self.kind = "ds"
            if op.startswith("ds_read") or op.startswith("ds_bpermute") or op.startswith("ds_swizzle"):
                w = _regs(ops[0]); r = sum((_regs(o) for o in ops[1:]), [])
            else:
                r = sum((_regs(o) for o in ops), [])
        elif op.startswith("buffer_") or op.startswith("global_"):
            self.kind = "vmem"
            lds = "lds" in mods or "_lds_" in op
            if op in ("buffer_wbl2", "buffer_inv"):
                pass
            elif lds:
                r = sum((_regs(o) for o in ops), []) + [("s", "m0")]
            elif "_load" in op:
                w = _regs(ops[0]); r = sum((_regs(o) for o in ops[1:]), [])
            elif "atomic" in op and "sc0" in mods and op.startswith("buffer_"):
                w = _regs(ops[0]); r = sum((_regs(o) for o in ops), [])
            elif "atomic" in op and "sc0" in mods:
                w = _regs(ops[0]); r = sum((_regs(o) for o in ops[1:]), [])
            else:
                r = sum((_regs(o) for o in ops), [])
        elif op.startswith("s_"):
            self.kind = "salu"
            if op.startswith("s_cmp") or op.startswith("s_bitcmp") or op.startswith("s_cbranch") or op in ("s_branch", "s_barrier", "s_waitcnt", "s_endpgm", "s_sleep", "s_setprio"):
                r = sum((_regs(o) for o in ops), [])
            else:
                w = _regs(ops[0]) if ops else []
                r = sum((_regs(o) for o in ops[1:]), [])
                if "saveexec" in op:
                    w += [("s", "exec")]
        else:
            raise ValueError("unknown instruction: " + text)
        self.w, self.r = set(w), set(r)

def mfma_passes(op):
    if "32x32x16" in op or "32x32x8" in op: return 8
    if "16x16x32" in op or "16x16x16" in op: return 4
    raise ValueError(op)

def need_states(p, c):
    n = 0
    vw = {x for x in p.w if x[0] in "va"}
    sw = {x for x in p.w if x[0] == "s"}
    if p.kind == "valu":
        if c.kind == "mfma" and vw & c.r: n = max(n, 2)
        if c.kind == "valu":
            if c.op.startswith("v_permlane") and vw & c.r: n = max(n, 2)
            if ("_dpp" in c.op or "row_" in c.text or "quad_perm" in c.text) and vw & c.r: n = max(n, 2)
            if c.op.startswith(("v_readlane", "v_readfirstlane")) and vw & c.r: n = max(n, 1)
            if any(p.op.startswith(t) for t in TRANS) and vw & c.r and not any(c.op.startswith(t) for t in TRANS): n = max(n, 1)
            if sw & c.r: n = max(n, 2)
            if c.op.startswith(("v_readlane", "v_writelane")) and sw & c.r: n = max(n, 4)
        if c.kind == "vmem" and sw & c.r: n = max(n, 5)
        if c.kind == "salu" and sw & c.r: n = max(n, 1)
        if ("s", "exec") in p.w and c.kind in ("mfma",): n = max(n, 4)
    if p.kind == "salu":
        if ("s", "m0") in p.w and c.kind == "vmem" and ("s", "m0") in c.r: n = max(n, 1)
    if p.kind == "mfma":
        ps = mfma_passes(p.op)
        full = {4: 8, 8: 12}[ps]; part = {4: 6, 8: 10}[ps]; war = {4: 3, 8: 7}[ps]
        if c.kind == "mfma":
            cC = set(_regs(c.ops[3])); cAB = set(_regs(c.ops[1]) + _regs(c.ops[2]))
            if p.w & cAB: n = max(n, full)
            if p.w & cC and not (cC == p.w and mfma_passes(c.op) == ps): n = max(n, part)
            if p.w & c.w and not (cC == p.w): n = max(n, part)
        else:
            if p.w & (c.r | c.w): n = max(n, full)
            pC = set(_regs(p.ops[3]))
            if c.kind == "valu" and pC & c.w: n = max(n, war)
    if p.kind == "vmem" and ("store" in p.op or "atomic" in p.op) and ("x4" in p.op or "x3" in p.op):
        data = set(_regs(p.ops[0] if p.op.startswith("buffer_") else p.ops[1]))
        if data & c.w: n = max(n, 2 if c.kind == "valu" else 1)
    return n

class Asm:
    def __init__(self):
        self.lines = []
    def __call__(self, text):
        for l in text.split("\n"):
            l = l.strip()
            if l: self.lines.append(l)
    def label(self, name):
        self.lines.append(name + ":")
    def finish(self):
        out = []; hist = []
        for l in self.lines:
            if l.startswith(";"):
                out.append("    " + l); continue
            ins = Ins(l)
            if ins.kind == "meta":
                if l.endswith(":"):
                    src = [i for i, p in enumerate(hist) if p.op.startswith(("s_cbranch", "s_branch")) and p.ops and p.ops[0] == l[:-1]]
                    if src:
                        for p in hist[src[0] + 1:]: p.states = 0
                out.append(l); continue
            need = 0
            dist = 0
            for p in reversed(hist):
                n = need_states(p, ins)
                if n > dist: need = max(need, n - dist)
                dist += p.states
                if dist >= 20: break
            while need > 0:
                k = min(need, 16)
                nop = Ins(f"s_nop {k-1}")
                out.append(f"    s_nop {k-1}"); hist.append(nop); need -= k
            out.append("    " + l); hist.append(ins)
            if len(hist) > 120: hist = hist[-120:]
        return "\n".join(out)
    def fence(self):
        self.lines.append("s_nop 11")
```

```python
import sys
from engines import *

WS_FQ = WS_F
WS_FO = WS_F + 0x200000
WS_FP = WS_F + 0x400000
WS_ST = WS_F + 0x100000
FS = 7
FW = 2
SLEEP = 0
APOLL = 1
KP = 3
ACK = 1
NPOLL = 1
PGAP = 0
GAP = 28
S_SCR = 69
SPIN = 1 << 18
SRDT = 88

class Stream:
    def __init__(self, a, vm):
        self.a, self.vm = a, vm
        self.q = []
        self.busy = {}
        self.landed = set(); self.issued = {}; self.m0_dirty = False; self.pres = {}; self.gates = set(); self.lag = None; self.nl = 0
    def run_pre(self, tag):
        box = self.pres[tag]
        if box[0]: box[0](); box[0] = None
    def add(self, tag, slot, srdreg, soff, step, voff, rs, fl, N, single=False, pre=None, wrap=None, nxt=None, ps=None):
        a = self.a
        fl = (" " + fl) if fl else ""
        sb, so_ = (S_SCR, 0) if slot == 4 else (S_RING, slot * 8192)
        box = [pre]
        def emit(k):
            if k == 0:
                if box[0]: box[0](); box[0] = None
                a(f"s_add_u32 m0, s{sb}, {so_}")
            if k == 4:
                a(f"s_add_u32 s{soff+1}, s{soff}, {4*(ps or 4*rs)}")
                a(f"s_add_u32 m0, s{sb}, {so_+4096}")
            if self.m0_dirty and k & 3: a(f"s_add_u32 m0, s{sb}, {so_+(k&4)*1024}")
            self.m0_dirty = False
            so = soff + 1 if k >= 4 else soff
            off = f" offset:{1024*(k&3)}" if k & 3 else ""
            a(f"buffer_load_dwordx4 v{voff+(0 if single else k&3)}, {sr(srdreg)}, s{so} offen{off}{fl} lds")
            if k == 7:
                if nxt is not None: nxt()
                elif wrap is None: a(f"s_add_u32 s{soff}, s{soff}, {step}")
                else:
                    a(f"s_add_u32 s{soff+2}, s{soff+2}, {step}\ns_and_b32 s{soff+2}, s{soff+2}, {wrap-1}\ns_add_u32 s{soff}, s{soff+3}, s{soff+2}")
        for k in range(8): self.q.append((tag, slot, k, emit, N))
        self.pres[tag] = box
    def can(self):
        if not self.q: return False
        tag, slot, k, _, _ = self.q[0]
        if (tag, k) in self.gates: return False
        return self.busy.get(slot) in (None, tag)
    def gate(self, tag, k=0): self.gates.add((tag, k))
    def open(self, tag, k=0): self.gates.discard((tag, k))
    def _sync(self):
        for tag, n in self.issued.items():
            if n == 8 and tag not in self.vm.q: self.landed.add(tag)
    def piece(self, throttle=True):
        tag, slot, k, emit, N = self.q.pop(0)
        if throttle and self.lag is not None and N < 8 and tag[0] in "kv":
            if len(self.vm.q) >= N:
                self.nl += 1
                self.a(f"s_cmp_lg_u32 s{self.lag}, 0\ns_cbranch_scc1 L_lag{self.nl}\ns_waitcnt vmcnt({N-1})"); self.a.label(f"L_lag{self.nl}")
            N = 12
        if throttle and len(self.vm.q) >= N:
            self.a(f"s_waitcnt vmcnt({N-1})"); self.vm.q = self.vm.q[len(self.vm.q) - (N - 1):] if N > 1 else []
        assert len(self.vm.q) < 63
        self.busy[slot] = tag
        emit(k); self.vm.issue(tag); self.issued[tag] = self.issued.get(tag, 0) + 1
        self._sync()
    def pump(self, n=99, throttle=True):
        while n > 0 and self.can():
            self.piece(throttle); n -= 1
    def need(self, tag, fill=True):
        self._sync()
        while tag not in self.landed and self.can() and (fill or self.issued.get(tag, 0) < 8):
            self.piece()
        if tag not in self.landed:
            assert self.issued.get(tag) == 8, tag
            self.vm.wait(tag); self._sync()
    def release(self, tag):
        for s, t in list(self.busy.items()):
            if t == tag: self.busy[s] = None

import itertools
uid = itertools.count()
class Ctx: pass

def cyc(c, n, start, mode=1):
    if c.stamps != mode: return
    c.a("s_memtime s[42:43]\ns_waitcnt lgkmcnt(0)")
    if start: c.a(f"s_mov_b32 s{70+n}, s42")
    else: c.a(f"s_sub_u32 s{70+n}, s42, s{70+n}\ns_add_u32 s{70+n}, s{70+n}, s70")

def stamp(c, n, mode=1):
    if c.stamps != mode and not (c.stamps and n in (1, 2, 19)) and not (c.stamps == 11 and mode == 1): return
    c.a(f"s_memrealtime s[42:43]\ns_waitcnt lgkmcnt(0)\ns_mov_b32 s{70+n}, s42")

def look(r, voff, so, nl):
    if not APOLL: return f"buffer_load_dword v{r}, v{voff}, {sr(SRDW)}, s{so} offen sc1"
    return (f"v_mov_b32 v{r}, 1\ns_mov_b64 exec, {(1<<nl)-1}\nv_mov_b32 v{r}, 0\n"
            f"buffer_atomic_or v{r}, v{voff}, {sr(SRDW)}, s{so} offen sc0 sc1\ns_mov_b64 exec, -1")

def poll(c, name, soff_expr_reg, nl, want, voff):
    a = c.a
    regs = [V_T0, 32, 33, 34][:NPOLL]
    ld = lambda r: look(r, voff, soff_expr_reg, nl)
    a(f"s_mov_b32 s68, {SPIN}")
    if NPOLL > 1:
        a(ld(regs[0]))
        for r in regs[1:-1]: a(f"v_mov_b32 v{r}, 0")
        a(f"s_waitcnt vmcnt(0)\nv_cmp_ne_u32 vcc, {want}, v{regs[0]}\ns_cbranch_vccz L_{name}_x")
    for r in regs[:-1]:
        a(ld(r))
        if PGAP: a(f"s_sleep {PGAP}")
    a.label(f"L_{name}")
    for n, r in enumerate(regs):
        a(ld(regs[n - 1]))
        a(f"s_waitcnt vmcnt({NPOLL-1})")
        a(f"v_cmp_ne_u32 vcc, {want}, v{r}")
        a(f"s_cbranch_vccz L_{name}_x")
    if SLEEP: a(f"s_sleep {SLEEP}")
    a(f"s_sub_u32 s68, s68, 1\ns_cbranch_scc0 L_{name}")
    a.label(f"L_{name}_x")
    c.vm.q = ["poll"] * (NPOLL - 1); c.st._sync()

V_CK, V_CA = 34, 35
def ck_issue(c, kind, arg):
    a = c.a
    if kind == "dbg":
        a(f"v_and_b32 v{V_CA}, 7, v{V_LANE}\nv_lshlrev_b32 v{V_CA}, 5, v{V_CA}")
        ld = f"global_load_dword v{V_CK}, v{V_CA}, s[{P_DBG}:{P_DBG+1}] sc1"
        cmp_ = f"v_cmp_gt_u32 vcc, 32, v{V_CK}"
    else:
        so, nl, sh = arg
        a(f"v_and_b32 v{V_CA}, {nl-1}, v{V_LANE}\nv_lshlrev_b32 v{V_CA}, {sh}, v{V_CA}")
        ld = look(V_CK, V_CA, so, nl) if ACK else f"buffer_load_dword v{V_CK}, v{V_CA}, {sr(SRDW)}, s{so} offen sc1"
        cmp_ = f"v_cmp_ne_u32 vcc, 1, v{V_CK}"
    a(ld); c.vm.issue("ck"); c.ck = (ld, cmp_)
def ck_verify(c, name, idle=()):
    a = c.a; ld, cmp_ = c.ck
    if "ck" in c.vm.q: c.vm.wait("ck")
    c.st._sync()
    if idle:
        a(f"{cmp_}\ns_cbranch_vccz L_{name}_x\n{ld}\ns_waitcnt vmcnt(0)")
        for hint in idle:
            a(f"{cmp_}\ns_cbranch_vccz L_{name}_x\n{ld}\n{hint}\ns_waitcnt vmcnt(1)")
    a(f"s_mov_b32 s68, {SPIN}")
    a.label(f"L_{name}")
    a(f"{cmp_}\ns_cbranch_vccz L_{name}_x")
    if SLEEP: a(f"s_sleep {SLEEP}")
    a(f"{ld}\ns_sub_u32 s68, s68, 1\ns_waitcnt vmcnt(0)\ns_cbranch_scc0 L_{name}")
    a.label(f"L_{name}_x")

def park2(c, tags, hook=None):
    a, st = c.a, c.st
    for t in range(8):
        st.need(tags[t])
        slot = [s for s, g in st.busy.items() if g == tags[t]][0]
        for s in range(8):
            a(f"ds_read_b128 {ar(32*t+4*s)}, v{V_KR+s} offset:{slot*8192}")
        a("s_waitcnt lgkmcnt(0)")
        st.release(tags[t])
        stamp(c, 3 + t, 8)
        if hook: hook(t)

V_SH = 104
V_SH0, V_SH1 = 10, 14
def finish_max(a, M, T, sh):
    a(f"""v_mov_b32 v{T}, v{M}
    v_permlane32_swap_b32 v{M}, v{T}
    v_max_f32 v{M}, v{M}, v{T}
    v_mul_f32 v{M}, -0.5, v{M}
    v_cvt_pk_bf16_f32 v{T}, v{M}, v{M}
    v_lshlrev_b32 v{T}, 16, v{T}
    v_sub_f32 v{M}, v{M}, v{T}
    v_cvt_pk_bf16_f32 v{sh}, v{T}, v{M}
    v_and_b32 v{M}, 0xffff0000, v{sh}
    v_add_f32 v{M}, v{M}, v{T}
    v_mul_f32 v{M}, -2.0, v{M}
    v_mov_b32 v{sh+1}, 0
    v_mov_b32 v{sh+2}, 0
    v_mov_b32 v{sh+3}, 0""")
V_SEL = 26
def set_ones(a):
    for k in range(4): a(f"v_mov_b32 v{V_ONE+k}, 0x3f803f80")
    a(f"""v_lshrrev_b32 v{V_SEL}, 4, v{V_LANE}
    v_xor_b32 v{V_SEL}, v{V_SEL}, v{V_LANE}
    v_and_b32 v{V_SEL}, 1, v{V_SEL}
    v_add_u32 v{V_SEL}, -1, v{V_SEL}
    v_and_b32 v{V_SEL}, 0x3f803f80, v{V_SEL}
    v_mov_b32 v{V_SEL+1}, v{V_SEL}
    v_mov_b32 v{V_SEL+2}, v{V_SEL}
    v_mov_b32 v{V_SEL+3}, v{V_SEL}""")
def rowsum(L, P, first):
    return f"v_mfma_f32_16x16x32_bf16 {ar(L)}, {vr(V_SEL)}, {vr(P)}, {'0' if first else ar(L)}"
def shift(S, sh): return f"v_mfma_f32_32x32x16_bf16 {S}, {vr(V_ONE)}, {vr(sh)}, {S}"

def scores2(c, npump=1):
    a, st = c.a, c.st
    pend = []
    for t in range(8):
        for s in range(8):
            cc = "0" if s == 0 else vr(V_S + 16 * t, 16)
            a(f"v_mfma_f32_32x32x16_bf16 {vr(V_S+16*t,16)}, {ar(32*t+4*s)}, {vr(V_Q+4*s)}, {cc}")
            if s >= 4:
                for _ in range(2):
                    if pend: a(pend.pop(0))
            if s == 0 or (s == 2 and npump > 1): st.pump(1)
        b = V_S + 16 * t
        if t == 0:
            pend = [f"v_max3_f32 v{V_M}, v{b}, v{b+1}, v{b+2}"]
            pend += [f"v_max3_f32 v{V_M}, v{V_M}, v{b+i}, v{b+i+1}" for i in range(3, 15, 2)]
            pend += [f"v_max_f32 v{V_M}, v{V_M}, v{b+15}"]
        else:
            pend = [f"v_max3_f32 v{V_M}, v{V_M}, v{b+i}, v{b+i+1}" for i in range(0, 16, 2)]
    while pend: a(pend.pop(0))
    finish_max(a, V_M, V_MC, V_SH)

class LagScores:
    def __init__(self, c): self.c = c; self.pend = []
    def tile(self, t):
        a, st, pend = self.c.a, self.c.st, self.pend
        for s in range(8):
            cc = "0" if s == 0 else vr(V_S + 16 * t, 16)
            a(f"v_mfma_f32_32x32x16_bf16 {vr(V_S+16*t,16)}, {ar(32*t+4*s)}, {vr(V_Q+4*s)}, {cc}")
            if s >= 4:
                for _ in range(2):
                    if pend: a(pend.pop(0))
            if s in (0, 2): st.pump(1)
        b = V_S + 16 * t
        if t == 0:
            pend += [f"v_max3_f32 v{V_M}, v{b}, v{b+1}, v{b+2}"]
            pend += [f"v_max3_f32 v{V_M}, v{V_M}, v{b+i}, v{b+i+1}" for i in range(3, 15, 2)]
            pend += [f"v_max_f32 v{V_M}, v{V_M}, v{b+15}"]
        else:
            pend += [f"v_max3_f32 v{V_M}, v{V_M}, v{b+i}, v{b+i+1}" for i in range(0, 16, 2)]
    def finish(self):
        for l in self.pend: self.c.a(l)
        finish_max(self.c.a, V_M, V_MC, V_SH)

def sm_lines(b):
    out = [f"v_exp_f32 v{b+i}, v{b+i}" for i in range(16)]
    out += [f"v_cvt_pk_bf16_f32 v{b+k}, v{b+2*k}, v{b+2*k+1}" for k in range(8)]
    return out

def pv2(c, tags, last_pump=False, hold_last=True, hook=None, last=None, epi=None):
    a, st = c.a, c.st
    set_ones(a)
    a(shift(vr(V_S, 16), V_SH)); a(shift(vr(V_S + 16, 16), V_SH))
    for l in sm_lines(V_S): a(l)
    for t in range(8):
        if t < 6: a(shift(vr(V_S + 16 * (t + 2), 16), V_SH))
        fin = t == 7 and epi
        b = V_S + 16 * t
        if fin:
            a(rowsum(A_L, b, False)); a(rowsum(A_L, b + 4, False)); epi.do("addr"); epi.do("stats")
        st.need(tags[t], fill=False)
        if t == 7 and last: last()
        slot = [s for s, g in st.busy.items() if g == tags[t]][0]
        for B in ((1, 2, 3, 0) if fin else range(4)):
            for l in v_reads(V_F, slot)[4 * B:4 * B + 4]: a(l)
        nxt = sm_lines(V_S + 16 * (t + 1)) if t < 7 else []
        for s in range(0 if fin else 2):
            a(rowsum(A_L, b + 4 * s, t == 0 and s == 0))
            for _ in range(2):
                if nxt: a(nxt.pop(0))
        for n, B in enumerate((1, 2, 3, 0) if fin else range(4)):
            for s in range(2):
                if s == 0: a(f"s_waitcnt lgkmcnt({(12, 8, 4, 4)[n] if fin else 12-4*B})")
                cc = "0" if (t == 0 and s == 0) else ar(A_O + 16 * B, 16)
                a(f"v_mfma_f32_32x32x16_bf16 {ar(A_O+16*B,16)}, {vr(V_F+8*B+4*s)}, {vr(b+4*s)}, {cc}")
                for _ in range(3):
                    if nxt: a(nxt.pop(0))
                if t < 7 or last_pump: st.pump(1)
            if fin and n >= 2: epi.do(n - 1)
        while nxt: a(nxt.pop(0))
        if not (hold_last and t == 7): st.release(tags[t])
        stamp(c, 3 + t, 4); stamp(c, 3 + t, 10)
        if hook: hook(t)

LQ_ORDER = list(range(8))
LQ_P, LQ_RAW, LQ_SH = 104, 112, V_Q
def lq_s(t):
    i = LQ_ORDER.index(t)
    return ("v", LQ_RAW) if i == 0 else ("a", 32 * LQ_ORDER[i - 1])
def lq_o(B): return ar((16, 48, 80, 144)[B], 16)
LQ_L = 176
def v_reads(dst, slot):
    out = []
    for B in range(4):
        for s in range(2):
            o = slot * 8192 + 16 * s * 256
            out.append(f"ds_read_b64_tr_b16 {vr(dst+8*B+4*s,2)}, v{V_TV+B} offset:{o}")
            out.append(f"ds_read_b64_tr_b16 {vr(dst+8*B+4*s+2,2)}, v{V_TV+B} offset:{o+8*256}")
    return out
def lq_park_v(c, tags, npark, hook=None):
    a, st = c.a, c.st
    for t in range(npark):
        st.need(tags[t])
        for l in v_reads(V_S + 32 * t, t): a(l)
        a("s_waitcnt lgkmcnt(0)")
        st.release(tags[t])
        stamp(c, 11 + t, 8)
        if hook: hook(t)
def lq_scores(c, npump):
    a, st = c.a, c.st
    pend = []; T = V_F
    for i, t in enumerate(LQ_ORDER):
        f, b = lq_s(t); S = f"{f}[{b}:{b+15}]"
        for s in range(8):
            a(f"v_mfma_f32_32x32x16_bf16 {S}, {ar(32*t+4*s)}, {vr(V_Q+4*s)}, {'0' if s == 0 else S}")
            if s >= 2:
                for _ in range(4):
                    if pend: a(pend.pop(0))
            if s == 0 or (s == 1 and npump > 1): st.pump(1)
        if i == 0:
            pend = [f"v_max3_f32 v{V_M}, v{b}, v{b+1}, v{b+2}"] + [f"v_max3_f32 v{V_M}, v{V_M}, v{b+k}, v{b+k+1}" for k in range(3, 15, 2)] + [f"v_max_f32 v{V_M}, v{V_M}, v{b+15}"]
        else:
            pend = [f"v_accvgpr_read_b32 v{T+k}, a{b+k}" for k in range(16)] + [f"v_max3_f32 v{V_M}, v{V_M}, v{T+k}, v{T+k+1}" for k in range(0, 16, 2)]
    while pend: a(pend.pop(0))
    finish_max(a, V_M, V_MC, LQ_SH)
def lq_pv(c, tags, npark, hook=None, last=None, at=7):
    a, st = c.a, c.st
    set_ones(a)
    def sh(i):
        f, b = lq_s(i); a(shift(f"{f}[{b}:{b+15}]", LQ_SH))
    def ex(i):
        f, b = lq_s(i)
        out = [] if f == "v" else [f"v_accvgpr_read_b32 v{LQ_RAW+k}, a{b+k}" for k in range(16)]
        return out + [f"v_exp_f32 v{LQ_RAW+k}, v{LQ_RAW+k}" for k in range(16)]
    pk = [f"v_cvt_pk_bf16_f32 v{LQ_P+k}, v{LQ_RAW+2*k}, v{LQ_RAW+2*k+1}" for k in range(8)]
    sh(0); sh(1)
    for l in ex(0) + pk: a(l)
    for t in range(8):
        if t < 6: sh(t + 2)
        ring = t >= npark
        if ring:
            st.need(tags[t], fill=False)
            if t >= at and last: last(t)
            for l in v_reads(V_F, t & 3): a(l)
        nxt = ex(t + 1) if t < 7 else []
        def fill(n):
            for _ in range(n):
                if nxt: a(nxt.pop(0))
        fr = V_F if ring else V_S + 32 * t
        for s in range(2):
            a(rowsum(LQ_L, LQ_P + 4 * s, t == 0 and s == 0)); fill(2)
        for B in range(4):
            if ring: a(f"s_waitcnt lgkmcnt({12-4*B})")
            for s in range(2):
                a(f"v_mfma_f32_32x32x16_bf16 {lq_o(B)}, {vr(fr+8*B+4*s)}, {vr(LQ_P+4*s)}, {'0' if t == 0 and s == 0 else lq_o(B)}")
                st.pump(1); fill(4)
        if ring and t != 7: st.release(tags[t])
        fill(99)
        if t < 7:
            for l in pk: a(l)
        stamp(c, 3 + t, 4)
        if hook: hook(t)

S_DLT = 49
class Aim:
    def __init__(self, a): self.a = a; self.scr = set()
    def __call__(self, reg, slot):
        if slot == 4 and reg not in self.scr:
            self.a(f"v_add_u32 v{reg}, s{S_DLT}, v{reg}"); self.scr.add(reg)
        if slot != 4 and reg in self.scr:
            self.a(f"v_subrev_u32 v{reg}, s{S_DLT}, v{reg}"); self.scr.discard(reg)
        return 0 if slot == 4 else slot * 8192

A_Q1, A_S1, A_L1 = 96, 128, 80
V_M1, V_MC1, V_P1 = 34, 35, 104
def o1(B): return vr(V_Q + 16 * B, 16) if B < 2 else ar(96 + 16 * (B - 2), 16)

def gqa_k(c, tags, slots, hook=None):
    a, st = c.a, c.st
    pend = []
    aim = Aim(a)
    def rd(t, s): return f"ds_read_b128 {vr(V_F+4*s)}, v{V_KR+s} offset:{aim(V_KR+s, slots[t])}"
    st.need(tags[0], fill=False)
    for s in range(8): a(rd(0, s))
    for t in range(8):
        if t < 7: st.need(tags[t + 1], fill=False)
        for s in range(8):
            if t == 0: a(f"s_waitcnt lgkmcnt(7)")
            elif t == 7: a(f"s_waitcnt lgkmcnt({7-s})") if s in (0, 2, 4, 6, 7) else None
            elif s in (0, 2, 4, 6): a("s_waitcnt lgkmcnt(6)")
            if t == 7 and s in (0, 2, 4, 6): a.lines[-1] = f"s_waitcnt lgkmcnt({6-s})"
            if t == 7 and s == 7: a.lines.pop()
            if s == 7 and t: st.release(tags[t])
            if s == 7 and t == 0: st.release(tags[0])
            c0 = "0" if s == 0 else vr(V_S + 16 * t, 16)
            c1 = "0" if s == 0 else ar(A_S1 + 16 * t, 16)
            a(f"v_mfma_f32_32x32x16_bf16 {vr(V_S+16*t,16)}, {vr(V_F+4*s)}, {vr(V_Q+4*s)}, {c0}")
            for _ in range(3):
                if pend and s >= 2: a(pend.pop(0))
            a(f"v_mfma_f32_32x32x16_bf16 {ar(A_S1+16*t,16)}, {vr(V_F+4*s)}, {ar(A_Q1+4*s)}, {c1}")
            if t < 7: a(rd(t + 1, s))
            for _ in range(3):
                if pend and s >= 2: a(pend.pop(0))
            st.pump(2 if t < KP else 1)
        while pend: a(pend.pop(0))
        if hook: hook(t)
        stamp(c, 3 + t, 5)
        if t == 1: stamp(c, 3, 7); cyc(c, 5, True, 7)
        if t == 4: stamp(c, 4, 7); cyc(c, 5, False, 7)
        b = V_S + 16 * t
        def mx(M, b):
            if t == 0:
                return ([f"v_max3_f32 v{M}, v{b}, v{b+1}, v{b+2}"] + [f"v_max3_f32 v{M}, v{M}, v{b+i}, v{b+i+1}" for i in range(3, 15, 2)]
                        + [f"v_max_f32 v{M}, v{M}, v{b+15}"])
            return [f"v_max3_f32 v{M}, v{M}, v{b+i}, v{b+i+1}" for i in range(0, 16, 2)]
        pend = mx(V_M, b) + [f"v_accvgpr_read_b32 v{V_P1+i}, a{A_S1+16*t+i}" for i in range(16)] + mx(V_M1, V_P1)
    while pend: a(pend.pop(0))
    finish_max(a, V_M, V_MC, V_SH0); finish_max(a, V_M1, V_MC1, V_SH1)

def gqa_v(c, tags, slots, hold, last=None, hook=None):
    a, st = c.a, c.st
    PB = (V_P1, V_P1 + 8); C = V_P1 + 16
    def raw(t, i): return PB[t & 1] + i if i < 8 else C + i - 8
    def sm1(t):
        rd_ = [f"v_accvgpr_read_b32 v{raw(t,i)}, a{A_S1+16*t+i}" for i in range(16)]
        ex = [f"v_exp_f32 v{raw(t,i)}, v{raw(t,i)}" for i in range(16)]
        pk = [f"v_cvt_pk_bf16_f32 v{PB[t&1]+k}, v{raw(t,2*k)}, v{raw(t,2*k+1)}" for k in range(8)]
        return rd_, ex + pk
    def sh(t): return [shift(vr(V_S + 16 * t, 16), V_SH0), shift(ar(A_S1 + 16 * t, 16), V_SH1)]
    aim = Aim(a)
    def rd(t, B): return v_reads(V_F, aim(V_TV + B, slots[t]) // 8192)[4 * B:4 * B + 4]
    for l in sh(0) + sh(1): a(l)
    st.need(tags[0], fill=False)
    for B in range(4):
        for l in rd(0, B): a(l)
    r0, e0 = sm1(0)
    for l in r0 + sm_lines(V_S) + e0: a(l)
    for t in range(8):
        if t < 7: st.need(tags[t + 1], fill=False)
        if t < 7:
            r1, e1 = sm1(t + 1); nxt = r1 + sm_lines(V_S + 16 * (t + 1)) + e1
        else: nxt = []
        b = V_S + 16 * t; P1 = PB[t & 1]
        def fill(budget):
            while nxt and budget >= (8 if nxt[0].startswith("v_exp") else 4) - 2:
                budget -= 8 if nxt[0].startswith("v_exp") else 4
                a(nxt.pop(0))
        extra = [rowsum(A_L, b, t == 0), rowsum(A_L1, P1, t == 0), rowsum(A_L, b + 4, False), rowsum(A_L1, P1 + 4, False)]
        shf = sh(t + 2)[::-1] if t < 6 else []
        order = (1, 2, 3, 0) if t == 7 else (0, 1, 2, 3)
        G = GAP
        if t == 7 and last:
            while extra: a(extra.pop(0))
            last(-1)
        for n, B in enumerate(order):
            if t < 7: a("s_waitcnt lgkmcnt(12)")
            elif n == 0: a("s_waitcnt lgkmcnt(0)")
            if (B == 3 or t == 7) and tags[t] not in hold: st.release(tags[t])
            for s in range(2):
                z = t == 0 and s == 0
                a(f"v_mfma_f32_32x32x16_bf16 {ar(A_O+16*B,16)}, {vr(V_F+8*B+4*s)}, {vr(b+4*s)}, {'0' if z else ar(A_O+16*B,16)}")
                n0 = len(a.lines); st.pump(2 if t < 5 else 1); fill(G - 5 * (len(a.lines) - n0))
                a(f"v_mfma_f32_32x32x16_bf16 {o1(B)}, {vr(V_F+8*B+4*s)}, {vr(P1+4*s)}, {'0' if z else o1(B)}")
                if s == 1 and t < 7:
                    for l in rd(t + 1, B): a(l)
                    fill(G - 16)
                else: fill(G)
            if extra: a(extra.pop(0)); fill(G - 20)
            if shf and B in (1, 3): a(shf.pop(0)); fill(G)
            if t == 7 and last: last(n)
        fill(9999)
        if hook: hook(t)
        stamp(c, 11 + t, 5); stamp(c, 3 + t, 6); stamp(c, 3 + t, 10)
        if t == 1: stamp(c, 6, 7); cyc(c, 8, True, 7)
        if t == 4: stamp(c, 7, 7); cyc(c, 8, False, 7)

class Epi:
    def __init__(self, c, heads, t=V_F + 24, sv=(V_F, V_F + 8)):
        self.c, self.heads, self.t, self.sv = c, heads, t, sv
        self.todo = {"addr", "stats", 1, 2, 3}
    @staticmethod
    def loc(spec, ring, scr):
        base, off = spec
        return (scr, off) if base == "scr" else (ring, base * 8192 + off)
    def do(self, what):
        if what not in self.todo: return
        self.todo.discard(what)
        a, t = self.c.a, self.t
        if what == "addr":
            a(f"s_lshl_b32 s{S_TMP}, s{S_WAVE}, 13\ns_add_u32 s{S_TMP}, s{S_TMP}, {LDS_SCR}")
            a(f"v_add_u32 v{t}, s{S_RING}, v{V_L16}\nv_add_u32 v{t+1}, s{S_TMP}, v{V_L16}")
            for B in (1, 2, 3):
                a(f"s_sub_u32 s{S_TMP}, s{S_WAVE}, {B}\ns_and_b32 s{S_TMP}, s{S_TMP}, 3")
                a(f"s_lshl_b32 s7, s{S_TMP}, 13\ns_add_u32 s7, s7, {LDS_SCR}\ns_lshl_b32 s{S_TMP}, s{S_TMP}, 15")
                a(f"v_add_u32 v{t+2*B}, s{S_TMP}, v{V_L16}\nv_add_u32 v{t+2*B+1}, s7, v{V_L16}")
        elif what == "stats":
            a("s_mov_b32 vcc_lo, 0xffff0000\ns_mov_b32 vcc_hi, 0xffff0000")
            for h, r in zip(self.heads, self.sv):
                a(f"v_accvgpr_read_b32 v{r}, a{h['L']}\nv_accvgpr_read_b32 v{r+1}, a{h['L']+1}")
                a(f"v_cndmask_b32 v{r+1}, v{r}, v{r+1}, vcc\nv_mov_b32 v{r}, v{h['M']}")
                v, o = self.loc(h["st"], t, t + 1)
                a(f"ds_write_b64 v{v}, {vr(r,2)} offset:{o}")
        else:
            B = what
            for h in self.heads:
                txt = h["acc"](B); f, lo = txt[0], int(txt[2:txt.index(":")])
                v, o = self.loc((h["slot"], 4096 * (B - 1)) if B < 3 else h["b3"], t, t + 1)
                for g in range(4): a(f"ds_write_b128 v{v}, {f}[{lo+4*g}:{lo+4*g+3}] offset:{o+1024*g}")

def o_epi(c, heads, mid=None, idle=None, freed=None, epi=None):
    a = c.a
    epi = epi or Epi(c, heads)
    t, loc = epi.t, epi.loc
    for x in ("addr", "stats", 1, 2, 3): epi.do(x)
    for n, h in enumerate(heads):
        own = h["acc"](0); lo = int(own[2:own.index(":")])
        for i in range(16):
            a(f"v_accvgpr_read_b32 v{V_S+64*n+i}, a{lo+i}" if own[0] == "a" else f"v_mov_b32 v{V_S+64*n+i}, v{lo+i}")
        if epi.sv[n] != V_F + 8 * n: a(f"v_mov_b32 v{V_F+8*n}, v{epi.sv[n]}\nv_mov_b32 v{V_F+8*n+1}, v{epi.sv[n]+1}")
    md = 4 if len(heads) == 1 else 6
    if idle: idle()
    a("s_waitcnt lgkmcnt(0)"); stamp(c, 11, md); a("s_barrier"); stamp(c, 12, md)
    def reads(n):
        h = heads[n]; out = []
        for B in (1, 2, 3):
            v, o = loc((h["slot"], 4096 * (B - 1)) if B < 3 else h["b3"], t + 2 * B, t + 2 * B + 1)
            out.append([f"ds_read_b128 {vr(V_S+64*n+16*B+4*g)}, v{v} offset:{o+1024*g}" for g in range(4)])
        return out
    for n, h in enumerate(heads):
        for B in (1, 2, 3):
            v, o = loc(h["st"], t + 2 * B, t + 2 * B + 1)
            a(f"ds_read_b64 {vr(V_F+8*n+2*B,2)}, v{v} offset:{o}")
    two = len(heads) == 2
    r0 = reads(0); r1 = reads(1) if two else [[], [], []]
    for n, h in enumerate(heads):
        if n == 0:
            for l in r0[0] + r0[1]: a(l)
            if mid: mid()
            a("s_waitcnt lgkmcnt(8)")
            for l in r0[2]: a(l)
        m = [V_F + 8 * n + 2 * u for u in range(4)]; l = [x + 1 for x in m]
        M = V_F + 16; L = V_F + 17; f = [V_F + 18 + u for u in range(4)]
        a(f"v_max3_f32 v{M}, v{m[0]}, v{m[1]}, v{m[2]}\nv_max_f32 v{M}, v{M}, v{m[3]}")
        for u in range(4): a(f"v_sub_f32 v{f[u]}, v{m[u]}, v{M}")
        for u in range(4): a(f"v_exp_f32 v{f[u]}, v{f[u]}")
        a(f"v_mul_f32 v{L}, v{f[0]}, v{l[0]}")
        for u in range(1, 4): a(f"v_fmac_f32 v{L}, v{f[u]}, v{l[u]}")
        a(f"v_rcp_f32 v{L}, v{L}")
        for u in range(4): a(f"v_mul_f32 v{f[u]}, v{f[u]}, v{L}")
        S = V_S + 64 * n
        def sel(r): return ("op_sel_hi:[1,0", vr(r, 2)) if r % 2 == 0 else ("op_sel:[0,1", vr(r - 1, 2))
        md_, fr = sel(f[0])
        for i in range(0, 16, 2): a(f"v_pk_mul_f32 {vr(S+i,2)}, {vr(S+i,2)}, {fr} {md_}]")
        for B in (1, 2, 3):
            a(f"s_waitcnt lgkmcnt({8 if (two and n == 0) else 12-4*B})")
            if n == 0:
                for l in r1[B - 1]: a(l)
            md_, fr = sel(f[B])
            tail = ",1]" if md_.startswith("op_sel_hi") else ",0]"
            for i in range(0, 16, 2): a(f"v_pk_fma_f32 {vr(S+i,2)}, {vr(S+16*B+i,2)}, {fr}, {vr(S+i,2)} {md_}{tail}")
        if n == len(heads) - 1:
            stamp(c, 13, md); a("s_barrier"); stamp(c, 14, md)
            if freed: freed()
        for k in range(8): a(f"v_cvt_pk_bf16_f32 v{S+k}, v{S+2*k}, v{S+2*k+1}")
        a(f"s_lshl_b32 s{S_TMP}, s{S_WAVE}, 11\ns_add_u32 s{S_TMP}, s{S_TMP}, s{h['dst']}")
        a(f"buffer_store_dwordx4 {vr(S)}, v{V_L16}, {sr(SRDW)}, s{S_TMP} offen sc1")
        a(f"buffer_store_dwordx4 {vr(S+4)}, v{V_L16}, {sr(SRDW)}, s{S_TMP} offen offset:1024 sc1")
        c.vm.issue("ost", 2)
    stamp(c, 15, md)

def flag_store(c, soff, nl=1):
    a = c.a
    a(f"v_mov_b32 v{V_T0}, 1\nv_lshlrev_b32 v{V_F+31}, {FW}, v{V_LANE}")
    a(f"s_mov_b64 exec, {(1<<nl)-1}")
    a(f"buffer_store_dword v{V_T0}, v{V_F+31}, {sr(SRDW)}, s{soff} offen sc1")
    a("s_mov_b64 exec, -1")
    c.vm.issue("flag")

def q_dma(c, soff, lds_off, tag):
    a = c.a
    a(f"s_lshl_b32 s{S_TMP}, s{S_WAVE}, 13\ns_add_u32 m0, s{S_TMP}, {LDS_SCR+lds_off}")
    a(f"s_lshl_b32 s{S_TMP}, s{S_WAVE}, 11\ns_add_u32 s{S_TMP}, s{S_TMP}, s{soff}")
    for k in range(2):
        a(f"buffer_load_dwordx4 v{V_L16}, {sr(SRDW)}, s{S_TMP} offen offset:{1024*k} sc1 lds")
    c.vm.issue(tag, 2); c.st.m0_dirty = True
def q_read(c, lds_off, dst):
    a = c.a
    a(f"v_add_u32 v{V_CA}, {LDS_SCR}, v{V_L16}")
    for s in range(8): a(f"ds_read_b128 {dst(s)}, v{V_CA} offset:{(s>>1)*8192+lds_off+(s&1)*1024}")

S_J, S_CC, S_U = 50, 51, 52
S_A = 56
S_B = 60
S_QB, S_OB, S_FQB, S_FOB = 64, 65, 66, 67
S_X0 = 92

def code_touch(a, first, last, est, share, name):
    k = -(-est // (128 * 64))
    a(f"s_getpc_b64 s[48:49]")
    a.label(f"L_{name}")
    a(f"s_add_u32 s48, s48, {first}-L_{name}\ns_addc_u32 s49, s49, 0")
    a(f"s_lshl_b32 s7, s{S_U}, 2\ns_add_u32 s7, s7, s{S_WAVE}\ns_mul_i32 s7, s7, {128*k}")
    a(f"v_lshl_add_u32 v{V_F+29}, v{V_LANE}, 7, s7")
    a(f"v_min_u32 v{V_F+29}, {last}-{first}-4, v{V_F+29}")
    a(f"s_mov_b64 exec, {(1<<k)-1}\nglobal_load_dword v{V_T0}, v{V_F+29}, s[48:49]\ns_mov_b64 exec, -1")
    a.label(f"L_{name}_x")

DOC = """; One persistent workgroup per CU (256 x 4 waves, 512 registers per wave, 160 KB LDS); generated by gen/gen_v2.py.
; j = id & 7, c = id >> 3.  Every workgroup owns one MHA task (batch c>>2, head 4j + (c&3)) plus a role:
;   role 1 (c < 16): a 128 x 128 tile of the Q projection first, then its MHA task, then a tile of out_B
;   role 2 (c >= 16): parks K / V of its MHA task until Q arrives, then two GQA heads sharing one K/V, then a tile of out_A
; All operands stream HBM -> LDS by LDS-DMA through wave-private rings of 8-KB tiles (swizzled for conflict-free
; ds_read_b128 / ds_read_b64_tr_b16).  S^T = K Q^T keeps one query per lane; each wave takes the true max over its
; tiles are summed in fp32 by the workgroups of the same column block.
; Hand-offs (Q, O, partial tiles) go through d_ws: write-through stores, wait, flag word.  Flag words are cleared by
; their writers at entry; d_debug counts the workgroups that have done so and is checked before any flag is read.
"""

class PerTile:
    def __init__(self, v): self.v = [int(x) for x in str(v).split(",")]
    def __getitem__(self, t): return self.v[min(t, len(self.v) - 1)]

def build(stamps=0, leak='', rbit=4, shints='', rk=0, rkt=0, ofl='sc1', pfl='sc1', g1first=1, g2first=2, hints='', qsplit='0123', qpos=1, qseq='1,8,4', ilv=1, g2wo='5,6', xmap=1, five=0, kp=3, wog=0, ack=1, ovl=1, apoll=1, fack=0, pollfirst=0, tsplit='01,2,3', onepoll=1, prew=0, npoll=1, pgap=0, wo1mid=1, outfl='', n_w2=6, n_wpre=0, lag=1, gap=28, q0=3, hack='', rotkv=0, tlb=0, fs=8, fw=2, sleep=0, pf=7, n_early=8, kvpf=0, qpf='', qthr=0, rotq=2, rota=2, kag=6, nog1=0, perm=0, npark=4, g1wo=0, va1=5, n_qpre=0, n_spump=2, n_look=8, n_x=16, n_wq=16, n_kva=32, n_vva=32, n_g2k=16, n_g2v=16, n_g1k='16,4,4,4,16', n_g1v=16, n_wo=16, fl_x="", fl_wq="", fl_kva="", fl_wo="", fl_kv="nt", rot=1):
    global FW, APOLL, ACK, KP; KP = int(kp); ACK = int(ack); FW = int(fw); APOLL = int(apoll)
    global FS, SLEEP, GAP, NPOLL, PGAP; NPOLL = int(npoll); PGAP = int(pgap); GAP = int(gap); FS = int(fs); SLEEP = int(sleep)
    stamps = int(stamps); prew = int(prew); n_w2 = int(n_w2); q0 = int(q0); pf = int(pf); n_early = int(n_early); kvpf = int(kvpf); n_qpre = int(n_qpre); npark = int(npark); g1wo = int(g1wo); va1 = int(va1); n_spump = int(n_spump); n_look = int(n_look);  n_g2k, n_g2v, n_g1k, n_g1v, n_wo, n_x, n_wq, n_kva, n_vva = map(PerTile, (n_g2k, n_g2v, n_g1k, n_g1v, n_wo, n_x, n_wq, n_kva, n_vva)); rot = int(rot)
    a = Asm()
    prologue(a, 256, "L_end")
    if stamps: a("s_memrealtime s[70:71]")
    if int(perm): a(f"s_xor_b32 s2, s2, {int(perm)}")
    if int(rbit) != 4:
        rb = int(rbit) + 3
        a(f"s_bfe_u32 s7, s2, {(1 << 16) | rb}\ns_lshl_b32 s7, s7, 7\ns_lshr_b32 s5, s2, {rb+1}\ns_lshl_b32 s5, s5, {rb}")
        a(f"s_and_b32 s2, s2, {(1 << rb) - 1}\ns_or_b32 s2, s2, s5\ns_or_b32 s2, s2, s7")
    a(f"""s_and_b32 s{S_J}, s2, 7
    s_lshr_b32 s{S_CC}, s2, 3
    s_and_b32 s{S_U}, s{S_CC}, 15
    s_and_b32 s53, s{S_CC}, 3
    s_lshl_b32 s7, s{S_J}, 2
    s_add_u32 s53, s53, s7          ; head of the MHA task
    s_lshr_b32 s54, s{S_CC}, 2      ; batch of the MHA task
    s_lshl_b32 s55, s54, 5
    s_add_u32 s55, s55, s53         ; b*32+h
    s_cmp_lt_u32 s{S_CC}, 16
    s_cbranch_scc1 L_g1""")
    def common():
        if stamps:
            for n in range(1, 20): a(f"s_mov_b32 s{70+n}, s70")
        srd(a, SRDW, P_WS, WS_BYTES)
        a(f"""s_lshl_b32 s{S_QB}, s55, 13
        s_add_u32 s{S_QB}, s{S_QB}, {WS_Q + (2<<20)}
        s_add_u32 s{S_OB}, s{S_QB}, {WS_O - WS_Q}
        s_lshl_b32 s{S_FQB}, s55, 6
        s_add_u32 s{S_FQB}, s{S_FQB}, {WS_FQ + 256*64}
        s_lshl_b32 s{S_FOB}, s54, 3
        s_add_u32 s{S_FOB}, s{S_FOB}, s{S_J}
        s_lshl_b32 s{S_FOB}, s{S_FOB}, {FS}
        s_and_b32 s7, s{S_CC}, 3
        s_lshl_b32 s7, s7, {FW}
        s_add_u32 s{S_FOB}, s{S_FOB}, s7
        s_add_u32 s{S_FOB}, s{S_FOB}, {WS_FO + (64 << FS)}
        s_mov_b32 s{S_C}, {f32(C_SCALE)}""")

    PS = 4096 if int(ilv) else None
    WSH = 10 if int(ilv) else 13
    def mk():
        c = Ctx(); c.a = a; c.vm = VM(a); c.st = Stream(a, c.vm); c.stamps = stamps
        return c
    def kv_offsets():
        a(f"s_lshl_b32 s{S_A}, s55, 18\ns_lshl_b32 s7, s{S_WAVE}, 13\ns_add_u32 s{S_A}, s{S_A}, s7")
    def clear_flags(c, words, name):
        a(f"s_cmp_lg_u32 s{S_WAVE}, 0\ns_cbranch_scc1 L_{name}")
        a(f"v_mov_b32 v{V_T0}, 0")
        for so, nl, sh in words:
            a(f"v_lshlrev_b32 v{V_F+31}, {sh}, v{V_LANE}\ns_mov_b64 exec, {(1<<nl)-1}")
            a(f"buffer_store_dword v{V_T0}, v{V_F+31}, {sr(SRDW)}, s{so} offen sc1\ns_mov_b64 exec, -1")
        a.label(f"L_{name}")
    def count_in(c, name):
        a(f"s_cmp_lg_u32 s{S_WAVE}, 0\ns_cbranch_scc1 L_{name}")
        a(f"s_lshl_b32 s7, s{S_J}, 5\nv_mov_b32 v{V_T0}, 1\nv_mov_b32 v{V_F+31}, s7\ns_mov_b64 exec, 1")
        a(f"global_atomic_add v{V_F+31}, v{V_T0}, s[{P_DBG}:{P_DBG+1}] sc1")
        a("s_mov_b64 exec, -1")
        a.label(f"L_{name}")
    def wait_cleared(c, name):
        a(f"s_mov_b32 s68, {SPIN}\nv_and_b32 v{V_F+31}, 7, v{V_LANE}\nv_lshlrev_b32 v{V_F+31}, 5, v{V_F+31}")
        a.label(f"L_{name}")
        a(f"global_load_dword v{V_T0}, v{V_F+31}, s[{P_DBG}:{P_DBG+1}] sc1")
        a(f"s_sub_u32 s68, s68, 1\ns_cbranch_scc1 L_{name}_x\ns_waitcnt vmcnt(0)")
        a(f"v_cmp_gt_u32 vcc, 32, v{V_T0}\ns_cbranch_vccnz L_{name}")
        a.label(f"L_{name}_x")
        c.vm.q = []; c.st._sync()
    def fp_word():
        a(f"s_xor_b32 s{S_X0}, s{S_CC}, 16          ; c_to")
        a(f"s_lshl_b32 s{S_X0+1}, s{S_X0}, 2\ns_add_u32 s{S_X0+1}, s{S_X0+1}, s{S_WAVE}\ns_lshl_b32 s{S_X0+1}, s{S_X0+1}, {FS}")
        a(f"s_lshl_b32 s7, s{S_J}, {FW}\ns_add_u32 s{S_X0+1}, s{S_X0+1}, s7\ns_add_u32 s{S_X0+1}, s{S_X0+1}, {WS_FP}")
    def add_wo(c, X, wsl=(0, 1, 2, 3)):
        def pre():
            set_vd(a, 2048)
            srd(a, SRD1, P_BWO if X else P_AWO, 0x800000)
            a(f"s_add_u32 s7, s{S_WAVE}, s{S_U}\ns_and_b32 s7, s7, 3")
            a(f"s_lshl_b32 s{S_B+3}, s{S_J}, 2\ns_add_u32 s{S_B+3}, s{S_B+3}, s7\ns_lshl_b32 s{S_B+3}, s{S_B+3}, 18")
            a(f"s_and_b32 s7, s{S_U}, 7\ns_lshl_b32 s7, s7, 8\ns_add_u32 s{S_B+3}, s{S_B+3}, s7")
            a(f"s_lshr_b32 s{S_B+2}, s{S_U}, 3\ns_lshl_b32 s{S_B+2}, s{S_B+2}, 17")
            a(f"s_add_u32 s{S_B}, s{S_B+3}, s{S_B+2}")
        def nx(t):
            return lambda: a(f"s_xor_b32 s7, s{S_B+2}, {(t+1) << 16}\ns_add_u32 s{S_B}, s{S_B+3}, s7") if t < 3 else None
        for t in range(4):
            c.st.add(f"wo{t}", wsl[t], SRD1, S_B, 65536, V_VD, 2048, fl_wo, n_wo[t], pre=pre if t == 0 else None, nxt=nx(t))
    def add_kv(c, nk, nv, first):
        rk = int(rotkv)
        def offs(S):
            a(f"s_lshl_b32 s{S+3}, s55, 18\ns_lshl_b32 s7, s{S_WAVE}, {WSH}\ns_add_u32 s{S+3}, s{S+3}, s7")
            if rk:
                a(f"s_lshr_b32 s7, s{S_J}, {rk-1}\ns_add_u32 s7, s7, s{S_CC}\ns_and_b32 s7, s7, 7\ns_lshl_b32 s{S+2}, s7, 15\ns_add_u32 s{S}, s{S+3}, s{S+2}")
            else: a(f"s_mov_b32 s{S}, s{S+3}")
        def prek():
            set_kd(a, 256, ps=PS); offs(S_A)
            if first: a("s_waitcnt lgkmcnt(0)")
            srd(a, SRD0, P_BK, 0x4000000)
        def prev():
            set_vd(a, 256, ps=PS); srd(a, SRD1, P_BV, 0x4000000); offs(S_B)
        wr = 262144 if rk else None
        for t in range(8): c.st.add(f"k{t}", t & 3, SRD0, S_A, 32768, V_KD, 256, fl_kv, nk[t], pre=prek if t == 0 else None, wrap=wr, ps=PS)
        for t in range(8): c.st.add(f"v{t}", t & 3, SRD1, S_B, 32768, V_VD, 256, fl_kv, nv[t], single=not PS, pre=prev if t == 0 else None, wrap=wr, ps=PS)
    def touch(c, ptr, size, base_asm, step, rs, fl):
        a(base_asm)
        a(f"s_add_u32 s49, s48, {step}")
        a(f"v_lshrrev_b32 v{V_CA}, 1, v{V_LANE}\nv_lshlrev_b32 v{V_CA}, {rs.bit_length()-1}, v{V_CA}")
        a(f"v_and_b32 v{V_T0}, 1, v{V_LANE}\nv_lshl_add_u32 v{V_CA}, v{V_T0}, 7, v{V_CA}")
        srd(a, SRDT, ptr, size)
        for so in (48, 49):
            a(f"buffer_load_dword v{V_T0}, v{V_CA}, {sr(SRDT)}, s{so} offen {fl}")
            c.vm.issue("pf")
    KVA_BASE = (f"s_lshl_b32 s48, s{S_J}, 2\ns_lshr_b32 s7, s{S_U}, 2\ns_add_u32 s48, s48, s7\ns_lshl_b32 s48, s48, 18\n"
                f"s_lshl_b32 s7, s{S_WAVE}, 13\ns_add_u32 s48, s48, s7\n"
                f"s_and_b32 s7, s{S_U}, 3\ns_lshl_b32 s7, s7, 16\ns_add_u32 s48, s48, s7")
    WO_BASE = (f"s_add_u32 s7, s{S_WAVE}, s{S_U}\ns_and_b32 s7, s7, 3\ns_lshl_b32 s48, s{S_J}, 2\ns_add_u32 s48, s48, s7\ns_lshl_b32 s48, s48, 18\n"
               f"s_and_b32 s7, s{S_U}, 7\ns_lshl_b32 s7, s7, 8\ns_add_u32 s48, s48, s7\n"
               f"s_lshr_b32 s7, s{S_U}, 3\ns_lshl_b32 s7, s7, 17\ns_add_u32 s48, s48, s7")
    def get_q(c):
        if "q" in c.vm.q: c.vm.wait("q")
        c.st._sync()
        a("s_barrier")
        q_read(c, 5120, lambda s: vr(V_Q + 4 * s))
        a("s_waitcnt lgkmcnt(0)")
    def mha1(c):
        st = c.st
        ls = LagScores(c)
        plan = {q0: [0, 1]}
        nxt = 2
        for t in range(q0 + 1, 8):
            plan[t] = [u for u in (nxt, nxt + 1) if u <= t] if t < 7 else list(range(nxt, 8))
            nxt += len(plan[t])
        def hook(t):
            if t == q0 - 3: ck_issue(c, "dbg", None)
            if t == q0 - 2: ck_verify(c, "g1clr"); ck_issue(c, "ws", (S_FQB, 1, 2))
            if t == q0 - 1: ck_verify(c, "g1q"); q_dma(c, S_QB, 5120, "q")
            if t == q0:
                get_q(c); stamp(c, 4)
            if t == 5 and pf & 1:
                code_touch(a, "L_g1tail", "L_g2", 16384, 2, "g1pf2")
            for u in plan.get(t, []): ls.tile(u)
        park2(c, [f"k{t}" for t in range(8)], hook)
        stamp(c, 3)
        ls.finish()
        stamp(c, 5)
        for g in range(g1wo, 3): st.gate(f"wo{g}")
        heads = [dict(acc=lambda B: ar(A_O + 16 * B, 16), L=A_L, M=V_M, slot=3, b3=("scr", 0), st=("scr", 4096), dst=S_OB)]
        epi = Epi(c, heads, t=112, sv=(2,)) if int(ovl) else None
        st.lag = None
        def rank(t):
            if not int(rk): return
            if t == int(rkt):
                a(f"s_lshl_b32 s7, s{S_J}, 5\ns_add_u32 s7, s7, 4\nv_mov_b32 v{V_CA}, s7\nv_mov_b32 v{V_CK}, 1\ns_mov_b64 exec, 1")
                a(f"global_atomic_add v{V_CK}, v{V_CA}, v{V_CK}, s[{P_DBG}:{P_DBG+1}] sc0 sc1\ns_mov_b64 exec, -1"); c.vm.issue("rk")
            if t == int(rkt) + 1:
                if "rk" in c.vm.q: c.vm.wait("rk")
                st._sync()
                a(f"v_readfirstlane_b32 s7, v{V_CK}\ns_cmp_ge_u32 s7, {int(rk)}\ns_cselect_b32 s{S_X0+5}, 1, 0"); st.lag = S_X0 + 5
        pv2(c, [f"v{t}" for t in range(8)], last_pump=True, last=lambda: (st.run_pre("wo0"), st.open(f"wo{g1wo}")), epi=epi, hook=rank)
        stamp(c, 6)
        a.label("L_g1tail")
        o_epi(c, heads, epi=epi,
              idle=lambda: tail_setup(c, 1),
              mid=lambda: (early_poll(c), st.open(f"wo{g1wo+1}"), st.pump(8 if int(wo1mid) and int(g1first) == 2 else 0, False)),
              freed=lambda: ([st.open(f"wo{g}") for g in range(3)], freed(c, ["v7"], int(g1first))))
    def mha2(c, pvhook):
        st = c.st
        end = 7 + npark
        def hook(p):
            if p == 1: count_in(c, "g2count")
            if prew:
                if p == 0: prew_setup(c); prew_o(c, S_OB)
                if p == 1:
                    a(f"s_add_u32 s49, s{S_X0+6}, {WS_O}"); prew_o(c, 49)
                    a(f"s_add_u32 s49, s49, 8192"); prew_o(c, 49)
                if 2 <= p < 6: prew_part(c, 2 * p - 4); prew_part(c, 2 * p - 3)
            e = end - int(qpos)
            if p == e - 3: ck_issue(c, "dbg", None)
            if p == e - 2: ck_verify(c, "g2clr")
            if p == e - 1 and not n_qpre: ck_issue(c, "ws", (S_FQB, 1, 2))
            sh_ = dict((int(x.split(":")[0]), x.split(":")[1]) for x in shints.split(",") if x)
            if (p == e - 1 and hints) or (sh_ and p == min(sh_) - 1):
                a(f"s_lshl_b32 s48, s{S_J}, 2\ns_lshr_b32 s7, s{S_U}, 2\ns_add_u32 s48, s48, s7\ns_lshl_b32 s48, s48, 3")
                a(f"s_and_b32 s7, s{S_U}, 3\ns_add_u32 s48, s48, s7\ns_lshl_b32 s48, s48, 2\ns_add_u32 s48, s48, s{S_WAVE}\ns_lshl_b32 s48, s48, 13")
                a(f"s_add_u32 s49, s48, 131072\nv_lshlrev_b32 v{V_F+30}, 7, v{V_LANE}\ns_mov_b32 s{SRDT+2}, 0x800000\ns_mov_b32 s{SRDT+3}, 0x20000")
            H = {"k": P_AK, "v": P_AV}
            if p in sh_:
                h = sh_[p]
                a(f"s_mov_b32 s{SRDT}, s{H[h[0]]}\ns_mov_b32 s{SRDT+1}, s{H[h[0]]+1}")
                a(f"buffer_load_dword v{V_T0}, v{V_F+30}, {sr(SRDT)}, s{48+int(h[1])} offen"); c.vm.issue("pf")
            if p == e and int(qpos):
                ck_verify(c, "g2q", [f"s_mov_b32 s{SRDT}, s{H[h[0]]}\ns_mov_b32 s{SRDT+1}, s{H[h[0]]+1}\n"
                                     f"buffer_load_dword v{V_T0}, v{V_F+30}, {sr(SRDT)}, s{48+int(h[1])} offen" for h in hints.split(",") if h])
                q_dma(c, S_QB, 5120, "q")
        park2(c, [f"k{t}" for t in range(8)], hook)
        stamp(c, 1)
        lq_park_v(c, [f"v{t}" for t in range(8)], npark, lambda t: hook(8 + t))
        stamp(c, 15, 8)
        qa, qb, qc = (int(x) for x in str(qseq).split(","))
        if n_qpre:
            st.pump(qa, False); ck_issue(c, "ws", (S_FQB, 1, 2)); st.pump(qb, False)
        if not int(qpos):
            ck_verify(c, "g2q")
            q_dma(c, S_QB, 5120, "q")
            st.pump(qc, False)
        get_q(c)
        stamp(c, 2)
        lq_scores(c, n_spump)
        stamp(c, 3)
        for g in ("ka0", "ka1", "ka2"): st.gate(g)
        st.busy[4] = "v7"
        lq_pv(c, [f"v{t}" for t in range(8)], npark, pvhook, last=lambda t: (st.run_pre("ka0"), st.open(f"ka{t-int(kag)}")), at=int(kag))
        stamp(c, 4)
        o_epi(c, [dict(acc=lq_o, L=LQ_L, M=V_M, slot=3, b3=("scr", 0), st=("scr", 4096), dst=S_OB)],
              mid=lambda: (st.open("ka1"), st.open(f"ka{8-int(kag)}"), st.pump(8, False)))
        st.open("ka2")
    V_MK = 124
    def prew_setup(c):
        t = V_MK - 1
        for k in range(4): a(f"v_mov_b32 v{V_MK+k}, -1")
        a(f"""v_and_b32 v{t}, 15, v{V_LANE}
        v_lshlrev_b32 v{t}, 4, v{t}
        v_lshrrev_b32 v{t-1}, 5, v{V_LANE}
        v_lshl_add_u32 v{t}, v{t-1}, 8, v{t}
        v_bfe_u32 v{t-1}, v{V_LANE}, 4, 1
        v_lshl_add_u32 v{t}, v{t-1}, 15, v{t}
        s_lshl_b32 s48, s{S_X0}, 3
        s_lshl_b32 s7, s{S_WAVE}, 1
        s_add_u32 s48, s48, s7
        s_lshl_b32 s48, s48, 3
        s_add_u32 s48, s48, s{S_J}
        s_lshl_b32 s48, s48, 12
        s_add_u32 s48, s48, {WS_P}""")
    def prew_part(c, p):
        a(f"buffer_store_dwordx4 {vr(V_MK)}, v{V_MK-1}, {sr(SRDW)}, s48 offen offset:{512*p} sc1"); c.vm.issue("mk")
    def prew_o(c, so):
        a(f"s_lshl_b32 s7, s{S_WAVE}, 11\ns_add_u32 s7, s7, s{so}")
        for k in range(2): a(f"buffer_store_dwordx4 {vr(V_MK)}, v{V_L16}, {sr(SRDW)}, s7 offen offset:{1024*k} sc1")
        c.vm.issue("mk", 2)
    V_PA = 11
    def tail_setup(c, X):
        a(f"""s_lshr_b32 s{S_X0+2}, s{S_U}, 3
        s_lshl_b32 s{S_X0+2}, s{S_X0+2}, 2
        s_add_u32 s{S_X0+2}, s{S_X0+2}, s{S_WAVE}
        s_add_u32 s{S_X0+2}, s{S_X0+2}, {8*X}        ; X*8 + batch
        s_lshl_b32 s{S_X0+3}, s{S_X0+2}, 3
        s_add_u32 s{S_X0+3}, s{S_X0+3}, s{S_J}
        s_lshl_b32 s{S_X0+4}, s{S_X0+3}, 15
        s_add_u32 s{S_X0+4}, s{S_X0+4}, {WS_O}       ; O offset
        s_lshl_b32 s{S_X0+3}, s{S_X0+3}, {FS}
        s_add_u32 s{S_X0+3}, s{S_X0+3}, {WS_FO}""")
        for T in range(4): a(f"v_add_u32 v{V_TW+4+T}, 0x10000, v{V_TW+T}")
        t = 10
        a(f"""v_and_b32 v{t}, 15, v{V_LANE}
        v_lshlrev_b32 v{t}, 4, v{t}
        v_lshrrev_b32 v{t+1}, 5, v{V_LANE}
        v_lshl_add_u32 v{t}, v{t+1}, 8, v{t}
        v_bfe_u32 v{t+1}, v{V_LANE}, 4, 1
        v_lshl_add_u32 v{t}, v{t+1}, 15, v{t}
        v_and_b32 v{V_PA}, 3, v{V_LANE}
        v_lshlrev_b32 v{V_PA}, {FW}, v{V_PA}
        s_lshl_b32 s58, s{S_X0}, 3
        s_lshl_b32 s7, s{S_WAVE}, 1
        s_add_u32 s58, s58, s7
        s_lshl_b32 s58, s58, 3
        s_add_u32 s58, s58, s{S_J}
        s_lshl_b32 s58, s58, 12
        s_add_u32 s58, s58, {WS_P}""")
        a(f"s_lshr_b32 s59, s{S_U}, 3\ns_lshl_b32 s59, s59, 12")
        a(f"""s_lshl_b32 s64, s{S_X0}, 2
        s_lshr_b32 s7, s{S_J}, 1
        s_add_u32 s64, s64, s7
        s_lshl_b32 s64, s64, {FS}
        s_add_u32 s64, s64, {WS_FP}               ; flags of the eight producers
        v_and_b32 v15, 7, v{V_LANE}
        v_lshlrev_b32 v15, {FW}, v15
        s_lshl_b32 s53, s{S_X0}, 3
        s_add_u32 s53, s53, s{S_J}
        s_lshl_b32 s53, s53, 15
        s_add_u32 s53, s53, {WS_P}
        s_add_u32 s54, s53, 16384
        v_lshlrev_b32 v13, 4, v0
        s_bfe_u32 s66, s{S_X0}, 0x10003
        s_lshl_b32 s66, s66, 3
        s_add_u32 s66, s66, s{S_J}
        s_lshl_b32 s66, s66, 16
        s_lshr_b32 s7, s{S_X0}, 4
        s_lshl_b32 s7, s7, 11
        s_add_u32 s66, s66, s7
        s_and_b32 s7, s{S_X0}, 7
        s_lshl_b32 s7, s7, 8
        s_add_u32 s66, s66, s7
        v_and_b32 v14, 15, v0
        v_lshlrev_b32 v14, 12, v14
        v_lshrrev_b32 v16, 4, v0
        v_lshl_add_u32 v14, v16, 4, v14""")
        srd(a, SRD0, P_OUT, 0x100000)
    def reduce(c, tag):
        if int(pollfirst):
            a(f"s_cmp_eq_u32 s{S_WAVE}, 0\ns_cbranch_scc1 L_{tag}red_0")
            flag_store(c, S_X0 + 1)
            a(f"s_branch L_{tag}red_x")
            a.label(f"L_{tag}red_0")
            a(look(12, 15, 64, 8))
            flag_store(c, S_X0 + 1)
            a(f"s_lshr_b32 s7, s{S_J}, 1\ns_cmp_eq_u32 s7, 0\ns_cselect_b32 s7, s{S_J}, 8\ns_lshl_b32 s7, s7, {FW}")
            a(f"v_cmp_ne_u32 s[48:49], s7, v15\ns_waitcnt vmcnt(1)\nv_cmp_ne_u32 vcc, 1, v12\ns_and_b64 vcc, vcc, s[48:49]\ns_cbranch_vccz L_{tag}red_x")
        else:
            flag_store(c, S_X0 + 1)
            if int(fack): a("s_waitcnt vmcnt(0)"); stamp(c, 9)
            if int(onepoll): a(f"s_cmp_lg_u32 s{S_WAVE}, 0\ns_cbranch_scc1 L_{tag}red_x")
        poll(c, tag + "red", 64, 8, 1, 15)
        if stamps == 1: a(f"s_sub_u32 s78, {SPIN}, s68\ns_mul_i32 s78, s78, 100\ns_add_u32 s78, s78, s70")
        if int(onepoll): a("s_barrier")
        stamp(c, 16); stamp(c, 17, 10)
        for j in range(8):
            a(f"buffer_load_dwordx4 {vr(V_F+4*j)}, v13, {sr(SRDW)}, s{53+(j>>2)} offen {pfl}")
            if j & 3 < 3: a(f"s_add_u32 s{53+(j>>2)}, s{53+(j>>2)}, 4096")
        acc = V_S
        for j in range(8):
            a(f"s_waitcnt vmcnt({7-j})")
            d = acc if j == 0 else acc + 8
            for k in range(4):
                a(f"v_lshlrev_b32 v{d+2*k}, 16, v{V_F+4*j+k}\nv_and_b32 v{d+2*k+1}, 0xffff0000, v{V_F+4*j+k}")
            if j:
                for k in range(4): a(f"v_pk_add_f32 {vr(acc+2*k,2)}, {vr(acc+2*k,2)}, {vr(d+2*k,2)}")
        for k in range(4): a(f"v_cvt_pk_bf16_f32 v{acc+16+k}, v{acc+2*k}, v{acc+2*k+1}")
        a(f"buffer_store_dwordx4 {vr(acc+16)}, v14, {sr(SRD0)}, s66 offen {outfl}")
        a("s_branch L_red" if stamps else "s_endpgm")
    def early_poll(c):
        a(look(12, V_PA, S_X0 + 3, 4)); c.vm.issue("ep")
    def freed(c, held, first=2):
        for g in held: c.st.release(g)
        c.st.open("wo1", 7); c.st.open("wo1")
        while c.st.issued.get(f"wo{first-1}", 0) < 8: c.st.pump(1, False)
        c.st.pump(int(n_wpre), False)

    def oproj(c, X, tag, words, sbase, wsl=(0, 1, 2, 3), first=2):
        st = c.st
        stamp(c, 10); stamp(c, 11, 10)
        items = sorted([(w, i, s_) for w in range(4) for i in range(4) for s_ in range(2)], key=lambda it: it[1] >= first)
        todo = list(items)
        def fetch():
            if not todo: return
            w, i, s_ = todo.pop(0)
            if i in (0, first) and s_ == 0:
                a(f"s_add_u32 s7, s{S_U}, {w}\ns_and_b32 s7, s7, 3\ns_lshl_b32 s7, s7, 13\ns_add_u32 s7, s7, s{S_X0+4}")
                a(f"s_add_u32 s56, s59, s7\ns_xor_b32 s57, s59, 4096\ns_add_u32 s57, s57, s7")
            a(f"buffer_load_dwordx4 {ar(32*w+8*i+4*s_)}, v{V_L16}, {sr(SRDW)}, s{56+(i>>1)} offen offset:{1024*(2*(i&1)+s_)} {ofl}")
            c.vm.issue(f"of{w}_{i}_{s_}")
        def publish(drain=False):
            a("s_barrier")
            lab = f"L_{tag}pub{next(uid)}"
            a(f"s_cmp_lg_u32 s{S_WAVE}, 0\ns_cbranch_scc1 {lab}")
            q = list(c.vm.q)
            for so, nl in words: flag_store(c, so, nl)
            if drain: a(f"s_waitcnt vmcnt({len(words)})\ns_branch {lab}_j")
            a.label(lab)
            if drain:
                a("s_waitcnt vmcnt(0)"); a.label(lab + "_j"); q = []
            c.vm.q = q
        ops = [it + (T,) for grp in tsplit.split(",") for it in items for T in map(int, grp)]
        cut = next(n for n, op in enumerate(ops) if op[1] >= first) - 4
        done = {max(n for n, op in enumerate(ops) if op[3] == T): T for T in range(4)}
        out = []
        def emit_tile(T):
            return ([f"v_cvt_pk_bf16_f32 v{V_S+64+8*T+k}, v{V_S+16*T+2*k}, v{V_S+16*T+2*k+1}" for k in range(8)]
                    + [f"buffer_store_dwordx4 {vr(V_S+64+4*p)}, v10, {sr(SRDW)}, s58 offen offset:{512*p} sc1" for p in (2 * T, 2 * T + 1)])
        def fill(n):
            if n - 4 in done: out.extend(emit_tile(done.pop(n - 4)))
            for _ in range(2):
                if out: a(out.pop(0))
        seen = set()
        def bf(w, i, s_):
            if (w, i, s_) not in seen:
                seen.add((w, i, s_))
                if f"of{w}_{i}_{s_}" in c.vm.q: c.vm.wait(f"of{w}_{i}_{s_}")
                fetch(); st.pump(2 if len(seen) <= n_w2 else (2 if first == 1 else 1), False)
            return ar(32 * w + 8 * i + 4 * s_)
        if "ep" in c.vm.q: c.vm.wait("ep")
        a(f"v_cmp_ne_u32 vcc, 1, v12\ns_cbranch_vccz L_{tag}early")
        main = a.lines; a.lines = []
        a.label(f"L_{tag}early")
        save = (list(c.vm.q), list(todo), list(st.q), dict(st.busy), set(st.landed), dict(st.issued), st.m0_dirty)
        for _ in range(n_look): fetch()
        c.vm.wait("ost"); st._sync(); assert f"wo{first-1}" in st.landed
        stamp(c, 11); stamp(c, 12, 10)
        publish()
        stamp(c, 12)
        a.label(f"L_{tag}ready")
        qr = list(c.vm.q)
        stamp(c, sbase); stamp(c, 14, 10); cyc(c, 17, True)
        w_ops(a, ops, bf, hi=cut, smap=wsl)
        st.pump(throttle=False); st.need("wo3", fill=False)
        qa, todoa = list(c.vm.q), list(todo)
        a(f"s_branch L_{tag}go")
        side = a.lines; a.lines = main
        c.vm.q, todo[:], st.q, st.busy, st.landed, st.issued, st.m0_dirty = save
        seen.clear()
        early_poll(c)
        c.vm.wait("ost")
        stamp(c, 11); stamp(c, 12, 10)
        publish(drain=True)
        stamp(c, 12)
        a(f"v_cmp_ne_u32 vcc, 1, v12\ns_cbranch_vccz L_{tag}second")
        t0 = list(todo)
        a.lines = side
        a.label(f"L_{tag}second")
        for _ in range(n_look): fetch()
        assert c.vm.q == qr
        a(f"s_branch L_{tag}ready")
        a.lines = main
        c.vm.q = []; todo[:] = t0
        st.pump(throttle=False)
        poll(c, tag + "o", S_X0 + 3, 4, 1, V_PA)
        stamp(c, sbase); stamp(c, 14, 10); cyc(c, 17, True)
        for _ in range(n_look): fetch()
        w_ops(a, ops, bf, hi=cut, smap=wsl)
        assert todo == todoa and c.vm.q[len(c.vm.q)-len(qa):] == qa, (c.vm.q, qa)
        a.label(f"L_{tag}go")
        a("s_barrier")
        w_ops(a, ops, bf, lo=cut, fill=fill, smap=wsl)
        cyc(c, 17, False); stamp(c, 18); stamp(c, 15, 10)
        for n in sorted(done): out.extend(emit_tile(done[n]))
        for l in out: a(l)
        stamp(c, sbase + 1)
        c.vm.wait_all()
        stamp(c, sbase + 2); stamp(c, 16, 10)
        reduce(c, tag)
        a.lines += side

    c2 = mk()
    if qpf:
        a(f"""s_and_b32 s60, s{S_U}, 7
        s_lshl_b32 s60, s60, 2
        s_add_u32 s60, s60, s{S_WAVE}          ; 0..31
        s_lshr_b32 s61, s{S_U}, 3              ; h
        v_lshrrev_b32 v40, 3, v{V_LANE}
        v_and_b32 v41, 7, v{V_LANE}
        v_lshlrev_b32 v41, 7, v41
        v_lshl_add_u32 v40, v40, 13, v41
        v_lshrrev_b32 v41, 1, v{V_LANE}
        v_and_b32 v42, 1, v{V_LANE}
        v_lshlrev_b32 v42, 7, v42
        v_lshl_add_u32 v41, v41, 11, v42       ; 32 rows x 256 B
        s_and_b32 s62, s60, 15
        s_lshl_b32 s62, s62, 16
        s_lshl_b32 s7, s61, 20
        s_add_u32 s62, s62, s7
        s_lshl_b32 s7, s{S_J}, 10
        s_add_u32 s62, s62, s7                 ; Wq offset of k-tile h
        s_and_b32 s63, s60, 7
        s_lshl_b32 s63, s63, 16
        s_lshr_b32 s7, s60, 4
        s_lshl_b32 s7, s7, 8
        s_add_u32 s63, s63, s7
        s_lshl_b32 s7, s61, 9
        s_add_u32 s63, s63, s7                 ; x offset of k-tile 2h + (0|1)
        s_waitcnt lgkmcnt(0)
        s_bitcmp1_b32 s60, 4
        s_cselect_b32 s12, s{P_BWQ}, s{P_AWQ}
        s_cselect_b32 s13, s{P_BWQ+1}, s{P_AWQ+1}
        s_mov_b32 s14, 0x800000
        s_mov_b32 s15, 0x20000
        s_bitcmp1_b32 s60, 3
        s_cselect_b32 s{SRDT}, s{P_BX}, s{P_AX}
        s_cselect_b32 s{SRDT+1}, s{P_BX+1}, s{P_AX+1}
        s_mov_b32 s{SRDT+2}, 0x80000
        s_mov_b32 s{SRDT+3}, 0x20000""")
        for n, kind in enumerate("xWWxWW"):
            if qpf[n] == "1":
                if kind == "x": a(f"buffer_load_dword v43, v41, {sr(SRDT)}, s63 offen")
                else: a("buffer_load_dword v43, v40, s[12:15], s62 offen")
                c2.vm.issue("pf")
                if int(qthr): a(f"s_waitcnt vmcnt({int(qthr)-1})")
            a("s_add_u32 s63, s63, 1024" if kind == "x" else f"s_add_u32 s62, s62, {2<<20}")
    add_kv(c2, n_g2k, n_g2v, True)
    if stamps == 9: c2.st.run_pre("k0"); a("s_memrealtime s[62:63]")
    c2.st.pump(n_g2k[0])
    if stamps == 9:
        a(f"s_memrealtime s[64:65]\ns_waitcnt vmcnt({n_g2k[0]-1})\ns_memrealtime s[66:67]\ns_waitcnt vmcnt(0)\ns_memrealtime s[68:69]\ns_waitcnt lgkmcnt(0)")
        a("s_mov_b32 s92, s62\ns_mov_b32 s93, s64\ns_mov_b32 s94, s66\ns_mov_b32 s95, s68")
    a("s_branch L_g2")
    a.label("L_g1")
    c = mk(); st = c.st
    if int(nog1):
        global SPIN; SPIN = 4
        a("s_waitcnt lgkmcnt(0)"); common(); fp_word(); a("s_branch L_red")
    set_kd(a, 2048)
    if int(xmap):
        a(f"""s_and_b32 s{S_X0+5}, s{S_J}, 1            ; X
        s_bfe_u32 s{S_X0+6}, s{S_U}, 0x20001      ; p
        s_lshr_b32 s{S_X0+7}, s{S_U}, 3           ; r
        s_lshl_b32 s{S_X0+8}, s{S_X0+7}, 2
        s_add_u32 s{S_X0+8}, s{S_X0+8}, s{S_WAVE}   ; batch
        s_lshl_b32 s{S_A+3}, s{S_X0+8}, 16
        s_lshr_b32 s7, s{S_J}, 1
        s_lshl_b32 s7, s7, 3
        s_and_b32 s{S_X0+9}, s{S_U}, 7
        s_add_u32 s{S_X0+9}, s{S_X0+9}, s7          ; head
        s_xor_b32 s{S_X0+7}, s{S_X0+7}, s{S_U}
        s_and_b32 s{S_X0+7}, s{S_X0+7}, 1           ; r ^ (u & 1)""")
    else:
        a(f"""s_lshr_b32 s{S_X0+5}, s{S_U}, 3           ; X
        s_and_b32 s{S_X0+6}, s{S_U}, 3            ; hh
        s_bfe_u32 s{S_X0+7}, s{S_U}, 0x10002      ; r
        s_lshl_b32 s{S_X0+8}, s{S_X0+7}, 2
        s_add_u32 s{S_X0+8}, s{S_X0+8}, s{S_WAVE}   ; batch
        s_lshl_b32 s{S_A+3}, s{S_X0+8}, 16
        s_lshl_b32 s7, s{S_J}, 2
        s_add_u32 s{S_X0+9}, s{S_X0+6}, s7          ; head""")
    def sigma(i, S, sh):
        a(f"s_add_u32 s7, s{S_X0+6}, {i>>1}\ns_and_b32 s7, s7, 3\ns_lshl_b32 s7, s7, 1\ns_add_u32 s7, s7, s{S_X0+7}")
        if i & 1: a("s_xor_b32 s7, s7, 1")
        a(f"s_lshl_b32 s7, s7, {sh}\ns_add_u32 s{S}, s{S+3}, s7")
    assert int(rotq) == 2
    if int(rotq) == 2: sigma(0, S_A, 8)
    a("s_waitcnt lgkmcnt(0)")
    srd_sel(a, SRD0, S_X0 + 5, P_AX, P_BX, 0x80000)
    a(f"s_lshl_b32 s{S_SCR}, s{S_WAVE}, 13\ns_add_u32 s{S_SCR}, s{S_SCR}, {LDS_SCR}")
    def prewq():
        set_vd(a, 8192)
        srd_sel(a, SRD1, S_X0 + 5, P_AWQ, P_BWQ, 0x800000)
        a(f"s_lshl_b32 s{S_B+3}, s{S_X0+9}, 8\ns_lshl_b32 s7, s{S_WAVE}, 18\ns_add_u32 s{S_B+3}, s{S_B+3}, s7")
        sigma(0, S_B, 20)
    for g in ["x0", "w0", "w1"] + [g for t in range(1, 7) for g in (f"x{t}", f"w{t+1}")] + ["x7"]:
        t = int(g[1])
        nx = (lambda t, S, sh: (lambda: sigma(t + 1, S, sh) if t < 7 else None)) if int(rotq) == 2 else (lambda *_: None)
        if g[0] == "x": st.add(g, 4, SRD0, S_A, 256, V_KD, 2048, fl_x, n_x[t], wrap=2048, nxt=nx(t, S_A, 8))
        else: st.add(g, t & 3, SRD1, S_B, 1 << 20, V_VD, 8192, fl_wq, n_wq[t], pre=prewq if t == 0 else None, wrap=8 << 20, nxt=nx(t, S_B, 20))
    st.pump(8)
    common()
    a(f"""s_lshl_b32 s{S_X0+3}, s{S_X0+5}, 3
    s_add_u32 s{S_X0+3}, s{S_X0+3}, s{S_X0+8}
    s_lshl_b32 s{S_X0+3}, s{S_X0+3}, 5
    s_add_u32 s{S_X0+3}, s{S_X0+3}, s{S_X0+9}
    s_lshl_b32 s{S_X0+4}, s{S_X0+3}, 6
    s_add_u32 s{S_X0+4}, s{S_X0+4}, {WS_FQ}
    s_lshl_b32 s{S_X0+3}, s{S_X0+3}, 13""")
    fp_word()
    clear_flags(c, [(S_X0 + 4, 4, 11), (S_FOB, 1, 2), (S_X0 + 1, 4, FS)], "g1clear")
    add_kv(c, n_g1k, n_g1v, False)
    add_wo(c, 1)
    set_kr(a, S_SCR); set_tr(a)
    if pf & 2: code_touch(a, "L_g1pf_x", "L_g2", 32768, 4, "g1pf")
    early = [n_early]
    def gated_pump(throttle):
        if st.can() and st.q[0][0][0] == "k":
            if early[0] <= 0: return
            early[0] -= 1
        st.pump(1, throttle)
    def wpre(t):
        def f():
            st.need(f"x{t}", fill=(t < 6))
            for s in range(8): a(f"ds_read_b128 {ar(32*t+4*s)}, v{V_KR+s}")
            if t == 0: stamp(c, 1)
            st.need(f"w{t}", fill=(t < 6))
            if t == 0: count_in(c, "g1count")
            stamp(c, 3 + 2 * t, 3)
            a("s_barrier")
            stamp(c, 4 + 2 * t, 3)
            if t == 3: stamp(c, 3, 7); cyc(c, 5, True, 7)
            if t == 6: stamp(c, 4, 7); cyc(c, 5, False, 7)
            if prew:
                if t == 0: prew_setup(c); prew_o(c, S_OB)
                if t < 4: prew_part(c, 2 * t); prew_part(c, 2 * t + 1)
            if t: st.release(f"w{t-1}")
            if t == 7:
                assert st.issued["x7"] == 8
                st.run_pre("k0")
        return f
    ops = [(w, t & 3, s, T, t) for t in range(7) for w in range(4) for s in range(2) for T in range(4)]
    ops += [(w, 3, s, T, 7) for grp in qsplit.split(",") for w in range(4) for s in range(2) for T in map(int, grp)]
    done = {max(n for n, op in enumerate(ops) if op[3] == T): T for T in range(4)}
    out = []
    def q_tile(T):
        return ([f"v_pk_mul_f32 {vr(V_S+16*T+i,2)}, {vr(V_S+16*T+i,2)}, s[{S_C}:{S_C+1}] op_sel_hi:[1,0]" for i in range(0, 16, 2)]
                + [f"v_cvt_pk_bf16_f32 v{V_S+64+8*T+k}, v{V_S+16*T+2*k}, v{V_S+16*T+2*k+1}" for k in range(8)]
                + [f"buffer_store_dwordx4 {vr(V_S+64+4*s)}, v{V_L16}, {sr(SRDW)}, s{S_X0+2 if s>=4 else S_X0+3} offen offset:{1024*(s&3)} sc1" for s in (2 * T, 2 * T + 1)])
    def q_fill(n):
        if n - 4 in done: out.extend(q_tile(done.pop(n - 4)))
        for _ in range(3):
            if out: a(out.pop(0))
    a(f"s_add_u32 s{S_X0+2}, s{S_X0+3}, 4096")
    wpre(0)()
    w_ops(a, ops, lambda w, slot, s, t: ar(32 * t + 4 * (2 * w + s)), fill=q_fill,
          before={32 * t - 4: (lambda t: lambda: (a("s_waitcnt lgkmcnt(0)"), wpre(t)()))(t) for t in range(1, 8)},
          waited={32 * i: (lambda i: lambda: (st.release(f"x{i}"), set_kr(a) if i == 7 else None))(i) for i in range(8)},
          behind=lambda n: (gated_pump(True), gated_pump(True)) if n % 4 == 0 and n < 32 * 7 + 16 else None)
    for n in sorted(done): out.extend(q_tile(done[n]))
    for l in out: a(l)
    c.vm.issue("qst", 8)
    st.pump(3, throttle=False)
    c.vm.wait("qst"); st._sync()
    flag_store(c, S_X0 + 4)
    a("s_barrier"); st.release("w7")
    stamp(c, 2)
    if int(lag):
        a(f"s_and_b32 s7, s{S_U}, 3\ns_cmp_eq_u32 s7, 1\ns_cselect_b32 s{S_X0+5}, 1, 0"); st.lag = S_X0 + 5
    mha1(c)
    oproj(c, 1, "g1", [(S_FOB, 1)], 13, first=int(g1first))

    a.label("L_g2")
    c = c2; st = c.st
    common()
    if stamps == 9: a("s_mov_b32 s73, s92\ns_mov_b32 s74, s93\ns_mov_b32 s75, s94\ns_mov_b32 s76, s95"); stamp(c, 7, 9)
    a(f"""s_lshl_b32 s{S_X0+5}, s{S_U}, 1
    s_lshl_b32 s{S_X0+6}, s{S_J}, 5
    s_add_u32 s{S_X0+6}, s{S_X0+6}, s{S_X0+5}   ; b*32+h
    s_lshl_b32 s{S_X0+7}, s{S_X0+6}, 6
    s_add_u32 s{S_X0+7}, s{S_X0+7}, {WS_FQ}     ; Q flag
    s_lshl_b32 s{S_X0+6}, s{S_X0+6}, 13         ; Q offset (O = +WS_O)
    s_lshl_b32 s{S_X0+8}, s{S_J}, 3
    s_lshr_b32 s7, s{S_U}, 1
    s_add_u32 s{S_X0+8}, s{S_X0+8}, s7
    s_lshl_b32 s{S_X0+8}, s{S_X0+8}, {FS}
    s_and_b32 s7, s{S_U}, 1
    s_lshl_b32 s7, s7, {FW+1}
    s_add_u32 s{S_X0+8}, s{S_X0+8}, s7
    s_add_u32 s{S_X0+8}, s{S_X0+8}, {WS_FO}     ; O flags (two words)
    s_add_u32 s{S_X0+9}, s{S_X0+8}, 4""")
    def kva_off(S):
        a(f"s_lshl_b32 s{S+3}, s{S_J}, 2\ns_lshr_b32 s7, s{S_U}, 2\ns_add_u32 s{S+3}, s{S+3}, s7\ns_lshl_b32 s{S+3}, s{S+3}, 18")
        a(f"s_lshl_b32 s7, s{S_WAVE}, {WSH}\ns_add_u32 s{S+3}, s{S+3}, s7")
        a(f"s_and_b32 s{S+2}, s{S_U}, {3 if rot else 0}\ns_lshl_b32 s{S+2}, s{S+2}, {15 if int(rota) == 2 else 16}\ns_add_u32 s{S}, s{S+3}, s{S+2}")
    def half2(S): return lambda: a(f"s_add_u32 s{S+3}, s{S+3}, 131072\ns_add_u32 s{S}, s{S}, 131072")
    wra = 131072 if int(rota) == 2 else 262144
    five = int(five)
    ASL = [n % 5 if five else n & 3 for n in range(16)]
    WSL2 = [1, 2, 3, 0] if five else [0, 1, 2, 3]
    a(f"s_lshl_b32 s{S_SCR}, s{S_WAVE}, 13\ns_add_u32 s{S_SCR}, s{S_SCR}, {LDS_SCR}")
    def preka(): srd(a, SRD0, P_AK, 0x800000); kva_off(S_A)
    def preva(): srd(a, SRD1, P_AV, 0x800000); kva_off(S_B)
    fp_word()
    clear_flags(c, [(S_FOB, 1, 2), (S_X0 + 8, 2, FW), (S_X0 + 1, 4, FS)], "g2clear")
    for t in range(8): st.add(f"ka{t}", ASL[t], SRD0, S_A, 32768, V_KD, 256, fl_kva, n_kva[t], pre=preka if t == 0 else half2(S_A) if t == 4 and int(rota) == 2 else None, wrap=wra, ps=PS)
    for t in range(8): st.add(f"va{t}", ASL[8 + t], SRD1, S_B, 32768, V_VD, 256, fl_kva, n_vva[t], single=not PS, pre=preva if t == 0 else half2(S_B) if t == 4 and int(rota) == 2 else None, wrap=wra, ps=PS)
    add_wo(c, 0, WSL2)
    set_kr(a); set_tr(a)
    if pf & 4: code_touch(a, "L_g2pf_x", "L_end", 32768, 4, "g2pf")
    if int(tlb):
        a(f"s_cmp_lg_u32 s{S_WAVE}, 2\ns_cbranch_scc1 L_tlb_x")
        a(f"v_lshlrev_b32 v{V_F+29}, 20, v{V_LANE}")
        for p, n in ((P_AWO, 8), (P_BWO, 8), (P_AK, 8), (P_AV, 8), (P_OUT, 1), (P_WS, 24)):
            srd(a, SRDT, p, n << 20)
            a(f"buffer_load_dword v{V_T0}, v{V_F+29}, {sr(SRDT)}, 0 offen")
        a.label("L_tlb_x")
    def qa_hook(t):
        if t == 1: ck_issue(c, "ws", (S_X0 + 7, 2, 6))
        if t == 3:
            ck_verify(c, "g2qa")
            q_dma(c, S_X0 + 6, 0, "qa")
            a(f"s_add_u32 s{S_X0+7}, s{S_X0+6}, 8192")
            q_dma(c, S_X0 + 7, 2048, "qa")
        if t == 7:
            if "qa" in c.vm.q: c.vm.wait("qa")
            st._sync()
            a("s_barrier")
            q_read(c, 0, lambda s: vr(V_Q + 4 * s)); a("s_waitcnt lgkmcnt(4)")
            q_read(c, 2048, lambda s: ar(A_Q1 + 4 * s))
            a("s_waitcnt lgkmcnt(0)\ns_barrier")
    mha2(c, qa_hook)
    st.release("v7")
    if kvpf & 2: touch(c, P_AV, 0x800000, KVA_BASE, 32768, 256, fl_kva)
    stamp(c, 5)
    if pf & 1: code_touch(a, "L_g2tail2", "L_end", 16384, 2, "g2pf2")
    def wo_gap(t):
        if t >= g2w[0]: st.open("wo0")
        if t >= g2w[1]: st.open("wo1")
        if st.issued.get("wo1", 0) == 7 and not getattr(c, "gap_done", False):
            c.gap_done = True
            a(f"buffer_load_dword v{V_T0}, v{V_VD+3}, {sr(SRD1)}, s{S_B+1} offen offset:3072 {fl_wo}")
            c.vm.issue("pf")
    st.gate("va1"); st.gate("wo1", 7)
    g2w = [int(x) for x in str(g2wo).split(",")]
    st.gate("wo0"); st.gate("wo1")
    a(f"s_sub_u32 s{S_DLT}, s{S_SCR}, s{S_RING}")
    gqa_k(c, [f"ka{t}" for t in range(8)], ASL[:8], lambda t: st.open("va1") if t == va1 - 1 else None)
    st.open("va1"); st.pump(8 if va1 == 8 else 0, False)
    stamp(c, 6)
    a.label("L_gv")
    if kvpf & 4: touch(c, P_AWO, 0x800000, WO_BASE.replace(f"v{V_CA}", f"v{V_CA}"), 65536, 2048, fl_wo)
    heads = [dict(acc=lambda B: ar(A_O + 16 * B, 16), L=A_L, M=V_M, slot=WSL2[3], b3=("scr", 0), st=(WSL2[1], 7168), dst=S_X0 + 6),
             dict(acc=o1, L=A_L1, M=V_M1, slot=WSL2[2], b3=("scr", 4096), st=(WSL2[1], 7168 + 8), dst=S_X0 + 7)]
    held = ("va5", "va6", "va7") if five else ("va6", "va7")
    epi = Epi(c, heads, t=V_P1, sv=(2, 4)) if int(ovl) else None
    gqa_v(c, [f"va{t}" for t in range(8)], ASL[8:], hold=held, hook=wo_gap,
          last=(lambda n: [epi.do(x) for x in {-1: ["addr"], 0: ["stats"], 1: [1], 2: [2], 3: [3]}[n]]) if epi else None)
    stamp(c, 7)
    a.label("L_g2tail2")
    a(f"s_add_u32 s{S_X0+6}, s{S_X0+6}, {WS_O}\ns_add_u32 s{S_X0+7}, s{S_X0+7}, {WS_O}")
    o_epi(c, heads, epi=epi,
          idle=lambda: tail_setup(c, 0), mid=lambda: (early_poll(c), st.pump(8, False), wo_gap(9)), freed=lambda: freed(c, held, int(g2first)))
    oproj(c, 0, "g2", [(S_X0 + 8, 2), (S_FOB, 1)], 13, WSL2, first=int(g2first))

    a.label("L_red")
    c = mk()
    if stamps:
        a("s_waitcnt vmcnt(0)"); stamp(c, 19)
        if leak:
            n1, n0, lw = (int(x) for x in leak.split(","))
            a(f"s_cmp_lg_u32 s2, {lw}\ns_cbranch_scc1 L_leak_x\ns_cmp_lg_u32 s3, 0\ns_cbranch_scc1 L_leak_x")
            a(f"s_sub_u32 s7, s{70+n1}, s{70+n0}\ns_min_u32 s7, s7, 10000\ns_mul_i32 s7, s7, 10\ns_add_u32 s7, s7, s89")
            a.label("L_leak")
            a("s_memrealtime s[42:43]\ns_waitcnt lgkmcnt(0)\ns_sub_u32 s5, s42, s7\ns_cmp_lt_i32 s5, 0\ns_cbranch_scc1 L_leak")
            a.label("L_leak_x")
        if stamps == 4: a("s_getreg_b32 s88, hwreg(HW_REG_HW_ID)\ns_bfe_u32 s88, s88, 0x80008\ns_mul_i32 s88, s88, 100\ns_add_u32 s88, s88, s70")
        a(f"s_lshl_b32 s7, s2, 2\ns_add_u32 s7, s7, s{S_WAVE}\ns_lshl_b32 s7, s7, 7\ns_add_u32 s7, s7, {WS_ST}")
        for n in range(20): a(f"v_mov_b32 v{V_S+n}, s{70+n}")
        a(f"v_mov_b32 v{V_T0}, 0\ns_mov_b64 exec, 1")
        for q in range(5): a(f"buffer_store_dwordx4 {vr(V_S+4*q)}, v{V_T0}, {sr(SRDW)}, s7 offen offset:{16*q}")
    a.label("L_end"); a("s_endpgm")
    if "L" in hack: a.lines = [l for l in a.lines if not (l.startswith("v_mfma") and f", {vr(V_ONE)}," in l)]
    if "E" in hack: a.lines = [l.replace("v_exp_f32", "v_mov_b32") for l in a.lines]
    def strip(l0, l1, pred):
        i0 = a.lines.index(l0); i1 = a.lines.index(l1)
        a.lines[i0:i1] = [l for l in a.lines[i0:i1] if not pred(l)]
    if "K" in hack: strip("L_g2pf2_x:", "L_gv:", lambda l: l.startswith("v_mfma"))
    if "V" in hack: strip("L_gv:", "L_g2tail2:", lambda l: l.startswith("v_mfma"))
    if "P" in hack: strip("L_g1pf3_x:", "L_g1tail:", lambda l: l.startswith("v_mfma"))
    if "R" in hack: strip("L_g2pf2_x:", "L_g2tail2:", lambda l: l.startswith("ds_read"))
    if "H" in hack: strip("L_gv:", "L_g2tail2:", lambda l: l.startswith("v_mfma_f32_32") and (l.split()[1].startswith("v[4") or l.split()[1].startswith("v[5") or l.split()[1].startswith("a[96") or l.split()[1].startswith("a[112")))
    if "M" in hack:
        i0 = a.lines.index("L_g2pf2_x:"); i1 = a.lines.index("L_g2tail2:")
        a.lines[i0:i1] = [l for n, l in enumerate(a.lines[i0:i1]) if not l.startswith("v_mfma")]
    s = header(["; @launch grid=(256,1,1) block=(256,1,1) lds=163840"])
    s += DOC + kernel_open(NAME + "_kernel") + a.finish() + "\n"
    s += '.section .rodata,"a"\n.p2align 6\n' + descriptor(NAME + "_kernel")
    return s

if __name__ == "__main__":
    out = sys.argv[1]
    kw = dict(x.split("=") for x in sys.argv[2:])
    open(out, "w").write(build(**kw))
```

```python
import sys
from engines import *

WS_FQ = WS_F
WS_FO = WS_F + 0x200000
WS_FP = WS_F + 0x400000
WS_ST = WS_F + 0x100000
FS = 7
FW = 2
SLEEP = 0
APOLL = 1
KP = 3
ACK = 1
NPOLL = 1
PGAP = 0
GAP = 28
S_SCR = 69
SPIN = 1 << 18
SRDT = 88

class Stream:
    def __init__(self, a, vm):
        self.a, self.vm = a, vm
        self.q = []
        self.busy = {}
        self.landed = set(); self.issued = {}; self.m0_dirty = False; self.pres = {}; self.gates = set(); self.lag = None; self.nl = 0
    def run_pre(self, tag):
        box = self.pres[tag]
        if box[0]: box[0](); box[0] = None
    def add(self, tag, slot, srdreg, soff, step, voff, rs, fl, N, single=False, pre=None, wrap=None, nxt=None, ps=None):
        a = self.a
        fl = (" " + fl) if fl else ""
        sb, so_ = (S_SCR, 0) if slot == 4 else (S_RING, slot * 8192)
        box = [pre]
        def emit(k):
            if k == 0:
                if box[0]: box[0](); box[0] = None
                a(f"s_add_u32 m0, s{sb}, {so_}")
            if k == 4:
                a(f"s_add_u32 s{soff+1}, s{soff}, {4*(ps or 4*rs)}")
                a(f"s_add_u32 m0, s{sb}, {so_+4096}")
            if self.m0_dirty and k & 3: a(f"s_add_u32 m0, s{sb}, {so_+(k&4)*1024}")
            self.m0_dirty = False
            so = soff + 1 if k >= 4 else soff
            off = f" offset:{1024*(k&3)}" if k & 3 else ""
            a(f"buffer_load_dwordx4 v{voff+(0 if single else k&3)}, {sr(srdreg)}, s{so} offen{off}{fl} lds")
            if k == 7:
                if nxt is not None: nxt()
                elif wrap is None: a(f"s_add_u32 s{soff}, s{soff}, {step}")
                else:
                    a(f"s_add_u32 s{soff+2}, s{soff+2}, {step}\ns_and_b32 s{soff+2}, s{soff+2}, {wrap-1}\ns_add_u32 s{soff}, s{soff+3}, s{soff+2}")
        for k in range(8): self.q.append((tag, slot, k, emit, N))
        self.pres[tag] = box
    def can(self):
        if not self.q: return False
        tag, slot, k, _, _ = self.q[0]
        if (tag, k) in self.gates: return False
        return self.busy.get(slot) in (None, tag)
    def gate(self, tag, k=0): self.gates.add((tag, k))
    def open(self, tag, k=0): self.gates.discard((tag, k))
    def _sync(self):
        for tag, n in self.issued.items():
            if n == 8 and tag not in self.vm.q: self.landed.add(tag)
    def piece(self, throttle=True):
        tag, slot, k, emit, N = self.q.pop(0)
        if throttle and self.lag is not None and N < 8 and tag[0] in "kv":
            if len(self.vm.q) >= N:
                self.nl += 1
                self.a(f"s_cmp_lg_u32 s{self.lag}, 0\ns_cbranch_scc1 L_lag{self.nl}\ns_waitcnt vmcnt({N-1})"); self.a.label(f"L_lag{self.nl}")
            N = 12
        if throttle and len(self.vm.q) >= N:
            self.a(f"s_waitcnt vmcnt({N-1})"); self.vm.q = self.vm.q[len(self.vm.q) - (N - 1):] if N > 1 else []
        assert len(self.vm.q) < 63
        self.busy[slot] = tag
        emit(k); self.vm.issue(tag); self.issued[tag] = self.issued.get(tag, 0) + 1
        self._sync()
    def pump(self, n=99, throttle=True):
        while n > 0 and self.can():
            self.piece(throttle); n -= 1
    def need(self, tag, fill=True):
        self._sync()
        while tag not in self.landed and self.can() and (fill or self.issued.get(tag, 0) < 8):
            self.piece()
        if tag not in self.landed:
            assert self.issued.get(tag) == 8, tag
            self.vm.wait(tag); self._sync()
    def release(self, tag):
        for s, t in list(self.busy.items()):
            if t == tag: self.busy[s] = None

import itertools
uid = itertools.count()
class Ctx: pass

def cyc(c, n, start, mode=1):
    if c.stamps != mode: return
    c.a("s_memtime s[42:43]\ns_waitcnt lgkmcnt(0)")
    if start: c.a(f"s_mov_b32 s{70+n}, s42")
    else: c.a(f"s_sub_u32 s{70+n}, s42, s{70+n}\ns_add_u32 s{70+n}, s{70+n}, s70")

def stamp(c, n, mode=1):
    if c.stamps != mode and not (c.stamps and n in (1, 2, 19)) and not (c.stamps == 11 and mode == 1): return
    c.a(f"s_memrealtime s[42:43]\ns_waitcnt lgkmcnt(0)\ns_mov_b32 s{70+n}, s42")

def look(r, voff, so, nl):
    if not APOLL: return f"buffer_load_dword v{r}, v{voff}, {sr(SRDW)}, s{so} offen sc1"
    return (f"v_mov_b32 v{r}, 1\ns_mov_b64 exec, {(1<<nl)-1}\nv_mov_b32 v{r}, 0\n"
            f"buffer_atomic_or v{r}, v{voff}, {sr(SRDW)}, s{so} offen sc0 sc1\ns_mov_b64 exec, -1")

def poll(c, name, soff_expr_reg, nl, want, voff):
    a = c.a
    regs = [V_T0, 32, 33, 34][:NPOLL]
    ld = lambda r: look(r, voff, soff_expr_reg, nl)
    a(f"s_mov_b32 s68, {SPIN}")
    if NPOLL > 1:
        a(ld(regs[0]))
        for r in regs[1:-1]: a(f"v_mov_b32 v{r}, 0")
        a(f"s_waitcnt vmcnt(0)\nv_cmp_ne_u32 vcc, {want}, v{regs[0]}\ns_cbranch_vccz L_{name}_x")
    for r in regs[:-1]:
        a(ld(r))
        if PGAP: a(f"s_sleep {PGAP}")
    a.label(f"L_{name}")
    for n, r in enumerate(regs):
        a(ld(regs[n - 1]))
        a(f"s_waitcnt vmcnt({NPOLL-1})")
        a(f"v_cmp_ne_u32 vcc, {want}, v{r}")
        a(f"s_cbranch_vccz L_{name}_x")
    if SLEEP: a(f"s_sleep {SLEEP}")
    a(f"s_sub_u32 s68, s68, 1\ns_cbranch_scc0 L_{name}")
    a.label(f"L_{name}_x")
    c.vm.q = ["poll"] * (NPOLL - 1); c.st._sync()

V_CK, V_CA = 34, 35
def ck_issue(c, kind, arg):
    a = c.a
    if kind == "dbg":
        a(f"v_and_b32 v{V_CA}, 7, v{V_LANE}\nv_lshlrev_b32 v{V_CA}, 5, v{V_CA}")
        ld = f"global_load_dword v{V_CK}, v{V_CA}, s[{P_DBG}:{P_DBG+1}] sc1"
        cmp_ = f"v_cmp_gt_u32 vcc, 32, v{V_CK}"
    else:
        so, nl, sh = arg
        a(f"v_and_b32 v{V_CA}, {nl-1}, v{V_LANE}\nv_lshlrev_b32 v{V_CA}, {sh}, v{V_CA}")
        ld = look(V_CK, V_CA, so, nl) if ACK else f"buffer_load_dword v{V_CK}, v{V_CA}, {sr(SRDW)}, s{so} offen sc1"
        cmp_ = f"v_cmp_ne_u32 vcc, 1, v{V_CK}"
    a(ld); c.vm.issue("ck"); c.ck = (ld, cmp_)
def ck_verify(c, name, idle=()):
    a = c.a; ld, cmp_ = c.ck
    if "ck" in c.vm.q: c.vm.wait("ck")
    c.st._sync()
    if idle:
        a(f"{cmp_}\ns_cbranch_vccz L_{name}_x\n{ld}\ns_waitcnt vmcnt(0)")
        for hint in idle:
            a(f"{cmp_}\ns_cbranch_vccz L_{name}_x\n{ld}\n{hint}\ns_waitcnt vmcnt(1)")
    a(f"s_mov_b32 s68, {SPIN}")
    a.label(f"L_{name}")
    a(f"{cmp_}\ns_cbranch_vccz L_{name}_x")
    if SLEEP: a(f"s_sleep {SLEEP}")
    a(f"{ld}\ns_sub_u32 s68, s68, 1\ns_waitcnt vmcnt(0)\ns_cbranch_scc0 L_{name}")
    a.label(f"L_{name}_x")

def park2(c, tags, hook=None):
    a, st = c.a, c.st
    for t in range(8):
        st.need(tags[t])
        slot = [s for s, g in st.busy.items() if g == tags[t]][0]
        for s in range(8):
            a(f"ds_read_b128 {ar(32*t+4*s)}, v{V_KR+s} offset:{slot*8192}")
        a("s_waitcnt lgkmcnt(0)")
        st.release(tags[t])
        stamp(c, 3 + t, 8)
        if hook: hook(t)

V_SH = 104
V_SH0, V_SH1 = 10, 14
def finish_max(a, M, T, sh):
    a(f"""v_mov_b32 v{T}, v{M}
    v_permlane32_swap_b32 v{M}, v{T}
    v_max_f32 v{M}, v{M}, v{T}
    v_mul_f32 v{M}, -0.5, v{M}
    v_cvt_pk_bf16_f32 v{T}, v{M}, v{M}
    v_lshlrev_b32 v{T}, 16, v{T}
    v_sub_f32 v{M}, v{M}, v{T}
    v_cvt_pk_bf16_f32 v{sh}, v{T}, v{M}
    v_and_b32 v{M}, 0xffff0000, v{sh}
    v_add_f32 v{M}, v{M}, v{T}
    v_mul_f32 v{M}, -2.0, v{M}
    v_mov_b32 v{sh+1}, 0
    v_mov_b32 v{sh+2}, 0
    v_mov_b32 v{sh+3}, 0""")
V_SEL = 26
def set_ones(a):
    for k in range(4): a(f"v_mov_b32 v{V_ONE+k}, 0x3f803f80")
    a(f"""v_lshrrev_b32 v{V_SEL}, 4, v{V_LANE}
    v_xor_b32 v{V_SEL}, v{V_SEL}, v{V_LANE}
    v_and_b32 v{V_SEL}, 1, v{V_SEL}
    v_add_u32 v{V_SEL}, -1, v{V_SEL}
    v_and_b32 v{V_SEL}, 0x3f803f80, v{V_SEL}
    v_mov_b32 v{V_SEL+1}, v{V_SEL}
    v_mov_b32 v{V_SEL+2}, v{V_SEL}
    v_mov_b32 v{V_SEL+3}, v{V_SEL}""")
def rowsum(L, P, first):
    return f"v_mfma_f32_16x16x32_bf16 {ar(L)}, {vr(V_SEL)}, {vr(P)}, {'0' if first else ar(L)}"
def shift(S, sh): return f"v_mfma_f32_32x32x16_bf16 {S}, {vr(V_ONE)}, {vr(sh)}, {S}"

def scores2(c, npump=1):
    a, st = c.a, c.st
    pend = []
    for t in range(8):
        for s in range(8):
            cc = "0" if s == 0 else vr(V_S + 16 * t, 16)
            a(f"v_mfma_f32_32x32x16_bf16 {vr(V_S+16*t,16)}, {ar(32*t+4*s)}, {vr(V_Q+4*s)}, {cc}")
            if s >= 4:
                for _ in range(2):
                    if pend: a(pend.pop(0))
            if s == 0 or (s == 2 and npump > 1): st.pump(1)
        b = V_S + 16 * t
        if t == 0:
            pend = [f"v_max3_f32 v{V_M}, v{b}, v{b+1}, v{b+2}"]
            pend += [f"v_max3_f32 v{V_M}, v{V_M}, v{b+i}, v{b+i+1}" for i in range(3, 15, 2)]
            pend += [f"v_max_f32 v{V_M}, v{V_M}, v{b+15}"]
        else:
            pend = [f"v_max3_f32 v{V_M}, v{V_M}, v{b+i}, v{b+i+1}" for i in range(0, 16, 2)]
    while pend: a(pend.pop(0))
    finish_max(a, V_M, V_MC, V_SH)

class LagScores:
    def __init__(self, c): self.c = c; self.pend = []
    def tile(self, t):
        a, st, pend = self.c.a, self.c.st, self.pend
        for s in range(8):
            cc = "0" if s == 0 else vr(V_S + 16 * t, 16)
            a(f"v_mfma_f32_32x32x16_bf16 {vr(V_S+16*t,16)}, {ar(32*t+4*s)}, {vr(V_Q+4*s)}, {cc}")
            if s >= 4:
                for _ in range(2):
                    if pend: a(pend.pop(0))
            if s in (0, 2): st.pump(1)
        b = V_S + 16 * t
        if t == 0:
            pend += [f"v_max3_f32 v{V_M}, v{b}, v{b+1}, v{b+2}"]
            pend += [f"v_max3_f32 v{V_M}, v{V_M}, v{b+i}, v{b+i+1}" for i in range(3, 15, 2)]
            pend += [f"v_max_f32 v{V_M}, v{V_M}, v{b+15}"]
        else:
            pend += [f"v_max3_f32 v{V_M}, v{V_M}, v{b+i}, v{b+i+1}" for i in range(0, 16, 2)]
    def finish(self):
        for l in self.pend: self.c.a(l)
        finish_max(self.c.a, V_M, V_MC, V_SH)

def sm_lines(b):
    out = [f"v_exp_f32 v{b+i}, v{b+i}" for i in range(16)]
    out += [f"v_cvt_pk_bf16_f32 v{b+k}, v{b+2*k}, v{b+2*k+1}" for k in range(8)]
    return out

def pv2(c, tags, last_pump=False, hold_last=True, hook=None, last=None, epi=None):
    a, st = c.a, c.st
    set_ones(a)
    a(shift(vr(V_S, 16), V_SH)); a(shift(vr(V_S + 16, 16), V_SH))
    for l in sm_lines(V_S): a(l)
    for t in range(8):
        if t < 6: a(shift(vr(V_S + 16 * (t + 2), 16), V_SH))
        fin = t == 7 and epi
        b = V_S + 16 * t
        if fin:
            a(rowsum(A_L, b, False)); a(rowsum(A_L, b + 4, False)); epi.do("addr"); epi.do("stats")
        st.need(tags[t], fill=False)
        if t == 7 and last: last()
        slot = [s for s, g in st.busy.items() if g == tags[t]][0]
        for B in ((1, 2, 3, 0) if fin else range(4)):
            for l in v_reads(V_F, slot)[4 * B:4 * B + 4]: a(l)
        nxt = sm_lines(V_S + 16 * (t + 1)) if t < 7 else []
        for s in range(0 if fin else 2):
            a(rowsum(A_L, b + 4 * s, t == 0 and s == 0))
            for _ in range(2):
                if nxt: a(nxt.pop(0))
        for n, B in enumerate((1, 2, 3, 0) if fin else range(4)):
            for s in range(2):
                if s == 0: a(f"s_waitcnt lgkmcnt({(12, 8, 4, 4)[n] if fin else 12-4*B})")
                cc = "0" if (t == 0 and s == 0) else ar(A_O + 16 * B, 16)
                a(f"v_mfma_f32_32x32x16_bf16 {ar(A_O+16*B,16)}, {vr(V_F+8*B+4*s)}, {vr(b+4*s)}, {cc}")
                for _ in range(3):
                    if nxt: a(nxt.pop(0))
                if t < 7 or last_pump: st.pump(1)
            if fin and n >= 2: epi.do(n - 1)
        while nxt: a(nxt.pop(0))
        if not (hold_last and t == 7): st.release(tags[t])
        stamp(c, 3 + t, 4); stamp(c, 3 + t, 10)
        if hook: hook(t)

LQ_ORDER = list(range(8))
LQ_P, LQ_RAW, LQ_SH = 104, 112, V_Q
def lq_s(t):
    i = LQ_ORDER.index(t)
    return ("v", LQ_RAW) if i == 0 else ("a", 32 * LQ_ORDER[i - 1])
def lq_o(B): return ar((16, 48, 80, 144)[B], 16)
LQ_L = 176
def v_reads(dst, slot):
    out = []
    for B in range(4):
        for s in range(2):
            o = slot * 8192 + 16 * s * 256
            out.append(f"ds_read_b64_tr_b16 {vr(dst+8*B+4*s,2)}, v{V_TV+B} offset:{o}")
            out.append(f"ds_read_b64_tr_b16 {vr(dst+8*B+4*s+2,2)}, v{V_TV+B} offset:{o+8*256}")
    return out
def lq_park_v(c, tags, npark, hook=None):
    a, st = c.a, c.st
    for t in range(npark):
        st.need(tags[t])
        for l in v_reads(V_S + 32 * t, t): a(l)
        a("s_waitcnt lgkmcnt(0)")
        st.release(tags[t])
        stamp(c, 11 + t, 8)
        if hook: hook(t)
def lq_scores(c, npump):
    a, st = c.a, c.st
    pend = []; T = V_F
    for i, t in enumerate(LQ_ORDER):
        f, b = lq_s(t); S = f"{f}[{b}:{b+15}]"
        for s in range(8):
            a(f"v_mfma_f32_32x32x16_bf16 {S}, {ar(32*t+4*s)}, {vr(V_Q+4*s)}, {'0' if s == 0 else S}")
            if s >= 2:
                for _ in range(4):
                    if pend: a(pend.pop(0))
            if s == 0 or (s == 1 and npump > 1): st.pump(1)
        if i == 0:
            pend = [f"v_max3_f32 v{V_M}, v{b}, v{b+1}, v{b+2}"] + [f"v_max3_f32 v{V_M}, v{V_M}, v{b+k}, v{b+k+1}" for k in range(3, 15, 2)] + [f"v_max_f32 v{V_M}, v{V_M}, v{b+15}"]
        else:
            pend = [f"v_accvgpr_read_b32 v{T+k}, a{b+k}" for k in range(16)] + [f"v_max3_f32 v{V_M}, v{V_M}, v{T+k}, v{T+k+1}" for k in range(0, 16, 2)]
    while pend: a(pend.pop(0))
    finish_max(a, V_M, V_MC, LQ_SH)
def lq_pv(c, tags, npark, hook=None, last=None, at=7):
    a, st = c.a, c.st
    set_ones(a)
    def sh(i):
        f, b = lq_s(i); a(shift(f"{f}[{b}:{b+15}]", LQ_SH))
    def ex(i):
        f, b = lq_s(i)
        out = [] if f == "v" else [f"v_accvgpr_read_b32 v{LQ_RAW+k}, a{b+k}" for k in range(16)]
        return out + [f"v_exp_f32 v{LQ_RAW+k}, v{LQ_RAW+k}" for k in range(16)]
    pk = [f"v_cvt_pk_bf16_f32 v{LQ_P+k}, v{LQ_RAW+2*k}, v{LQ_RAW+2*k+1}" for k in range(8)]
    sh(0); sh(1)
    for l in ex(0) + pk: a(l)
    for t in range(8):
        if t < 6: sh(t + 2)
        ring = t >= npark
        if ring:
            st.need(tags[t], fill=False)
            if t >= at and last: last(t)
            for l in v_reads(V_F, t & 3): a(l)
        nxt = ex(t + 1) if t < 7 else []
        def fill(n):
            for _ in range(n):
                if nxt: a(nxt.pop(0))
        fr = V_F if ring else V_S + 32 * t
        for s in range(2):
            a(rowsum(LQ_L, LQ_P + 4 * s, t == 0 and s == 0)); fill(2)
        for B in range(4):
            if ring: a(f"s_waitcnt lgkmcnt({12-4*B})")
            for s in range(2):
                a(f"v_mfma_f32_32x32x16_bf16 {lq_o(B)}, {vr(fr+8*B+4*s)}, {vr(LQ_P+4*s)}, {'0' if t == 0 and s == 0 else lq_o(B)}")
                st.pump(1); fill(4)
        if ring and t != 7: st.release(tags[t])
        fill(99)
        if t < 7:
            for l in pk: a(l)
        stamp(c, 3 + t, 4)
        if hook: hook(t)

S_DLT = 49
class Aim:
    def __init__(self, a): self.a = a; self.scr = set()
    def __call__(self, reg, slot):
        if slot == 4 and reg not in self.scr:
            self.a(f"v_add_u32 v{reg}, s{S_DLT}, v{reg}"); self.scr.add(reg)
        if slot != 4 and reg in self.scr:
            self.a(f"v_subrev_u32 v{reg}, s{S_DLT}, v{reg}"); self.scr.discard(reg)
        return 0 if slot == 4 else slot * 8192

A_Q1, A_S1, A_L1 = 96, 128, 80
V_M1, V_MC1, V_P1 = 34, 35, 104
def o1(B): return vr(V_Q + 16 * B, 16) if B < 2 else ar(96 + 16 * (B - 2), 16)

def gqa_k(c, tags, slots, hook=None):
    a, st = c.a, c.st
    pend = []
    aim = Aim(a)
    def rd(t, s): return f"ds_read_b128 {vr(V_F+4*s)}, v{V_KR+s} offset:{aim(V_KR+s, slots[t])}"
    st.need(tags[0], fill=False)
    for s in range(8): a(rd(0, s))
    for t in range(8):
        if t < 7: st.need(tags[t + 1], fill=False)
        for s in range(8):
            if t == 0: a(f"s_waitcnt lgkmcnt(7)")
            elif t == 7: a(f"s_waitcnt lgkmcnt({7-s})") if s in (0, 2, 4, 6, 7) else None
            elif s in (0, 2, 4, 6): a("s_waitcnt lgkmcnt(6)")
            if t == 7 and s in (0, 2, 4, 6): a.lines[-1] = f"s_waitcnt lgkmcnt({6-s})"
            if t == 7 and s == 7: a.lines.pop()
            if s == 7 and t: st.release(tags[t])
            if s == 7 and t == 0: st.release(tags[0])
            c0 = "0" if s == 0 else vr(V_S + 16 * t, 16)
            c1 = "0" if s == 0 else ar(A_S1 + 16 * t, 16)
            a(f"v_mfma_f32_32x32x16_bf16 {vr(V_S+16*t,16)}, {vr(V_F+4*s)}, {vr(V_Q+4*s)}, {c0}")
            for _ in range(3):
                if pend and s >= 2: a(pend.pop(0))
            a(f"v_mfma_f32_32x32x16_bf16 {ar(A_S1+16*t,16)}, {vr(V_F+4*s)}, {ar(A_Q1+4*s)}, {c1}")
            if t < 7: a(rd(t + 1, s))
            for _ in range(3):
                if pend and s >= 2: a(pend.pop(0))
            st.pump(2 if t < KP else 1)
        while pend: a(pend.pop(0))
        if hook: hook(t)
        stamp(c, 3 + t, 5)
        if t == 1: stamp(c, 3, 7); cyc(c, 5, True, 7)
        if t == 4: stamp(c, 4, 7); cyc(c, 5, False, 7)
        b = V_S + 16 * t
        def mx(M, b):
            if t == 0:
                return ([f"v_max3_f32 v{M}, v{b}, v{b+1}, v{b+2}"] + [f"v_max3_f32 v{M}, v{M}, v{b+i}, v{b+i+1}" for i in range(3, 15, 2)]
                        + [f"v_max_f32 v{M}, v{M}, v{b+15}"])
            return [f"v_max3_f32 v{M}, v{M}, v{b+i}, v{b+i+1}" for i in range(0, 16, 2)]
        pend = mx(V_M, b) + [f"v_accvgpr_read_b32 v{V_P1+i}, a{A_S1+16*t+i}" for i in range(16)] + mx(V_M1, V_P1)
    while pend: a(pend.pop(0))
    finish_max(a, V_M, V_MC, V_SH0); finish_max(a, V_M1, V_MC1, V_SH1)

def gqa_v(c, tags, slots, hold, last=None, hook=None):
    a, st = c.a, c.st
    PB = (V_P1, V_P1 + 8); C = V_P1 + 16
    def raw(t, i): return PB[t & 1] + i if i < 8 else C + i - 8
    def sm1(t):
        rd_ = [f"v_accvgpr_read_b32 v{raw(t,i)}, a{A_S1+16*t+i}" for i in range(16)]
        ex = [f"v_exp_f32 v{raw(t,i)}, v{raw(t,i)}" for i in range(16)]
        pk = [f"v_cvt_pk_bf16_f32 v{PB[t&1]+k}, v{raw(t,2*k)}, v{raw(t,2*k+1)}" for k in range(8)]
        return rd_, ex + pk
    def sh(t): return [shift(vr(V_S + 16 * t, 16), V_SH0), shift(ar(A_S1 + 16 * t, 16), V_SH1)]
    aim = Aim(a)
    def rd(t, B): return v_reads(V_F, aim(V_TV + B, slots[t]) // 8192)[4 * B:4 * B + 4]
    for l in sh(0) + sh(1): a(l)
    st.need(tags[0], fill=False)
    for B in range(4):
        for l in rd(0, B): a(l)
    r0, e0 = sm1(0)
    for l in r0 + sm_lines(V_S) + e0: a(l)
    for t in range(8):
        if t < 7: st.need(tags[t + 1], fill=False)
        if t < 7:
            r1, e1 = sm1(t + 1); nxt = r1 + sm_lines(V_S + 16 * (t + 1)) + e1
        else: nxt = []
        b = V_S + 16 * t; P1 = PB[t & 1]
        def fill(budget):
            while nxt and budget >= (8 if nxt[0].startswith("v_exp") else 4) - 2:
                budget -= 8 if nxt[0].startswith("v_exp") else 4
                a(nxt.pop(0))
        extra = [rowsum(A_L, b, t == 0), rowsum(A_L1, P1, t == 0), rowsum(A_L, b + 4, False), rowsum(A_L1, P1 + 4, False)]
        shf = sh(t + 2)[::-1] if t < 6 else []
        order = (1, 2, 3, 0) if t == 7 else (0, 1, 2, 3)
        G = GAP
        if t == 7 and last:
            while extra: a(extra.pop(0))
            last(-1)
        for n, B in enumerate(order):
            if t < 7: a("s_waitcnt lgkmcnt(12)")
            elif n == 0: a("s_waitcnt lgkmcnt(0)")
            if (B == 3 or t == 7) and tags[t] not in hold: st.release(tags[t])
            for s in range(2):
                z = t == 0 and s == 0
                a(f"v_mfma_f32_32x32x16_bf16 {ar(A_O+16*B,16)}, {vr(V_F+8*B+4*s)}, {vr(b+4*s)}, {'0' if z else ar(A_O+16*B,16)}")
                n0 = len(a.lines); st.pump(2 if t < 5 else 1); fill(G - 5 * (len(a.lines) - n0))
                a(f"v_mfma_f32_32x32x16_bf16 {o1(B)}, {vr(V_F+8*B+4*s)}, {vr(P1+4*s)}, {'0' if z else o1(B)}")
                if s == 1 and t < 7:
                    for l in rd(t + 1, B): a(l)
                    fill(G - 16)
                else: fill(G)
            if extra: a(extra.pop(0)); fill(G - 20)
            if shf and B in (1, 3): a(shf.pop(0)); fill(G)
            if t == 7 and last: last(n)
        fill(9999)
        if hook: hook(t)
        stamp(c, 11 + t, 5); stamp(c, 3 + t, 6); stamp(c, 3 + t, 10)
        if t == 1: stamp(c, 6, 7); cyc(c, 8, True, 7)
        if t == 4: stamp(c, 7, 7); cyc(c, 8, False, 7)

class Epi:
    def __init__(self, c, heads, t=V_F + 24, sv=(V_F, V_F + 8)):
        self.c, self.heads, self.t, self.sv = c, heads, t, sv
        self.todo = {"addr", "stats", 1, 2, 3}
    @staticmethod
    def loc(spec, ring, scr):
        base, off = spec
        return (scr, off) if base == "scr" else (ring, base * 8192 + off)
    def do(self, what):
        if what not in self.todo: return
        self.todo.discard(what)
        a, t = self.c.a, self.t
        if what == "addr":
            a(f"s_lshl_b32 s{S_TMP}, s{S_WAVE}, 13\ns_add_u32 s{S_TMP}, s{S_TMP}, {LDS_SCR}")
            a(f"v_add_u32 v{t}, s{S_RING}, v{V_L16}\nv_add_u32 v{t+1}, s{S_TMP}, v{V_L16}")
            for B in (1, 2, 3):
                a(f"s_sub_u32 s{S_TMP}, s{S_WAVE}, {B}\ns_and_b32 s{S_TMP}, s{S_TMP}, 3")
                a(f"s_lshl_b32 s7, s{S_TMP}, 13\ns_add_u32 s7, s7, {LDS_SCR}\ns_lshl_b32 s{S_TMP}, s{S_TMP}, 15")
                a(f"v_add_u32 v{t+2*B}, s{S_TMP}, v{V_L16}\nv_add_u32 v{t+2*B+1}, s7, v{V_L16}")
        elif what == "stats":
            a("s_mov_b32 vcc_lo, 0xffff0000\ns_mov_b32 vcc_hi, 0xffff0000")
            for h, r in zip(self.heads, self.sv):
                a(f"v_accvgpr_read_b32 v{r}, a{h['L']}\nv_accvgpr_read_b32 v{r+1}, a{h['L']+1}")
                a(f"v_cndmask_b32 v{r+1}, v{r}, v{r+1}, vcc\nv_mov_b32 v{r}, v{h['M']}")
                v, o = self.loc(h["st"], t, t + 1)
                a(f"ds_write_b64 v{v}, {vr(r,2)} offset:{o}")
        else:
            B = what
            for h in self.heads:
                txt = h["acc"](B); f, lo = txt[0], int(txt[2:txt.index(":")])
                v, o = self.loc((h["slot"], 4096 * (B - 1)) if B < 3 else h["b3"], t, t + 1)
                for g in range(4): a(f"ds_write_b128 v{v}, {f}[{lo+4*g}:{lo+4*g+3}] offset:{o+1024*g}")

def o_epi(c, heads, mid=None, idle=None, freed=None, epi=None):
    a = c.a
    epi = epi or Epi(c, heads)
    t, loc = epi.t, epi.loc
    for x in ("addr", "stats", 1, 2, 3): epi.do(x)
    for n, h in enumerate(heads):
        own = h["acc"](0); lo = int(own[2:own.index(":")])
        for i in range(16):
            a(f"v_accvgpr_read_b32 v{V_S+64*n+i}, a{lo+i}" if own[0] == "a" else f"v_mov_b32 v{V_S+64*n+i}, v{lo+i}")
        if epi.sv[n] != V_F + 8 * n: a(f"v_mov_b32 v{V_F+8*n}, v{epi.sv[n]}\nv_mov_b32 v{V_F+8*n+1}, v{epi.sv[n]+1}")
    md = 4 if len(heads) == 1 else 6
    if idle: idle()
    a("s_waitcnt lgkmcnt(0)"); stamp(c, 11, md); a("s_barrier"); stamp(c, 12, md)
    def reads(n):
        h = heads[n]; out = []
        for B in (1, 2, 3):
            v, o = loc((h["slot"], 4096 * (B - 1)) if B < 3 else h["b3"], t + 2 * B, t + 2 * B + 1)
            out.append([f"ds_read_b128 {vr(V_S+64*n+16*B+4*g)}, v{v} offset:{o+1024*g}" for g in range(4)])
        return out
    for n, h in enumerate(heads):
        for B in (1, 2, 3):
            v, o = loc(h["st"], t + 2 * B, t + 2 * B + 1)
            a(f"ds_read_b64 {vr(V_F+8*n+2*B,2)}, v{v} offset:{o}")
    two = len(heads) == 2
    r0 = reads(0); r1 = reads(1) if two else [[], [], []]
    for n, h in enumerate(heads):
        if n == 0:
            for l in r0[0] + r0[1]: a(l)
            if mid: mid()
            a("s_waitcnt lgkmcnt(8)")
            for l in r0[2]: a(l)
        m = [V_F + 8 * n + 2 * u for u in range(4)]; l = [x + 1 for x in m]
        M = V_F + 16; L = V_F + 17; f = [V_F + 18 + u for u in range(4)]
        a(f"v_max3_f32 v{M}, v{m[0]}, v{m[1]}, v{m[2]}\nv_max_f32 v{M}, v{M}, v{m[3]}")
        for u in range(4): a(f"v_sub_f32 v{f[u]}, v{m[u]}, v{M}")
        for u in range(4): a(f"v_exp_f32 v{f[u]}, v{f[u]}")
        a(f"v_mul_f32 v{L}, v{f[0]}, v{l[0]}")
        for u in range(1, 4): a(f"v_fmac_f32 v{L}, v{f[u]}, v{l[u]}")
        a(f"v_rcp_f32 v{L}, v{L}")
        for u in range(4): a(f"v_mul_f32 v{f[u]}, v{f[u]}, v{L}")
        S = V_S + 64 * n
        def sel(r): return ("op_sel_hi:[1,0", vr(r, 2)) if r % 2 == 0 else ("op_sel:[0,1", vr(r - 1, 2))
        md_, fr = sel(f[0])
        for i in range(0, 16, 2): a(f"v_pk_mul_f32 {vr(S+i,2)}, {vr(S+i,2)}, {fr} {md_}]")
        for B in (1, 2, 3):
            a(f"s_waitcnt lgkmcnt({8 if (two and n == 0) else 12-4*B})")
            if n == 0:
                for l in r1[B - 1]: a(l)
            md_, fr = sel(f[B])
            tail = ",1]" if md_.startswith("op_sel_hi") else ",0]"
            for i in range(0, 16, 2): a(f"v_pk_fma_f32 {vr(S+i,2)}, {vr(S+16*B+i,2)}, {fr}, {vr(S+i,2)} {md_}{tail}")
        if n == len(heads) - 1:
            stamp(c, 13, md); a("s_barrier"); stamp(c, 14, md)
            if freed: freed()
        for k in range(8): a(f"v_cvt_pk_bf16_f32 v{S+k}, v{S+2*k}, v{S+2*k+1}")
        a(f"s_lshl_b32 s{S_TMP}, s{S_WAVE}, 11\ns_add_u32 s{S_TMP}, s{S_TMP}, s{h['dst']}")
        a(f"buffer_store_dwordx4 {vr(S)}, v{V_L16}, {sr(SRDW)}, s{S_TMP} offen sc1")
        a(f"buffer_store_dwordx4 {vr(S+4)}, v{V_L16}, {sr(SRDW)}, s{S_TMP} offen offset:1024 sc1")
        c.vm.issue("ost", 2)
    stamp(c, 15, md)

def flag_store(c, soff, nl=1):
    a = c.a
    a(f"v_mov_b32 v{V_T0}, 1\nv_lshlrev_b32 v{V_F+31}, {FW}, v{V_LANE}")
    a(f"s_mov_b64 exec, {(1<<nl)-1}")
    a(f"buffer_store_dword v{V_T0}, v{V_F+31}, {sr(SRDW)}, s{soff} offen sc1")
    a("s_mov_b64 exec, -1")
    c.vm.issue("flag")

def q_dma(c, soff, lds_off, tag):
    a = c.a
    a(f"s_lshl_b32 s{S_TMP}, s{S_WAVE}, 13\ns_add_u32 m0, s{S_TMP}, {LDS_SCR+lds_off}")
    a(f"s_lshl_b32 s{S_TMP}, s{S_WAVE}, 11\ns_add_u32 s{S_TMP}, s{S_TMP}, s{soff}")
    for k in range(2):
        a(f"buffer_load_dwordx4 v{V_L16}, {sr(SRDW)}, s{S_TMP} offen offset:{1024*k} sc1 lds")
    c.vm.issue(tag, 2); c.st.m0_dirty = True
def q_read(c, lds_off, dst):
    a = c.a
    a(f"v_add_u32 v{V_CA}, {LDS_SCR}, v{V_L16}")
    for s in range(8): a(f"ds_read_b128 {dst(s)}, v{V_CA} offset:{(s>>1)*8192+lds_off+(s&1)*1024}")

S_J, S_CC, S_U = 50, 51, 52
S_A = 56
S_B = 60
S_QB, S_OB, S_FQB, S_FOB = 64, 65, 66, 67
S_X0 = 92

def code_touch(a, first, last, est, share, name):
    k = -(-est // (128 * 64))
    a(f"s_getpc_b64 s[48:49]")
    a.label(f"L_{name}")
    a(f"s_add_u32 s48, s48, {first}-L_{name}\ns_addc_u32 s49, s49, 0")
    a(f"s_lshl_b32 s7, s{S_U}, 2\ns_add_u32 s7, s7, s{S_WAVE}\ns_mul_i32 s7, s7, {128*k}")
    a(f"v_lshl_add_u32 v{V_F+29}, v{V_LANE}, 7, s7")
    a(f"v_min_u32 v{V_F+29}, {last}-{first}-4, v{V_F+29}")
    a(f"s_mov_b64 exec, {(1<<k)-1}\nglobal_load_dword v{V_T0}, v{V_F+29}, s[48:49]\ns_mov_b64 exec, -1")
    a.label(f"L_{name}_x")

DOC = """; One persistent workgroup per CU (256 x 4 waves, 512 registers per wave, 160 KB LDS); generated by gen/gen_v2.py.
; j = id & 7, c = id >> 3.  Every workgroup owns one MHA task (batch c>>2, head 4j + (c&3)) plus a role:
;   role 1 (c < 16): a 128 x 128 tile of the Q projection first, then its MHA task, then a tile of out_B
;   role 2 (c >= 16): parks K / V of its MHA task until Q arrives, then two GQA heads sharing one K/V, then a tile of out_A
; All operands stream HBM -> LDS by LDS-DMA through wave-private rings of 8-KB tiles (swizzled for conflict-free
; ds_read_b128 / ds_read_b64_tr_b16).  S^T = K Q^T keeps one query per lane; each wave takes the true max over its
; tiles are summed in fp32 by the workgroups of the same column block.
; Hand-offs (Q, O, partial tiles) go through d_ws: write-through stores, wait, flag word.  Flag words are cleared by
; their writers at entry; d_debug counts the workgroups that have done so and is checked before any flag is read.
"""

class PerTile:
    def __init__(self, v): self.v = [int(x) for x in str(v).split(",")]
    def __getitem__(self, t): return self.v[min(t, len(self.v) - 1)]

def build(stamps=0, earlyb=2, dyn=0, kvperm='', leak='', rbit=4, shints='', rk=0, rkt=0, ofl='sc1', pfl='sc1', g1first=1, g2first=2, hints='', qsplit='0123', qpos=1, qseq='1,8,4', ilv=1, g2wo='5,6', xmap=1, five=0, kp=3, wog=0, ack=1, ovl=1, apoll=1, fack=0, pollfirst=0, tsplit='01,2,3', onepoll=1, prew=0, npoll=1, pgap=0, wo1mid=1, outfl='', n_w2=6, n_wpre=0, lag=1, gap=28, q0=3, hack='', rotkv=0, tlb=0, fs=8, fw=2, sleep=0, pf=7, n_early=8, kvpf=0, qpf='', qthr=0, rotq=2, rota=2, kag=6, nog1=0, perm=0, npark=4, g1wo=0, va1=5, n_qpre=0, n_spump=2, n_look=8, n_x=16, n_wq=16, n_kva=32, n_vva=32, n_g2k=16, n_g2v=16, n_g1k='16,4,4,4,16', n_g1v=16, n_wo=16, fl_x="", fl_wq="", fl_kva="", fl_wo="", fl_kv="nt", rot=1):
    global FW, APOLL, ACK, KP; KP = int(kp); ACK = int(ack); FW = int(fw); APOLL = int(apoll)
    global FS, SLEEP, GAP, NPOLL, PGAP; NPOLL = int(npoll); PGAP = int(pgap); GAP = int(gap); FS = int(fs); SLEEP = int(sleep)
    stamps = int(stamps); prew = int(prew); n_w2 = int(n_w2); q0 = int(q0); pf = int(pf); n_early = int(n_early); kvpf = int(kvpf); n_qpre = int(n_qpre); npark = int(npark); g1wo = int(g1wo); va1 = int(va1); n_spump = int(n_spump); n_look = int(n_look);  n_g2k, n_g2v, n_g1k, n_g1v, n_wo, n_x, n_wq, n_kva, n_vva = map(PerTile, (n_g2k, n_g2v, n_g1k, n_g1v, n_wo, n_x, n_wq, n_kva, n_vva)); rot = int(rot)
    a = Asm()
    prologue(a, 256, "L_end")
    if stamps: a("s_memrealtime s[70:71]")
    if int(perm): a(f"s_xor_b32 s2, s2, {int(perm)}")
    if int(rbit) != 4:
        rb = int(rbit) + 3
        a(f"s_bfe_u32 s7, s2, {(1 << 16) | rb}\ns_lshl_b32 s7, s7, 7\ns_lshr_b32 s5, s2, {rb+1}\ns_lshl_b32 s5, s5, {rb}")
        a(f"s_and_b32 s2, s2, {(1 << rb) - 1}\ns_or_b32 s2, s2, s5\ns_or_b32 s2, s2, s7")
    a(f"""s_and_b32 s{S_J}, s2, 7
    s_lshr_b32 s{S_CC}, s2, 3
    s_and_b32 s{S_U}, s{S_CC}, 15
    s_and_b32 s53, s{S_CC}, 3
    s_lshl_b32 s7, s{S_J}, 2
    s_add_u32 s53, s53, s7          ; head of the MHA task
    s_lshr_b32 s54, s{S_CC}, 2      ; batch of the MHA task
    s_lshl_b32 s55, s54, 5
    s_add_u32 s55, s55, s53         ; b*32+h
    s_cmp_lt_u32 s{S_CC}, 16
    s_cbranch_scc1 L_g1""")
    def common():
        if stamps:
            for n in range(1, 20): a(f"s_mov_b32 s{70+n}, s70")
        srd(a, SRDW, P_WS, WS_BYTES)
        a(f"""s_lshl_b32 s{S_QB}, s55, 13
        s_add_u32 s{S_QB}, s{S_QB}, {WS_Q + (2<<20)}
        s_add_u32 s{S_OB}, s{S_QB}, {WS_O - WS_Q}
        s_lshl_b32 s{S_FQB}, s55, 6
        s_add_u32 s{S_FQB}, s{S_FQB}, {WS_FQ + 256*64}
        s_lshl_b32 s{S_FOB}, s54, 3
        s_add_u32 s{S_FOB}, s{S_FOB}, s{S_J}
        s_lshl_b32 s{S_FOB}, s{S_FOB}, {FS}
        s_and_b32 s7, s{S_CC}, 3
        s_lshl_b32 s7, s7, {FW}
        s_add_u32 s{S_FOB}, s{S_FOB}, s7
        s_add_u32 s{S_FOB}, s{S_FOB}, {WS_FO + (64 << FS)}
        s_mov_b32 s{S_C}, {f32(C_SCALE)}""")

    PS = 4096 if int(ilv) else None
    WSH = 10 if int(ilv) else 13
    def mk():
        c = Ctx(); c.a = a; c.vm = VM(a); c.st = Stream(a, c.vm); c.stamps = stamps
        return c
    def kv_offsets():
        a(f"s_lshl_b32 s{S_A}, s55, 18\ns_lshl_b32 s7, s{S_WAVE}, 13\ns_add_u32 s{S_A}, s{S_A}, s7")
    def clear_flags(c, words, name):
        a(f"s_cmp_lg_u32 s{S_WAVE}, 0\ns_cbranch_scc1 L_{name}")
        a(f"v_mov_b32 v{V_T0}, 0")
        for so, nl, sh in words:
            a(f"v_lshlrev_b32 v{V_F+31}, {sh}, v{V_LANE}\ns_mov_b64 exec, {(1<<nl)-1}")
            a(f"buffer_store_dword v{V_T0}, v{V_F+31}, {sr(SRDW)}, s{so} offen sc1\ns_mov_b64 exec, -1")
        a.label(f"L_{name}")
    def count_in(c, name):
        a(f"s_cmp_lg_u32 s{S_WAVE}, 0\ns_cbranch_scc1 L_{name}")
        a(f"s_lshl_b32 s7, s{S_J}, 5\nv_mov_b32 v{V_T0}, 1\nv_mov_b32 v{V_F+31}, s7\ns_mov_b64 exec, 1")
        a(f"global_atomic_add v{V_F+31}, v{V_T0}, s[{P_DBG}:{P_DBG+1}] sc1")
        a("s_mov_b64 exec, -1")
        a.label(f"L_{name}")
    def wait_cleared(c, name):
        a(f"s_mov_b32 s68, {SPIN}\nv_and_b32 v{V_F+31}, 7, v{V_LANE}\nv_lshlrev_b32 v{V_F+31}, 5, v{V_F+31}")
        a.label(f"L_{name}")
        a(f"global_load_dword v{V_T0}, v{V_F+31}, s[{P_DBG}:{P_DBG+1}] sc1")
        a(f"s_sub_u32 s68, s68, 1\ns_cbranch_scc1 L_{name}_x\ns_waitcnt vmcnt(0)")
        a(f"v_cmp_gt_u32 vcc, 32, v{V_T0}\ns_cbranch_vccnz L_{name}")
        a.label(f"L_{name}_x")
        c.vm.q = []; c.st._sync()
    def fp_word():
        a(f"s_xor_b32 s{S_X0}, s{S_CC}, 16          ; c_to")
        a(f"s_lshl_b32 s{S_X0+1}, s{S_X0}, 2\ns_add_u32 s{S_X0+1}, s{S_X0+1}, s{S_WAVE}\ns_lshl_b32 s{S_X0+1}, s{S_X0+1}, {FS}")
        a(f"s_lshl_b32 s7, s{S_J}, {FW}\ns_add_u32 s{S_X0+1}, s{S_X0+1}, s7\ns_add_u32 s{S_X0+1}, s{S_X0+1}, {WS_FP}")
    def add_wo(c, X, wsl=(0, 1, 2, 3)):
        def pre():
            set_vd(a, 2048)
            srd(a, SRD1, P_BWO if X else P_AWO, 0x800000)
            a(f"s_add_u32 s7, s{S_WAVE}, s{S_U}\ns_and_b32 s7, s7, 3")
            a(f"s_lshl_b32 s{S_B+3}, s{S_J}, 2\ns_add_u32 s{S_B+3}, s{S_B+3}, s7\ns_lshl_b32 s{S_B+3}, s{S_B+3}, 18")
            a(f"s_and_b32 s7, s{S_U}, 7\ns_lshl_b32 s7, s7, 8\ns_add_u32 s{S_B+3}, s{S_B+3}, s7")
            a(f"s_lshr_b32 s{S_B+2}, s{S_U}, 3\ns_lshl_b32 s{S_B+2}, s{S_B+2}, 17")
            a(f"s_add_u32 s{S_B}, s{S_B+3}, s{S_B+2}")
        def nx(t):
            return lambda: a(f"s_xor_b32 s7, s{S_B+2}, {(t+1) << 16}\ns_add_u32 s{S_B}, s{S_B+3}, s7") if t < 3 else None
        for t in range(4):
            c.st.add(f"wo{t}", wsl[t], SRD1, S_B, 65536, V_VD, 2048, fl_wo, n_wo[t], pre=pre if t == 0 else None, nxt=nx(t))
    def add_kv(c, nk, nv, first):
        rk = int(rotkv)
        def offs(S):
            if kvperm == "1":
                a(f"s_and_b32 s7, s{S_CC}, 3\ns_lshl_b32 s7, s7, 3\ns_add_u32 s7, s7, s{S_J}\ns_lshr_b32 s{S+3}, s{S_CC}, 2\ns_lshl_b32 s{S+3}, s{S+3}, 5\ns_add_u32 s{S+3}, s{S+3}, s7")
                a(f"s_lshl_b32 s{S+3}, s{S+3}, 18\ns_lshl_b32 s7, s{S_WAVE}, {WSH}\ns_add_u32 s{S+3}, s{S+3}, s7\ns_mov_b32 s{S}, s{S+3}"); return
            if kvperm == "2":
                a(f"s_lshl_b32 s{S+3}, s{S_J}, 5\ns_add_u32 s{S+3}, s{S+3}, s{S_CC}")
                a(f"s_lshl_b32 s{S+3}, s{S+3}, 18\ns_lshl_b32 s7, s{S_WAVE}, {WSH}\ns_add_u32 s{S+3}, s{S+3}, s7\ns_mov_b32 s{S}, s{S+3}"); return
            if kvperm == "3":
                a(f"s_lshr_b32 s7, s{S_CC}, 4\ns_bfe_u32 s{S+3}, s{S_CC}, 0x20002\ns_lshl_b32 s{S+3}, s{S+3}, 1\ns_add_u32 s{S+3}, s{S+3}, s7\ns_lshl_b32 s{S+3}, s{S+3}, 5")
                a(f"s_and_b32 s7, s55, 31\ns_add_u32 s{S+3}, s{S+3}, s7")
                a(f"s_lshl_b32 s{S+3}, s{S+3}, 18\ns_lshl_b32 s7, s{S_WAVE}, {WSH}\ns_add_u32 s{S+3}, s{S+3}, s7\ns_mov_b32 s{S}, s{S+3}"); return
            a(f"s_lshl_b32 s{S+3}, s55, 18\ns_lshl_b32 s7, s{S_WAVE}, {WSH}\ns_add_u32 s{S+3}, s{S+3}, s7")
            if rk:
                a(f"s_lshr_b32 s7, s{S_J}, {rk-1}\ns_add_u32 s7, s7, s{S_CC}\ns_and_b32 s7, s7, 7\ns_lshl_b32 s{S+2}, s7, 15\ns_add_u32 s{S}, s{S+3}, s{S+2}")
            else: a(f"s_mov_b32 s{S}, s{S+3}")
        def prek():
            set_kd(a, 256, ps=PS); offs(S_A)
            if first: a("s_waitcnt lgkmcnt(0)")
            srd(a, SRD0, P_BK, 0x4000000)
        def prev():
            set_vd(a, 256, ps=PS); srd(a, SRD1, P_BV, 0x4000000); offs(S_B)
        wr = 262144 if rk else None
        for t in range(8): c.st.add(f"k{t}", t & 3, SRD0, S_A, 32768, V_KD, 256, fl_kv, nk[t], pre=prek if t == 0 else None, wrap=wr, ps=PS)
        for t in range(8): c.st.add(f"v{t}", t & 3, SRD1, S_B, 32768, V_VD, 256, fl_kv, nv[t], single=not PS, pre=prev if t == 0 else None, wrap=wr, ps=PS)
    def touch(c, ptr, size, base_asm, step, rs, fl):
        a(base_asm)
        a(f"s_add_u32 s49, s48, {step}")
        a(f"v_lshrrev_b32 v{V_CA}, 1, v{V_LANE}\nv_lshlrev_b32 v{V_CA}, {rs.bit_length()-1}, v{V_CA}")
        a(f"v_and_b32 v{V_T0}, 1, v{V_LANE}\nv_lshl_add_u32 v{V_CA}, v{V_T0}, 7, v{V_CA}")
        srd(a, SRDT, ptr, size)
        for so in (48, 49):
            a(f"buffer_load_dword v{V_T0}, v{V_CA}, {sr(SRDT)}, s{so} offen {fl}")
            c.vm.issue("pf")
    KVA_BASE = (f"s_lshl_b32 s48, s{S_J}, 2\ns_lshr_b32 s7, s{S_U}, 2\ns_add_u32 s48, s48, s7\ns_lshl_b32 s48, s48, 18\n"
                f"s_lshl_b32 s7, s{S_WAVE}, 13\ns_add_u32 s48, s48, s7\n"
                f"s_and_b32 s7, s{S_U}, 3\ns_lshl_b32 s7, s7, 16\ns_add_u32 s48, s48, s7")
    WO_BASE = (f"s_add_u32 s7, s{S_WAVE}, s{S_U}\ns_and_b32 s7, s7, 3\ns_lshl_b32 s48, s{S_J}, 2\ns_add_u32 s48, s48, s7\ns_lshl_b32 s48, s48, 18\n"
               f"s_and_b32 s7, s{S_U}, 7\ns_lshl_b32 s7, s7, 8\ns_add_u32 s48, s48, s7\n"
               f"s_lshr_b32 s7, s{S_U}, 3\ns_lshl_b32 s7, s7, 17\ns_add_u32 s48, s48, s7")
    def get_q(c):
        if "q" in c.vm.q: c.vm.wait("q")
        c.st._sync()
        a("s_barrier")
        q_read(c, 5120, lambda s: vr(V_Q + 4 * s))
        a("s_waitcnt lgkmcnt(0)")
    def mha1(c):
        st = c.st
        ls = LagScores(c)
        plan = {q0: [0, 1]}
        nxt = 2
        for t in range(q0 + 1, 8):
            plan[t] = [u for u in (nxt, nxt + 1) if u <= t] if t < 7 else list(range(nxt, 8))
            nxt += len(plan[t])
        def hook(t):
            if t == q0 - 3: ck_issue(c, "dbg", None)
            if t == q0 - 2: ck_verify(c, "g1clr"); ck_issue(c, "ws", (S_FQB, 1, 2))
            if t == q0 - 1: ck_verify(c, "g1q"); q_dma(c, S_QB, 5120, "q")
            if t == q0:
                get_q(c); stamp(c, 4)
            if t == 5 and pf & 1:
                code_touch(a, "L_g1tail", "L_g2", 16384, 2, "g1pf2")
            for u in plan.get(t, []): ls.tile(u)
        park2(c, [f"k{t}" for t in range(8)], hook)
        stamp(c, 3)
        ls.finish()
        stamp(c, 5)
        for g in range(g1wo, 3): st.gate(f"wo{g}")
        heads = [dict(acc=lambda B: ar(A_O + 16 * B, 16), L=A_L, M=V_M, slot=3, b3=("scr", 0), st=("scr", 4096), dst=S_OB)]
        epi = Epi(c, heads, t=112, sv=(2,)) if int(ovl) else None
        st.lag = None
        def rank(t):
            if not int(rk): return
            if t == int(rkt):
                a(f"s_lshl_b32 s7, s{S_J}, 5\ns_add_u32 s7, s7, 4\nv_mov_b32 v{V_CA}, s7\nv_mov_b32 v{V_CK}, 1\ns_mov_b64 exec, 1")
                a(f"global_atomic_add v{V_CK}, v{V_CA}, v{V_CK}, s[{P_DBG}:{P_DBG+1}] sc0 sc1\ns_mov_b64 exec, -1"); c.vm.issue("rk")
            if t == int(rkt) + 1:
                if "rk" in c.vm.q: c.vm.wait("rk")
                st._sync()
                a(f"v_readfirstlane_b32 s7, v{V_CK}\ns_cmp_ge_u32 s7, {int(rk)}\ns_cselect_b32 s{S_X0+5}, 1, 0"); st.lag = S_X0 + 5
        pv2(c, [f"v{t}" for t in range(8)], last_pump=True, last=lambda: (st.run_pre("wo0"), st.open(f"wo{g1wo}")), epi=epi, hook=rank)
        stamp(c, 6)
        a.label("L_g1tail")
        o_epi(c, heads, epi=epi,
              idle=lambda: tail_setup(c, 1),
              mid=lambda: (early_poll(c), st.open(f"wo{g1wo+1}"), st.pump(8 if int(wo1mid) and int(g1first) == 2 else 0, False)),
              freed=lambda: ([st.open(f"wo{g}") for g in range(3)], freed(c, ["v7"], int(g1first))))
    def mha2(c, pvhook):
        st = c.st
        end = 7 + npark
        def hook(p):
            if p == 1: count_in(c, "g2count")
            if prew:
                if p == 0: prew_setup(c); prew_o(c, S_OB)
                if p == 1:
                    a(f"s_add_u32 s49, s{S_X0+6}, {WS_O}"); prew_o(c, 49)
                    a(f"s_add_u32 s49, s49, 8192"); prew_o(c, 49)
                if 2 <= p < 6: prew_part(c, 2 * p - 4); prew_part(c, 2 * p - 3)
            e = end - int(qpos)
            if p == e - 3: ck_issue(c, "dbg", None)
            if p == e - 2: ck_verify(c, "g2clr")
            if p == e - 1 and not n_qpre: ck_issue(c, "ws", (S_FQB, 1, 2))
            sh_ = dict((int(x.split(":")[0]), x.split(":")[1]) for x in shints.split(",") if x)
            if (p == e - 1 and hints) or (sh_ and p == min(sh_) - 1):
                a(f"s_lshl_b32 s48, s{S_J}, 2\ns_lshr_b32 s7, s{S_U}, 2\ns_add_u32 s48, s48, s7\ns_lshl_b32 s48, s48, 3")
                a(f"s_and_b32 s7, s{S_U}, 3\ns_add_u32 s48, s48, s7\ns_lshl_b32 s48, s48, 2\ns_add_u32 s48, s48, s{S_WAVE}\ns_lshl_b32 s48, s48, 13")
                a(f"s_add_u32 s49, s48, 131072\nv_lshlrev_b32 v{V_F+30}, 7, v{V_LANE}\ns_mov_b32 s{SRDT+2}, 0x800000\ns_mov_b32 s{SRDT+3}, 0x20000")
            H = {"k": P_AK, "v": P_AV}
            if p in sh_:
                h = sh_[p]
                a(f"s_mov_b32 s{SRDT}, s{H[h[0]]}\ns_mov_b32 s{SRDT+1}, s{H[h[0]]+1}")
                a(f"buffer_load_dword v{V_T0}, v{V_F+30}, {sr(SRDT)}, s{48+int(h[1])} offen"); c.vm.issue("pf")
            if p == e and int(qpos):
                ck_verify(c, "g2q", [f"s_mov_b32 s{SRDT}, s{H[h[0]]}\ns_mov_b32 s{SRDT+1}, s{H[h[0]]+1}\n"
                                     f"buffer_load_dword v{V_T0}, v{V_F+30}, {sr(SRDT)}, s{48+int(h[1])} offen" for h in hints.split(",") if h])
                q_dma(c, S_QB, 5120, "q")
        park2(c, [f"k{t}" for t in range(8)], hook)
        stamp(c, 1)
        lq_park_v(c, [f"v{t}" for t in range(8)], npark, lambda t: hook(8 + t))
        stamp(c, 15, 8)
        qa, qb, qc = (int(x) for x in str(qseq).split(","))
        if n_qpre:
            st.pump(qa, False); ck_issue(c, "ws", (S_FQB, 1, 2)); st.pump(qb, False)
        if not int(qpos):
            ck_verify(c, "g2q")
            q_dma(c, S_QB, 5120, "q")
            st.pump(qc, False)
        get_q(c)
        stamp(c, 2)
        lq_scores(c, n_spump)
        stamp(c, 3)
        for g in ("ka0", "ka1", "ka2"): st.gate(g)
        st.busy[4] = "v7"
        lq_pv(c, [f"v{t}" for t in range(8)], npark, pvhook, last=lambda t: (st.run_pre("ka0"), st.open(f"ka{t-int(kag)}")), at=int(kag))
        stamp(c, 4)
        o_epi(c, [dict(acc=lq_o, L=LQ_L, M=V_M, slot=3, b3=("scr", 0), st=("scr", 4096), dst=S_OB)],
              mid=lambda: (st.open("ka1"), st.open(f"ka{8-int(kag)}"), st.pump(8, False)))
        st.open("ka2")
    V_MK = 124
    def prew_setup(c):
        t = V_MK - 1
        for k in range(4): a(f"v_mov_b32 v{V_MK+k}, -1")
        a(f"""v_and_b32 v{t}, 15, v{V_LANE}
        v_lshlrev_b32 v{t}, 4, v{t}
        v_lshrrev_b32 v{t-1}, 5, v{V_LANE}
        v_lshl_add_u32 v{t}, v{t-1}, 8, v{t}
        v_bfe_u32 v{t-1}, v{V_LANE}, 4, 1
        v_lshl_add_u32 v{t}, v{t-1}, 15, v{t}
        s_lshl_b32 s48, s{S_X0}, 3
        s_lshl_b32 s7, s{S_WAVE}, 1
        s_add_u32 s48, s48, s7
        s_lshl_b32 s48, s48, 3
        s_add_u32 s48, s48, s{S_J}
        s_lshl_b32 s48, s48, 12
        s_add_u32 s48, s48, {WS_P}""")
    def prew_part(c, p):
        a(f"buffer_store_dwordx4 {vr(V_MK)}, v{V_MK-1}, {sr(SRDW)}, s48 offen offset:{512*p} sc1"); c.vm.issue("mk")
    def prew_o(c, so):
        a(f"s_lshl_b32 s7, s{S_WAVE}, 11\ns_add_u32 s7, s7, s{so}")
        for k in range(2): a(f"buffer_store_dwordx4 {vr(V_MK)}, v{V_L16}, {sr(SRDW)}, s7 offen offset:{1024*k} sc1")
        c.vm.issue("mk", 2)
    V_PA = 11
    def tail_setup(c, X):
        a(f"""s_lshr_b32 s{S_X0+2}, s{S_U}, 3
        s_lshl_b32 s{S_X0+2}, s{S_X0+2}, 2
        s_add_u32 s{S_X0+2}, s{S_X0+2}, s{S_WAVE}
        s_add_u32 s{S_X0+2}, s{S_X0+2}, {8*X}        ; X*8 + batch
        s_lshl_b32 s{S_X0+3}, s{S_X0+2}, 3
        s_add_u32 s{S_X0+3}, s{S_X0+3}, s{S_J}
        s_lshl_b32 s{S_X0+4}, s{S_X0+3}, 15
        s_add_u32 s{S_X0+4}, s{S_X0+4}, {WS_O}       ; O offset
        s_lshl_b32 s{S_X0+3}, s{S_X0+3}, {FS}
        s_add_u32 s{S_X0+3}, s{S_X0+3}, {WS_FO}""")
        for T in range(4): a(f"v_add_u32 v{V_TW+4+T}, 0x10000, v{V_TW+T}")
        t = 10
        a(f"""v_and_b32 v{t}, 15, v{V_LANE}
        v_lshlrev_b32 v{t}, 4, v{t}
        v_lshrrev_b32 v{t+1}, 5, v{V_LANE}
        v_lshl_add_u32 v{t}, v{t+1}, 8, v{t}
        v_bfe_u32 v{t+1}, v{V_LANE}, 4, 1
        v_lshl_add_u32 v{t}, v{t+1}, 15, v{t}
        v_and_b32 v{V_PA}, 3, v{V_LANE}
        v_lshlrev_b32 v{V_PA}, {FW}, v{V_PA}
        s_lshl_b32 s58, s{S_X0}, 3
        s_lshl_b32 s7, s{S_WAVE}, 1
        s_add_u32 s58, s58, s7
        s_lshl_b32 s58, s58, 3
        s_add_u32 s58, s58, s{S_J}
        s_lshl_b32 s58, s58, 12
        s_add_u32 s58, s58, {WS_P}""")
        a(f"s_lshr_b32 s59, s{S_U}, 3\ns_lshl_b32 s59, s59, 12")
        a(f"""s_lshl_b32 s64, s{S_X0}, 2
        s_lshr_b32 s7, s{S_J}, 1
        s_add_u32 s64, s64, s7
        s_lshl_b32 s64, s64, {FS}
        s_add_u32 s64, s64, {WS_FP}               ; flags of the eight producers
        v_and_b32 v15, 7, v{V_LANE}
        v_lshlrev_b32 v15, {FW}, v15
        s_lshl_b32 s53, s{S_X0}, 3
        s_add_u32 s53, s53, s{S_J}
        s_lshl_b32 s53, s53, 15
        s_add_u32 s53, s53, {WS_P}
        s_add_u32 s54, s53, 16384
        v_lshlrev_b32 v13, 4, v0
        s_bfe_u32 s66, s{S_X0}, 0x10003
        s_lshl_b32 s66, s66, 3
        s_add_u32 s66, s66, s{S_J}
        s_lshl_b32 s66, s66, 16
        s_lshr_b32 s7, s{S_X0}, 4
        s_lshl_b32 s7, s7, 11
        s_add_u32 s66, s66, s7
        s_and_b32 s7, s{S_X0}, 7
        s_lshl_b32 s7, s7, 8
        s_add_u32 s66, s66, s7
        v_and_b32 v14, 15, v0
        v_lshlrev_b32 v14, 12, v14
        v_lshrrev_b32 v16, 4, v0
        v_lshl_add_u32 v14, v16, 4, v14""")
        srd(a, SRD0, P_OUT, 0x100000)
    def reduce(c, tag):
        if int(pollfirst):
            a(f"s_cmp_eq_u32 s{S_WAVE}, 0\ns_cbranch_scc1 L_{tag}red_0")
            flag_store(c, S_X0 + 1)
            a(f"s_branch L_{tag}red_x")
            a.label(f"L_{tag}red_0")
            a(look(12, 15, 64, 8))
            flag_store(c, S_X0 + 1)
            a(f"s_lshr_b32 s7, s{S_J}, 1\ns_cmp_eq_u32 s7, 0\ns_cselect_b32 s7, s{S_J}, 8\ns_lshl_b32 s7, s7, {FW}")
            a(f"v_cmp_ne_u32 s[48:49], s7, v15\ns_waitcnt vmcnt(1)\nv_cmp_ne_u32 vcc, 1, v12\ns_and_b64 vcc, vcc, s[48:49]\ns_cbranch_vccz L_{tag}red_x")
        else:
            flag_store(c, S_X0 + 1)
            if int(fack): a("s_waitcnt vmcnt(0)"); stamp(c, 9)
            if int(onepoll): a(f"s_cmp_lg_u32 s{S_WAVE}, 0\ns_cbranch_scc1 L_{tag}red_x")
        poll(c, tag + "red", 64, 8, 1, 15)
        if stamps == 1: a(f"s_sub_u32 s78, {SPIN}, s68\ns_mul_i32 s78, s78, 100\ns_add_u32 s78, s78, s70")
        if int(onepoll): a("s_barrier")
        stamp(c, 16); stamp(c, 17, 10)
        for j in range(8):
            a(f"buffer_load_dwordx4 {vr(V_F+4*j)}, v13, {sr(SRDW)}, s{53+(j>>2)} offen {pfl}")
            if j & 3 < 3: a(f"s_add_u32 s{53+(j>>2)}, s{53+(j>>2)}, 4096")
        acc = V_S
        for j in range(8):
            a(f"s_waitcnt vmcnt({7-j})")
            d = acc if j == 0 else acc + 8
            for k in range(4):
                a(f"v_lshlrev_b32 v{d+2*k}, 16, v{V_F+4*j+k}\nv_and_b32 v{d+2*k+1}, 0xffff0000, v{V_F+4*j+k}")
            if j:
                for k in range(4): a(f"v_pk_add_f32 {vr(acc+2*k,2)}, {vr(acc+2*k,2)}, {vr(d+2*k,2)}")
        for k in range(4): a(f"v_cvt_pk_bf16_f32 v{acc+16+k}, v{acc+2*k}, v{acc+2*k+1}")
        a(f"buffer_store_dwordx4 {vr(acc+16)}, v14, {sr(SRD0)}, s66 offen {outfl}")
        a("s_branch L_red" if stamps else "s_endpgm")
    def early_poll(c):
        a(look(12, V_PA, S_X0 + 3, 4)); c.vm.issue("ep")
    def freed(c, held, first=2):
        for g in held: c.st.release(g)
        c.st.open("wo1", 7); c.st.open("wo1")
        while c.st.issued.get(f"wo{first-1}", 0) < 8: c.st.pump(1, False)
        c.st.pump(int(n_wpre), False)

    def oproj(c, X, tag, words, sbase, wsl=(0, 1, 2, 3), first=2):
        st = c.st
        stamp(c, 10); stamp(c, 11, 10)
        items = sorted([(w, i, s_) for w in range(4) for i in range(4) for s_ in range(2)], key=lambda it: it[1] >= first)
        todo = list(items)
        def fetch():
            if not todo: return
            w, i, s_ = todo.pop(0)
            if i in (0, first) and s_ == 0:
                a(f"s_add_u32 s7, s{S_U}, {w}\ns_and_b32 s7, s7, 3\ns_lshl_b32 s7, s7, 13\ns_add_u32 s7, s7, s{S_X0+4}")
                a(f"s_add_u32 s56, s59, s7\ns_xor_b32 s57, s59, 4096\ns_add_u32 s57, s57, s7")
            a(f"buffer_load_dwordx4 {ar(32*w+8*i+4*s_)}, v{V_L16}, {sr(SRDW)}, s{56+(i>>1)} offen offset:{1024*(2*(i&1)+s_)} {ofl}")
            c.vm.issue(f"of{w}_{i}_{s_}")
        def publish(drain=False):
            a("s_barrier")
            lab = f"L_{tag}pub{next(uid)}"
            a(f"s_cmp_lg_u32 s{S_WAVE}, 0\ns_cbranch_scc1 {lab}")
            q = list(c.vm.q)
            for so, nl in words: flag_store(c, so, nl)
            if drain: a(f"s_waitcnt vmcnt({len(words)})\ns_branch {lab}_j")
            a.label(lab)
            if drain:
                a("s_waitcnt vmcnt(0)"); a.label(lab + "_j"); q = []
            c.vm.q = q
        ops = [it + (T,) for grp in tsplit.split(",") for it in items for T in map(int, grp)]
        cut = next(n for n, op in enumerate(ops) if op[1] >= first) - 4
        done = {max(n for n, op in enumerate(ops) if op[3] == T): T for T in range(4)}
        out = []
        def emit_tile(T):
            return ([f"v_cvt_pk_bf16_f32 v{V_S+64+8*T+k}, v{V_S+16*T+2*k}, v{V_S+16*T+2*k+1}" for k in range(8)]
                    + [f"buffer_store_dwordx4 {vr(V_S+64+4*p)}, v10, {sr(SRDW)}, s58 offen offset:{512*p} sc1" for p in (2 * T, 2 * T + 1)])
        def fill(n):
            if n - 4 in done: out.extend(emit_tile(done.pop(n - 4)))
            for _ in range(2):
                if out: a(out.pop(0))
        seen = set()
        def bf(w, i, s_):
            if (w, i, s_) not in seen:
                seen.add((w, i, s_))
                if f"of{w}_{i}_{s_}" in c.vm.q: c.vm.wait(f"of{w}_{i}_{s_}")
                fetch(); st.pump(2 if len(seen) <= n_w2 else (2 if first == 1 else 1), False)
            return ar(32 * w + 8 * i + 4 * s_)
        if "ep" in c.vm.q: c.vm.wait("ep")
        a(f"v_cmp_ne_u32 vcc, 1, v12\ns_cbranch_vccz L_{tag}early")
        main = a.lines; a.lines = []
        a.label(f"L_{tag}early")
        save = (list(c.vm.q), list(todo), list(st.q), dict(st.busy), set(st.landed), dict(st.issued), st.m0_dirty)
        for _ in range(n_look): fetch()
        c.vm.wait("ost"); st._sync(); assert f"wo{first-1}" in st.landed
        stamp(c, 11); stamp(c, 12, 10)
        publish()
        stamp(c, 12)
        a.label(f"L_{tag}ready")
        qr = list(c.vm.q)
        stamp(c, sbase); stamp(c, 14, 10); cyc(c, 17, True)
        w_ops(a, ops, bf, hi=cut, smap=wsl)
        st.pump(throttle=False); st.need("wo3", fill=False)
        qa, todoa = list(c.vm.q), list(todo)
        def finish(ops_, lo, **kw):
            dn = {max(n for n, op in enumerate(ops_) if op[3] == T): T for T in range(4)}
            done.clear(); done.update(dn); out.clear()
            w_ops(a, ops_, lo=lo, fill=fill, smap=wsl, **kw)
            cyc(c, 17, False); stamp(c, 18); stamp(c, 15, 10)
            for n in sorted(done): out.extend(emit_tile(done[n]))
            for l in out: a(l)
        if int(dyn):
            a("s_barrier")
            finish(ops, cut, bfrag=bf)
            a(f"s_branch L_{tag}fin")
        else:
            a(f"s_branch L_{tag}go")
        side = a.lines; a.lines = main
        c.vm.q, todo[:], st.q, st.busy, st.landed, st.issued, st.m0_dirty = save
        seen.clear()
        early_poll(c)
        c.vm.wait("ost")
        stamp(c, 11); stamp(c, 12, 10)
        publish(drain=True)
        stamp(c, 12)
        a(f"v_cmp_ne_u32 vcc, 1, v12\ns_cbranch_vccz L_{tag}second")
        t0 = list(todo)
        a.lines = side
        a.label(f"L_{tag}second")
        for _ in range(n_look): fetch()
        assert c.vm.q == qr
        a(f"s_branch L_{tag}ready")
        a.lines = main
        c.vm.q = []; todo[:] = t0
        st.pump(throttle=False)
        if int(dyn):
            a("s_waitcnt vmcnt(0)\ns_barrier")
            a(f"s_mov_b32 s68, {SPIN}")
            a.label(f"L_{tag}any")
            a(look(12, V_PA, S_X0 + 3, 4))
            a(f"s_waitcnt vmcnt(0)\nv_cmp_eq_u32 vcc, 1, v12\ns_and_b32 s48, vcc_lo, 15\ns_cbranch_scc1 L_{tag}any_x")
            a(f"s_sub_u32 s68, s68, 1\ns_cbranch_scc0 L_{tag}any\ns_mov_b32 s48, 15")
            a.label(f"L_{tag}any_x")
            stamp(c, sbase); stamp(c, 14, 10); cyc(c, 17, True)
            a("s_bcnt1_i32_b32 s49, s48\ns_xor_b32 s5, s48, 15\ns_lshl_b32 s5, s5, 4\ns_or_b32 s48, s48, s5")
            for p in range(4): a(f"s_ff1_i32_b32 s7, s48\ns_bitset0_b32 s48, s7\ns_and_b32 s{60+p}, s7, 3")
            def loads(p):
                a(f"s_lshl_b32 s7, s{60+p}, 13\ns_add_u32 s7, s7, s{S_X0+4}\ns_add_u32 s56, s59, s7\ns_xor_b32 s57, s59, 4096\ns_add_u32 s57, s57, s7")
                for i in range(4):
                    for s_ in range(2):
                        a(f"buffer_load_dwordx4 {ar(32*p+8*i+4*s_)}, v{V_L16}, {sr(SRDW)}, s{56+(i>>1)} offen offset:{1024*(2*(i&1)+s_)} {ofl}")
            for p in range(4):
                if p: a(f"s_cmp_gt_u32 s49, {p}\ns_cbranch_scc0 L_{tag}ld_x")
                loads(p)
            a.label(f"L_{tag}ld_x")
            SETS = (V_TW + 4, 104)
            def enter(p):
                if p: a(f"s_mov_b32 s68, {SPIN}\ns_cmp_gt_u32 s49, {p}\ns_cbranch_scc0 L_{tag}def{p}")
                for m in range(4, p, -1):
                    a(f"s_waitcnt vmcnt({8*(m-p-1)})")
                    if m > p + 1: a(f"s_cmp_ge_u32 s49, {m}\ns_cbranch_scc1 L_{tag}in{p}")
                if p:
                    a(f"s_branch L_{tag}in{p}")
                    a.label(f"L_{tag}def{p}")
                    a(look(12, V_PA, S_X0 + 3, 4))
                    a(f"s_waitcnt vmcnt(0)\nv_cmp_eq_u32 vcc, 1, v12\ns_bitcmp1_b32 vcc_lo, s{60+p}\ns_cbranch_scc1 L_{tag}got{p}")
                    a(f"s_sub_u32 s68, s68, 1\ns_cbranch_scc0 L_{tag}def{p}")
                    a.label(f"L_{tag}got{p}")
                    if p == 3: stamp(c, 9)
                    loads(p)
                    a("s_waitcnt vmcnt(0)")
                a.label(f"L_{tag}in{p}")
                a(f"s_sub_u32 s7, s{60+p}, s{S_U}\ns_and_b32 s7, s7, 3\ns_lshl_b32 s7, s7, 15")
                for T in range(4): a(f"v_add_u32 v{SETS[p&1]+T}, s7, v{V_TW+T}")
            dops = [(p, i, s_, T) for p in range(3) for i in range(4) for s_ in range(2) for T in range(4)]
            dops += [(3, i, s_, T) for grp in tsplit.split(",") for i in range(4) for s_ in range(2) for T in map(int, grp)]
            enter(0)
            finish(dops, 0, bfrag=lambda p, i, s_: ar(32 * p + 8 * i + 4 * s_), sets=SETS,
                   at={32 * p - 4: (lambda p: lambda: enter(p))(p) for p in (1, 2, 3)})
            a.label(f"L_{tag}fin")
        else:
            poll(c, tag + "o", S_X0 + 3, 4, 1, V_PA)
            stamp(c, sbase); stamp(c, 14, 10); cyc(c, 17, True)
            for _ in range(n_look): fetch()
            w_ops(a, ops, bf, hi=cut, smap=wsl)
            assert todo == todoa and c.vm.q[len(c.vm.q)-len(qa):] == qa, (c.vm.q, qa)
            a.label(f"L_{tag}go")
            a("s_barrier")
            finish(ops, cut, bfrag=bf)
        stamp(c, sbase + 1)
        c.vm.wait_all()
        stamp(c, sbase + 2); stamp(c, 16, 10)
        reduce(c, tag)
        a.lines += side

    c2 = mk()
    if qpf:
        a(f"""s_and_b32 s60, s{S_U}, 7
        s_lshl_b32 s60, s60, 2
        s_add_u32 s60, s60, s{S_WAVE}          ; 0..31
        s_lshr_b32 s61, s{S_U}, 3              ; h
        v_lshrrev_b32 v40, 3, v{V_LANE}
        v_and_b32 v41, 7, v{V_LANE}
        v_lshlrev_b32 v41, 7, v41
        v_lshl_add_u32 v40, v40, 13, v41
        v_lshrrev_b32 v41, 1, v{V_LANE}
        v_and_b32 v42, 1, v{V_LANE}
        v_lshlrev_b32 v42, 7, v42
        v_lshl_add_u32 v41, v41, 11, v42       ; 32 rows x 256 B
        s_and_b32 s62, s60, 15
        s_lshl_b32 s62, s62, 16
        s_lshl_b32 s7, s61, 20
        s_add_u32 s62, s62, s7
        s_lshl_b32 s7, s{S_J}, 10
        s_add_u32 s62, s62, s7                 ; Wq offset of k-tile h
        s_and_b32 s63, s60, 7
        s_lshl_b32 s63, s63, 16
        s_lshr_b32 s7, s60, 4
        s_lshl_b32 s7, s7, 8
        s_add_u32 s63, s63, s7
        s_lshl_b32 s7, s61, 9
        s_add_u32 s63, s63, s7                 ; x offset of k-tile 2h + (0|1)
        s_waitcnt lgkmcnt(0)
        s_bitcmp1_b32 s60, 4
        s_cselect_b32 s12, s{P_BWQ}, s{P_AWQ}
        s_cselect_b32 s13, s{P_BWQ+1}, s{P_AWQ+1}
        s_mov_b32 s14, 0x800000
        s_mov_b32 s15, 0x20000
        s_bitcmp1_b32 s60, 3
        s_cselect_b32 s{SRDT}, s{P_BX}, s{P_AX}
        s_cselect_b32 s{SRDT+1}, s{P_BX+1}, s{P_AX+1}
        s_mov_b32 s{SRDT+2}, 0x80000
        s_mov_b32 s{SRDT+3}, 0x20000""")
        for n, kind in enumerate("xWWxWW"):
            if qpf[n] == "1":
                if kind == "x": a(f"buffer_load_dword v43, v41, {sr(SRDT)}, s63 offen")
                else: a("buffer_load_dword v43, v40, s[12:15], s62 offen")
                c2.vm.issue("pf")
                if int(qthr): a(f"s_waitcnt vmcnt({int(qthr)-1})")
            a("s_add_u32 s63, s63, 1024" if kind == "x" else f"s_add_u32 s62, s62, {2<<20}")
    add_kv(c2, n_g2k, n_g2v, True)
    if stamps == 9: c2.st.run_pre("k0"); a("s_memrealtime s[62:63]")
    c2.st.pump(n_g2k[0])
    if stamps == 9:
        a(f"s_memrealtime s[64:65]\ns_waitcnt vmcnt({n_g2k[0]-1})\ns_memrealtime s[66:67]\ns_waitcnt vmcnt(0)\ns_memrealtime s[68:69]\ns_waitcnt lgkmcnt(0)")
        a("s_mov_b32 s92, s62\ns_mov_b32 s93, s64\ns_mov_b32 s94, s66\ns_mov_b32 s95, s68")
    a("s_branch L_g2")
    a.label("L_g1")
    c = mk(); st = c.st
    if int(nog1):
        global SPIN; SPIN = 4
        a("s_waitcnt lgkmcnt(0)"); common(); fp_word(); a("s_branch L_red")
    set_kd(a, 2048)
    if int(xmap):
        a(f"""s_and_b32 s{S_X0+5}, s{S_J}, 1            ; X
        s_bfe_u32 s{S_X0+6}, s{S_U}, 0x20001      ; p
        s_lshr_b32 s{S_X0+7}, s{S_U}, 3           ; r
        s_lshl_b32 s{S_X0+8}, s{S_X0+7}, 2
        s_add_u32 s{S_X0+8}, s{S_X0+8}, s{S_WAVE}   ; batch
        s_lshl_b32 s{S_A+3}, s{S_X0+8}, 16
        s_lshr_b32 s7, s{S_J}, 1
        s_lshl_b32 s7, s7, 3
        s_and_b32 s{S_X0+9}, s{S_U}, 7
        s_add_u32 s{S_X0+9}, s{S_X0+9}, s7          ; head
        s_xor_b32 s{S_X0+7}, s{S_X0+7}, s{S_U}
        s_and_b32 s{S_X0+7}, s{S_X0+7}, 1           ; r ^ (u & 1)""")
    else:
        a(f"""s_lshr_b32 s{S_X0+5}, s{S_U}, 3           ; X
        s_and_b32 s{S_X0+6}, s{S_U}, 3            ; hh
        s_bfe_u32 s{S_X0+7}, s{S_U}, 0x10002      ; r
        s_lshl_b32 s{S_X0+8}, s{S_X0+7}, 2
        s_add_u32 s{S_X0+8}, s{S_X0+8}, s{S_WAVE}   ; batch
        s_lshl_b32 s{S_A+3}, s{S_X0+8}, 16
        s_lshl_b32 s7, s{S_J}, 2
        s_add_u32 s{S_X0+9}, s{S_X0+6}, s7          ; head""")
    def sigma(i, S, sh):
        a(f"s_add_u32 s7, s{S_X0+6}, {i>>1}\ns_and_b32 s7, s7, 3\ns_lshl_b32 s7, s7, 1\ns_add_u32 s7, s7, s{S_X0+7}")
        if i & 1: a("s_xor_b32 s7, s7, 1")
        a(f"s_lshl_b32 s7, s7, {sh}\ns_add_u32 s{S}, s{S+3}, s7")
    assert int(rotq) == 2
    if int(rotq) == 2: sigma(0, S_A, 8)
    a("s_waitcnt lgkmcnt(0)")
    srd_sel(a, SRD0, S_X0 + 5, P_AX, P_BX, 0x80000)
    a(f"s_lshl_b32 s{S_SCR}, s{S_WAVE}, 13\ns_add_u32 s{S_SCR}, s{S_SCR}, {LDS_SCR}")
    def prewq():
        set_vd(a, 8192)
        srd_sel(a, SRD1, S_X0 + 5, P_AWQ, P_BWQ, 0x800000)
        a(f"s_lshl_b32 s{S_B+3}, s{S_X0+9}, 8\ns_lshl_b32 s7, s{S_WAVE}, 18\ns_add_u32 s{S_B+3}, s{S_B+3}, s7")
        sigma(0, S_B, 20)
    for g in ["x0", "w0", "w1"] + [g for t in range(1, 7) for g in (f"x{t}", f"w{t+1}")] + ["x7"]:
        t = int(g[1])
        nx = (lambda t, S, sh: (lambda: sigma(t + 1, S, sh) if t < 7 else None)) if int(rotq) == 2 else (lambda *_: None)
        if g[0] == "x": st.add(g, 4, SRD0, S_A, 256, V_KD, 2048, fl_x, n_x[t], wrap=2048, nxt=nx(t, S_A, 8))
        else: st.add(g, t & 3, SRD1, S_B, 1 << 20, V_VD, 8192, fl_wq, n_wq[t], pre=prewq if t == 0 else None, wrap=8 << 20, nxt=nx(t, S_B, 20))
    st.pump(8)
    common()
    a(f"""s_lshl_b32 s{S_X0+3}, s{S_X0+5}, 3
    s_add_u32 s{S_X0+3}, s{S_X0+3}, s{S_X0+8}
    s_lshl_b32 s{S_X0+3}, s{S_X0+3}, 5
    s_add_u32 s{S_X0+3}, s{S_X0+3}, s{S_X0+9}
    s_lshl_b32 s{S_X0+4}, s{S_X0+3}, 6
    s_add_u32 s{S_X0+4}, s{S_X0+4}, {WS_FQ}
    s_lshl_b32 s{S_X0+3}, s{S_X0+3}, 13""")
    fp_word()
    clear_flags(c, [(S_X0 + 4, 4, 11), (S_FOB, 1, 2), (S_X0 + 1, 4, FS)], "g1clear")
    add_kv(c, n_g1k, n_g1v, False)
    add_wo(c, 1)
    set_kr(a, S_SCR); set_tr(a)
    if pf & 2: code_touch(a, "L_g1pf_x", "L_g2", 32768, 4, "g1pf")
    early = [n_early]
    def gated_pump(throttle):
        if st.can() and st.q[0][0][0] == "k":
            if early[0] <= 0: return
            early[0] -= 1
        st.pump(1, throttle)
    def wpre(t):
        def f():
            st.need(f"x{t}", fill=(t < 6))
            for s in range(8): a(f"ds_read_b128 {ar(32*t+4*s)}, v{V_KR+s}")
            if t == 0: stamp(c, 1)
            st.need(f"w{t}", fill=(t < 6))
            if t == 0: count_in(c, "g1count")
            stamp(c, 3 + 2 * t, 3)
            a("s_barrier")
            stamp(c, 4 + 2 * t, 3)
            if t == 3: stamp(c, 3, 7); cyc(c, 5, True, 7)
            if t == 6: stamp(c, 4, 7); cyc(c, 5, False, 7)
            if prew:
                if t == 0: prew_setup(c); prew_o(c, S_OB)
                if t < 4: prew_part(c, 2 * t); prew_part(c, 2 * t + 1)
            if t: st.release(f"w{t-1}")
            if t == 7:
                assert st.issued["x7"] == 8
                st.run_pre("k0")
        return f
    ops = [(w, t & 3, s, T, t) for t in range(7) for w in range(4) for s in range(2) for T in range(4)]
    ops += [(w, 3, s, T, 7) for grp in qsplit.split(",") for w in range(4) for s in range(2) for T in map(int, grp)]
    done = {max(n for n, op in enumerate(ops) if op[3] == T): T for T in range(4)}
    out = []
    def q_tile(T):
        return ([f"v_pk_mul_f32 {vr(V_S+16*T+i,2)}, {vr(V_S+16*T+i,2)}, s[{S_C}:{S_C+1}] op_sel_hi:[1,0]" for i in range(0, 16, 2)]
                + [f"v_cvt_pk_bf16_f32 v{V_S+64+8*T+k}, v{V_S+16*T+2*k}, v{V_S+16*T+2*k+1}" for k in range(8)]
                + [f"buffer_store_dwordx4 {vr(V_S+64+4*s)}, v{V_L16}, {sr(SRDW)}, s{S_X0+2 if s>=4 else S_X0+3} offen offset:{1024*(s&3)} sc1" for s in (2 * T, 2 * T + 1)])
    def q_fill(n):
        if n - 4 in done: out.extend(q_tile(done.pop(n - 4)))
        for _ in range(3):
            if out: a(out.pop(0))
    a(f"s_add_u32 s{S_X0+2}, s{S_X0+3}, 4096")
    wpre(0)()
    w_ops(a, ops, lambda w, slot, s, t: ar(32 * t + 4 * (2 * w + s)), fill=q_fill,
          before={32 * t - 4: (lambda t: lambda: (a("s_waitcnt lgkmcnt(0)"), wpre(t)()))(t) for t in range(1, 8)},
          waited={32 * i: (lambda i: lambda: (st.release(f"x{i}"), set_kr(a) if i == 7 else None))(i) for i in range(8)},
          behind=lambda n: (gated_pump(True), gated_pump(True)) if n % 4 == 0 and n < 32 * 7 + 16 else None)
    for n in sorted(done): out.extend(q_tile(done[n]))
    for l in out: a(l)
    c.vm.issue("qst", 8)
    st.pump(3, throttle=False)
    c.vm.wait("qst"); st._sync()
    flag_store(c, S_X0 + 4)
    a("s_barrier"); st.release("w7")
    stamp(c, 2)
    if int(lag):
        a(f"s_and_b32 s7, s{S_U}, 3\ns_cmp_eq_u32 s7, 1\ns_cselect_b32 s{S_X0+5}, 1, 0"); st.lag = S_X0 + 5
    mha1(c)
    oproj(c, 1, "g1", [(S_FOB, 1)], 13, first=int(g1first))

    a.label("L_g2")
    c = c2; st = c.st
    common()
    if stamps == 9: a("s_mov_b32 s73, s92\ns_mov_b32 s74, s93\ns_mov_b32 s75, s94\ns_mov_b32 s76, s95"); stamp(c, 7, 9)
    a(f"""s_lshl_b32 s{S_X0+5}, s{S_U}, 1
    s_lshl_b32 s{S_X0+6}, s{S_J}, 5
    s_add_u32 s{S_X0+6}, s{S_X0+6}, s{S_X0+5}   ; b*32+h
    s_lshl_b32 s{S_X0+7}, s{S_X0+6}, 6
    s_add_u32 s{S_X0+7}, s{S_X0+7}, {WS_FQ}     ; Q flag
    s_lshl_b32 s{S_X0+6}, s{S_X0+6}, 13         ; Q offset (O = +WS_O)
    s_lshl_b32 s{S_X0+8}, s{S_J}, 3
    s_lshr_b32 s7, s{S_U}, 1
    s_add_u32 s{S_X0+8}, s{S_X0+8}, s7
    s_lshl_b32 s{S_X0+8}, s{S_X0+8}, {FS}
    s_and_b32 s7, s{S_U}, 1
    s_lshl_b32 s7, s7, {FW+1}
    s_add_u32 s{S_X0+8}, s{S_X0+8}, s7
    s_add_u32 s{S_X0+8}, s{S_X0+8}, {WS_FO}     ; O flags (two words)
    s_add_u32 s{S_X0+9}, s{S_X0+8}, 4""")
    def kva_off(S):
        a(f"s_lshl_b32 s{S+3}, s{S_J}, 2\ns_lshr_b32 s7, s{S_U}, 2\ns_add_u32 s{S+3}, s{S+3}, s7\ns_lshl_b32 s{S+3}, s{S+3}, 18")
        a(f"s_lshl_b32 s7, s{S_WAVE}, {WSH}\ns_add_u32 s{S+3}, s{S+3}, s7")
        a(f"s_and_b32 s{S+2}, s{S_U}, {3 if rot else 0}\ns_lshl_b32 s{S+2}, s{S+2}, {15 if int(rota) == 2 else 16}\ns_add_u32 s{S}, s{S+3}, s{S+2}")
    def half2(S): return lambda: a(f"s_add_u32 s{S+3}, s{S+3}, 131072\ns_add_u32 s{S}, s{S}, 131072")
    wra = 131072 if int(rota) == 2 else 262144
    five = int(five)
    ASL = [n % 5 if five else n & 3 for n in range(16)]
    WSL2 = [1, 2, 3, 0] if five else [0, 1, 2, 3]
    a(f"s_lshl_b32 s{S_SCR}, s{S_WAVE}, 13\ns_add_u32 s{S_SCR}, s{S_SCR}, {LDS_SCR}")
    def preka(): srd(a, SRD0, P_AK, 0x800000); kva_off(S_A)
    def preva(): srd(a, SRD1, P_AV, 0x800000); kva_off(S_B)
    fp_word()
    clear_flags(c, [(S_FOB, 1, 2), (S_X0 + 8, 2, FW), (S_X0 + 1, 4, FS)], "g2clear")
    for t in range(8): st.add(f"ka{t}", ASL[t], SRD0, S_A, 32768, V_KD, 256, fl_kva, n_kva[t], pre=preka if t == 0 else half2(S_A) if t == 4 and int(rota) == 2 else None, wrap=wra, ps=PS)
    for t in range(8): st.add(f"va{t}", ASL[8 + t], SRD1, S_B, 32768, V_VD, 256, fl_kva, n_vva[t], single=not PS, pre=preva if t == 0 else half2(S_B) if t == 4 and int(rota) == 2 else None, wrap=wra, ps=PS)
    add_wo(c, 0, WSL2)
    set_kr(a); set_tr(a)
    if pf & 4: code_touch(a, "L_g2pf_x", "L_end", 32768, 4, "g2pf")
    if int(tlb):
        a(f"s_cmp_lg_u32 s{S_WAVE}, 2\ns_cbranch_scc1 L_tlb_x")
        a(f"v_lshlrev_b32 v{V_F+29}, 20, v{V_LANE}")
        for p, n in ((P_AWO, 8), (P_BWO, 8), (P_AK, 8), (P_AV, 8), (P_OUT, 1), (P_WS, 24)):
            srd(a, SRDT, p, n << 20)
            a(f"buffer_load_dword v{V_T0}, v{V_F+29}, {sr(SRDT)}, 0 offen")
        a.label("L_tlb_x")
    def qa_hook(t):
        if t == 1: ck_issue(c, "ws", (S_X0 + 7, 2, 6))
        if t == 3:
            ck_verify(c, "g2qa")
            q_dma(c, S_X0 + 6, 0, "qa")
            a(f"s_add_u32 s{S_X0+7}, s{S_X0+6}, 8192")
            q_dma(c, S_X0 + 7, 2048, "qa")
        if t == 7:
            if "qa" in c.vm.q: c.vm.wait("qa")
            st._sync()
            a("s_barrier")
            q_read(c, 0, lambda s: vr(V_Q + 4 * s)); a("s_waitcnt lgkmcnt(4)")
            q_read(c, 2048, lambda s: ar(A_Q1 + 4 * s))
            a("s_waitcnt lgkmcnt(0)\ns_barrier")
    mha2(c, qa_hook)
    st.release("v7")
    if kvpf & 2: touch(c, P_AV, 0x800000, KVA_BASE, 32768, 256, fl_kva)
    stamp(c, 5)
    if pf & 1: code_touch(a, "L_g2tail2", "L_end", 16384, 2, "g2pf2")
    def wo_gap(t):
        if t >= g2w[0]: st.open("wo0")
        if t >= g2w[1]: st.open("wo1")
        if st.issued.get("wo1", 0) == 7 and not getattr(c, "gap_done", False):
            c.gap_done = True
            a(f"buffer_load_dword v{V_T0}, v{V_VD+3}, {sr(SRD1)}, s{S_B+1} offen offset:3072 {fl_wo}")
            c.vm.issue("pf")
    st.gate("va1"); st.gate("wo1", 7)
    g2w = [int(x) for x in str(g2wo).split(",")]
    st.gate("wo0"); st.gate("wo1")
    a(f"s_sub_u32 s{S_DLT}, s{S_SCR}, s{S_RING}")
    def khook(t):
        if t == va1 - 1: st.open("va1")
        if int(earlyb) and t == int(earlyb):
            if "ost" in c.vm.q: c.vm.wait("ost")
            a(f"s_barrier\ns_cmp_lg_u32 s{S_WAVE}, 0\ns_cbranch_scc1 L_g2eb")
            q = list(c.vm.q)
            a(f"v_mov_b32 v{V_T0}, 1\nv_mov_b32 v{V_CA}, 0\ns_mov_b64 exec, 1")
            a(f"buffer_store_dword v{V_T0}, v{V_CA}, {sr(SRDW)}, s{S_FOB} offen sc1\ns_mov_b64 exec, -1")
            a.label("L_g2eb"); c.vm.q = q
    gqa_k(c, [f"ka{t}" for t in range(8)], ASL[:8], khook)
    st.open("va1"); st.pump(8 if va1 == 8 else 0, False)
    stamp(c, 6)
    a.label("L_gv")
    if kvpf & 4: touch(c, P_AWO, 0x800000, WO_BASE.replace(f"v{V_CA}", f"v{V_CA}"), 65536, 2048, fl_wo)
    heads = [dict(acc=lambda B: ar(A_O + 16 * B, 16), L=A_L, M=V_M, slot=WSL2[3], b3=("scr", 0), st=(WSL2[1], 7168), dst=S_X0 + 6),
             dict(acc=o1, L=A_L1, M=V_M1, slot=WSL2[2], b3=("scr", 4096), st=(WSL2[1], 7168 + 8), dst=S_X0 + 7)]
    held = ("va5", "va6", "va7") if five else ("va6", "va7")
    epi = Epi(c, heads, t=V_P1, sv=(2, 4)) if int(ovl) else None
    gqa_v(c, [f"va{t}" for t in range(8)], ASL[8:], hold=held, hook=wo_gap,
          last=(lambda n: [epi.do(x) for x in {-1: ["addr"], 0: ["stats"], 1: [1], 2: [2], 3: [3]}[n]]) if epi else None)
    stamp(c, 7)
    a.label("L_g2tail2")
    a(f"s_add_u32 s{S_X0+6}, s{S_X0+6}, {WS_O}\ns_add_u32 s{S_X0+7}, s{S_X0+7}, {WS_O}")
    o_epi(c, heads, epi=epi,
          idle=lambda: tail_setup(c, 0), mid=lambda: (early_poll(c), st.pump(8, False), wo_gap(9)), freed=lambda: freed(c, held, int(g2first)))
    oproj(c, 0, "g2", [(S_X0 + 8, 2)] + ([] if int(earlyb) else [(S_FOB, 1)]), 13, WSL2, first=int(g2first))

    a.label("L_red")
    c = mk()
    if stamps:
        a("s_waitcnt vmcnt(0)"); stamp(c, 19)
        if leak:
            n1, n0, lw = (int(x) for x in leak.split(","))
            a(f"s_cmp_lg_u32 s2, {lw}\ns_cbranch_scc1 L_leak_x\ns_cmp_lg_u32 s3, 0\ns_cbranch_scc1 L_leak_x")
            a(f"s_sub_u32 s7, s{70+n1}, s{70+n0}\ns_min_u32 s7, s7, 10000\ns_mul_i32 s7, s7, 10\ns_add_u32 s7, s7, s89")
            a.label("L_leak")
            a("s_memrealtime s[42:43]\ns_waitcnt lgkmcnt(0)\ns_sub_u32 s5, s42, s7\ns_cmp_lt_i32 s5, 0\ns_cbranch_scc1 L_leak")
            a.label("L_leak_x")
        if stamps == 4: a("s_getreg_b32 s88, hwreg(HW_REG_HW_ID)\ns_bfe_u32 s88, s88, 0x80008\ns_mul_i32 s88, s88, 100\ns_add_u32 s88, s88, s70")
        a(f"s_lshl_b32 s7, s2, 2\ns_add_u32 s7, s7, s{S_WAVE}\ns_lshl_b32 s7, s7, 7\ns_add_u32 s7, s7, {WS_ST}")
        for n in range(20): a(f"v_mov_b32 v{V_S+n}, s{70+n}")
        a(f"v_mov_b32 v{V_T0}, 0\ns_mov_b64 exec, 1")
        for q in range(5): a(f"buffer_store_dwordx4 {vr(V_S+4*q)}, v{V_T0}, {sr(SRDW)}, s7 offen offset:{16*q}")
    a.label("L_end"); a("s_endpgm")
    if "L" in hack: a.lines = [l for l in a.lines if not (l.startswith("v_mfma") and f", {vr(V_ONE)}," in l)]
    if "E" in hack: a.lines = [l.replace("v_exp_f32", "v_mov_b32") for l in a.lines]
    def strip(l0, l1, pred):
        i0 = a.lines.index(l0); i1 = a.lines.index(l1)
        a.lines[i0:i1] = [l for l in a.lines[i0:i1] if not pred(l)]
    if "K" in hack: strip("L_g2pf2_x:", "L_gv:", lambda l: l.startswith("v_mfma"))
    if "V" in hack: strip("L_gv:", "L_g2tail2:", lambda l: l.startswith("v_mfma"))
    if "P" in hack: strip("L_g1pf3_x:", "L_g1tail:", lambda l: l.startswith("v_mfma"))
    if "R" in hack: strip("L_g2pf2_x:", "L_g2tail2:", lambda l: l.startswith("ds_read"))
    if "H" in hack: strip("L_gv:", "L_g2tail2:", lambda l: l.startswith("v_mfma_f32_32") and (l.split()[1].startswith("v[4") or l.split()[1].startswith("v[5") or l.split()[1].startswith("a[96") or l.split()[1].startswith("a[112")))
    if "M" in hack:
        i0 = a.lines.index("L_g2pf2_x:"); i1 = a.lines.index("L_g2tail2:")
        a.lines[i0:i1] = [l for n, l in enumerate(a.lines[i0:i1]) if not l.startswith("v_mfma")]
    s = header(["; @launch grid=(256,1,1) block=(256,1,1) lds=163840"])
    s += DOC + kernel_open(NAME + "_kernel") + a.finish() + "\n"
    s += '.section .rodata,"a"\n.p2align 6\n' + descriptor(NAME + "_kernel")
    return s

if __name__ == "__main__":
    out = sys.argv[1]
    kw = dict(x.split("=") for x in sys.argv[2:])
    open(out, "w").write(build(**kw))
```
